```python
import torch

def _softmax(x, axis=-1):
    return torch.softmax(x, dim=axis)
def _gelu(x):
    return torch.nn.functional.gelu(x, approximate="tanh")
def _silu(x):
    return torch.nn.functional.silu(x)
def _sigmoid(x):
    return torch.sigmoid(x)
def _layernorm(x, axis=-1, eps=1e-5):
    m = x.mean(dim=axis, keepdim=True)
    v = x.var(dim=axis, keepdim=True, unbiased=False)
    return (x - m) / torch.sqrt(v + eps)
def _scatter_add(tgt, idx, src, axis=0):
    return tgt.clone().index_add_(axis, idx, src)
def _segment_sum(src, seg, n):
    out = torch.zeros((n,) + src.shape[1:], dtype=src.dtype)
    return out.index_add_(0, seg, src)
def _pad(x, pw):
    flat = tuple(v for pair in reversed(pw) for v in pair)
    return torch.nn.functional.pad(x, flat)

kernel_name = 'concat_heads__mha_block__ssm_conv_s5__prompt'

def setup_inputs():

    _w = (lambda a: (lambda t: t.to(torch.bfloat16) if t.is_floating_point() else t)(torch.as_tensor(a)))
    def _A_setup():
        B, S, D, H = 1, 2048, 576, 32
        return {
            "x": _w((lambda *s: torch.randn(*s, dtype=torch.bfloat16) * 0.2)(B, S, D)),
            "wqkv": _w((lambda *s: torch.randn(*s, dtype=torch.bfloat16) * 0.2)(D, 3 * D)),
            "wo": _w((lambda *s: torch.randn(*s, dtype=torch.bfloat16) * 0.05)(D, D)),
        }
    _A_in = _A_setup()

    def _B_setup():
        B, S, D = 1, 2048, 576
        P = D
        Lambda_re = -0.5 * (lambda _x: torch.exp(torch.as_tensor(_x)))((lambda *s: torch.randn(*s, dtype=torch.bfloat16) * 0.8)(P))
        Lambda_im = (lambda *s: torch.randn(*s, dtype=torch.bfloat16) * 0.8)(P) * 1.0
        B_re = (lambda *s: torch.randn(*s, dtype=torch.bfloat16) * 0.8)(P, D) * (D ** -0.5)
        B_im = (lambda *s: torch.randn(*s, dtype=torch.bfloat16) * 0.8)(P, D) * (D ** -0.5)
        C_re = (lambda *s: torch.randn(*s, dtype=torch.bfloat16) * 0.8)(D, P) * (P ** -0.5)
        C_im = (lambda *s: torch.randn(*s, dtype=torch.bfloat16) * 0.8)(D, P) * (P ** -0.5)
        log_dt = (lambda *s: torch.randn(*s, dtype=torch.bfloat16) * 0.8)(P) * 0.3 - 2.0
        Dskip = (lambda *s: torch.randn(*s, dtype=torch.bfloat16) * 0.8)(D)
        return {
            "x": _w((lambda *s: torch.randn(*s, dtype=torch.bfloat16) * 0.05)(B, S, D)),
            "Lambda_re": _w(Lambda_re),
            "Lambda_im": _w(Lambda_im),
            "B_re": _w(B_re),
            "B_im": _w(B_im),
            "C_re": _w(C_re),
            "C_im": _w(C_im),
            "log_dt": _w(log_dt),
            "Dskip": _w(Dskip),
        }
    _B_in = _B_setup()

    return {
        "A_x": _A_in["x"],
        "A_wqkv": _A_in["wqkv"],
        "A_wo": _A_in["wo"],
        "B_x": _B_in["x"],
        "B_Lambda_re": _B_in["Lambda_re"],
        "B_Lambda_im": _B_in["Lambda_im"],
        "B_B_re": _B_in["B_re"],
        "B_B_im": _B_in["B_im"],
        "B_C_re": _B_in["C_re"],
        "B_C_im": _B_in["C_im"],
        "B_log_dt": _B_in["log_dt"],
        "B_Dskip": _B_in["Dskip"],
    }

def reference(A_x, A_wqkv, A_wo, B_x, B_Lambda_re, B_Lambda_im, B_B_re, B_B_im, B_C_re, B_C_im, B_log_dt, B_Dskip):
    def _A_ref(x, wqkv, wo):
        B, S, D = x.shape
        H = 32
        Dh = D // H
        qkv = (lambda x, *d: x.permute(*d))((x @ wqkv).reshape(B, S, 3, H, Dh), 2, 0, 3, 1, 4)
        q, k, v = qkv[0], qkv[1], qkv[2]
        scores = torch.einsum("bhqd,bhkd->bhqk", q, k) * (Dh ** -0.5)
        p = _softmax(scores, axis=-1)
        o = torch.einsum("bhqk,bhkd->bhqd", p, v)
        return (lambda x, *d: x.permute(*d))(o, 0, 2, 1, 3).reshape(B, S, D) @ wo

    def _B_ref(x, Lambda_re, Lambda_im, B_re, B_im, C_re, C_im, log_dt, Dskip):
        Bsz, L, H = x.shape
        Lam = Lambda_re + 1j * Lambda_im
        Bmat = B_re + 1j * B_im
        Cmat = C_re + 1j * C_im
        dt = torch.exp(log_dt)
        Lam_bar = torch.exp(dt * Lam)
        B_bar = ((Lam_bar - 1.0) / Lam)[:, None] * Bmat
        Bu = torch.einsum("bld,pd->blp", x + 0j, B_bar)
        h = torch.zeros_like(Bu[:, 0, :])
        hs = []
        for t in range(L):
            h = Lam_bar[None, :] * h + Bu[:, t, :]
            hs.append(h)
        hseq = torch.stack(hs, 1)
        y = 2.0 * torch.einsum("blp,dp->bld", hseq, Cmat).real + x * Dskip[None, None, :]
        return y

    a = _A_ref(A_x, A_wqkv, A_wo)
    b = _B_ref(B_x, B_Lambda_re, B_Lambda_im, B_B_re, B_B_im, B_C_re, B_C_im, B_log_dt, B_Dskip)
    return torch.concatenate([a, b], axis=-1)
```

```python
import re


class Asm:
    def __init__(self):
        self.lines = []

    def __call__(self, text):
        for ln in text.split("\n"):
            ln = ln.strip()
            if ln:
                self.lines.append(ln)
        return self

    def label(self, name):
        self.lines.append(name + ":")

    def comment(self, t):
        self.lines.append("; " + t)

    def text(self):
        out = []
        for ln in self.lines:
            if ln.endswith(":") or ln.startswith("."):
                out.append(ln)
            else:
                out.append("    " + ln)
        return "\n".join(out) + "\n"


def vr(a, n=1):
    return f"v{a}" if n == 1 else f"v[{a}:{a + n - 1}]"


def sr(a, n=1):
    return f"s{a}" if n == 1 else f"s[{a}:{a + n - 1}]"


_REG = re.compile(r"^-?\|?(?:abs\()?([vsa])(?:(\d+)|\[(\d+):(\d+)\])\)?\|?$")
TRANS = ("v_exp_", "v_log_", "v_rcp_", "v_rsq_", "v_sqrt_", "v_sin_", "v_cos_")


def regs_of(op):
    op = op.strip()
    if op == "vcc":
        return {("s", "vcc")}
    if op == "exec":
        return {("s", "exec")}
    if op == "m0":
        return {("s", "m0")}
    m = _REG.match(op)
    if not m:
        return set()
    k = m.group(1)
    if m.group(2) is not None:
        return {(k, int(m.group(2)))}
    return {(k, i) for i in range(int(m.group(3)), int(m.group(4)) + 1)}


def split_ops(rest):
    ops, depth, cur = [], 0, ""
    for ch in rest:
        if ch == "[":
            depth += 1
        if ch == "]":
            depth -= 1
        if ch == "," and depth == 0:
            ops.append(cur.strip())
            cur = ""
        else:
            cur += ch
    if cur.strip():
        ops.append(cur.strip())
    mods = ""
    if ops:
        parts = ops[-1].split(None, 1)
        ops[-1] = parts[0]
        mods = parts[1] if len(parts) > 1 else ""
    return ops, mods


class Ins:
    def __init__(self, line):
        self.line = line
        code = line.split(";")[0].strip()
        parts = code.split(None, 1)
        self.op = parts[0]
        ops, mods = split_ops(parts[1]) if len(parts) > 1 else ([], "")
        self.ops, self.mods = ops, mods
        self.w, self.r = set(), set()
        self.kind = "other"
        self.ws = 1
        self.srcc = set()
        self.srcab = set()
        self.passes = 0
        op = self.op
        R = [regs_of(o) for o in ops]
        if op == "s_nop":
            self.ws = int(ops[0], 0) + 1
        elif op.startswith("v_mfma"):
            self.kind = "mfma"
            self.w = R[0]
            self.srcab = R[1] | R[2]
            self.srcc = R[3]
            self.r = self.srcab | self.srcc
            self.passes = 8 if "32x32" in op else 4
        elif op.startswith("v_"):
            self.kind = "valu"
            if op.startswith("v_cmp"):
                self.w = R[0]
                self.r = set().union(*R[1:])
            elif op.startswith("v_permlane") and "swap" in op:
                self.w = R[0] | R[1]
                self.r = R[0] | R[1]
            elif "_co_" in op:
                self.w = R[0] | R[1]
                self.r = set().union(*R[2:])
            else:
                self.w = R[0]
                self.r = set().union(*R[1:]) if len(R) > 1 else set()
                if op.startswith(("v_fmac", "v_dot2c", "v_writelane")) or "UNUSED_PRESERVE" in mods:
                    self.r |= R[0]
                if op.startswith("v_cndmask") and len(ops) == 3:
                    self.r |= {("s", "vcc")}
        elif op.startswith("ds_"):
            self.kind = "ds"
            if op.startswith(("ds_read", "ds_bpermute", "ds_permute", "ds_swizzle")):
                self.w = R[0]
                self.r = set().union(*R[1:])
            else:
                self.r = set().union(*R)
        elif op.startswith(("buffer_", "global_")):
            self.kind = "vmem"
            self.lds = " lds" in (" " + mods) or "_lds_" in op
            if "load" in op and not self.lds:
                self.w = R[0]
                self.r = set().union(*R[1:])
            else:
                self.r = set().union(*R)
            self.store_data = set()
            if "store" in op and ("x4" in op or "x3" in op):
                self.store_data = R[0] if op.startswith("buffer_") else R[1]
        elif op.startswith("s_"):
            self.kind = "salu"
            if op.startswith(("s_cmp", "s_cbranch", "s_branch", "s_waitcnt", "s_barrier", "s_endpgm", "s_setprio", "s_sleep", "s_bitcmp")):
                self.r = set().union(*R) if R else set()
            else:
                self.w = R[0] if R else set()
                self.r = set().union(*R[1:]) if len(R) > 1 else set()
                if "saveexec" in op:
                    self.w |= {("s", "exec")}
        self.trans = op.startswith(TRANS)


def check(lines, tag=""):
    ins = []
    for ln in lines:
        c = ln.split(";")[0].strip()
        if not c or c.endswith(":") or c.startswith("."):
            continue
        ins.append(Ins(ln))
    errs = []
    for i, b in enumerate(ins):
        dist = 0
        for j in range(i - 1, max(-1, i - 24), -1):
            a = ins[j]
            if a.op in ("s_endpgm", "s_branch"):
                break
            need = 0

            def V(s):
                return {x for x in s if x[0] in "va"}

            def S(s):
                return {x for x in s if x[0] == "s"}
            if a.kind == "valu":
                if b.kind == "mfma" and V(a.w) & b.r:
                    need = max(need, 2)
                if a.trans and b.kind == "valu" and not b.trans and V(a.w) & b.r:
                    need = max(need, 1)
                if b.kind == "valu" and S(a.w) & b.r:
                    need = max(need, 4 if b.op.startswith(("v_readlane", "v_writelane")) else 2)
                if b.kind == "vmem" and S(a.w) & b.r:
                    need = max(need, 5)
                if b.kind == "salu" and S(a.w) & b.r:
                    need = max(need, 1)
                if b.op.startswith(("v_readfirstlane", "v_readlane")) and V(a.w) & b.r:
                    need = max(need, 1)
                if (b.op.startswith("v_permlane") or "dpp" in b.op or "row_" in b.mods or "quad_perm" in b.mods) and V(a.w) & b.r:
                    need = max(need, 2)
                if ("sdwa" in a.op or "op_sel" in a.mods) and b.kind == "valu" and V(a.w) & (b.r | b.w):
                    need = max(need, 1)
            if a.kind == "mfma":
                p = a.passes
                if b.kind in ("valu", "ds", "vmem") and a.w & (b.r | b.w):
                    need = max(need, 12 if p == 8 else 8)
                if b.kind == "mfma":
                    if a.w & b.srcab:
                        need = max(need, 12 if p == 8 else 8)
                    if a.w & b.srcc and a.w != b.srcc:
                        need = max(need, 10 if p == 8 else 6)
                    if a.w & b.w and not (a.w & b.srcc):
                        need = max(need, 10 if p == 8 else 6)
                if b.kind == "valu" and a.srcc & b.w:
                    need = max(need, 7 if p == 8 else 3)
            if a.kind == "salu" and ("s", "m0") in a.w and b.kind == "vmem" and getattr(b, "lds", False):
                need = max(need, 1)
            if a.kind == "vmem" and a.store_data and a.store_data & b.w:
                need = max(need, 2 if b.kind == "valu" else 1)
            if need > dist:
                errs.append(f"{tag}: need {need} have {dist}: [{a.line}] -> [{b.line}]")
            dist += a.ws
            if dist >= 20:
                break
    return errs
```

```python
import math
import struct
import sys
from asmlib import Asm, check, vr, sr

IMG = 151552
CH = 18944
KV_OFF = 0
Q_OFF = 32 * IMG
XT_OFF = 64 * IMG
O_OFF = XT_OFF + 1152 * 4096
ESEG_OFF = O_OFF + 2048 * 1152
ECH_OFF = ESEG_OFF + 576 * 1024
PAR_OFF = ECH_OFF + 576 * 128
WS_END = PAR_OFF + 576 * 32
STAMP_OFF = 32 << 20

STAGE = 40960
OPT = dict(ring=4, pre=2, prebar=3, stamps=0)


def f2u(x):
    return struct.unpack("<I", struct.pack("<f", x))[0]


LOG2E = 1.4426950408889634
QSCALE = LOG2E / math.sqrt(18.0)

P_AX, P_WQKV, P_WO, P_BX, P_LRE, P_LIM, P_BRE, P_BIM = 16, 18, 20, 22, 24, 26, 28, 30
P_CRE, P_CIM, P_LDT, P_DSK = 32, 34, 36, 38
P_OUT, P_DBG, P_WS = 40, 42, 44
SRD1, SRD2A, SRD2B, SRDW, SRDO = 48, 52, 56, 60, 64


def srd(a, d, p, nbytes):
    a(f"""s_mov_b32 s{d}, s{p}
    s_mov_b32 s{d+1}, s{p+1}
    s_mov_b32 s{d+2}, {nbytes}
    s_mov_b32 s{d+3}, 0x00020000""")


def srd_sel(a, d, p1, p0, n1, n0):
    a(f"""s_cselect_b32 s{d}, s{p1}, s{p0}
    s_cselect_b32 s{d+1}, s{p1+1}, s{p0+1}
    s_mov_b32 s{d+2}, {n0}
    s_cselect_b32 s{d+2}, {n1}, s{d+2}""")
    a(f"s_mov_b32 s{d+3}, 0x00020000")


def load_args(a):
    a("""s_load_dwordx16 s[16:31], s[0:1], 0
    s_load_dwordx8 s[32:39], s[0:1], 64
    s_load_dwordx4 s[40:43], s[0:1], 96
    s_load_dwordx2 s[44:45], s[0:1], 112""")


def stamp(a, idx):
    if OPT["stamps"]:
        a(f"s_memrealtime s[{84+2*idx}:{85+2*idx}]")


def stamp_store(a, kidx, n, tmp=8):
    if not OPT["stamps"]:
        return
    a(f"""s_waitcnt lgkmcnt(0)
    s_mov_b64 exec, 1
    s_lshl_b32 s6, s2, 3
    s_add_u32 s6, s6, s5
    s_lshl_b32 s6, s6, 5
    s_add_u32 s6, s6, {STAMP_OFF + kidx * 65536}
    s_mov_b32 s{SRDW+2}, {STAMP_OFF + 4 * 65536}
    v_mov_b32 v{tmp+8}, 0""")
    for i in range(8):
        a(f"v_mov_b32 v{tmp+i}, s{84+2*i}" if i < n else f"v_mov_b32 v{tmp+i}, 0")
    a(f"""buffer_store_dwordx4 v[{tmp}:{tmp+3}], v{tmp+8}, s[{SRDW}:{SRDW+3}], s6 offen
    buffer_store_dwordx4 v[{tmp+4}:{tmp+7}], v{tmp+8}, s[{SRDW}:{SRDW+3}], s6 offen offset:16""")


def loader(a, alt_last):
    ring, pre = OPT["ring"], OPT["pre"]

    def issue(st):
        base = (st % ring) * STAGE
        for j in range(4):
            a(f"s_add_u32 m0, s76, {base + 4096*j}")
            if st > 0:
                a(f"s_add_u32 s{68+j}, s{68+j}, s74")
            else:
                a("s_nop 0")
            a(f"buffer_load_dwordx4 v1, s[{SRD1}:{SRD1+3}], s{68+j} offen lds")
        alt = alt_last and st == 8
        for g in range(2):
            for u in range(3):
                a(f"s_add_u32 m0, s{77+u}, {base + 12288*g}")
                if u == 0 and st > 0 and not alt:
                    a(f"s_add_u32 s{72+g}, s{72+g}, s75")
                else:
                    a("s_nop 0")
                d = SRD2A if g == 0 else SRD2B
                a(f"buffer_load_dwordx4 v{(5 if alt else 2)+u}, s[{d}:{d+3}], s{(80 if alt else 72)+g} offen lds")

    for st in range(pre):
        issue(st)
    nxt = pre
    for st in range(9):
        a(f"s_waitcnt vmcnt({10*(nxt-1-st)})")
        a("s_barrier")
        while nxt < 9 and nxt <= st - 1 + ring and (nxt - st <= pre or nxt <= st + ring - 1 and OPT.get("greedy")):
            issue(nxt)
            nxt += 1


def rows_voff(a, dst, stride, tmp):
    a(f"""v_lshrrev_b32 v{tmp}, 3, v0
    v_lshrrev_b32 v{tmp+1}, 4, v0
    s_and_b32 s7, s6, 1
    s_lshl_b32 s7, s7, 2
    v_add_u32 v{tmp+1}, s7, v{tmp+1}
    v_and_b32 v{tmp+2}, 7, v0
    v_xor_b32 v{tmp+1}, v{tmp+1}, v{tmp+2}
    s_lshl_b32 s7, s6, 3
    v_add_u32 v{tmp}, s7, v{tmp}
    v_mul_u32_u24 v{tmp}, {stride}, v{tmp}
    v_lshl_add_u32 v{dst}, v{tmp+1}, 4, v{tmp}""")


def wrows_parts(a, u, kr, pc, tmp):
    a(f"""v_add_u32 v{tmp}, {64*u}, v0
    v_mul_u32_u24 v{kr}, 2731, v{tmp}
    v_lshrrev_b32 v{kr}, 16, v{kr}
    v_mul_u32_u24 v{pc}, 24, v{kr}
    v_sub_u32 v{pc}, v{tmp}, v{pc}
    v_and_b32 v{tmp}, 2, v{kr}
    v_lshlrev_b32 v{tmp}, 1, v{tmp}
    v_xor_b32 v{pc}, v{pc}, v{tmp}""")


def consumer(a, steps_per_stage, reads, mfmas, addr_regs, prebar, per_gap=2):
    ring = OPT["ring"]
    nsteps = 9 * steps_per_stage
    a("s_barrier")
    for x in reads(0, 0):
        a(x)
    for n in range(nsteps):
        ks = n % steps_per_stage
        st = n // steps_per_stage
        m = mfmas(n, n & 1)
        a("s_waitcnt lgkmcnt(0)")
        rd = []
        if n + 1 < nsteps:
            if ks == steps_per_stage - 1:
                pb = min(prebar, len(m) - 1)
                for x in m[:pb]:
                    a(x)
                m = m[pb:]
                a("s_barrier")
                delta = STAGE if (st + 1) % ring else -(ring - 1) * STAGE
                for rg in addr_regs:
                    a(f"v_add_u32 v{rg}, {delta & 0xffffffff}, v{rg}")
                rd = reads((n + 1) % steps_per_stage, (n + 1) & 1)
                k = -(-len(rd) // 2)
                for x in rd[:k]:
                    a(x)
                rd = rd[k:]
            else:
                rd = reads((n + 1) % steps_per_stage, (n + 1) & 1)
        for x in m:
            a(x)
            for y in rd[:per_gap]:
                a(y)
            rd = rd[per_gap:]
        for y in rd:
            a(y)


MF = "v_mfma_f32_32x32x16_bf16"
ACC = 160
FR = 100
XA, WA = 90, 94


def lane_parts(a):
    a("""v_and_b32 v1, 31, v0
    v_lshrrev_b32 v2, 5, v0
    s_mov_b32 s8, 0
    s_mov_b32 s9, -1
    s_mov_b32 s10, 0xffff0000
    s_mov_b32 s11, 0xffff0000""")


def tau(a, dst, tmp):
    a(f"""v_and_b32 v{dst}, 3, v1
    v_lshrrev_b32 v{tmp}, 3, v1
    v_lshl_add_u32 v{dst}, v{tmp}, 2, v{dst}
    v_and_b32 v{tmp}, 4, v1
    v_lshl_add_u32 v{dst}, v{tmp}, 2, v{dst}""")


def row_addr(a, dst, rowreg, sbase, tmp):
    a(f"""v_bfe_u32 v{tmp}, v{rowreg}, 1, 3
    v_xor_b32 v{tmp}, v{tmp}, v2
    v_lshlrev_b32 v{tmp}, 4, v{tmp}
    v_lshl_add_u32 v{tmp}, v{rowreg}, 7, v{tmp}
    v_add_u32 v{dst}, {sbase}, v{tmp}
    v_xor_b32 v{dst+1}, 32, v{dst}
    v_xor_b32 v{dst+2}, 64, v{dst}
    v_xor_b32 v{dst+3}, 96, v{dst}""")


def tr_addr(a, ntile, stride, base):
    a(f"""v_bfe_u32 v3, v0, 2, 2
    v_lshl_add_u32 v3, v2, 3, v3
    v_mul_u32_u24 v3, {stride}, v3
    v_add_u32 v3, {base}, v3
    v_and_b32 v4, 8, v0
    v_lshlrev_b32 v4, 3, v4
    v_and_b32 v5, 3, v0
    v_lshlrev_b32 v5, 3, v5""")
    for ft in range(ntile):
        a(f"""v_mov_b32 v6, s{68+2*ft}
        v_mov_b32 v7, s{69+2*ft}
        v_cndmask_b32 v6, v6, v7, s[10:11]
        v_bfe_u32 v6, v6, v5, 8
        v_lshlrev_b32 v6, 3, v6
        v_xor_b32 v6, v6, v4
        v_add_u32 v{WA+ft}, v3, v6""")


def nat_tables(a, ntile, first):
    for ft in range(ntile):
        a(f"""s_add_u32 s7, s{first}, {ft}
        s_mul_i32 s7, s7, 0x08080808
        s_add_u32 s{68+2*ft}, s7, 0x03020100
        s_add_u32 s{69+2*ft}, s7, 0x07060504""")


def wx_loop(a, w_is_a):
    def reads(ks, b):
        f = FR + 20 * b
        r = []
        for e in range(2):
            r.append(f"ds_read_b64_tr_b16 v[{f+8+2*e}:{f+9+2*e}], v{WA} offset:{(16*ks+4*e)*384}")
        r.append(f"ds_read_b128 v[{f}:{f+3}], v{XA+ks}")
        r.append(f"ds_read_b128 v[{f+4}:{f+7}], v{XA+ks} offset:4096")
        for ft in (1, 2):
            for e in range(2):
                r.append(f"ds_read_b64_tr_b16 v[{f+8+4*ft+2*e}:{f+9+4*ft+2*e}], v{WA+ft} offset:{(16*ks+4*e)*384}")
        return r

    def mfmas(n, b):
        f = FR + 20 * b
        m = []
        for ft in range(3):
            for tt in range(2):
                acc = vr(ACC + (ft * 2 + tt) * 16, 16)
                w, x = vr(f + 8 + 4 * ft, 4), vr(f + 4 * tt, 4)
                A, B = (w, x) if w_is_a else (x, w)
                m.append(f"{MF} {acc}, {A}, {B}, {acc if n else 0}")
        return m
    consumer(a, 4, reads, mfmas, [XA, XA + 1, XA + 2, XA + 3, WA, WA + 1, WA + 2], OPT["prebar"])


def chunk_info(q):
    j, pos = divmod(q, 9)
    if pos < 4:
        return ("half", 2 * j, pos)
    if pos == 4:
        return ("mid", j, 0)
    return ("half", 2 * j + 1, pos - 5)


def reg_tile(qa, qb):
    return [(qb if c & 1 else qa) + (c >> 1) for c in range(8)]


def spec_tile(slots):
    t = [0] * 8
    for i, (x, y) in enumerate(slots):
        t[2 * i], t[2 * i + 1] = x, y
    return t


QK_TILES = [
    [reg_tile(5, 9), reg_tile(14, 18), reg_tile(0, 41), reg_tile(23, 27), reg_tile(32, 36),
     spec_tile([(45, 46), (47, 4), (13, 22), (31, 40)])],
    [reg_tile(50, 54), reg_tile(59, 63), reg_tile(68, 72), reg_tile(77, 81), reg_tile(86, 90),
     spec_tile([(48, 95), (49, 58), (67, 76), (85, 94)])],
    [reg_tile(104, 108), reg_tile(113, 117), reg_tile(99, 140), reg_tile(122, 126), reg_tile(131, 135),
     spec_tile([(96, 97), (98, 103), (112, 121), (130, 139)])],
]
for _b in range(3):
    assert sorted(sum(QK_TILES[_b], [])) == list(range(48 * _b, 48 * _b + 48))


def is_regular(t):
    for hh in range(2):
        inf = [chunk_info(t[2 * i + hh]) for i in range(4)]
        if not all(x[0] == "half" and x[1] == inf[0][1] and x[2] == i for i, x in enumerate(inf)):
            return False
    return True


def qk_epilogue(a, b, wf):
    W = f"s[{SRDW}:{SRDW+3}]"
    tmp = FR
    for ft in range(3):
        t = QK_TILES[b][3 * wf + ft]
        A = [ACC + (ft * 2 + tt) * 16 for tt in range(2)]
        if is_regular(t):
            h0, h1 = chunk_info(t[0])[1], chunk_info(t[1])[1]
            if h1 - h0 == 1:
                va = 5
            else:
                va = 6
                a(f"s_mov_b32 s7, {(h1-h0)*IMG}\n v_mad_i32_i24 v6, v2, s7, v3")
            a(f"s_mov_b32 s12, {h0*IMG}\n s_mov_b32 s13, {h0*IMG+4096}")
            for tt in range(2):
                for k in range(8):
                    a(f"v_cvt_pk_bf16_f32 v{A[tt]+k}, v{A[tt]+2*k}, v{A[tt]+2*k+1}")
                    if k == 3:
                        a(f"buffer_store_dwordx4 v[{A[tt]}:{A[tt]+3}], v{va}, {W}, s12 offen offset:{512*tt}")
                a(f"buffer_store_dwordx4 v[{A[tt]+4}:{A[tt]+7}], v{va}, {W}, s13 offen offset:{512*tt}")
        else:
            for i in range(4):
                k0, k1 = chunk_info(t[2 * i]), chunk_info(t[2 * i + 1])
                T = tmp
                tmp += 4
                d00 = f"v{A[0]+4*i}, v{A[0]+4*i+1}"
                d01 = f"v{A[0]+4*i+2}, v{A[0]+4*i+3}"
                d10 = f"v{A[1]+4*i}, v{A[1]+4*i+1}"
                d11 = f"v{A[1]+4*i+2}, v{A[1]+4*i+3}"
                a(f"v_cvt_pk_bf16_f32 v{T}, {d00}\n v_cvt_pk_bf16_f32 v{T+3}, {d11}")
                if k0[0] == k1[0] == "half":
                    a(f"v_cvt_pk_bf16_f32 v{T+1}, {d01}\n v_cvt_pk_bf16_f32 v{T+2}, {d10}")
                elif k0[0] == k1[0] == "mid":
                    a(f"v_cvt_pk_bf16_f32 v{T+1}, {d10}\n v_cvt_pk_bf16_f32 v{T+2}, {d01}")
                else:
                    assert k0[0] == "half" and k1[0] == "mid"
                    a(f"""v_cvt_pk_bf16_f32 v8, {d01}
                    v_cvt_pk_bf16_f32 v9, {d10}
                    v_cndmask_b32 v{T+1}, v8, v9, s[8:9]
                    v_cndmask_b32 v{T+2}, v9, v8, s[8:9]""")

                def const(k, s):
                    if k[0] == "half":
                        return k[1] * IMG + (k[2] >> 1) * 4096 + (k[2] & 1) * 8 + 512 * s
                    return (2 * k[1] + s) * IMG
                if k0[0] == k1[0]:
                    vb = 3 if k0[0] == "half" else 4
                else:
                    vb = 7
                    a("v_cndmask_b32 v7, v3, v4, s[8:9]")
                for s in range(2):
                    c0, c1 = const(k0, s), const(k1, s)
                    a(f"""s_mov_b32 s7, {abs(c1-c0)}
                    s_mov_b32 s{12+s}, {min(c0, c1)}
                    v_mad_u32_u24 v{10+s}, v{2 if c1 >= c0 else 12}, s7, v{vb}
                    buffer_store_dwordx2 v[{T+2*s}:{T+2*s+1}], v{10+s}, {W}, s{12+s} offen""")


def cmul(a, dr, di, xr, xi, yr, yi):
    a(f"""v_mul_f32 v{dr}, v{xr}, v{yr}
    v_mul_f32 v{di}, v{xr}, v{yi}
    v_fma_f32 v{dr}, -v{xi}, v{yi}, v{dr}
    v_fma_f32 v{di}, v{xi}, v{yr}, v{di}""")


def k1(a):
    a.label("k1_kernel")
    stamp(a, 0)
    a("s_cmp_ge_u32 s2, 256\n s_cbranch_scc1 K1_done")
    load_args(a)
    a("""v_lshrrev_b32 v1, 6, v0
    v_and_b32 v0, 63, v0
    s_and_b32 s6, s2, 7
    v_readfirstlane_b32 s5, v1
    s_lshr_b32 s7, s2, 3
    s_and_b32 s3, s6, 1
    s_lshl_b32 s3, s3, 3
    s_and_b32 s4, s7, 7
    s_add_u32 s3, s3, s4
    s_lshr_b32 s6, s6, 1
    s_lshl_b32 s6, s6, 2
    s_lshr_b32 s7, s7, 3
    s_add_u32 s4, s6, s7
    s_cmp_ge_u32 s4, 15
    s_cbranch_scc1 K1_done
    s_cmp_lt_u32 s5, 4
    s_waitcnt lgkmcnt(0)
    s_cbranch_scc1 K1_cons""")
    a("s_sub_u32 s6, s5, 4")
    rows_voff(a, 1, 1152, 8)
    a(f"""s_mul_i32 s68, s3, {128*1152}
    s_add_u32 s69, s68, {32*1152}
    s_add_u32 s70, s68, {64*1152}
    s_add_u32 s71, s68, {96*1152}
    s_mov_b32 s74, 128
    s_lshl_b32 s76, s6, 10
    s_cmp_ge_u32 s4, 9""")
    srd_sel(a, SRD1, P_BX, P_AX, 2048 * 1152, 2048 * 1152)
    srd_sel(a, SRD2A, P_BRE, P_WQKV, 576 * 1152, 576 * 3456)
    srd_sel(a, SRD2B, P_BIM, P_WQKV, 576 * 1152, 576 * 3456)
    a("s_cbranch_scc1 K1_ld_ssm")
    for u in range(3):
        wrows_parts(a, u, 8, 9, 10)
        a(f"v_mul_u32_u24 v8, 3456, v8\n v_lshl_add_u32 v{2+u}, v9, 4, v8")
    a(f"""s_mul_i32 s72, s6, {8*3456}
    s_mul_i32 s7, s4, 384
    s_add_u32 s72, s72, s7
    s_add_u32 s73, s72, {32*3456}
    s_mov_b32 s75, {64*3456}
    s_mul_i32 s77, s6, 3072
    s_add_u32 s77, s77, 16384
    s_add_u32 s78, s77, 1024
    s_add_u32 s79, s77, 2048
    s_branch K1_ld_go""")
    a.label("K1_ld_ssm")
    a(f"""v_mov_b32 v2, v1
    v_add_u32 v3, {32*1152}, v1
    v_add_u32 v4, {64*1152}, v1
    s_sub_u32 s72, s4, 9
    s_mul_i32 s72, s72, {96*1152}
    s_mov_b32 s73, s72
    s_mov_b32 s75, 128
    s_add_u32 s77, s76, 16384
    s_add_u32 s78, s77, 4096
    s_add_u32 s79, s77, 8192""")
    a.label("K1_ld_go")
    loader(a, False)
    a("s_endpgm")
    a.label("K1_cons")
    srd(a, SRDW, P_WS, WS_END)
    lane_parts(a)
    a("""s_and_b32 s14, s5, 1
    s_lshr_b32 s15, s5, 1
    s_cmp_ge_u32 s4, 9
    s_cbranch_scc1 K1_ssm
    s_cmp_ge_u32 s4, 6
    s_cbranch_scc1 K1_v""")
    a("""s_sub_u32 s46, s4, 3
    s_cmp_lt_u32 s4, 3
    s_cselect_b32 s46, s4, s46
    s_lshl_b32 s46, s46, 1
    s_add_u32 s46, s46, s15""")
    for var in range(6):
        b, wf = divmod(var, 2)
        if var:
            a(f"s_cmp_eq_u32 s46, {var}")
        for ft in range(3):
            t = [x - 48 * b for x in QK_TILES[b][3 * wf + ft]]
            for hh in range(2):
                val = sum(t[4 * hh + c] << (8 * c) for c in range(4))
                if var:
                    a(f"s_cselect_b32 s{68+2*ft+hh}, {val}, s{68+2*ft+hh}")
                else:
                    a(f"s_mov_b32 s{68+2*ft+hh}, {val}")
    tr_addr(a, 3, 384, 16384)
    a("s_lshl_b32 s7, s14, 13")
    row_addr(a, XA, 1, "s7", 8)
    stamp(a, 1)
    wx_loop(a, True)
    stamp(a, 2)
    a(f"""s_lshr_b32 s6, s3, 1
    s_mul_i32 s6, s6, {CH}
    s_cmp_lt_u32 s4, 3
    s_cselect_b32 s7, {Q_OFF}, {KV_OFF}
    s_add_u32 s6, s6, s7
    s_and_b32 s7, s3, 1
    s_lshl_b32 s7, s7, 1
    s_add_u32 s7, s7, s14
    s_lshl_b32 s12, s7, 10
    s_add_u32 s12, s12, s6
    s_lshl_b32 s13, s7, 8
    s_add_u32 s13, s13, s6
    s_add_u32 s13, s13, 8192
    v_lshl_add_u32 v3, v1, 4, s12
    v_lshl_add_u32 v4, v1, 3, s13
    s_mov_b32 s7, {IMG}
    v_mad_i32_i24 v5, v2, s7, v3
    v_xor_b32 v12, 1, v2""")
    for var in range(6):
        if var < 5:
            a(f"s_cmp_lg_u32 s46, {var}\n s_cbranch_scc1 K1_qe{var+1}")
        qk_epilogue(a, *divmod(var, 2))
        stamp(a, 3)
        stamp_store(a, 0, 4)
        a("s_endpgm")
        if var < 5:
            a.label(f"K1_qe{var+1}")
    a.label("K1_v")
    a("s_mul_i32 s46, s15, 3")
    nat_tables(a, 3, 46)
    tr_addr(a, 3, 384, 16384)
    tau(a, 9, 8)
    a("s_lshl_b32 s7, s14, 13")
    row_addr(a, XA, 9, "s7", 8)
    a("""s_sub_u32 s6, s4, 6
    s_mul_i32 s6, s6, 192
    s_lshl_b32 s7, s46, 5
    s_add_u32 s6, s6, s7
    v_add_u32 v3, s6, v1""")
    a(f"s_mov_b32 s7, {IMG}\n v_mul_u32_u24 v8, 608, v2")
    for ft in range(3):
        a(f"""v_add_u32 v4, {32*ft}, v3
        v_mul_u32_u24 v5, 3641, v4
        v_lshrrev_b32 v5, 16, v5
        v_mul_u32_u24 v6, 18, v5
        v_sub_u32 v6, v4, v6
        v_cmp_eq_u32 s[{76+2*ft}:{77+2*ft}], 17, v6
        v_mad_u32_u24 v5, v5, s7, v8
        v_lshl_add_u32 v{80+ft}, v6, 4, v5""")
    a("""v_mov_b32 v84, 0x3f803f80
    v_mov_b32 v85, v84
    v_mov_b32 v86, v84
    v_mov_b32 v87, v84""")
    stamp(a, 1)
    wx_loop(a, False)
    stamp(a, 2)
    a(f"""s_lshr_b32 s6, s3, 1
    s_mul_i32 s6, s6, {CH}
    s_and_b32 s7, s3, 1
    s_lshl_b32 s7, s7, 1
    s_add_u32 s7, s7, s14
    s_mul_i32 s7, s7, {8*304}
    s_add_u32 s12, s6, s7
    s_add_u32 s12, s12, {KV_OFF + 9216}
    s_nop 3""")
    W = f"s[{SRDW}:{SRDW+3}]"
    for ft in range(3):
        for tt in range(2):
            A = ACC + (ft * 2 + tt) * 16
            for k in range(8):
                a(f"v_cvt_pk_bf16_f32 v{A+k}, v{A+2*k}, v{A+2*k+1}")
                if k == 3:
                    a(f"buffer_store_dwordx4 v[{A}:{A+3}], v{80+ft}, {W}, s12 offen offset:{4*tt*304}")
            a(f"buffer_store_dwordx4 v[{A+4}:{A+7}], v{80+ft}, {W}, s12 offen offset:{(4*tt+1)*304}")
    for ft in range(3):
        a(f"s_mov_b64 exec, s[{76+2*ft}:{77+2*ft}]")
        for g in (0, 1, 4, 5):
            a(f"buffer_store_dwordx4 v[84:87], v{80+ft}, {W}, s12 offen offset:{g*304+16}")
    stamp(a, 3)
    stamp_store(a, 0, 4)
    a("s_endpgm")
    a.label("K1_ssm")
    a("""s_sub_u32 s46, s4, 9
    s_mul_i32 s46, s46, 96
    v_add_u32 v3, s46, v1
    v_lshlrev_b32 v3, 1, v3""")
    PR = 12
    for ct in range(3):
        p = PR + 16 * ct
        a(f"""global_load_ushort v{p}, v3, s[{P_LRE}:{P_LRE+1}] offset:{64*ct}
        global_load_ushort v{p+1}, v3, s[{P_LIM}:{P_LIM+1}] offset:{64*ct}
        global_load_ushort v{p+2}, v3, s[{P_LDT}:{P_LDT+1}] offset:{64*ct}""")
    tau(a, 9, 8)
    a("s_lshl_b32 s7, s5, 12")
    row_addr(a, XA, 9, "s7", 8)
    row_addr(a, WA, 1, "16384", 8)
    a(f"""s_mov_b32 s12, {f2u(LOG2E)}
    s_waitcnt vmcnt(0)""")
    for ct in range(3):
        p = PR + 16 * ct
        a(f"""v_lshlrev_b32 v{p}, 16, v{p}
        v_lshlrev_b32 v{p+1}, 16, v{p+1}
        v_lshlrev_b32 v{p+2}, 16, v{p+2}
        v_mul_f32 v{p+2}, s12, v{p+2}
        v_exp_f32 v{p+2}, v{p+2}
        s_nop 0
        v_cvt_pk_bf16_f32 v{p+2}, v{p+2}, v{p+2}
        v_lshlrev_b32 v{p+2}, 16, v{p+2}
        v_mul_f32 v{p+3}, v{p+2}, v{p}
        v_mul_f32 v{p+2}, v{p+2}, v{p+1}
        v_mul_f32 v{p+3}, s12, v{p+3}
        v_mul_f32 v{p+2}, 0.15915494309189532, v{p+2}
        v_exp_f32 v{p+3}, v{p+3}
        v_fract_f32 v{p+2}, v{p+2}
        v_cos_f32 v{p+4}, v{p+2}
        v_sin_f32 v{p+5}, v{p+2}
        v_mul_f32 v{p+12}, v{p}, v{p}
        v_mul_f32 v{p+4}, v{p+4}, v{p+3}
        v_mul_f32 v{p+5}, v{p+5}, v{p+3}
        v_fma_f32 v{p+12}, v{p+1}, v{p+1}, v{p+12}
        v_rcp_f32 v{p+12}, v{p+12}
        v_add_f32 v{p+13}, -1.0, v{p+4}
        v_mul_f32 v{p+10}, v{p+13}, v{p}
        v_mul_f32 v{p+11}, v{p+5}, v{p}
        v_add_f32 v{p+12}, v{p+12}, v{p+12}
        v_fma_f32 v{p+10}, v{p+5}, v{p+1}, v{p+10}
        v_fma_f32 v{p+11}, -v{p+13}, v{p+1}, v{p+11}
        v_mul_f32 v{p+10}, v{p+10}, v{p+12}
        v_mul_f32 v{p+11}, v{p+11}, v{p+12}""")
        cmul(a, p + 12, p + 13, p + 4, p + 5, p + 4, p + 5)
        cmul(a, p + 14, p + 15, p + 12, p + 13, p + 12, p + 13)
        cmul(a, p + 12, p + 13, p + 14, p + 15, p + 14, p + 15)
        cmul(a, p + 6, p + 7, p + 12, p + 13, p + 12, p + 13)
        cmul(a, p + 12, p + 13, p + 6, p + 7, p + 6, p + 7)
        cmul(a, p + 14, p + 15, p + 12, p + 13, p + 12, p + 13)
        cmul(a, p + 8, p + 9, p + 14, p + 15, p + 14, p + 15)
    a(f"""s_or_b32 s6, s3, s5
    s_cmp_lg_u32 s6, 0
    s_cbranch_scc1 K1_nopar
    s_mov_b64 exec, 0xffffffff
    v_lshlrev_b32 v3, 4, v3
    s_mov_b32 s6, {PAR_OFF}""")
    for ct in range(3):
        p = PR + 16 * ct
        a(f"""buffer_store_dwordx4 v[{p+4}:{p+7}], v3, {W}, s6 offen offset:{1024*ct}
        buffer_store_dwordx4 v[{p+8}:{p+11}], v3, {W}, s6 offen offset:{1024*ct+16}""")
    a("s_mov_b64 exec, -1")
    a.label("K1_nopar")

    def reads(ks, b):
        f = FR + 28 * b
        r = [f"ds_read_b128 v[{f}:{f+3}], v{XA+ks}"]
        for ft in (0, 3, 1, 4, 2, 5):
            r.append(f"ds_read_b128 v[{f+4+4*ft}:{f+7+4*ft}], v{WA+ks} offset:{4096*ft}")
        return r

    def mfmas(n, b):
        f = FR + 28 * b
        return [f"{MF} {vr(ACC+16*ft, 16)}, {vr(f, 4)}, {vr(f+4+4*ft, 4)}, {vr(ACC+16*ft, 16) if n else 0}"
                for ft in (0, 3, 1, 4, 2, 5)]
    stamp(a, 1)
    consumer(a, 4, reads, mfmas, [XA + i for i in range(4)] + [WA + i for i in range(4)], OPT["prebar"])
    stamp(a, 2)
    a(f"""v_lshlrev_b32 v3, 12, v1
    v_lshl_add_u32 v3, v2, 5, v3
    v_lshlrev_b32 v4, 10, v1
    v_lshl_add_u32 v4, v2, 3, v4
    s_lshl_b32 s6, s3, 2
    s_add_u32 s6, s6, s5
    s_lshl_b32 s7, s46, 12
    s_lshl_b32 s12, s6, 6
    s_add_u32 s12, s12, s7
    s_add_u32 s12, s12, {XT_OFF}
    s_lshl_b32 s13, s6, 4
    s_lshl_b32 s7, s46, 10
    s_add_u32 s13, s13, s7
    s_add_u32 s13, s13, {ESEG_OFF}
    s_lshl_b32 s6, s5, 1
    v_add_u32 v5, s6, v2
    v_mul_u32_u24 v5, 768, v5
    v_lshl_add_u32 v5, v1, 3, v5""")
    E = 60
    for r in range(1, 16):
        for ct in range(3):
            p = PR + 16 * ct
            xr, xi = ACC + 16 * ct + r, ACC + 16 * (3 + ct) + r
            if r == 1:
                er, ei = ACC + 16 * ct, ACC + 16 * (3 + ct)
            else:
                er, ei = E + 4 * ct + 2 * (r & 1), E + 4 * ct + 2 * (r & 1) + 1
            nr, ni = E + 4 * ct + 2 * ((r + 1) & 1), E + 4 * ct + 2 * ((r + 1) & 1) + 1
            a(f"""v_fma_f32 v{nr}, v{p+4}, v{er}, v{xr}
            v_fma_f32 v{ni}, v{p+4}, v{ei}, v{xi}
            v_fma_f32 v{nr}, -v{p+5}, v{ei}, v{nr}
            v_fma_f32 v{ni}, v{p+5}, v{er}, v{ni}""")
    XB = STAGE
    assert 8 % OPT["ring"] != 1
    for ct in range(3):
        a(f"ds_write_b64 v5, v[{E+4*ct}:{E+4*ct+1}] offset:{XB + 256*ct}")
    for ct in range(3):
        a(f"""s_add_u32 s6, s13, {32*1024*ct}
        buffer_store_dwordx2 v[{E+4*ct}:{E+4*ct+1}], v4, {W}, s6 offen""")
    a("s_waitcnt lgkmcnt(0)\n s_barrier")
    a(f"""s_lshl_b32 s6, s5, 8
    v_lshl_add_u32 v5, v1, 3, s6""")
    for s in range(8):
        a(f"ds_read_b64 v[{FR+2*s}:{FR+2*s+1}], v5 offset:{XB + 768*s}")
    for ft in range(6):
        A = ACC + 16 * ft
        a(f"s_add_u32 s6, s12, {(32*(ft%3) + 576*(ft//3))*4096}")
        for k in range(8):
            a(f"v_cvt_pk_bf16_f32 v{A+k}, v{A+2*k}, v{A+2*k+1}")
            if k == 3:
                a(f"buffer_store_dwordx4 v[{A}:{A+3}], v3, {W}, s6 offen")
        a(f"buffer_store_dwordx4 v[{A+4}:{A+7}], v3, {W}, s6 offen offset:16")
    a(f"""s_cmp_ge_u32 s5, 3
    s_cbranch_scc1 K1_send
    s_cmp_eq_u32 s5, 1
    s_cselect_b64 s[6:7], -1, 0
    s_cmp_eq_u32 s5, 2
    s_cselect_b64 s[14:15], -1, 0
    v_cndmask_b32 v8, v{PR+6}, v{PR+16+6}, s[6:7]
    v_cndmask_b32 v9, v{PR+7}, v{PR+16+7}, s[6:7]
    v_cndmask_b32 v8, v8, v{PR+32+6}, s[14:15]
    v_cndmask_b32 v9, v9, v{PR+32+7}, s[14:15]
    s_waitcnt lgkmcnt(0)""")
    for s in range(1, 8):
        er, ei, nr, ni = FR + 2 * s - 2, FR + 2 * s - 1, FR + 2 * s, FR + 2 * s + 1
        a(f"""v_fma_f32 v{nr}, v8, v{er}, v{nr}
        v_fma_f32 v{ni}, v8, v{ei}, v{ni}
        v_fma_f32 v{nr}, -v9, v{ei}, v{nr}
        v_fma_f32 v{ni}, v9, v{er}, v{ni}""")
    a(f"""s_lshl_b32 s6, s5, 5
    s_add_u32 s6, s6, s46
    s_lshl_b32 s6, s6, 7
    s_lshl_b32 s7, s3, 3
    s_add_u32 s6, s6, s7
    s_add_u32 s6, s6, {ECH_OFF}
    v_lshlrev_b32 v5, 7, v1
    s_mov_b64 exec, 0xffffffff
    buffer_store_dwordx2 v[{FR+14}:{FR+15}], v5, {W}, s6 offen""")
    a.label("K1_send")
    stamp(a, 3)
    stamp_store(a, 0, 4)
    a.label("K1_done")
    a("s_endpgm")


S0, OA, PP, KF, KX, VF, QM, QA, AK, AX, AV = 16, 48, 64, 72, 80, 84, 100, 104, 108, 109, 110
MF8 = "v_mfma_f32_32x32x8bf16_1k"


def k2(a):
    W = f"s[{SRDW}:{SRDW+3}]"
    a.label("k2_kernel")
    stamp(a, 0)
    a(f"""s_cmp_ge_u32 s2, 256
    s_cbranch_scc1 K2_done
    s_load_dwordx2 s[44:45], s[0:1], 112
    v_lshrrev_b32 v1, 6, v0
    v_lshlrev_b32 v3, 4, v0
    v_and_b32 v0, 63, v0
    v_readfirstlane_b32 s5, v1
    s_and_b32 s3, s2, 7
    s_lshl_b32 s3, s3, 2
    s_bfe_u32 s6, s2, 0x20003
    s_add_u32 s3, s3, s6
    s_lshr_b32 s4, s2, 5
    s_mul_i32 s12, s3, {IMG}
    s_lshl_b32 s13, s5, 10""")
    lane_parts(a)
    a(f"""s_mul_i32 s14, s4, {CH}
    s_add_u32 s14, s14, s12
    s_add_u32 s14, s14, {Q_OFF}
    s_lshl_b32 s6, s5, 9
    v_lshlrev_b32 v4, 4, v1
    v_lshl_add_u32 v4, v2, 12, v4
    v_add_u32 v4, s6, v4
    s_lshr_b32 s6, s5, 1
    s_lshl_b32 s6, s6, 8
    s_and_b32 s7, s5, 1
    s_lshl_b32 s7, s7, 2
    s_add_u32 s6, s6, s7
    s_add_u32 s6, s6, 8192
    v_lshl_add_u32 v5, v1, 3, s6
    s_and_b32 s15, s2, 15
    s_lshr_b32 s46, s2, 4
    s_mul_i32 s46, s46, 36
    v_add_u32 v6, s46, v0
    s_waitcnt lgkmcnt(0)""")
    srd(a, SRDW, P_WS, WS_END)
    a(f"""buffer_load_dwordx4 v[{QM}:{QM+3}], v4, {W}, s14 offen
    buffer_load_dword v{QA}, v5, {W}, s14 offen""")

    def dma(k):
        a(f"""s_add_u32 m0, s13, {8192*k}
        {"s_add_u32 s12, s12, 8192" if k else "s_nop 0"}
        buffer_load_dwordx4 v3, {W}, s12 offen lds""")
    for k in range(3):
        dma(k)
    a(f"""s_mov_b32 exec_lo, -1
    s_mov_b32 exec_hi, 15
    v_lshlrev_b32 v7, 12, v6
    s_lshl_b32 s6, s15, 3
    s_add_u32 s6, s6, s5
    s_lshl_b32 s6, s6, 5
    s_add_u32 s47, s6, {XT_OFF}
    s_add_u32 s68, s6, {XT_OFF + 576*4096}
    v_lshlrev_b32 v8, 5, v6
    s_mov_b32 s6, {PAR_OFF}
    v_lshlrev_b32 v9, 10, v6
    s_lshl_b32 s7, s15, 6
    s_add_u32 s7, s7, {ESEG_OFF}
    v_lshlrev_b32 v10, 7, v6
    s_mov_b32 s69, {ECH_OFF}
    buffer_load_dwordx4 v[32:35], v8, {W}, s6 offen
    buffer_load_dwordx4 v[36:39], v8, {W}, s6 offen offset:16""")
    for i in range(8):
        a(f"buffer_load_dwordx4 v[{56+4*i}:{59+4*i}], v10, {W}, s69 offen offset:{16*i}")
    for i in range(4):
        a(f"buffer_load_dwordx4 v[{40+4*i}:{43+4*i}], v9, {W}, s7 offen offset:{16*i}")
    a(f"""buffer_load_dwordx4 v[16:19], v7, {W}, s47 offen
    buffer_load_dwordx4 v[24:27], v7, {W}, s68 offen
    buffer_load_dwordx4 v[20:23], v7, {W}, s47 offen offset:16
    buffer_load_dwordx4 v[28:31], v7, {W}, s68 offen offset:16
    s_mov_b64 exec, -1""")
    for k in range(3, 19):
        dma(k)
    a(f"""v_and_b32 v11, 19, v1
    v_and_b32 v12, 4, v1
    v_lshl_add_u32 v11, v12, 1, v11
    v_and_b32 v12, 8, v1
    v_lshrrev_b32 v12, 1, v12
    v_add_u32 v11, v11, v12
    v_lshlrev_b32 v{AK}, 4, v11
    v_lshl_add_u32 v{AK}, v2, 12, v{AK}
    v_lshlrev_b32 v{AX}, 3, v11
    v_add_u32 v{AX}, 8192, v{AX}""")
    a(f"""v_min_u32 v12, 18, v1
    v_cmp_gt_u32 vcc, 16, v1
    v_and_b32 v13, 3, v1
    v_subrev_u32 v14, 20, v1
    v_cndmask_b32 v12, v12, v11, vcc
    v_cmp_gt_u32 vcc, 8, v14
    v_mul_u32_u24 v{AV}, 304, v2
    s_nop 0
    v_cndmask_b32 v12, v12, v13, vcc
    v_lshl_add_u32 v{AV}, v12, 4, v{AV}
    v_add_u32 v{AV}, 9216, v{AV}
    s_mov_b32 s70, {f2u(QSCALE)}
    s_mov_b32 s71, 0xffff0000
    s_waitcnt vmcnt(16)""")
    stamp(a, 1)
    for q in (QM, QM + 1, QM + 2, QM + 3, QA):
        a(f"""v_lshlrev_b32 v12, 16, v{q}
        v_and_b32 v13, s71, v{q}
        v_mul_f32 v12, s70, v12
        v_mul_f32 v13, s70, v13
        v_cvt_pk_bf16_f32 v{q}, v12, v13""")
    a(f"""v_cndmask_b32 v{QA}, v{QA}, 0, s[8:9]
    v_mov_b32 v{QA+1}, 0
    v_mov_b32 v{QA+2}, 0
    v_mov_b32 v{QA+3}, v{QA}""")
    a("v_mov_b32 v12, 0\n v_mov_b32 v13, 0")
    for c in range(15):
        er, ei = (12, 13) if c == 0 else (56 + 2 * c - 2, 56 + 2 * c - 1)
        nr, ni = 56 + 2 * c, 56 + 2 * c + 1
        a(f"""s_cmp_le_u32 s15, {c}
        s_cbranch_scc1 K2_c{c}
        v_fma_f32 v{nr}, v36, v{er}, v{nr}
        v_fma_f32 v{ni}, v36, v{ei}, v{ni}
        v_fma_f32 v{nr}, -v37, v{ei}, v{nr}
        v_fma_f32 v{ni}, v37, v{er}, v{ni}""")
    a(f"v_mov_b32 v12, v{56+28}\n v_mov_b32 v13, v{56+29}\n s_branch K2_c0")
    for c in range(14, 0, -1):
        a.label(f"K2_c{c}")
        a(f"v_mov_b32 v12, v{56+2*c-2}\n v_mov_b32 v13, v{56+2*c-1}")
        if c > 1:
            a("s_branch K2_c0")
    a.label("K2_c0")
    for s in range(7):
        a(f"""s_cmp_le_u32 s5, {s}
        s_cbranch_scc1 K2_sdone
        v_fma_f32 v14, v34, v12, v{40+2*s}
        v_fma_f32 v15, v34, v13, v{41+2*s}
        v_fma_f32 v14, -v35, v13, v14
        v_fma_f32 v13, v35, v12, v15
        v_mov_b32 v12, v14""")
    a.label("K2_sdone")
    HO = 112
    g = (12, 13)
    for r in range(16):
        xr, xi = 16 + (r >> 1), 24 + (r >> 1)
        n_ = (14, 15) if g == (12, 13) else (12, 13)
        if r & 1:
            a(f"v_and_b32 v{n_[0]}, s71, v{xr}\n v_and_b32 v{n_[1]}, s71, v{xi}")
        else:
            a(f"v_lshlrev_b32 v{n_[0]}, 16, v{xr}\n v_lshlrev_b32 v{n_[1]}, 16, v{xi}")
        o = 88 + 2 * (r & 1)
        a(f"""v_fmac_f32 v{n_[0]}, v32, v{g[0]}
        v_fmac_f32 v{n_[1]}, v32, v{g[1]}
        v_fma_f32 v{n_[0]}, -v33, v{g[1]}, v{n_[0]}
        v_fmac_f32 v{n_[1]}, v33, v{g[0]}
        v_mul_f32 v{o}, v38, v{n_[0]}
        v_mul_f32 v{o+1}, v38, v{n_[1]}
        v_fma_f32 v{o}, -v39, v{n_[1]}, v{o}
        v_fma_f32 v{o+1}, -v39, v{n_[0]}, -v{o+1}""")
        if r & 1:
            a(f"v_cvt_pk_bf16_f32 v{HO+(r>>1)}, v88, v90\n v_cvt_pk_bf16_f32 v{HO+8+(r>>1)}, v89, v91")
        g = n_
    a(f"""s_mov_b32 exec_hi, 15
    buffer_store_dwordx4 v[{HO}:{HO+3}], v7, {W}, s47 offen
    buffer_store_dwordx4 v[{HO+4}:{HO+7}], v7, {W}, s47 offen offset:16
    buffer_store_dwordx4 v[{HO+8}:{HO+11}], v7, {W}, s68 offen
    buffer_store_dwordx4 v[{HO+12}:{HO+15}], v7, {W}, s68 offen offset:16
    s_mov_b64 exec, -1
    s_barrier""")
    stamp(a, 2)

    def koff(j):
        return (j >> 3) * CH + (j & 7) * 512

    def xoff(u):
        return (u >> 2) * CH + (u & 3) * 256

    def voff(j, u):
        return (j >> 3) * CH + (4 * (j & 7) + 2 * u) * 304

    def rdK(j):
        b = KF + 4 * (j & 1)
        return f"ds_read_b128 v[{b}:{b+3}], v{AK} offset:{koff(j)}"

    def rdX(u):
        b = KX + 2 * (u & 1)
        return f"ds_read_b64 v[{b}:{b+1}], v{AX} offset:{xoff(u)}"

    def rdV(j, u):
        b = VF + 8 * (j & 1) + 4 * u
        return f"ds_read_b128 v[{b}:{b+3}], v{AV} offset:{voff(j, u)}"

    def mA(j):
        s = S0 + 16 * (j & 1)
        return f"{MF} {vr(s, 16)}, {vr(KF + 4*(j & 1), 4)}, {vr(QM, 4)}, 0"

    def mB(j):
        s = S0 + 16 * (j & 1)
        return f"{MF8} {vr(s, 16)}, {vr(KX + 2*((j >> 1) & 1), 2)}, {vr(QA + 2*(j & 1), 2)}, {vr(s, 16)}"

    def mP(j, u, first=False):
        return f"{MF} {vr(OA, 16)}, {vr(VF + 8*(j & 1) + 4*u, 4)}, {vr(PP + 4*u, 4)}, {vr(OA, 16)}"

    a(f"{rdK(0)}\n{rdX(0)}\n{rdK(1)}\n{rdV(0, 0)}\n{rdV(0, 1)}")
    for i in range(16):
        a(f"v_mov_b32 v{OA+i}, 0")
    for i in range(4):
        a(f"v_mov_b32 v{PP+4+i}, 0\n v_mov_b32 v{VF+12+i}, 0")
    a(f"""s_mov_b32 s6, 0
    s_waitcnt lgkmcnt(3)
    {mA(0)}
    {mB(0)}
    s_nop 8""")
    a(".p2align 6") if False else None
    a.label("K2_loop")
    body_start = len(a.lines)
    for jj in range(8):
        s = S0 + 16 * (jj & 1)

        def ex(i):
            return f"v_exp_f32 v{s+i}, v{s+i}"

        def cv(k):
            return f"v_cvt_pk_bf16_f32 v{PP+k}, v{s+2*k}, v{s+2*k+1}"
        if jj == 6:
            a("""s_cmp_lg_u32 s6, 0
            s_cbranch_scc1 K2_nobar
            s_waitcnt vmcnt(0)
            s_barrier""")
            a.label("K2_nobar")
        a("s_waitcnt lgkmcnt(0)")
        a(mA(jj + 1))
        a(rdK(jj + 2))
        a(ex(0))
        a(rdV(jj + 1, 0))
        a(ex(1) + "\n" + ex(2) + "\n" + ex(3))
        a(mP(jj - 1, 1))
        a(rdV(jj + 1, 1))
        a(ex(4))
        if jj % 2 == 0:
            a(rdX(jj // 2 + 1))
        a(ex(5) + "\n" + cv(0) + "\n" + ex(6) + "\n" + cv(1) + "\n" + ex(7))
        a(mB(jj + 1))
        a(cv(2) + "\n" + cv(3) + "\n" + ex(8) + "\n" + ex(9) + "\n" + ex(10) + "\n" + ex(11))
        a(mP(jj, 0))
        a(ex(12) + "\n" + ex(13) + "\n" + cv(4) + "\n" + ex(14) + "\n" + cv(5) + "\n" + ex(15) + "\n" + cv(6))
        if jj == 7:
            a(f"""v_add_u32 v{AK}, {CH}, v{AK}
            v_add_u32 v{AX}, {CH}, v{AX}
            v_add_u32 v{AV}, {CH}, v{AV}
            s_add_u32 s6, s6, 1
            s_cmp_lt_u32 s6, 8""")
        else:
            a("s_nop 0")
        a(cv(7))
    a("s_cbranch_scc1 K2_loop")
    body = a.lines[body_start:]
    a.loops = getattr(a, "loops", []) + [body]
    a(f"s_nop 1\n{mP(7, 1)}")
    stamp(a, 3)
    a(f"""s_lshl_b32 s6, s4, 8
    s_lshl_b32 s7, s5, 5
    s_add_u32 s6, s6, s7
    v_add_u32 v4, s6, v1
    v_mul_u32_u24 v4, 1152, v4
    v_lshl_add_u32 v5, v2, 4, v4
    s_lshl_b32 s12, s3, 5
    s_add_u32 s12, s12, {O_OFF}
    s_lshl_b32 s13, s3, 2
    s_add_u32 s13, s13, {O_OFF + 1024}
    s_mov_b32 s14, {f2u(2.0**-60)}
    s_mov_b32 s15, {f2u(2.0**60)}
    s_movk_i32 s46, 0x207
    s_nop 1""")
    a(f"""v_cndmask_b32 v6, v{OA+10}, v{OA+12}, s[8:9]
    v_add_f32 v7, |v{OA}|, |v{OA+1}|""")
    for i in range(2, 10):
        a(f"v_add_f32 v7, v7, |v{OA+i}|")
    a(f"""v_cmp_nle_f32 vcc, s14, v6
    v_cmp_lt_f32 s[68:69], s15, v6
    v_cmp_class_f32 s[70:71], v7, s46
    s_or_b64 vcc, vcc, s[68:69]
    s_or_b64 vcc, vcc, s[70:71]
    s_cbranch_vccnz K2_slow""")
    a.label("K2_fin")
    a("v_rcp_f32 v6, v6\n s_nop 0")
    for i in range(10):
        a(f"v_mul_f32 v{OA+i}, v6, v{OA+i}")
    for k in range(5):
        a(f"v_cvt_pk_bf16_f32 v{OA+k}, v{OA+2*k}, v{OA+2*k+1}")
    a(f"""buffer_store_dwordx4 v[{OA}:{OA+3}], v5, {W}, s12 offen
    s_mov_b64 exec, 0xffffffff
    buffer_store_dword v{OA+4}, v4, {W}, s13 offen""")
    stamp(a, 4)
    stamp_store(a, 1, 5)
    a.label("K2_done")
    a("s_endpgm")
    a.label("K2_slow")
    for ps in range(2):
        a(f"""v_subrev_u32 v{AK}, {8*CH}, v{AK}
        v_subrev_u32 v{AX}, {8*CH}, v{AX}
        v_subrev_u32 v{AV}, {8*CH}, v{AV}
        s_mov_b32 s6, 0""")
        if ps == 0:
            a("v_mov_b32 v7, 0xff800000")
        else:
            for i in range(16):
                a(f"v_mov_b32 v{OA+i}, 0")
        a.label(f"K2_sl{ps}")
        st = len(a.lines)
        a(f"{rdK(0)}\n{rdK(1)}\n{rdX(0)}")
        if ps:
            a(f"{rdV(0, 0)}\n{rdV(0, 1)}\n{rdV(1, 0)}\n{rdV(1, 1)}")
        a(f"s_waitcnt lgkmcnt(0)\n{mA(0)}\n{mA(1)}\n{mB(0)}\n{mB(1)}\n s_nop 15")
        for j in range(2):
            s = S0 + 16 * j
            if ps == 0:
                for i in range(0, 16, 2):
                    a(f"v_max3_f32 v7, v7, v{s+i}, v{s+i+1}")
            else:
                for i in range(16):
                    a(f"v_sub_f32 v{s+i}, v{s+i}, v7")
                for i in range(16):
                    a(f"v_exp_f32 v{s+i}, v{s+i}")
                a("s_nop 0")
                for k in range(8):
                    a(f"v_cvt_pk_bf16_f32 v{PP+k}, v{s+2*k}, v{s+2*k+1}")
                a(f"s_nop 1\n{mP(j, 0)}\n{mP(j, 1)}")
        a(f"""s_add_u32 s6, s6, 1
        s_and_b32 s7, s6, 3
        s_cmp_eq_u32 s7, 0
        s_movk_i32 s68, 1024
        s_movk_i32 s69, 256
        s_movk_i32 s70, {8*304}
        s_cselect_b32 s68, {CH - 3*1024}, s68
        s_cselect_b32 s69, {CH - 3*256}, s69
        s_cselect_b32 s70, {CH - 3*8*304}, s70
        v_add_u32 v{AK}, s68, v{AK}
        v_add_u32 v{AX}, s69, v{AX}
        v_add_u32 v{AV}, s70, v{AV}
        s_cmp_lt_u32 s6, 32
        s_cbranch_scc1 K2_sl{ps}""")
        a.loops.append(a.lines[st:])
        if ps == 0:
            a("""v_mov_b32 v8, v7
            s_nop 1
            v_permlane32_swap_b32 v7, v8
            s_nop 1
            v_max_f32 v7, v7, v8""")
    a(f"""s_nop 15
    v_cndmask_b32 v6, v{OA+10}, v{OA+12}, s[8:9]
    s_branch K2_fin""")


def k3(a):
    a.label("k3_kernel")
    stamp(a, 0)
    a("s_cmp_ge_u32 s2, 240\n s_cbranch_scc1 K3_done")
    load_args(a)
    a("""v_lshrrev_b32 v1, 6, v0
    v_and_b32 v0, 63, v0
    s_and_b32 s6, s2, 7
    v_readfirstlane_b32 s5, v1
    s_lshr_b32 s47, s2, 3
    s_lshl_b32 s3, s6, 1
    s_and_b32 s7, s47, 1
    s_add_u32 s3, s3, s7
    s_lshr_b32 s4, s47, 1
    s_sub_u32 s12, s47, 6
    s_lshl_b32 s13, s6, 2
    s_and_b32 s7, s12, 3
    s_add_u32 s13, s13, s7
    s_lshr_b32 s12, s12, 2
    s_cmp_lt_u32 s47, 6
    s_cselect_b32 s3, s3, s13
    s_cselect_b32 s4, s4, s12
    s_cmp_lt_u32 s5, 4
    s_waitcnt lgkmcnt(0)
    s_cbranch_scc1 K3_cons""")
    a("s_sub_u32 s6, s5, 4")
    srd(a, SRD1, P_WS, WS_END)
    a(f"""s_lshl_b32 s76, s6, 10
    s_cmp_ge_u32 s47, 6""")
    srd_sel(a, SRD2A, P_CRE, P_WO, 576 * 1152, 576 * 1152)
    srd_sel(a, SRD2B, P_CIM, P_WO, 576 * 1152, 576 * 1152)
    a("s_cbranch_scc1 K3_ld_r")
    rows_voff(a, 1, 1152, 8)
    a(f"""s_mul_i32 s68, s3, {128*1152}
    s_add_u32 s68, s68, {O_OFF}
    s_add_u32 s69, s68, {32*1152}
    s_add_u32 s70, s68, {64*1152}
    s_add_u32 s71, s68, {96*1152}
    s_mov_b32 s74, 128""")
    for u in range(3):
        wrows_parts(a, u, 8, 9, 10)
        a(f"""v_lshlrev_b32 v9, 4, v9
        v_mul_u32_u24 v10, 1152, v8
        v_add_u32 v{2+u}, v9, v10
        v_lshrrev_b32 v10, 1, v8
        v_mul_u32_u24 v10, 18, v10
        v_and_b32 v8, 1, v8
        v_add3_u32 v8, v8, v10, 16
        v_mul_u32_u24 v10, 1152, v8
        v_add_u32 v{5+u}, v9, v10""")
    a(f"""s_lshl_b32 s72, s6, 3
    s_and_b32 s7, s6, 2
    s_add_u32 s72, s72, s7
    s_mul_i32 s72, s72, 1152
    s_mul_i32 s7, s4, 384
    s_add_u32 s72, s72, s7
    s_add_u32 s73, s72, {36*1152}
    s_mul_i32 s80, s6, {72*1152}
    s_add_u32 s80, s80, s7
    s_add_u32 s81, s80, {4*72*1152}
    s_mov_b32 s75, {72*1152}
    s_mul_i32 s77, s6, 3072
    s_add_u32 s77, s77, 16384
    s_add_u32 s78, s77, 1024
    s_add_u32 s79, s77, 2048
    s_branch K3_ld_go""")
    a.label("K3_ld_r")
    rows_voff(a, 2, 1152, 8)
    a(f"""v_add_u32 v3, {32*1152}, v2
    v_add_u32 v4, {64*1152}, v2
    v_mov_b32 v5, v2
    v_mov_b32 v6, v3
    v_mov_b32 v7, v4
    v_lshrrev_b32 v8, 3, v0
    s_lshl_b32 s7, s6, 3
    v_add_u32 v8, s7, v8
    v_lshlrev_b32 v8, 12, v8
    v_lshrrev_b32 v9, 2, v0
    v_and_b32 v9, 4, v9
    v_and_b32 v10, 7, v0
    v_xor_b32 v9, v9, v10
    v_lshl_add_u32 v1, v9, 4, v8
    s_lshl_b32 s68, s3, 7
    s_add_u32 s68, s68, {XT_OFF}
    s_add_u32 s69, s68, {32*4096}
    s_add_u32 s70, s68, {576*4096}
    s_add_u32 s71, s68, {608*4096}
    s_mov_b32 s74, {64*4096}
    s_mul_i32 s72, s4, {96*1152}
    s_mov_b32 s73, s72
    s_add_u32 s80, s72, {8*128}
    s_mov_b32 s81, s80
    s_mov_b32 s75, 128
    s_add_u32 s77, s76, 16384
    s_add_u32 s78, s77, 4096
    s_add_u32 s79, s77, 8192""")
    a.label("K3_ld_go")
    loader(a, True)
    a("s_endpgm")
    a.label("K3_cons")
    srd(a, SRDO, P_OUT, 2048 * 4608)
    if OPT["stamps"]:
        srd(a, SRDW, P_WS, WS_END)
    lane_parts(a)
    O = f"s[{SRDO}:{SRDO+3}]"
    a("""s_cmp_ge_u32 s47, 6
    s_cbranch_scc1 K3_r
    s_and_b32 s14, s5, 1
    s_lshr_b32 s15, s5, 1
    s_mul_i32 s46, s15, 3""")
    nat_tables(a, 3, 46)
    tr_addr(a, 3, 384, 16384)
    a("s_lshl_b32 s7, s14, 13")
    row_addr(a, XA, 1, "s7", 8)
    stamp(a, 1)
    wx_loop(a, True)
    stamp(a, 2)
    a(f"""v_mul_u32_u24 v3, 4608, v1
    v_lshl_add_u32 v3, v2, 4, v3
    s_lshl_b32 s6, s3, 1
    s_add_u32 s6, s6, s14
    s_mul_i32 s6, s6, {64*4608}
    s_mul_i32 s7, s4, 768
    s_add_u32 s6, s6, s7
    s_mul_i32 s7, s15, 384
    s_add_u32 s12, s6, s7
    s_add_u32 s13, s12, {32*4608}
    s_nop 1""")
    for ft in range(3):
        for tt in range(2):
            A = ACC + (ft * 2 + tt) * 16
            for i in range(4):
                a(f"buffer_store_dwordx4 v[{A+4*i}:{A+4*i+3}], v3, {O}, s{12+tt} offen offset:{128*ft+32*i}")
    stamp(a, 3)
    stamp_store(a, 2, 4)
    a("s_endpgm")
    a.label("K3_r")
    a("""s_cmp_eq_u32 s5, 3
    s_cbranch_scc0 K3_r2""")
    for _ in range(9):
        a("s_barrier")
    a("s_endpgm")
    a.label("K3_r2")
    a(f"""s_mul_i32 s6, s4, 96
    s_lshl_b32 s7, s5, 5
    s_add_u32 s46, s6, s7
    v_lshlrev_b32 v3, 3, v2
    s_lshl_b32 s6, s46, 1
    v_add_u32 v3, s6, v3
    s_lshl_b32 s6, s3, 6
    v_add_u32 v4, s6, v1
    v_mul_u32_u24 v4, 1152, v4
    v_add_u32 v4, v4, v3
    v_add_u32 v5, {32*1152}, v4""")
    for i in range(4):
        a(f"global_load_dwordx2 v[{12+2*i}:{13+2*i}], v3, s[{P_DSK}:{P_DSK+1}] offset:{16*i}")
    for tt in range(2):
        for i in range(4):
            a(f"global_load_dwordx2 v[{20+8*tt+2*i}:{21+8*tt+2*i}], v{4+tt}, s[{P_BX}:{P_BX+1}] offset:{16*i}")
    a("""s_mov_b32 s68, 0x03020100
    s_mov_b32 s69, 0x07060504
    s_mov_b32 s70, 0x0b0a0908
    s_mov_b32 s71, 0x0f0e0d0c""")
    tr_addr(a, 2, 128, 0)
    a("s_lshl_b32 s7, s5, 12\n s_add_u32 s7, s7, 16384")
    row_addr(a, XA, 1, "s7", 8)
    a("s_mov_b32 s12, 0xffff0000\n s_waitcnt vmcnt(0)")
    for k in range(8):
        a(f"v_lshlrev_b32 v{40+2*k}, 16, v{12+k}\n v_and_b32 v{41+2*k}, s12, v{12+k}")
    for tt in range(2):
        for k in range(8):
            A = ACC + 16 * tt + 2 * k
            a(f"""v_lshlrev_b32 v{A}, 16, v{20+8*tt+k}
            v_and_b32 v{A+1}, s12, v{20+8*tt+k}
            v_mul_f32 v{A}, v{A}, v{40+2*k}
            v_mul_f32 v{A+1}, v{A+1}, v{41+2*k}""")

    def reads(ks, b):
        f = FR + 12 * b
        im, k4 = divmod(ks, 4)
        r = [f"ds_read_b128 v[{f}:{f+3}], v{XA+k4} offset:{12288*im}"]
        for tt in range(2):
            for e in range(2):
                r.append(f"ds_read_b64_tr_b16 v[{f+4+4*tt+2*e}:{f+5+4*tt+2*e}], v{WA+tt} offset:{(64*im+16*k4+4*e)*128}")
        return r

    def mfmas(n, b):
        f = FR + 12 * b
        return [f"{MF} {vr(ACC+16*tt, 16)}, {vr(f, 4)}, {vr(f+4+4*tt, 4)}, {vr(ACC+16*tt, 16)}" for tt in range(2)]
    stamp(a, 1)
    consumer(a, 8, reads, mfmas, [XA + i for i in range(4)] + [WA, WA + 1], 0, per_gap=5)
    stamp(a, 2)
    a(f"""v_mul_u32_u24 v3, 4608, v1
    v_lshl_add_u32 v3, v2, 4, v3
    s_mul_i32 s6, s3, {64*4608}
    s_lshl_b32 s7, s46, 2
    s_add_u32 s6, s6, s7
    s_add_u32 s12, s6, 2304
    s_add_u32 s13, s12, {32*4608}
    s_nop 5""")
    for tt in range(2):
        for i in range(4):
            A = ACC + 16 * tt
            a(f"buffer_store_dwordx4 v[{A+4*i}:{A+4*i+3}], v3, {O}, s{12+tt} offen offset:{32*i}")
    stamp(a, 3)
    stamp_store(a, 2, 4)
    a.label("K3_done")
    a("s_endpgm")


HEADER = """; concat_heads / MHA block / S5 SSM: three launches
; @launch kernel=k1_kernel grid=(256,1,1) block=(512,1,1) lds=163840
; @launch kernel=k2_kernel grid=(256,1,1) block=(512,1,1) lds=163840
; @launch kernel=k3_kernel grid=(240,1,1) block=(512,1,1) lds=163840
.amdgcn_target "amdgcn-amd-amdhsa--gfx950"
.text
"""


def desc(name, vg):
    return f""".amdhsa_kernel {name}
  .amdhsa_next_free_vgpr {vg}
  .amdhsa_next_free_sgpr 102
  .amdhsa_accum_offset {vg}
  .amdhsa_group_segment_fixed_size 0
  .amdhsa_kernarg_size 120
  .amdhsa_user_sgpr_count 2
  .amdhsa_user_sgpr_kernarg_segment_ptr 1
  .amdhsa_system_sgpr_workgroup_id_x 1
.end_amdhsa_kernel
"""


def build(**opt):
    OPT.update(opt)
    out = HEADER
    errs = []
    for name, fn in (("k1_kernel", k1), ("k2_kernel", k2), ("k3_kernel", k3)):
        a = Asm()
        fn(a)
        errs += check(a.lines, name)
        for body in getattr(a, "loops", []):
            errs += check(body + body, name + " loop")
        out += f".globl {name}\n.p2align 8\n.type {name},@function\n" + a.text()
    out += '.section .rodata,"a"\n'
    for name, vg in (("k1_kernel", 256), ("k2_kernel", 128), ("k3_kernel", 256)):
        out += ".p2align 6\n" + desc(name, vg)
    return out, sorted(set(errs))


if __name__ == "__main__":
    opts = {}
    path = "concat_heads__mha_block__ssm_conv_s5__prompt.s"
    for arg in sys.argv[1:]:
        if "=" in arg:
            k, v = arg.split("=")
            opts[k] = int(v)
        else:
            path = arg
    text, errs = build(**opts)
    for e in errs:
        print("HAZARD", e)
    open(path, "w").write(text)
    print("wrote", path, len(text), "bytes;", len(errs), "hazards")
```

```python
import math
import struct
import sys
from asmlib import Asm, check, vr, sr

IMG = 155648
CH = 19456
KV_OFF = 0
Q_OFF = 32 * IMG
XT_OFF = 64 * IMG
SEGB = 1152 * 32
O_OFF = XT_OFF + 1152 * 4096
ESEG_OFF = O_OFF + 2048 * 1152
ECH_OFF = ESEG_OFF + 576 * 1024
PAR_OFF = ECH_OFF + 576 * 128
WS_END = PAR_OFF + 576 * 32
STAMP_OFF = 32 << 20

VG = 320
STAGE = 40960
OPT = dict(ring=4, pre=2, prebar=3, stamps=0)


def f2u(x):
    return struct.unpack("<I", struct.pack("<f", x))[0]


LOG2E = 1.4426950408889634
QSCALE = LOG2E / math.sqrt(18.0)

P_AX, P_WQKV, P_WO, P_BX, P_LRE, P_LIM, P_BRE, P_BIM = 16, 18, 20, 22, 24, 26, 28, 30
P_CRE, P_CIM, P_LDT, P_DSK = 32, 34, 36, 38
P_OUT, P_DBG, P_WS = 40, 42, 44
SRD1, SRD2A, SRD2B, SRDW, SRDO = 48, 52, 56, 60, 64


def srd(a, d, p, nbytes):
    a(f"""s_mov_b32 s{d}, s{p}
    s_mov_b32 s{d+1}, s{p+1}
    s_mov_b32 s{d+2}, {nbytes}
    s_mov_b32 s{d+3}, 0x00020000""")


def srd_sel(a, d, p1, p0, n1, n0):
    a(f"""s_cselect_b32 s{d}, s{p1}, s{p0}
    s_cselect_b32 s{d+1}, s{p1+1}, s{p0+1}
    s_mov_b32 s{d+2}, {n0}
    s_cselect_b32 s{d+2}, {n1}, s{d+2}""")
    a(f"s_mov_b32 s{d+3}, 0x00020000")


def load_args(a):
    a("""s_load_dwordx16 s[16:31], s[0:1], 0
    s_load_dwordx8 s[32:39], s[0:1], 64
    s_load_dwordx4 s[40:43], s[0:1], 96
    s_load_dwordx2 s[44:45], s[0:1], 112""")


def stamp(a, idx):
    if OPT["stamps"]:
        a(f"{'s_memtime' if OPT['stamps'] == 2 else 's_memrealtime'} s[{84+2*idx}:{85+2*idx}]")


def stampc(a, idx):
    if OPT["stamps"]:
        a(f"s_memtime s[{84+2*idx}:{85+2*idx}]")


def stamp_store(a, kidx, n, tmp=8):
    if not OPT["stamps"]:
        return
    a(f"""s_waitcnt lgkmcnt(0)
    s_mov_b64 exec, 1
    s_lshl_b32 s6, s2, 3
    s_add_u32 s6, s6, s5
    s_lshl_b32 s6, s6, 5
    s_add_u32 s6, s6, {STAMP_OFF + kidx * 65536}
    s_mov_b32 s{SRDW+2}, {STAMP_OFF + 4 * 65536}
    v_mov_b32 v{tmp+8}, 0""")
    for i in range(8):
        a(f"v_mov_b32 v{tmp+i}, s{84+2*i}" if i < n else f"v_mov_b32 v{tmp+i}, 0")
    a(f"""buffer_store_dwordx4 v[{tmp}:{tmp+3}], v{tmp+8}, s[{SRDW}:{SRDW+3}], s6 offen
    buffer_store_dwordx4 v[{tmp+4}:{tmp+7}], v{tmp+8}, s[{SRDW}:{SRDW+3}], s6 offen offset:16""")


def loader(a, alt_last):
    ring, pre = OPT["ring"], OPT["pre"]

    def issue(st):
        if OPT.get("noload") and st > 1:
            return
        base = (st % ring) * STAGE
        for j in range(4):
            a(f"s_add_u32 m0, s76, {base + 4096*j}")
            if st > 0:
                a(f"s_add_u32 s{68+j}, s{68+j}, s74")
            else:
                a("s_nop 0")
            a(f"buffer_load_dwordx4 v1, s[{SRD1}:{SRD1+3}], s{68+j} offen lds")
        alt = alt_last and st == 8
        for g in range(2):
            for u in range(3):
                a(f"s_add_u32 m0, s{77+u}, {base + 12288*g}")
                if u == 0 and st > 0 and not alt:
                    a(f"s_add_u32 s{72+g}, s{72+g}, s75")
                else:
                    a("s_nop 0")
                d = SRD2A if g == 0 else SRD2B
                a(f"buffer_load_dwordx4 v{(5 if alt else 2)+u}, s[{d}:{d+3}], s{(80 if alt else 72)+g} offen lds")

    for st in range(pre):
        issue(st)
    nxt = pre
    for st in range(9):
        a(f"s_waitcnt vmcnt({0 if OPT.get('noload') else 10*(nxt-1-st)})")
        a("s_barrier")
        while nxt < 9 and nxt <= st - 1 + ring and (nxt - st <= pre or nxt <= st + ring - 1 and OPT.get("greedy")):
            issue(nxt)
            nxt += 1


def rows_voff(a, dst, stride, tmp):
    a(f"""v_lshrrev_b32 v{tmp}, 3, v0
    v_lshrrev_b32 v{tmp+1}, 4, v0
    s_and_b32 s7, s6, 1
    s_lshl_b32 s7, s7, 2
    v_add_u32 v{tmp+1}, s7, v{tmp+1}
    v_and_b32 v{tmp+2}, 7, v0
    v_xor_b32 v{tmp+1}, v{tmp+1}, v{tmp+2}
    s_lshl_b32 s7, s6, 3
    v_add_u32 v{tmp}, s7, v{tmp}
    v_mul_u32_u24 v{tmp}, {stride}, v{tmp}
    v_lshl_add_u32 v{dst}, v{tmp+1}, 4, v{tmp}""")


def wrows_parts(a, u, kr, pc, tmp):
    a(f"""v_add_u32 v{tmp}, {64*u}, v0
    v_mul_u32_u24 v{kr}, 2731, v{tmp}
    v_lshrrev_b32 v{kr}, 16, v{kr}
    v_mul_u32_u24 v{pc}, 24, v{kr}
    v_sub_u32 v{pc}, v{tmp}, v{pc}
    v_and_b32 v{tmp}, 2, v{kr}
    v_lshlrev_b32 v{tmp}, 1, v{tmp}
    v_xor_b32 v{pc}, v{pc}, v{tmp}""")


def consumer(a, steps_per_stage, reads, mfmas, addr_regs, prebar, per_gap=2):
    ring = OPT["ring"]
    if OPT.get("nocomp"):
        rd0, mf0 = reads, mfmas
        if OPT["nocomp"] == 1:
            reads = lambda ks, b: []
        mfmas = lambda n, b: mf0(n, b)[:1] if n == 0 else ["s_nop 0", "s_nop 0", "s_nop 0", "s_nop 0"]
    nsteps = 9 * steps_per_stage
    a("s_barrier")
    for x in reads(0, 0):
        a(x)
    for n in range(nsteps):
        ks = n % steps_per_stage
        st = n // steps_per_stage
        m = mfmas(n, n & 1)
        a("s_waitcnt lgkmcnt(0)")
        rd = []
        if n + 1 < nsteps:
            if ks == steps_per_stage - 1:
                pb = min(prebar, len(m) - 1)
                for x in m[:pb]:
                    a(x)
                m = m[pb:]
                a("s_barrier")
                delta = STAGE if (st + 1) % ring else -(ring - 1) * STAGE
                for rg in addr_regs:
                    a(f"v_add_u32 v{rg}, {delta & 0xffffffff}, v{rg}")
                rd = reads((n + 1) % steps_per_stage, (n + 1) & 1)
                k = -(-len(rd) // 2)
                for x in rd[:k]:
                    a(x)
                rd = rd[k:]
            else:
                rd = reads((n + 1) % steps_per_stage, (n + 1) & 1)
        for x in m:
            a(x)
            for y in rd[:per_gap]:
                a(y)
            rd = rd[per_gap:]
        for y in rd:
            a(y)


MF = "v_mfma_f32_32x32x16_bf16"
ACC = 160
FR = 100
XA, WA = 90, 94


def lane_parts(a):
    a("""v_and_b32 v1, 31, v0
    v_lshrrev_b32 v2, 5, v0
    s_mov_b32 s8, 0
    s_mov_b32 s9, -1
    s_mov_b32 s10, 0xffff0000
    s_mov_b32 s11, 0xffff0000""")


def tau(a, dst, tmp):
    a(f"""v_and_b32 v{dst}, 3, v1
    v_lshrrev_b32 v{tmp}, 3, v1
    v_lshl_add_u32 v{dst}, v{tmp}, 2, v{dst}
    v_and_b32 v{tmp}, 4, v1
    v_lshl_add_u32 v{dst}, v{tmp}, 2, v{dst}""")


def row_addr(a, dst, rowreg, sbase, tmp):
    a(f"""v_bfe_u32 v{tmp}, v{rowreg}, 1, 3
    v_xor_b32 v{tmp}, v{tmp}, v2
    v_lshlrev_b32 v{tmp}, 4, v{tmp}
    v_lshl_add_u32 v{tmp}, v{rowreg}, 7, v{tmp}
    v_add_u32 v{dst}, {sbase}, v{tmp}
    v_xor_b32 v{dst+1}, 32, v{dst}
    v_xor_b32 v{dst+2}, 64, v{dst}
    v_xor_b32 v{dst+3}, 96, v{dst}""")


def tr_addr(a, ntile, stride, base):
    a(f"""v_bfe_u32 v3, v0, 2, 2
    v_lshl_add_u32 v3, v2, 3, v3
    v_mul_u32_u24 v3, {stride}, v3
    v_add_u32 v3, {base}, v3
    v_and_b32 v4, 8, v0
    v_lshlrev_b32 v4, 3, v4
    v_and_b32 v5, 3, v0
    v_lshlrev_b32 v5, 3, v5""")
    for ft in range(ntile):
        a(f"""v_mov_b32 v6, s{68+2*ft}
        v_mov_b32 v7, s{69+2*ft}
        v_cndmask_b32 v6, v6, v7, s[10:11]
        v_bfe_u32 v6, v6, v5, 8
        v_lshlrev_b32 v6, 3, v6
        v_xor_b32 v6, v6, v4
        v_add_u32 v{WA+ft}, v3, v6""")


def nat_tables(a, ntile, first):
    for ft in range(ntile):
        a(f"""s_add_u32 s7, s{first}, {ft}
        s_mul_i32 s7, s7, 0x08080808
        s_add_u32 s{68+2*ft}, s7, 0x03020100
        s_add_u32 s{69+2*ft}, s7, 0x07060504""")


def wx_loop(a, w_is_a):
    def reads(ks, b):
        f = FR + 20 * b
        r = []
        for e in range(2):
            r.append(f"ds_read_b64_tr_b16 v[{f+8+2*e}:{f+9+2*e}], v{WA} offset:{(16*ks+4*e)*384}")
        r.append(f"ds_read_b128 v[{f}:{f+3}], v{XA+ks}")
        r.append(f"ds_read_b128 v[{f+4}:{f+7}], v{XA+ks} offset:4096")
        for ft in (1, 2):
            for e in range(2):
                r.append(f"ds_read_b64_tr_b16 v[{f+8+4*ft+2*e}:{f+9+4*ft+2*e}], v{WA+ft} offset:{(16*ks+4*e)*384}")
        return r

    def mfmas(n, b):
        f = FR + 20 * b
        m = []
        for ft in range(3):
            for tt in range(2):
                acc = vr(ACC + (ft * 2 + tt) * 16, 16)
                w, x = vr(f + 8 + 4 * ft, 4), vr(f + 4 * tt, 4)
                A, B = (w, x) if w_is_a else (x, w)
                m.append(f"{MF} {acc}, {A}, {B}, {acc if n else 0}")
        return m
    consumer(a, 4, reads, mfmas, [XA, XA + 1, XA + 2, XA + 3, WA, WA + 1, WA + 2], OPT["prebar"])


def chunk_info(q):
    j, pos = divmod(q, 9)
    if pos < 4:
        return ("half", 2 * j, pos)
    if pos == 4:
        return ("mid", j, 0)
    return ("half", 2 * j + 1, pos - 5)


def reg_tile(qa, qb):
    return [(qb if c & 1 else qa) + (c >> 1) for c in range(8)]


def spec_tile(slots):
    t = [0] * 8
    for i, (x, y) in enumerate(slots):
        t[2 * i], t[2 * i + 1] = x, y
    return t


QK_TILES = [
    [reg_tile(5, 9), reg_tile(14, 18), reg_tile(0, 41), reg_tile(23, 27), reg_tile(32, 36),
     spec_tile([(45, 46), (47, 4), (13, 22), (31, 40)])],
    [reg_tile(50, 54), reg_tile(59, 63), reg_tile(68, 72), reg_tile(77, 81), reg_tile(86, 90),
     spec_tile([(48, 95), (49, 58), (67, 76), (85, 94)])],
    [reg_tile(104, 108), reg_tile(113, 117), reg_tile(99, 140), reg_tile(122, 126), reg_tile(131, 135),
     spec_tile([(96, 97), (98, 103), (112, 121), (130, 139)])],
]
for _b in range(3):
    assert sorted(sum(QK_TILES[_b], [])) == list(range(48 * _b, 48 * _b + 48))


def is_regular(t):
    for hh in range(2):
        inf = [chunk_info(t[2 * i + hh]) for i in range(4)]
        if not all(x[0] == "half" and x[1] == inf[0][1] and x[2] == i for i, x in enumerate(inf)):
            return False
    return True


def qk_epilogue(a, b, wf):
    W = f"s[{SRDW}:{SRDW+3}]"
    tmp = FR
    for ft in range(3):
        t = QK_TILES[b][3 * wf + ft]
        A = [ACC + (ft * 2 + tt) * 16 for tt in range(2)]
        if is_regular(t):
            h0, h1 = chunk_info(t[0])[1], chunk_info(t[1])[1]
            if h1 - h0 == 1:
                va = 5
            else:
                va = 6
                a(f"s_mov_b32 s7, {(h1-h0)*IMG}\n v_mad_i32_i24 v6, v2, s7, v3")
            a(f"s_mov_b32 s12, {h0*IMG}\n s_mov_b32 s13, {h0*IMG+4096}")
            for tt in range(2):
                for k in range(8):
                    a(f"v_cvt_pk_bf16_f32 v{A[tt]+k}, v{A[tt]+2*k}, v{A[tt]+2*k+1}")
                    if k == 3:
                        a(f"buffer_store_dwordx4 v[{A[tt]}:{A[tt]+3}], v{va}, {W}, s12 offen offset:{512*tt}")
                a(f"buffer_store_dwordx4 v[{A[tt]+4}:{A[tt]+7}], v{va}, {W}, s13 offen offset:{512*tt}")
        else:
            for i in range(4):
                k0, k1 = chunk_info(t[2 * i]), chunk_info(t[2 * i + 1])
                T = tmp
                tmp += 4
                d00 = f"v{A[0]+4*i}, v{A[0]+4*i+1}"
                d01 = f"v{A[0]+4*i+2}, v{A[0]+4*i+3}"
                d10 = f"v{A[1]+4*i}, v{A[1]+4*i+1}"
                d11 = f"v{A[1]+4*i+2}, v{A[1]+4*i+3}"
                a(f"v_cvt_pk_bf16_f32 v{T}, {d00}\n v_cvt_pk_bf16_f32 v{T+3}, {d11}")
                if k0[0] == k1[0] == "half":
                    a(f"v_cvt_pk_bf16_f32 v{T+1}, {d01}\n v_cvt_pk_bf16_f32 v{T+2}, {d10}")
                elif k0[0] == k1[0] == "mid":
                    a(f"v_cvt_pk_bf16_f32 v{T+1}, {d10}\n v_cvt_pk_bf16_f32 v{T+2}, {d01}")
                else:
                    assert k0[0] == "half" and k1[0] == "mid"
                    a(f"""v_cvt_pk_bf16_f32 v8, {d01}
                    v_cvt_pk_bf16_f32 v9, {d10}
                    v_cndmask_b32 v{T+1}, v8, v9, s[8:9]
                    v_cndmask_b32 v{T+2}, v9, v8, s[8:9]""")

                def const(k, s):
                    if k[0] == "half":
                        return k[1] * IMG + (k[2] >> 1) * 4096 + (k[2] & 1) * 8 + 512 * s
                    return (2 * k[1] + s) * IMG
                if k0[0] == k1[0]:
                    vb = 3 if k0[0] == "half" else 4
                else:
                    vb = 7
                    a("v_cndmask_b32 v7, v3, v4, s[8:9]")
                for s in range(2):
                    c0, c1 = const(k0, s), const(k1, s)
                    a(f"""s_mov_b32 s7, {abs(c1-c0)}
                    s_mov_b32 s{12+s}, {min(c0, c1)}
                    v_mad_u32_u24 v{10+s}, v{2 if c1 >= c0 else 12}, s7, v{vb}
                    buffer_store_dwordx2 v[{T+2*s}:{T+2*s+1}], v{10+s}, {W}, s{12+s} offen""")


def cmul(a, dr, di, xr, xi, yr, yi):
    a(f"""v_mul_f32 v{dr}, v{xr}, v{yr}
    v_mul_f32 v{di}, v{xr}, v{yi}
    v_fma_f32 v{dr}, -v{xi}, v{yi}, v{dr}
    v_fma_f32 v{di}, v{xi}, v{yr}, v{di}""")


def k1_prefetch(a):
    a(f"""s_cmp_ge_u32 s4, 9""")
    srd_sel(a, SRD1, P_BX, P_AX, 2048 * 1152, 2048 * 1152)
    srd_sel(a, SRD2A, P_BRE, P_WQKV, 576 * 1152, 576 * 3456)
    a(f"""s_cselect_b32 s68, 1, 0
    s_and_b32 s6, s4, 3
    s_lshl_b32 s6, s6, 2
    s_add_u32 s6, s6, s5
    s_lshl_b32 s7, s3, 4
    s_add_u32 s6, s6, s7
    s_mul_i32 s6, s6, {8*1152}
    v_lshlrev_b32 v1, 7, v0
    v_min_u32 v2, {71*128}, v1
    v_add_u32 v3, {64*128}, v1
    v_min_u32 v3, {71*128}, v3
    buffer_load_dword v8, v2, s[{SRD1}:{SRD1+3}], s6 offen
    buffer_load_dword v9, v3, s[{SRD1}:{SRD1+3}], s6 offen
    s_and_b32 s6, s3, 7
    s_lshl_b32 s6, s6, 2
    s_add_u32 s6, s6, s5
    v_min_u32 v2, 53, v0
    s_cmp_eq_u32 s68, 0
    s_cbranch_scc1 K1_pfq
    s_cmp_ge_u32 s6, 16
    s_cselect_b32 s{SRD2A}, s{P_BIM}, s{SRD2A}
    s_cselect_b32 s{SRD2A+1}, s{P_BIM+1}, s{SRD2A+1}
    s_and_b32 s6, s6, 15
    s_mul_i32 s6, s6, {6*1152}
    s_sub_u32 s7, s4, 9
    s_mul_i32 s7, s7, {96*1152}
    v_lshlrev_b32 v2, 7, v2
    s_branch K1_pfw""")
    a.label("K1_pfq")
    a(f"""s_mul_i32 s6, s6, {18*3456}
    s_mul_i32 s7, s4, 384
    v_mul_u32_u24 v3, 21846, v2
    v_lshrrev_b32 v3, 16, v3
    v_mul_u32_u24 v3, {3456 - 384}, v3
    v_lshl_add_u32 v2, v2, 7, v3""")
    a.label("K1_pfw")
    a(f"""s_add_u32 s6, s6, s7
    buffer_load_dword v10, v2, s[{SRD2A}:{SRD2A+3}], s6 offen""")


def k1(a):
    a.label("k1_kernel")
    stamp(a, 0)
    a("s_cmp_ge_u32 s2, 256\n s_cbranch_scc1 K1_done")
    load_args(a)
    a("""v_lshrrev_b32 v1, 6, v0
    v_and_b32 v0, 63, v0
    s_and_b32 s6, s2, 7
    v_readfirstlane_b32 s5, v1
    s_lshr_b32 s7, s2, 3
    s_and_b32 s3, s6, 1
    s_lshl_b32 s3, s3, 3
    s_and_b32 s4, s7, 7
    s_add_u32 s3, s3, s4
    s_lshr_b32 s6, s6, 1
    s_lshl_b32 s6, s6, 2
    s_lshr_b32 s7, s7, 3
    s_add_u32 s4, s6, s7
    s_cmp_ge_u32 s4, 15
    s_cbranch_scc1 K1_const
    s_cmp_lt_u32 s5, 4
    s_waitcnt lgkmcnt(0)
    s_cbranch_scc1 K1_cons""")
    a("s_sub_u32 s6, s5, 4")
    rows_voff(a, 1, 1152, 8)
    a(f"""s_mul_i32 s68, s3, {128*1152}
    s_add_u32 s69, s68, {32*1152}
    s_add_u32 s70, s68, {64*1152}
    s_add_u32 s71, s68, {96*1152}
    s_mov_b32 s74, 128
    s_lshl_b32 s76, s6, 10
    s_cmp_ge_u32 s4, 9""")
    srd_sel(a, SRD1, P_BX, P_AX, 2048 * 1152, 2048 * 1152)
    srd_sel(a, SRD2A, P_BRE, P_WQKV, 576 * 1152, 576 * 3456)
    srd_sel(a, SRD2B, P_BIM, P_WQKV, 576 * 1152, 576 * 3456)
    a("s_cbranch_scc1 K1_ld_ssm")
    for u in range(3):
        wrows_parts(a, u, 8, 9, 10)
        a(f"v_mul_u32_u24 v8, 3456, v8\n v_lshl_add_u32 v{2+u}, v9, 4, v8")
    a(f"""s_mul_i32 s72, s6, {8*3456}
    s_mul_i32 s7, s4, 384
    s_add_u32 s72, s72, s7
    s_add_u32 s73, s72, {32*3456}
    s_mov_b32 s75, {64*3456}
    s_mul_i32 s77, s6, 3072
    s_add_u32 s77, s77, 16384
    s_add_u32 s78, s77, 1024
    s_add_u32 s79, s77, 2048
    s_branch K1_ld_go""")
    a.label("K1_ld_ssm")
    a(f"""v_mov_b32 v2, v1
    v_add_u32 v3, {32*1152}, v1
    v_add_u32 v4, {64*1152}, v1
    s_sub_u32 s72, s4, 9
    s_mul_i32 s72, s72, {96*1152}
    s_mov_b32 s73, s72
    s_mov_b32 s75, 128
    s_add_u32 s77, s76, 16384
    s_add_u32 s78, s77, 4096
    s_add_u32 s79, s77, 8192""")
    a.label("K1_ld_go")
    loader(a, False)
    a("s_endpgm")
    a.label("K1_cons")
    if OPT.get("pf1", 0):
        k1_prefetch(a)
    srd(a, SRDW, P_WS, WS_END)
    lane_parts(a)
    a("""s_and_b32 s14, s5, 1
    s_lshr_b32 s15, s5, 1
    s_cmp_ge_u32 s4, 9
    s_cbranch_scc1 K1_ssm
    s_cmp_ge_u32 s4, 6
    s_cbranch_scc1 K1_v""")
    a("""s_sub_u32 s46, s4, 3
    s_cmp_lt_u32 s4, 3
    s_cselect_b32 s46, s4, s46
    s_lshl_b32 s46, s46, 1
    s_add_u32 s46, s46, s15""")
    for var in range(6):
        b, wf = divmod(var, 2)
        if var:
            a(f"s_cmp_eq_u32 s46, {var}")
        for ft in range(3):
            t = [x - 48 * b for x in QK_TILES[b][3 * wf + ft]]
            for hh in range(2):
                val = sum(t[4 * hh + c] << (8 * c) for c in range(4))
                if var:
                    a(f"s_cselect_b32 s{68+2*ft+hh}, {val}, s{68+2*ft+hh}")
                else:
                    a(f"s_mov_b32 s{68+2*ft+hh}, {val}")
    tr_addr(a, 3, 384, 16384)
    a("s_lshl_b32 s7, s14, 13")
    row_addr(a, XA, 1, "s7", 8)
    stamp(a, 1)
    wx_loop(a, True)
    stamp(a, 2)
    a(f"""s_lshr_b32 s6, s3, 1
    s_mul_i32 s6, s6, {CH}
    s_cmp_lt_u32 s4, 3
    s_cselect_b32 s7, {Q_OFF}, {KV_OFF}
    s_add_u32 s6, s6, s7
    s_and_b32 s7, s3, 1
    s_lshl_b32 s7, s7, 1
    s_add_u32 s7, s7, s14
    s_lshl_b32 s12, s7, 10
    s_add_u32 s12, s12, s6
    s_and_b32 s13, s3, 1
    s_lshl_b32 s13, s13, 9
    s_lshl_b32 s7, s14, 3
    s_add_u32 s13, s13, s7
    s_add_u32 s13, s13, s6
    s_add_u32 s13, s13, 8192
    v_lshl_add_u32 v3, v1, 4, s12
    v_lshl_add_u32 v4, v1, 4, s13
    s_mov_b32 s7, {IMG}
    v_mad_i32_i24 v5, v2, s7, v3
    v_xor_b32 v12, 1, v2""")
    for var in range(6):
        if var < 5:
            a(f"s_cmp_lg_u32 s46, {var}\n s_cbranch_scc1 K1_qe{var+1}")
        qk_epilogue(a, *divmod(var, 2))
        stamp(a, 3)
        stamp_store(a, 0, 4)
        a("s_endpgm")
        if var < 5:
            a.label(f"K1_qe{var+1}")
    a.label("K1_v")
    a("s_mul_i32 s46, s15, 3")
    nat_tables(a, 3, 46)
    tr_addr(a, 3, 384, 16384)
    tau(a, 9, 8)
    a("s_lshl_b32 s7, s14, 13")
    row_addr(a, XA, 9, "s7", 8)
    a("""s_sub_u32 s6, s4, 6
    s_mul_i32 s6, s6, 192
    s_lshl_b32 s7, s46, 5
    s_add_u32 s6, s6, s7
    v_add_u32 v3, s6, v1""")
    a(f"s_mov_b32 s7, {IMG}\n v_mul_u32_u24 v8, {2*VG}, v2")
    for ft in range(3):
        a(f"""v_add_u32 v4, {32*ft}, v3
        v_mul_u32_u24 v5, 3641, v4
        v_lshrrev_b32 v5, 16, v5
        v_mul_u32_u24 v6, 18, v5
        v_sub_u32 v6, v4, v6
        v_mad_u32_u24 v5, v5, s7, v8
        v_lshl_add_u32 v{80+ft}, v6, 4, v5""")
    stamp(a, 1)
    wx_loop(a, False)
    stamp(a, 2)
    a(f"""s_lshr_b32 s6, s3, 1
    s_mul_i32 s6, s6, {CH}
    s_and_b32 s7, s3, 1
    s_lshl_b32 s7, s7, 1
    s_add_u32 s7, s7, s14
    s_mul_i32 s7, s7, {8*VG}
    s_add_u32 s12, s6, s7
    s_add_u32 s12, s12, {KV_OFF + 9216}
    s_nop 3""")
    W = f"s[{SRDW}:{SRDW+3}]"
    for ft in range(3):
        for tt in range(2):
            A = ACC + (ft * 2 + tt) * 16
            for k in range(8):
                a(f"v_cvt_pk_bf16_f32 v{A+k}, v{A+2*k}, v{A+2*k+1}")
                if k == 3:
                    a(f"buffer_store_dwordx4 v[{A}:{A+3}], v{80+ft}, {W}, s12 offen offset:{4*tt*VG}")
            a(f"buffer_store_dwordx4 v[{A+4}:{A+7}], v{80+ft}, {W}, s12 offen offset:{(4*tt+1)*VG}")
    stamp(a, 3)
    stamp_store(a, 0, 4)
    a("s_endpgm")
    a.label("K1_ssm")
    a("""s_sub_u32 s46, s4, 9
    s_mul_i32 s46, s46, 96
    v_add_u32 v3, s46, v1
    v_lshlrev_b32 v3, 1, v3""")
    PR = 12
    for ct in range(3):
        p = PR + 16 * ct
        a(f"""global_load_ushort v{p}, v3, s[{P_LRE}:{P_LRE+1}] offset:{64*ct}
        global_load_ushort v{p+1}, v3, s[{P_LIM}:{P_LIM+1}] offset:{64*ct}
        global_load_ushort v{p+2}, v3, s[{P_LDT}:{P_LDT+1}] offset:{64*ct}""")
    tau(a, 9, 8)
    a("s_lshl_b32 s7, s5, 12")
    row_addr(a, XA, 9, "s7", 8)
    row_addr(a, WA, 1, "16384", 8)
    a(f"""s_mov_b32 s12, {f2u(LOG2E)}
    s_waitcnt vmcnt(0)""")
    for ct in range(3):
        p = PR + 16 * ct
        a(f"""v_lshlrev_b32 v{p}, 16, v{p}
        v_lshlrev_b32 v{p+1}, 16, v{p+1}
        v_lshlrev_b32 v{p+2}, 16, v{p+2}
        v_mul_f32 v{p+2}, s12, v{p+2}
        v_exp_f32 v{p+2}, v{p+2}
        s_nop 0
        v_cvt_pk_bf16_f32 v{p+2}, v{p+2}, v{p+2}
        v_lshlrev_b32 v{p+2}, 16, v{p+2}
        v_mul_f32 v{p+3}, v{p+2}, v{p}
        v_mul_f32 v{p+2}, v{p+2}, v{p+1}
        v_mul_f32 v{p+3}, s12, v{p+3}
        v_mul_f32 v{p+2}, 0.15915494309189532, v{p+2}
        v_exp_f32 v{p+3}, v{p+3}
        v_fract_f32 v{p+2}, v{p+2}
        v_cos_f32 v{p+4}, v{p+2}
        v_sin_f32 v{p+5}, v{p+2}
        v_mul_f32 v{p+12}, v{p}, v{p}
        v_mul_f32 v{p+4}, v{p+4}, v{p+3}
        v_mul_f32 v{p+5}, v{p+5}, v{p+3}
        v_fma_f32 v{p+12}, v{p+1}, v{p+1}, v{p+12}
        v_rcp_f32 v{p+12}, v{p+12}
        v_add_f32 v{p+13}, -1.0, v{p+4}
        v_mul_f32 v{p+10}, v{p+13}, v{p}
        v_mul_f32 v{p+11}, v{p+5}, v{p}
        v_add_f32 v{p+12}, v{p+12}, v{p+12}
        v_fma_f32 v{p+10}, v{p+5}, v{p+1}, v{p+10}
        v_fma_f32 v{p+11}, -v{p+13}, v{p+1}, v{p+11}
        v_mul_f32 v{p+10}, v{p+10}, v{p+12}
        v_mul_f32 v{p+11}, v{p+11}, v{p+12}""")
        cmul(a, p + 12, p + 13, p + 4, p + 5, p + 4, p + 5)
        cmul(a, p + 14, p + 15, p + 12, p + 13, p + 12, p + 13)
        cmul(a, p + 12, p + 13, p + 14, p + 15, p + 14, p + 15)
        cmul(a, p + 6, p + 7, p + 12, p + 13, p + 12, p + 13)
        cmul(a, p + 12, p + 13, p + 6, p + 7, p + 6, p + 7)
        cmul(a, p + 14, p + 15, p + 12, p + 13, p + 12, p + 13)
        cmul(a, p + 8, p + 9, p + 14, p + 15, p + 14, p + 15)
    a(f"""s_or_b32 s6, s3, s5
    s_cmp_lg_u32 s6, 0
    s_cbranch_scc1 K1_nopar
    s_mov_b64 exec, 0xffffffff
    v_lshlrev_b32 v3, 4, v3
    s_mov_b32 s6, {PAR_OFF}""")
    for ct in range(3):
        p = PR + 16 * ct
        a(f"""buffer_store_dwordx4 v[{p+4}:{p+7}], v3, {W}, s6 offen offset:{1024*ct}
        buffer_store_dwordx4 v[{p+8}:{p+11}], v3, {W}, s6 offen offset:{1024*ct+16}""")
    a("s_mov_b64 exec, -1")
    a.label("K1_nopar")

    def reads(ks, b):
        f = FR + 28 * b
        r = [f"ds_read_b128 v[{f}:{f+3}], v{XA+ks}"]
        for ft in (0, 3, 1, 4, 2, 5):
            r.append(f"ds_read_b128 v[{f+4+4*ft}:{f+7+4*ft}], v{WA+ks} offset:{4096*ft}")
        return r

    def mfmas(n, b):
        f = FR + 28 * b
        return [f"{MF} {vr(ACC+16*ft, 16)}, {vr(f, 4)}, {vr(f+4+4*ft, 4)}, {vr(ACC+16*ft, 16) if n else 0}"
                for ft in (0, 3, 1, 4, 2, 5)]
    stamp(a, 1)
    consumer(a, 4, reads, mfmas, [XA + i for i in range(4)] + [WA + i for i in range(4)], OPT["prebar"])
    stamp(a, 2)
    a(f"""v_mul_u32_u24 v3, {SEGB}, v2
    v_lshl_add_u32 v3, v1, 5, v3
    v_mul_u32_u24 v4, 4608, v2
    v_lshl_add_u32 v4, v1, 3, v4
    s_lshl_b32 s6, s3, 2
    s_add_u32 s6, s6, s5
    s_lshl_b32 s7, s46, 5
    s_mul_i32 s12, s6, {2*SEGB}
    s_add_u32 s12, s12, s7
    s_add_u32 s12, s12, {XT_OFF}
    s_mul_i32 s13, s6, {2*4608}
    s_lshl_b32 s7, s46, 3
    s_add_u32 s13, s13, s7
    s_add_u32 s13, s13, {ESEG_OFF}
    s_lshl_b32 s6, s5, 1
    v_add_u32 v5, s6, v2
    v_mul_u32_u24 v5, 768, v5
    v_lshl_add_u32 v5, v1, 3, v5""")
    E = 60
    pack = []
    for ft in range(6):
        A, D = ACC + 16 * ft, FR + 8 * ft
        pack.append(f"s_add_u32 s6, s12, {(32*(ft%3) + 576*(ft//3))*32}")
        for k in range(8):
            pack.append(f"v_cvt_pk_bf16_f32 v{D+k}, v{A+2*k}, v{A+2*k+1}")
            if k == 3:
                pack.append(f"buffer_store_dwordx4 v[{D}:{D+3}], v3, {W}, s6 offen")
        pack.append(f"buffer_store_dwordx4 v[{D+4}:{D+7}], v3, {W}, s6 offen offset:16")
    for r in range(1, 16):
        for ct in range(3):
            p = PR + 16 * ct
            xr, xi = ACC + 16 * ct + r, ACC + 16 * (3 + ct) + r
            if r == 1:
                er, ei = ACC + 16 * ct, ACC + 16 * (3 + ct)
            else:
                er, ei = E + 4 * ct + 2 * (r & 1), E + 4 * ct + 2 * (r & 1) + 1
            nr, ni = E + 4 * ct + 2 * ((r + 1) & 1), E + 4 * ct + 2 * ((r + 1) & 1) + 1
            a(f"""v_fma_f32 v{nr}, v{p+4}, v{er}, v{xr}
            v_fma_f32 v{ni}, v{p+4}, v{ei}, v{xi}
            v_fma_f32 v{nr}, -v{p+5}, v{ei}, v{nr}
            v_fma_f32 v{ni}, v{p+5}, v{er}, v{ni}""")
            for x in pack[:2]:
                a(x)
            pack = pack[2:]
    assert not pack
    XB = STAGE
    assert 8 % OPT["ring"] != 1
    for ct in range(3):
        a(f"ds_write_b64 v5, v[{E+4*ct}:{E+4*ct+1}] offset:{XB + 256*ct}")
    a(f"""s_lshl_b32 s6, s5, 8
    v_lshl_add_u32 v5, v1, 3, s6
    s_waitcnt lgkmcnt(0)
    s_barrier""")
    for s in range(8):
        a(f"ds_read_b64 v[{ACC+2*s}:{ACC+2*s+1}], v5 offset:{XB + 768*s}")
    for ct in range(3):
        a(f"buffer_store_dwordx2 v[{E+4*ct}:{E+4*ct+1}], v4, {W}, s13 offen offset:{256*ct}")
    a(f"""s_cmp_ge_u32 s5, 3
    s_cbranch_scc1 K1_send
    s_cmp_eq_u32 s5, 1
    s_cselect_b64 s[6:7], -1, 0
    s_cmp_eq_u32 s5, 2
    s_cselect_b64 s[14:15], -1, 0
    v_cndmask_b32 v8, v{PR+6}, v{PR+16+6}, s[6:7]
    v_cndmask_b32 v9, v{PR+7}, v{PR+16+7}, s[6:7]
    v_cndmask_b32 v8, v8, v{PR+32+6}, s[14:15]
    v_cndmask_b32 v9, v9, v{PR+32+7}, s[14:15]
    s_waitcnt lgkmcnt(0)""")
    for s in range(1, 8):
        er, ei, nr, ni = ACC + 2 * s - 2, ACC + 2 * s - 1, ACC + 2 * s, ACC + 2 * s + 1
        a(f"""v_fma_f32 v{nr}, v8, v{er}, v{nr}
        v_fma_f32 v{ni}, v8, v{ei}, v{ni}
        v_fma_f32 v{nr}, -v9, v{ei}, v{nr}
        v_fma_f32 v{ni}, v9, v{er}, v{ni}""")
    a(f"""s_lshl_b32 s6, s5, 5
    s_add_u32 s6, s6, s46
    s_lshl_b32 s6, s6, 3
    s_mul_i32 s7, s3, 4608
    s_add_u32 s6, s6, s7
    s_add_u32 s6, s6, {ECH_OFF}
    v_lshlrev_b32 v5, 3, v1
    s_mov_b64 exec, 0xffffffff
    buffer_store_dwordx2 v[{ACC+14}:{ACC+15}], v5, {W}, s6 offen""")
    a.label("K1_send")
    stamp(a, 3)
    stamp_store(a, 0, 4)
    a.label("K1_done")
    a("s_endpgm")
    a.label("K1_const")
    a(f"""s_lshl_b32 s6, s3, 3
    s_add_u32 s6, s6, s5
    s_lshr_b32 s7, s6, 2
    s_mul_i32 s7, s7, {IMG}
    s_and_b32 s6, s6, 3
    s_mul_i32 s6, s6, {2*CH}
    s_add_u32 s6, s6, s7
    s_add_u32 s6, s6, {KV_OFF + 9216 + 288}
    s_add_u32 s7, s6, {CH}
    v_lshrrev_b32 v1, 1, v0
    v_mul_u32_u24 v1, {VG}, v1
    v_and_b32 v2, 1, v0
    v_lshl_add_u32 v1, v2, 4, v1
    v_subrev_u32 v2, 1, v2
    v_and_b32 v4, 0x3f803f80, v2
    v_mov_b32 v5, v4
    v_mov_b32 v6, v4
    v_mov_b32 v7, v4
    s_waitcnt lgkmcnt(0)""")
    srd(a, SRDW, P_WS, WS_END)
    a(f"""buffer_store_dwordx4 v[4:7], v1, {W}, s6 offen
    buffer_store_dwordx4 v[4:7], v1, {W}, s7 offen
    s_endpgm""")


def k2(a):
    import k2gen
    k2gen.k2(a)


def k3(a):
    a.label("k3_kernel")
    stamp(a, 0)
    a("s_cmp_ge_u32 s2, 240\n s_cbranch_scc1 K3_done")
    load_args(a)
    a("""v_lshrrev_b32 v1, 6, v0
    v_and_b32 v0, 63, v0
    s_and_b32 s6, s2, 7
    v_readfirstlane_b32 s5, v1
    s_lshr_b32 s47, s2, 3
    s_lshl_b32 s3, s6, 1
    s_and_b32 s7, s47, 1
    s_add_u32 s3, s3, s7
    s_lshr_b32 s4, s47, 1
    s_sub_u32 s12, s47, 6
    s_lshl_b32 s13, s6, 2
    s_and_b32 s7, s12, 3
    s_add_u32 s13, s13, s7
    s_lshr_b32 s12, s12, 2
    s_cmp_lt_u32 s47, 6
    s_cselect_b32 s3, s3, s13
    s_cselect_b32 s4, s4, s12
    s_cmp_lt_u32 s5, 4
    s_waitcnt lgkmcnt(0)
    s_cbranch_scc1 K3_cons""")
    a("s_sub_u32 s6, s5, 4")
    srd(a, SRD1, P_WS, WS_END)
    a(f"""s_lshl_b32 s76, s6, 10
    s_cmp_ge_u32 s47, 6""")
    srd_sel(a, SRD2A, P_CRE, P_WO, 576 * 1152, 576 * 1152)
    srd_sel(a, SRD2B, P_CIM, P_WO, 576 * 1152, 576 * 1152)
    a("s_cbranch_scc1 K3_ld_r")
    rows_voff(a, 1, 1152, 8)
    a(f"""s_mul_i32 s68, s3, {128*1152}
    s_add_u32 s68, s68, {O_OFF}
    s_add_u32 s69, s68, {32*1152}
    s_add_u32 s70, s68, {64*1152}
    s_add_u32 s71, s68, {96*1152}
    s_mov_b32 s74, 128""")
    for u in range(3):
        wrows_parts(a, u, 8, 9, 10)
        a(f"""v_lshlrev_b32 v9, 4, v9
        v_mul_u32_u24 v10, 1152, v8
        v_add_u32 v{2+u}, v9, v10
        v_lshrrev_b32 v10, 1, v8
        v_mul_u32_u24 v10, 18, v10
        v_and_b32 v8, 1, v8
        v_add3_u32 v8, v8, v10, 16
        v_mul_u32_u24 v10, 1152, v8
        v_add_u32 v{5+u}, v9, v10""")
    a(f"""s_lshl_b32 s72, s6, 3
    s_and_b32 s7, s6, 2
    s_add_u32 s72, s72, s7
    s_mul_i32 s72, s72, 1152
    s_mul_i32 s7, s4, 384
    s_add_u32 s72, s72, s7
    s_add_u32 s73, s72, {36*1152}
    s_mul_i32 s80, s6, {72*1152}
    s_add_u32 s80, s80, s7
    s_add_u32 s81, s80, {4*72*1152}
    s_mov_b32 s75, {72*1152}
    s_mul_i32 s77, s6, 3072
    s_add_u32 s77, s77, 16384
    s_add_u32 s78, s77, 1024
    s_add_u32 s79, s77, 2048
    s_branch K3_ld_go""")
    a.label("K3_ld_r")
    rows_voff(a, 2, 1152, 8)
    a(f"""v_add_u32 v3, {32*1152}, v2
    v_add_u32 v4, {64*1152}, v2
    v_mov_b32 v5, v2
    v_mov_b32 v6, v3
    v_mov_b32 v7, v4
    v_lshrrev_b32 v8, 3, v0
    s_lshl_b32 s7, s6, 3
    v_add_u32 v8, s7, v8
    v_lshlrev_b32 v8, 5, v8
    v_lshrrev_b32 v9, 2, v0
    v_and_b32 v9, 4, v9
    v_and_b32 v10, 7, v0
    v_xor_b32 v9, v9, v10
    v_and_b32 v10, 1, v9
    v_lshl_add_u32 v8, v10, 4, v8
    v_lshrrev_b32 v9, 1, v9
    v_mul_u32_u24 v9, {SEGB}, v9
    v_add_u32 v1, v8, v9
    s_mul_i32 s68, s3, {4*SEGB}
    s_add_u32 s68, s68, {XT_OFF}
    s_add_u32 s69, s68, {32*32}
    s_add_u32 s70, s68, {576*32}
    s_add_u32 s71, s68, {608*32}
    s_mov_b32 s74, {64*32}
    s_mul_i32 s72, s4, {96*1152}
    s_mov_b32 s73, s72
    s_add_u32 s80, s72, {8*128}
    s_mov_b32 s81, s80
    s_mov_b32 s75, 128
    s_add_u32 s77, s76, 16384
    s_add_u32 s78, s77, 4096
    s_add_u32 s79, s77, 8192""")
    a.label("K3_ld_go")
    loader(a, True)
    a("s_endpgm")
    a.label("K3_cons")
    srd(a, SRDO, P_OUT, 2048 * 4608)
    if OPT["stamps"]:
        srd(a, SRDW, P_WS, WS_END)
    lane_parts(a)
    O = f"s[{SRDO}:{SRDO+3}]"
    a("""s_cmp_ge_u32 s47, 6
    s_cbranch_scc1 K3_r
    s_and_b32 s14, s5, 1
    s_lshr_b32 s15, s5, 1
    s_mul_i32 s46, s15, 3""")
    nat_tables(a, 3, 46)
    tr_addr(a, 3, 384, 16384)
    a("s_lshl_b32 s7, s14, 13")
    row_addr(a, XA, 1, "s7", 8)
    stamp(a, 1)
    wx_loop(a, True)
    stamp(a, 2)
    a(f"""v_mul_u32_u24 v3, 4608, v1
    v_lshl_add_u32 v3, v2, 4, v3
    s_lshl_b32 s6, s3, 1
    s_add_u32 s6, s6, s14
    s_mul_i32 s6, s6, {64*4608}
    s_mul_i32 s7, s4, 768
    s_add_u32 s6, s6, s7
    s_mul_i32 s7, s15, 384
    s_add_u32 s12, s6, s7
    s_add_u32 s13, s12, {32*4608}
    s_nop 1""")
    for ft in range(3):
        for tt in range(2):
            A = ACC + (ft * 2 + tt) * 16
            for i in range(4):
                a(f"buffer_store_dwordx4 v[{A+4*i}:{A+4*i+3}], v3, {O}, s{12+tt} offen offset:{128*ft+32*i}")
    stamp(a, 3)
    stamp_store(a, 2, 4)
    a("s_endpgm")
    a.label("K3_r")
    a("""s_cmp_eq_u32 s5, 3
    s_cbranch_scc0 K3_r2""")
    for _ in range(9):
        a("s_barrier")
    a("s_endpgm")
    a.label("K3_r2")
    a(f"""s_mul_i32 s6, s4, 96
    s_lshl_b32 s7, s5, 5
    s_add_u32 s46, s6, s7
    v_lshlrev_b32 v3, 3, v2
    s_lshl_b32 s6, s46, 1
    v_add_u32 v3, s6, v3
    s_lshl_b32 s6, s3, 6
    v_add_u32 v4, s6, v1
    v_mul_u32_u24 v4, 1152, v4
    v_add_u32 v4, v4, v3
    v_add_u32 v5, {32*1152}, v4""")
    for i in range(4):
        a(f"global_load_dwordx2 v[{12+2*i}:{13+2*i}], v3, s[{P_DSK}:{P_DSK+1}] offset:{16*i}")
    for tt in range(2):
        for i in range(4):
            a(f"global_load_dwordx2 v[{20+8*tt+2*i}:{21+8*tt+2*i}], v{4+tt}, s[{P_BX}:{P_BX+1}] offset:{16*i}")
    a("""s_mov_b32 s68, 0x03020100
    s_mov_b32 s69, 0x07060504
    s_mov_b32 s70, 0x0b0a0908
    s_mov_b32 s71, 0x0f0e0d0c""")
    tr_addr(a, 2, 128, 0)
    a("s_lshl_b32 s7, s5, 12\n s_add_u32 s7, s7, 16384")
    row_addr(a, XA, 1, "s7", 8)
    a("s_mov_b32 s12, 0xffff0000\n s_waitcnt vmcnt(0)")
    for k in range(8):
        a(f"v_lshlrev_b32 v{40+2*k}, 16, v{12+k}\n v_and_b32 v{41+2*k}, s12, v{12+k}")
    for tt in range(2):
        for k in range(8):
            A = ACC + 16 * tt + 2 * k
            a(f"""v_lshlrev_b32 v{A}, 16, v{20+8*tt+k}
            v_and_b32 v{A+1}, s12, v{20+8*tt+k}
            v_mul_f32 v{A}, v{A}, v{40+2*k}
            v_mul_f32 v{A+1}, v{A+1}, v{41+2*k}""")

    def reads(ks, b):
        f = FR + 12 * b
        im, k4 = divmod(ks, 4)
        r = [f"ds_read_b128 v[{f}:{f+3}], v{XA+k4} offset:{12288*im}"]
        for tt in range(2):
            for e in range(2):
                r.append(f"ds_read_b64_tr_b16 v[{f+4+4*tt+2*e}:{f+5+4*tt+2*e}], v{WA+tt} offset:{(64*im+16*k4+4*e)*128}")
        return r

    def mfmas(n, b):
        f = FR + 12 * b
        return [f"{MF} {vr(ACC+16*tt, 16)}, {vr(f, 4)}, {vr(f+4+4*tt, 4)}, {vr(ACC+16*tt, 16)}" for tt in range(2)]
    stamp(a, 1)
    consumer(a, 8, reads, mfmas, [XA + i for i in range(4)] + [WA, WA + 1], 0, per_gap=5)
    stamp(a, 2)
    a(f"""v_mul_u32_u24 v3, 4608, v1
    v_lshl_add_u32 v3, v2, 4, v3
    s_mul_i32 s6, s3, {64*4608}
    s_lshl_b32 s7, s46, 2
    s_add_u32 s6, s6, s7
    s_add_u32 s12, s6, 2304
    s_add_u32 s13, s12, {32*4608}
    s_nop 5""")
    for tt in range(2):
        for i in range(4):
            A = ACC + 16 * tt
            a(f"buffer_store_dwordx4 v[{A+4*i}:{A+4*i+3}], v3, {O}, s{12+tt} offen offset:{32*i}")
    stamp(a, 3)
    stamp_store(a, 2, 4)
    a.label("K3_done")
    a("s_endpgm")


HEADER = """; concat_heads / MHA block / S5 SSM: three launches
; @launch kernel=k1_kernel grid=(256,1,1) block=(512,1,1) lds=163840
; @launch kernel=k2_kernel grid=(256,1,1) block=(512,1,1) lds=163840
; @launch kernel=k3_kernel grid=(240,1,1) block=(512,1,1) lds=163840
.amdgcn_target "amdgcn-amd-amdhsa--gfx950"
.text
"""


def desc(name, vg):
    return f""".amdhsa_kernel {name}
  .amdhsa_next_free_vgpr {vg}
  .amdhsa_next_free_sgpr 102
  .amdhsa_accum_offset {vg}
  .amdhsa_group_segment_fixed_size 0
  .amdhsa_kernarg_size 120
  .amdhsa_user_sgpr_count 2
  .amdhsa_user_sgpr_kernarg_segment_ptr 1
  .amdhsa_system_sgpr_workgroup_id_x 1
.end_amdhsa_kernel
"""


def build(**opt):
    OPT.update(opt)
    out = HEADER
    errs = []
    for name, fn in (("k1_kernel", k1), ("k2_kernel", k2), ("k3_kernel", k3)):
        a = Asm()
        fn(a)
        wt = {0: "", 1: " sc0 sc1", 2: " nt", 3: " sc1"}[OPT.get("wt" + name[1], 0)]
        a.lines = [ln + wt if ln.startswith("buffer_store") else ln for ln in a.lines]
        errs += check(a.lines, name)
        for body in getattr(a, "loops", []):
            errs += check(body + body, name + " loop")
        out += f".globl {name}\n.p2align 8\n.type {name},@function\n" + a.text()
    out += '.section .rodata,"a"\n'
    for name, vg in (("k1_kernel", 256), ("k2_kernel", 192), ("k3_kernel", 256)):
        out += ".p2align 6\n" + desc(name, vg)
    return out, sorted(set(errs))


if __name__ == "__main__":
    opts = {}
    path = "concat_heads__mha_block__ssm_conv_s5__prompt.s"
    for arg in sys.argv[1:]:
        if "=" in arg:
            k, v = arg.split("=")
            opts[k] = int(v)
        else:
            path = arg
    text, errs = build(**opts)
    for e in errs:
        print("HAZARD", e)
    open(path, "w").write(text)
    print("wrote", path, len(text), "bytes;", len(errs), "hazards")
```

```python
import gen as G
from asmlib import vr

MF = "v_mfma_f32_32x32x16_bf16"
MF8 = "v_mfma_f32_32x32x8bf16_1k"
OA, PP, KF, KX, VF, QB, AK, AX, AV = 80, 112, 128, 136, 144, 160, 176, 177, 178


def S(q, j):
    return 16 + 32 * q + 16 * (j & 1)


def k2(a):
    OPT, IMG, CH, VG, SEGB = G.OPT, G.IMG, G.CH, G.VG, G.SEGB
    stamp, stampc = G.stamp, G.stampc
    W = f"s[{G.SRDW}:{G.SRDW+3}]"
    a.label("k2_kernel")
    stamp(a, 0)
    a(f"""s_cmp_ge_u32 s2, 256
    s_cbranch_scc1 K2_done""")
    G.load_args(a)
    a(f"""v_lshrrev_b32 v1, 6, v0
    v_and_b32 v0, 63, v0
    s_and_b32 s3, s2, 7
    v_readfirstlane_b32 s5, v1
    s_lshl_b32 s3, s3, 2
    s_bfe_u32 s6, s2, 0x20003
    s_add_u32 s3, s3, s6
    s_lshr_b32 s4, s2, 5
    s_mul_i32 s75, s3, {IMG}
    s_lshr_b32 s74, s5, 2
    s_and_b32 s76, s5, 3
    s_mul_i32 s13, s74, {4*CH}
    s_lshl_b32 s6, s76, 10
    s_add_u32 s13, s13, s6
    s_add_u32 s12, s75, s13
    v_lshlrev_b32 v3, 4, v0""")
    G.lane_parts(a)
    a(f"""s_mul_i32 s14, s4, {CH}
    s_add_u32 s14, s14, s75
    s_add_u32 s14, s14, {G.Q_OFF}
    v_lshlrev_b32 v4, 4, v1
    v_lshl_add_u32 v5, v2, 12, v4
    v_add_u32 v5, s6, v5
    s_lshr_b32 s6, s76, 1
    s_lshl_b32 s6, s6, 9
    s_and_b32 s7, s76, 1
    s_lshl_b32 s7, s7, 3
    s_add_u32 s6, s6, s7
    s_add_u32 s6, s6, 8192
    v_add_u32 v4, s6, v4
    s_and_b32 s15, s2, 15
    s_lshr_b32 s46, s2, 4
    s_mul_i32 s46, s46, 36
    v_add_u32 v6, s46, v0
    v_lshlrev_b32 v7, 5, v6
    v_lshlrev_b32 v9, 3, v6
    s_lshl_b32 s6, s15, 3
    s_mul_i32 s7, s6, 4608
    s_add_u32 s7, s7, {G.ESEG_OFF}
    s_add_u32 s6, s6, s5
    s_mul_i32 s6, s6, {SEGB}
    s_add_u32 s47, s6, {G.XT_OFF}
    s_add_u32 s68, s6, {G.XT_OFF + 576*32}
    s_mov_b32 s6, {G.PAR_OFF}
    s_mov_b32 s69, {G.ECH_OFF}
    s_waitcnt lgkmcnt(0)""")
    G.srd(a, G.SRDW, G.P_WS, G.WS_END)

    def dma(k):
        return f"""s_add_u32 m0, s13, {4096*k}
        {"s_add_u32 s12, s12, 4096" if k else "s_nop 0"}
        buffer_load_dwordx4 v3, {W}, s12 offen lds"""
    a(f"""s_mov_b32 exec_hi, 15
    buffer_load_dwordx4 v[32:35], v7, {W}, s6 offen
    buffer_load_dwordx4 v[36:39], v7, {W}, s6 offen offset:16""")
    for i in range(15):
        a(f"buffer_load_dwordx2 v[{56+2*i}:{57+2*i}], v9, {W}, s69 offen\n s_add_u32 s69, s69, 4608")
    for i in range(7):
        a(f"buffer_load_dwordx2 v[{40+2*i}:{41+2*i}], v9, {W}, s7 offen\n s_add_u32 s7, s7, 4608")
    a(f"""buffer_load_dwordx4 v[16:19], v7, {W}, s47 offen
    buffer_load_dwordx4 v[24:27], v7, {W}, s68 offen
    buffer_load_dwordx4 v[20:23], v7, {W}, s47 offen offset:16
    buffer_load_dwordx4 v[28:31], v7, {W}, s68 offen offset:16
    s_mov_b64 exec, -1
    buffer_load_dwordx4 v[{QB}:{QB+3}], v5, {W}, s14 offen
    buffer_load_dwordx4 v[{QB+8}:{QB+11}], v5, {W}, s14 offen offset:512
    buffer_load_dwordx2 v[{QB+4}:{QB+5}], v4, {W}, s14 offen""")
    NPRE = OPT.get("k2pre", 5)
    for k in range(NPRE):
        a(dma(k))
    a(f"""v_and_b32 v11, 19, v1
    v_and_b32 v12, 4, v1
    v_lshl_add_u32 v11, v12, 1, v11
    v_and_b32 v12, 8, v1
    v_lshrrev_b32 v12, 1, v12
    v_add_u32 v11, v11, v12
    s_mul_i32 s6, s74, {4*CH}
    v_lshl_add_u32 v{AX}, v11, 4, s6
    v_lshl_add_u32 v{AK}, v2, 12, v{AX}
    v_add_u32 v{AX}, 8192, v{AX}""")
    a(f"""v_min_u32 v12, 19, v1
    v_cmp_gt_u32 vcc, 16, v1
    v_cmp_eq_u32 s[70:71], 28, v1
    v_mul_u32_u24 v{AV}, {VG}, v2
    v_cndmask_b32 v12, v12, v11, vcc
    s_add_u32 s6, s6, 9216
    v_cndmask_b32 v12, v12, 18, s[70:71]
    v_lshl_add_u32 v{AV}, v12, 4, v{AV}
    v_add_u32 v{AV}, s6, v{AV}
    s_mov_b32 s70, {G.f2u(G.QSCALE)}
    s_mov_b32 s71, 0xffff0000
    v_mov_b32 v12, 0
    v_mov_b32 v13, 0
    s_waitcnt vmcnt({NPRE})""")
    stamp(a, 1)
    for c in range(15):
        er, ei = (12, 13) if c == 0 else (56 + 2 * c - 2, 56 + 2 * c - 1)
        nr, ni = 56 + 2 * c, 56 + 2 * c + 1
        a(f"""s_cmp_le_u32 s15, {c}
        s_cbranch_scc1 K2_c{c}
        v_fma_f32 v{nr}, v36, v{er}, v{nr}
        v_fma_f32 v{ni}, v36, v{ei}, v{ni}
        v_fma_f32 v{nr}, -v37, v{ei}, v{nr}
        v_fma_f32 v{ni}, v37, v{er}, v{ni}""")
    a(f"v_mov_b32 v12, v{56+28}\n v_mov_b32 v13, v{56+29}\n s_branch K2_c0")
    for c in range(14, 0, -1):
        a.label(f"K2_c{c}")
        a(f"v_mov_b32 v12, v{56+2*c-2}\n v_mov_b32 v13, v{56+2*c-1}")
        if c > 1:
            a("s_branch K2_c0")
    a.label("K2_c0")
    for s in range(7):
        a(f"""s_cmp_le_u32 s5, {s}
        s_cbranch_scc1 K2_sdone
        v_fma_f32 v14, v34, v12, v{40+2*s}
        v_fma_f32 v15, v34, v13, v{41+2*s}
        v_fma_f32 v14, -v35, v13, v14
        v_fma_f32 v13, v35, v12, v15
        v_mov_b32 v12, v14""")
    a.label("K2_sdone")
    HO = 96
    g = (12, 13)
    kd = NPRE
    a("v_mov_b32 v92, s71")
    for r in range(16):
        xr, xi = 16 + (r >> 1), 24 + (r >> 1)
        n_ = (14, 15) if g == (12, 13) else (12, 13)
        if kd < 19:
            a(dma(kd))
            kd += 1
        if r & 1:
            a(f"v_and_b32 v{n_[0]}, v92, v{xr}\n v_and_b32 v{n_[1]}, v92, v{xi}")
        else:
            a(f"v_lshlrev_b32 v{n_[0]}, 16, v{xr}\n v_lshlrev_b32 v{n_[1]}, 16, v{xi}")
        o = 88 + 2 * (r & 1)
        a(f"""v_fmac_f32 v{n_[0]}, v32, v{g[0]}
        v_fmac_f32 v{n_[1]}, v32, v{g[1]}
        v_fma_f32 v{n_[0]}, -v33, v{g[1]}, v{n_[0]}
        v_fmac_f32 v{n_[1]}, v33, v{g[0]}
        v_mul_f32 v{o}, v38, v{n_[0]}
        v_mul_f32 v{o+1}, v38, v{n_[1]}
        v_fma_f32 v{o}, -v39, v{n_[1]}, v{o}
        v_fma_f32 v{o+1}, -v39, v{n_[0]}, -v{o+1}""")
        if r & 1:
            a(f"v_cvt_pk_bf16_f32 v{HO+(r>>1)}, v88, v90\n v_cvt_pk_bf16_f32 v{HO+8+(r>>1)}, v89, v91")
        g = n_
    assert kd == 19
    a(f"""s_mov_b32 exec_hi, 15
    buffer_store_dwordx4 v[{HO}:{HO+3}], v7, {W}, s47 offen
    buffer_store_dwordx4 v[{HO+4}:{HO+7}], v7, {W}, s47 offen offset:16
    buffer_store_dwordx4 v[{HO+8}:{HO+11}], v7, {W}, s68 offen
    buffer_store_dwordx4 v[{HO+12}:{HO+15}], v7, {W}, s68 offen offset:16
    s_mov_b64 exec, -1""")
    a(f"v_mov_b32 v{QB+12}, v{QB+5}")
    for q in (QB, QB + 1, QB + 2, QB + 3, QB + 4, QB + 8, QB + 9, QB + 10, QB + 11, QB + 12):
        a(f"""v_lshlrev_b32 v12, 16, v{q}
        v_and_b32 v13, v92, v{q}
        v_mul_f32 v12, s70, v12
        v_mul_f32 v13, s70, v13
        v_cvt_pk_bf16_f32 v{q}, v12, v13""")
    for q in range(2):
        x = QB + 8 * q + 4
        a(f"""v_cndmask_b32 v{x}, v{x}, 0, s[8:9]
        v_mov_b32 v{x+1}, 0
        v_mov_b32 v{x+2}, 0
        v_mov_b32 v{x+3}, v{x}""")
    for i in range(32):
        a(f"v_mov_b32 v{OA+i}, 0")
    for i in range(4):
        a(f"v_mov_b32 v{PP+12+i}, 0\n v_mov_b32 v{VF+12+i}, 0")
    a("s_waitcnt vmcnt(13)\n s_barrier")
    stamp(a, 2)
    stampc(a, 5)

    def koff(j):
        return (j >> 3) * CH + (j & 7) * 512

    def xoff(u):
        return (u >> 1) * CH + (u & 1) * 512

    def voff(j, u):
        return (j >> 3) * CH + (4 * (j & 7) + 2 * u) * VG

    def rdK(j):
        return f"ds_read_b128 {vr(KF + 4*(j & 1), 4)}, v{AK} offset:{koff(j)}"

    def rdX(u):
        return f"ds_read_b128 {vr(KX + 4*(u & 1), 4)}, v{AX} offset:{xoff(u)}"

    def rdV(j, u):
        return f"ds_read_b128 {vr(VF + 8*(j & 1) + 4*u, 4)}, v{AV} offset:{voff(j, u)}"

    def mA(q, j):
        return f"{MF} {vr(S(q, j), 16)}, {vr(KF + 4*(j & 1), 4)}, {vr(QB + 8*q, 4)}, 0"

    def mB(q, j):
        kx = KX + 4 * ((j >> 2) & 1) + 2 * ((j >> 1) & 1)
        return f"{MF8} {vr(S(q, j), 16)}, {vr(kx, 2)}, {vr(QB + 8*q + 4 + 2*(j & 1), 2)}, {vr(S(q, j), 16)}"

    def mP(q, j, u):
        o = vr(OA + 16 * q, 16)
        return f"{MF} {o}, {vr(VF + 8*(j & 1) + 4*u, 4)}, {vr(PP + 8*q + 4*u, 4)}, {o}"

    a(f"""{rdK(0)}
    {rdX(0)}
    {rdK(1)}
    {rdV(0, 0)}
    {rdV(0, 1)}
    s_mov_b32 s6, 0
    s_waitcnt lgkmcnt(3)
    {mA(0, 0)}
    {mA(1, 0)}
    {mB(0, 0)}
    {mB(1, 0)}
    s_waitcnt lgkmcnt(0)
    s_nop 6""")
    a(".p2align 3")
    a.label("K2_loop")
    body_start = len(a.lines)
    pat = "A r1 e e e e P1 r2 e e e e B e e c c c c e e P0 e e e e w n c c c c"
    for jj in range(8):
        for q in range(2):
            s, P = S(q, jj), PP + 8 * q
            ne = nc = 0
            for tok in pat.split():
                if tok == "e":
                    a(f"v_exp_f32 v{s+ne}, v{s+ne}")
                    ne += 1
                elif tok == "c":
                    a(f"v_cvt_pk_bf16_f32 v{P+nc}, v{s+2*nc}, v{s+2*nc+1}")
                    nc += 1
                elif tok == "A":
                    a(mA(q, jj + 1))
                elif tok == "B":
                    a(mB(q, jj + 1))
                elif tok == "P1":
                    a(mP(1, jj - 1, 1) if q == 0 else mP(0, jj, 1))
                elif tok == "P0":
                    a(mP(q, jj, 0))
                elif tok == "r1":
                    a(rdV(jj + 1, 0) if q == 0 else rdK(jj + 2))
                elif tok == "r2":
                    if q == 0:
                        a(rdV(jj + 1, 1))
                    elif jj % 4 == 0:
                        a(rdX(jj // 4 + 1))
                elif tok == "w" and q == 1:
                    a("s_waitcnt lgkmcnt(0)")
                elif tok == "n" and q == 1:
                    if jj == 7:
                        a(f"""v_add_u32 v{AK}, s77, v{AK}
                        v_add_u32 v{AX}, s77, v{AX}
                        v_add_u32 v{AV}, s77, v{AV}
                        s_add_u32 s6, s6, 1
                        s_cmp_eq_u32 s6, 1""")
                    else:
                        a("s_nop 0")
    body = a.lines[body_start:]
    a("""s_cbranch_scc1 K2_mid
    s_cmp_lt_u32 s6, 4
    s_cbranch_scc1 K2_loop""")
    a.loops = getattr(a, "loops", []) + [body]
    a.lines.insert(body_start - 3, f"s_mov_b32 s77, {CH}")
    a(mP(1, 7, 1))
    stamp(a, 3)
    stampc(a, 6)
    a(f"""s_mul_i32 s6, s5, 4096
    s_mul_i32 s7, s74, {4*CH - 4*4096}
    s_add_u32 s6, s6, s7
    v_add_u32 v8, s6, v3
    s_xor_b32 s7, s74, 1
    s_mul_i32 s7, s7, {4*CH}
    s_lshl_b32 s6, s76, 12
    s_add_u32 s6, s6, s7
    v_add_u32 v9, s6, v3
    s_lshl_b32 s6, s4, 8
    s_lshl_b32 s7, s76, 6
    s_add_u32 s6, s6, s7
    s_lshl_b32 s7, s74, 5
    s_add_u32 s6, s6, s7
    v_add_u32 v4, s6, v1
    v_mul_u32_u24 v4, 1152, v4
    v_lshl_add_u32 v5, v2, 4, v4
    s_cmp_eq_u32 s74, 0
    s_cbranch_scc1 K2_x0""")
    for i in range(4):
        a(f"ds_write_b128 v8, {vr(OA + 4*i, 4)} offset:{1024*i}")
    for i in range(16):
        a(f"v_mov_b32 v{OA+i}, v{OA+16+i}")
    for i in range(8):
        a(f"v_mov_b32 v{QB+i}, v{QB+8+i}")
    a("s_branch K2_x1")
    a.label("K2_x0")
    for i in range(4):
        a(f"ds_write_b128 v8, {vr(OA + 16 + 4*i, 4)} offset:{1024*i}")
    a.label("K2_x1")
    a(f"""s_lshl_b32 s12, s3, 5
    s_add_u32 s12, s12, {G.O_OFF}
    s_lshl_b32 s13, s3, 2
    s_add_u32 s13, s13, {G.O_OFF + 1024}
    s_mov_b32 s14, {G.f2u(2.0**-60)}
    s_mov_b32 s15, {G.f2u(2.0**60)}
    s_movk_i32 s46, 0x207
    s_waitcnt lgkmcnt(0)
    s_barrier""")
    for i in range(4):
        a(f"ds_read_b128 {vr(16 + 4*i, 4)}, v9 offset:{1024*i}")
    a("s_waitcnt lgkmcnt(0)")
    for i in range(13):
        a(f"v_add_f32 v{OA+i}, v{OA+i}, v{16+i}")
    a(f"""v_cndmask_b32 v6, v{OA+10}, v{OA+12}, s[8:9]
    v_add_f32 v7, |v{OA}|, |v{OA+1}|""")
    for i in range(2, 10):
        a(f"v_add_f32 v7, v7, |v{OA+i}|")
    a(f"""v_cmp_nle_f32 vcc, s14, v6
    v_cmp_lt_f32 s[68:69], s15, v6
    v_cmp_class_f32 s[70:71], v7, s46
    s_or_b64 vcc, vcc, s[68:69]
    s_or_b64 vcc, vcc, s[70:71]
    {"s_branch K2_slow" if OPT.get("slow") else "s_cbranch_vccnz K2_slow"}""")
    a.label("K2_fin")
    a("v_rcp_f32 v6, v6\n s_nop 0")
    for i in range(10):
        a(f"v_mul_f32 v{OA+i}, v6, v{OA+i}")
    for k in range(5):
        a(f"v_cvt_pk_bf16_f32 v{OA+k}, v{OA+2*k}, v{OA+2*k+1}")
    a(f"""buffer_store_dwordx4 v[{OA}:{OA+3}], v5, {W}, s12 offen
    s_mov_b64 exec, 0xffffffff
    buffer_store_dword v{OA+4}, v4, {W}, s13 offen""")
    stamp(a, 4)
    G.stamp_store(a, 1, 7)
    a.label("K2_done")
    a("s_endpgm")
    a.label("K2_mid")
    a("s_waitcnt vmcnt(4)\n s_barrier")
    if OPT.get("k3pf", 1):
        a(f"""s_lshr_b32 s7, s2, 3
        s_lshl_b32 s7, s7, 3
        s_add_u32 s7, s7, s5
        s_and_b32 s68, s2, 7
        s_lshl_b32 s68, s68, 8
        s_add_u32 s68, s68, s7
        s_mul_i32 s68, s68, 1152
        s_cmp_ge_u32 s7, 81
        s_cselect_b32 s48, s{G.P_CIM}, s{G.P_CRE}
        s_cselect_b32 s49, s{G.P_CIM+1}, s{G.P_CRE+1}
        s_cselect_b32 s69, 81, 0
        s_cmp_ge_u32 s7, 162
        s_cselect_b32 s48, s{G.P_WO}, s48
        s_cselect_b32 s49, s{G.P_WO+1}, s49
        s_cselect_b32 s69, 162, s69
        s_sub_u32 s7, s7, s69
        s_lshl_b32 s7, s7, 13
        s_mov_b32 s50, {576*1152}
        s_mov_b32 s51, 0x00020000
        v_lshlrev_b32 v10, 7, v0
        v_min_u32 v11, 1024, v10""")
        G.srd(a, 52, G.P_BX, 2048 * 1152)
        a("""buffer_load_dword v12, v10, s[48:51], s7 offen
        buffer_load_dword v13, v11, s[52:55], s68 offen""")
    a("s_branch K2_loop")
    a.label("K2_slow")
    a(f"""s_mul_i32 s6, s74, {4*CH}
    s_add_u32 s6, s6, {4*CH}
    v_subrev_u32 v{AK}, s6, v{AK}
    v_subrev_u32 v{AX}, s6, v{AX}
    v_subrev_u32 v{AV}, s6, v{AV}""")
    for ps in range(2):
        a("s_mov_b32 s6, 0")
        if ps == 0:
            a("v_mov_b32 v7, 0xff800000")
        else:
            for i in range(16):
                a(f"v_mov_b32 v{OA+i}, 0")
        a.label(f"K2_sl{ps}")
        st = len(a.lines)
        a(f"""s_lshr_b32 s7, s6, 2
        s_mul_i32 s7, s7, {CH}
        s_add_u32 s7, s7, s75
        s_and_b32 s68, s6, 3
        s_mul_i32 s70, s68, {8*VG}
        s_add_u32 s70, s70, s7
        s_lshr_b32 s69, s68, 1
        s_lshl_b32 s69, s69, 9
        s_add_u32 s69, s69, s7
        s_bitcmp1_b32 s6, 0
        s_cselect_b32 s71, 8, 0
        s_add_u32 s69, s69, s71
        s_lshl_b32 s68, s68, 10
        s_add_u32 s68, s68, s7
        buffer_load_dwordx4 {vr(KF, 4)}, v{AK}, {W}, s68 offen
        buffer_load_dwordx4 {vr(KF + 4, 4)}, v{AK}, {W}, s68 offen offset:512
        buffer_load_dwordx2 {vr(KX, 2)}, v{AX}, {W}, s69 offen""")
        if ps:
            for i in range(4):
                a(f"buffer_load_dwordx4 {vr(VF + 4*i, 4)}, v{AV}, {W}, s70 offen offset:{2*i*VG}")
        a(f"s_waitcnt vmcnt(0)\n{mA(0, 0)}\n{mA(0, 1)}\n{mB(0, 0)}\n{mB(0, 1)}\n s_nop 15")
        for j in range(2):
            s = S(0, j)
            if ps == 0:
                for i in range(0, 16, 2):
                    a(f"v_max3_f32 v7, v7, v{s+i}, v{s+i+1}")
            else:
                for i in range(16):
                    a(f"v_sub_f32 v{s+i}, v{s+i}, v7")
                for i in range(16):
                    a(f"v_exp_f32 v{s+i}, v{s+i}")
                a("s_nop 0")
                for k in range(8):
                    a(f"v_cvt_pk_bf16_f32 v{PP+k}, v{s+2*k}, v{s+2*k+1}")
                a(f"s_nop 1\n{mP(0, j, 0)}\n{mP(0, j, 1)}")
        a(f"""s_add_u32 s6, s6, 1
        s_cmp_lt_u32 s6, 32
        s_cbranch_scc1 K2_sl{ps}""")
        a.loops.append(a.lines[st:])
        if ps == 0:
            a("""v_mov_b32 v8, v7
            s_nop 1
            v_permlane32_swap_b32 v7, v8
            s_nop 1
            v_max_f32 v7, v7, v8""")
    a(f"""s_nop 15
    v_cndmask_b32 v6, v{OA+10}, v{OA+12}, s[8:9]
    s_branch K2_fin""")
```

```python
import sys
import gen
opts = {}
path = "concat_heads__mha_block__ssm_conv_s5__prompt.s"
for arg in sys.argv[1:]:
    if "=" in arg:
        k, v = arg.split("=")
        opts[k] = int(v)
    else:
        path = arg
text, errs = gen.build(**opts)
for e in errs:
    print("HAZARD", e)
open(path, "w").write(text)
print("wrote", path, len(text), "bytes;", len(errs), "hazards")
```

```python
import math
import struct
import sys
from asmlib import Asm, Ins, check, vr, sr

IMG = 155648
CH = 19456
KV_OFF = 0
Q_OFF = 32 * IMG
XT_OFF = 64 * IMG
PLB = 1152 * 16 + 128
SEGB = 2 * PLB
O_OFF = XT_OFF + 256 * PLB
ECH_OFF = O_OFF + 2048 * 1152
WS_END = ECH_OFF + 32 * 4608
STAMP_OFF = 32 << 20

VG = 320
STAGE = 40960
OPT = dict(ring=4, pre=2, prebar=3, stamps=0)


def f2u(x):
    return struct.unpack("<I", struct.pack("<f", x))[0]


LOG2E = 1.4426950408889634
QSCALE = LOG2E / math.sqrt(18.0)

P_AX, P_WQKV, P_WO, P_BX, P_LRE, P_LIM, P_BRE, P_BIM = 16, 18, 20, 22, 24, 26, 28, 30
P_CRE, P_CIM, P_LDT, P_DSK = 32, 34, 36, 38
P_OUT, P_DBG, P_WS = 40, 42, 44
SRD1, SRD2A, SRD2B, SRDW, SRDO = 48, 52, 56, 60, 64


def srd(a, d, p, nbytes):
    a(f"""s_mov_b32 s{d}, s{p}
    s_mov_b32 s{d+1}, s{p+1}
    s_mov_b32 s{d+2}, {nbytes}
    s_mov_b32 s{d+3}, 0x00020000""")


def srd_sel(a, d, p1, p0, n1, n0):
    a(f"""s_cselect_b32 s{d}, s{p1}, s{p0}
    s_cselect_b32 s{d+1}, s{p1+1}, s{p0+1}
    s_mov_b32 s{d+2}, {n0}
    s_cselect_b32 s{d+2}, {n1}, s{d+2}""")
    a(f"s_mov_b32 s{d+3}, 0x00020000")


def load_args(a):
    a("""s_load_dwordx16 s[16:31], s[0:1], 0
    s_load_dwordx8 s[32:39], s[0:1], 64
    s_load_dwordx4 s[40:43], s[0:1], 96
    s_load_dwordx2 s[44:45], s[0:1], 112""")


def stamp(a, idx):
    if OPT["stamps"] == 3 and idx:
        return
    if OPT["stamps"]:
        a(f"{'s_memtime' if OPT['stamps'] == 2 else 's_memrealtime'} s[{84+2*idx}:{85+2*idx}]")


def stampc(a, idx):
    if OPT["stamps"]:
        a(f"s_memtime s[{84+2*idx}:{85+2*idx}]")


def stamp_store(a, kidx, n, tmp=8):
    if not OPT["stamps"]:
        return
    if OPT["stamps"] == 3:
        n = 8
    a(f"""s_waitcnt lgkmcnt(0)
    s_mov_b64 exec, 1
    s_lshl_b32 s6, s2, 3
    s_add_u32 s6, s6, s5
    s_lshl_b32 s6, s6, 5
    s_add_u32 s6, s6, {STAMP_OFF + kidx * 65536}
    s_mov_b32 s{SRDW+2}, {STAMP_OFF + 4 * 65536}
    v_mov_b32 v{tmp+8}, 0""")
    for i in range(8):
        a(f"v_mov_b32 v{tmp+i}, s{84+2*i}" if i < n else f"v_mov_b32 v{tmp+i}, 0")
    a(f"""buffer_store_dwordx4 v[{tmp}:{tmp+3}], v{tmp+8}, s[{SRDW}:{SRDW+3}], s6 offen
    buffer_store_dwordx4 v[{tmp+4}:{tmp+7}], v{tmp+8}, s[{SRDW}:{SRDW+3}], s6 offen offset:16""")


def loader(a, alt_last):
    ring, pre = OPT["ring"], OPT["pre"]

    def issue(st):
        if OPT.get("noload") and st > 1:
            return
        base = (st % ring) * STAGE
        for j in range(4):
            a(f"s_add_u32 m0, s76, {base + 4096*j}")
            if st > 0:
                a(f"s_add_u32 s{68+j}, s{68+j}, s74")
            else:
                a("s_nop 0")
            a(f"buffer_load_dwordx4 v1, s[{SRD1}:{SRD1+3}], s{68+j} offen lds")
        alt = alt_last and st == 8
        for g in range(2):
            for u in range(3):
                a(f"s_add_u32 m0, s{77+u}, {base + 12288*g}")
                if u == 0 and st > 0 and not alt:
                    a(f"s_add_u32 s{72+g}, s{72+g}, s75")
                else:
                    a("s_nop 0")
                d = SRD2A if g == 0 else SRD2B
                a(f"buffer_load_dwordx4 v{(5 if alt else 2)+u}, s[{d}:{d+3}], s{(80 if alt else 72)+g} offen lds")

    for st in range(pre):
        issue(st)
    nxt = pre
    for st in range(9):
        a(f"s_waitcnt vmcnt({0 if OPT.get('noload') else 10*(nxt-1-st)})")
        a("s_barrier")
        while nxt < 9 and nxt <= st - 1 + ring and (nxt - st <= pre or nxt <= st + ring - 1 and OPT.get("greedy")):
            issue(nxt)
            nxt += 1


def rows_voff(a, dst, stride, tmp):
    a(f"""v_lshrrev_b32 v{tmp}, 3, v0
    v_lshrrev_b32 v{tmp+1}, 4, v0
    s_and_b32 s7, s6, 1
    s_lshl_b32 s7, s7, 2
    v_add_u32 v{tmp+1}, s7, v{tmp+1}
    v_and_b32 v{tmp+2}, 7, v0
    v_xor_b32 v{tmp+1}, v{tmp+1}, v{tmp+2}
    s_lshl_b32 s7, s6, 3
    v_add_u32 v{tmp}, s7, v{tmp}
    v_mul_u32_u24 v{tmp}, {stride}, v{tmp}
    v_lshl_add_u32 v{dst}, v{tmp+1}, 4, v{tmp}""")


def wrows_parts(a, u, kr, pc, tmp):
    a(f"""v_add_u32 v{tmp}, {64*u}, v0
    v_mul_u32_u24 v{kr}, 2731, v{tmp}
    v_lshrrev_b32 v{kr}, 16, v{kr}
    v_mul_u32_u24 v{pc}, 24, v{kr}
    v_sub_u32 v{pc}, v{tmp}, v{pc}
    v_and_b32 v{tmp}, 2, v{kr}
    v_lshlrev_b32 v{tmp}, 1, v{tmp}
    v_xor_b32 v{pc}, v{pc}, v{tmp}""")


def consumer(a, steps_per_stage, reads, mfmas, addr_regs, prebar, per_gap=2, pf=0, fill=None, fill_from=2, ring=None, stage=STAGE):
    ring = ring or OPT["ring"]
    if OPT.get("nocomp"):
        rd0, mf0 = reads, mfmas
        if OPT["nocomp"] == 1:
            reads = lambda ks, b: []
        mfmas = lambda n, b: mf0(n, b)[:1] if n == 0 else ["s_nop 0", "s_nop 0", "s_nop 0", "s_nop 0"]
    nsteps = 9 * steps_per_stage
    a("s_barrier")
    for x in reads(0, 0):
        a(x)
    for n in range(nsteps):
        ks = n % steps_per_stage
        st = n // steps_per_stage
        m = mfmas(n, n & 1)
        a("s_waitcnt lgkmcnt(0)")
        rd = []
        if n + 1 < nsteps:
            if ks == steps_per_stage - 1:
                pb = min(prebar, len(m) - 1)
                for x in m[:pb]:
                    a(x)
                m = m[pb:]
                a("s_barrier")
                if OPT["stamps"] == 3 and st < 7:
                    a(f"s_memrealtime s[{86+2*st}:{87+2*st}]")
                delta = stage if (st + 1) % ring else -(ring - 1) * stage
                for rg in addr_regs:
                    a(f"v_add_u32 v{rg}, {delta & 0xffffffff}, v{rg}")
                rd = reads((n + 1) % steps_per_stage, (n + 1) & 1)
                k = -(-len(rd) // 2)
                for x in rd[:k]:
                    a(x)
                rd = rd[k:]
            else:
                rd = reads((n + 1) % steps_per_stage, (n + 1) & 1)
        for x in m:
            a(x)
            nf = 0 if len(rd) >= per_gap else (3 if not rd else 1)
            for y in rd[:per_gap]:
                a(y)
            rd = rd[per_gap:]
            while fill and n >= fill_from and nf > 0:
                a(fill.pop(0))
                nf -= 1
        for y in rd:
            a(y)


def consumer2(a, sps, reads, mfmas, upd, depth=1, bar_ks=1, per_gap=2, fill=None, fill_from=2):
    ring = OPT["ring"]
    assert OPT["pre"] <= ring - 2 and bar_ks + depth <= sps
    nsteps = 9 * sps
    nb = depth + 1
    out = []

    def issue(x):
        a(x)
        if x.startswith("ds_read"):
            out.append(Ins(x).w)
            assert len(out) <= 15

    def rds(n):
        st, ks = divmod(n, sps)
        r = list(reads(ks, n % nb))
        if st < 8:
            delta = STAGE if (st + 1) % ring else -(ring - 1) * STAGE
            r += [f"v_add_u32 v{rg}, {delta & 0xffffffff}, v{rg}" for rg in upd(ks)]
        return r
    a("s_barrier")
    for n in range(depth):
        for x in rds(n):
            issue(x)
    for n in range(nsteps):
        st, ks = divmod(n, sps)
        rd = rds(n + depth) if n + depth < nsteps else []
        for mi, x in enumerate(mfmas(n, n % nb)):
            need = Ins(x).srcab
            last = max((i for i, w in enumerate(out) if w & need), default=-1)
            if last >= 0:
                a(f"s_waitcnt lgkmcnt({len(out) - 1 - last})")
                del out[:last + 1]
            a(x)
            if mi == 0 and ks == bar_ks and st < 8:
                a("s_barrier")
                if OPT["stamps"] == 3 and st < 7:
                    a(f"s_memrealtime s[{86+2*st}:{87+2*st}]")
            nf = 0 if len(rd) > per_gap else (3 if not rd else 2)
            for y in rd[:per_gap]:
                issue(y)
            rd = rd[per_gap:]
            while fill and n >= fill_from and nf > 0:
                a(fill.pop(0))
                nf -= 1
        for y in rd:
            issue(y)


MF = "v_mfma_f32_32x32x16_bf16"
ACC = 160
FR = 100
XA, WA = 90, 94


def lane_parts(a):
    a("""v_and_b32 v1, 31, v0
    v_lshrrev_b32 v2, 5, v0
    s_mov_b32 s8, 0
    s_mov_b32 s9, -1
    s_mov_b32 s10, 0xffff0000
    s_mov_b32 s11, 0xffff0000""")


def tau(a, dst, tmp):
    a(f"""v_and_b32 v{dst}, 3, v1
    v_lshrrev_b32 v{tmp}, 3, v1
    v_lshl_add_u32 v{dst}, v{tmp}, 2, v{dst}
    v_and_b32 v{tmp}, 4, v1
    v_lshl_add_u32 v{dst}, v{tmp}, 2, v{dst}""")


def row_addr(a, dst, rowreg, sbase, tmp):
    a(f"""v_bfe_u32 v{tmp}, v{rowreg}, 1, 3
    v_xor_b32 v{tmp}, v{tmp}, v2
    v_lshlrev_b32 v{tmp}, 4, v{tmp}
    v_lshl_add_u32 v{tmp}, v{rowreg}, 7, v{tmp}
    v_add_u32 v{dst}, {sbase}, v{tmp}
    v_xor_b32 v{dst+1}, 32, v{dst}
    v_xor_b32 v{dst+2}, 64, v{dst}
    v_xor_b32 v{dst+3}, 96, v{dst}""")


def tr_addr(a, ntile, stride, base):
    a(f"""v_bfe_u32 v3, v0, 2, 2
    v_lshl_add_u32 v3, v2, 3, v3
    v_mul_u32_u24 v3, {stride}, v3
    v_add_u32 v3, {base}, v3
    v_and_b32 v4, 8, v0
    v_lshlrev_b32 v4, 3, v4
    v_and_b32 v5, 3, v0
    v_lshlrev_b32 v5, 3, v5""")
    for ft in range(ntile):
        a(f"""v_mov_b32 v6, s{68+2*ft}
        v_mov_b32 v7, s{69+2*ft}
        v_cndmask_b32 v6, v6, v7, s[10:11]
        v_bfe_u32 v6, v6, v5, 8
        v_lshlrev_b32 v6, 3, v6
        v_xor_b32 v6, v6, v4
        v_add_u32 v{WA+ft}, v3, v6""")


def nat_tables(a, ntile, first):
    for ft in range(ntile):
        a(f"""s_add_u32 s7, s{first}, {ft}
        s_mul_i32 s7, s7, 0x08080808
        s_add_u32 s{68+2*ft}, s7, 0x03020100
        s_add_u32 s{69+2*ft}, s7, 0x07060504""")


def wx_loop(a, w_is_a, pf=0):
    def reads(ks, b):
        f = FR + 20 * b
        r = []
        for e in range(2):
            r.append(f"ds_read_b64_tr_b16 v[{f+8+2*e}:{f+9+2*e}], v{WA} offset:{(16*ks+4*e)*384}")
        r.append(f"ds_read_b128 v[{f}:{f+3}], v{XA+ks}")
        r.append(f"ds_read_b128 v[{f+4}:{f+7}], v{XA+ks} offset:4096")
        for ft in (1, 2):
            for e in range(2):
                r.append(f"ds_read_b64_tr_b16 v[{f+8+4*ft+2*e}:{f+9+4*ft+2*e}], v{WA+ft} offset:{(16*ks+4*e)*384}")
        return r

    def mfmas(n, b):
        f = FR + 20 * b
        m = []
        for ft in range(3):
            for tt in range(2):
                acc = vr(ACC + (ft * 2 + tt) * 16, 16)
                w, x = vr(f + 8 + 4 * ft, 4), vr(f + 4 * tt, 4)
                A, B = (w, x) if w_is_a else (x, w)
                m.append(f"{MF} {acc}, {A}, {B}, {acc if n else 0}")
        return m
    if OPT.get("c2", 1):
        consumer2(a, 4, reads, mfmas, lambda ks: [XA + ks] + ([WA, WA + 1, WA + 2] if ks == 3 else []), bar_ks=OPT.get("bar_ks", 1))
    else:
        consumer(a, 4, reads, mfmas, [XA, XA + 1, XA + 2, XA + 3, WA, WA + 1, WA + 2], OPT["prebar"], pf=pf)


def chunk_info(q):
    j, pos = divmod(q, 9)
    if pos < 4:
        return ("half", 2 * j, pos)
    if pos == 4:
        return ("mid", j, 0)
    return ("half", 2 * j + 1, pos - 5)


def reg_tile(qa, qb):
    return [(qb if c & 1 else qa) + (c >> 1) for c in range(8)]


def spec_tile(slots):
    t = [0] * 8
    for i, (x, y) in enumerate(slots):
        t[2 * i], t[2 * i + 1] = x, y
    return t


QK_TILES = [
    [reg_tile(5, 9), reg_tile(14, 18), reg_tile(0, 41), reg_tile(23, 27), reg_tile(32, 36),
     spec_tile([(45, 46), (47, 4), (13, 22), (31, 40)])],
    [reg_tile(50, 54), reg_tile(59, 63), reg_tile(68, 72), reg_tile(77, 81), reg_tile(86, 90),
     spec_tile([(48, 95), (49, 58), (67, 76), (85, 94)])],
    [reg_tile(104, 108), reg_tile(113, 117), reg_tile(99, 140), reg_tile(122, 126), reg_tile(131, 135),
     spec_tile([(96, 97), (98, 103), (112, 121), (130, 139)])],
]
for _b in range(3):
    assert sorted(sum(QK_TILES[_b], [])) == list(range(48 * _b, 48 * _b + 48))


def is_regular(t):
    for hh in range(2):
        inf = [chunk_info(t[2 * i + hh]) for i in range(4)]
        if not all(x[0] == "half" and x[1] == inf[0][1] and x[2] == i for i, x in enumerate(inf)):
            return False
    return True


def qk_epilogue(a, b, wf):
    W = f"s[{SRDW}:{SRDW+3}]"
    tmp = FR
    for ft in range(3):
        t = QK_TILES[b][3 * wf + ft]
        A = [ACC + (ft * 2 + tt) * 16 for tt in range(2)]
        if is_regular(t):
            h0, h1 = chunk_info(t[0])[1], chunk_info(t[1])[1]
            if h1 - h0 == 1:
                va = 5
            else:
                va = 6
                a(f"s_mov_b32 s7, {(h1-h0)*IMG}\n v_mad_i32_i24 v6, v2, s7, v3")
            a(f"s_mov_b32 s12, {h0*IMG}\n s_mov_b32 s13, {h0*IMG+4096}")
            for tt in range(2):
                for k in range(8):
                    a(f"v_cvt_pk_bf16_f32 v{A[tt]+k}, v{A[tt]+2*k}, v{A[tt]+2*k+1}")
                    if k == 3:
                        a(f"buffer_store_dwordx4 v[{A[tt]}:{A[tt]+3}], v{va}, {W}, s12 offen offset:{512*tt}")
                a(f"buffer_store_dwordx4 v[{A[tt]+4}:{A[tt]+7}], v{va}, {W}, s13 offen offset:{512*tt}")
        else:
            for i in range(4):
                k0, k1 = chunk_info(t[2 * i]), chunk_info(t[2 * i + 1])
                T = tmp
                tmp += 4
                d00 = f"v{A[0]+4*i}, v{A[0]+4*i+1}"
                d01 = f"v{A[0]+4*i+2}, v{A[0]+4*i+3}"
                d10 = f"v{A[1]+4*i}, v{A[1]+4*i+1}"
                d11 = f"v{A[1]+4*i+2}, v{A[1]+4*i+3}"
                a(f"v_cvt_pk_bf16_f32 v{T}, {d00}\n v_cvt_pk_bf16_f32 v{T+3}, {d11}")
                if k0[0] == k1[0] == "half":
                    a(f"v_cvt_pk_bf16_f32 v{T+1}, {d01}\n v_cvt_pk_bf16_f32 v{T+2}, {d10}")
                elif k0[0] == k1[0] == "mid":
                    a(f"v_cvt_pk_bf16_f32 v{T+1}, {d10}\n v_cvt_pk_bf16_f32 v{T+2}, {d01}")
                else:
                    assert k0[0] == "half" and k1[0] == "mid"
                    a(f"""v_cvt_pk_bf16_f32 v8, {d01}
                    v_cvt_pk_bf16_f32 v9, {d10}
                    v_cndmask_b32 v{T+1}, v8, v9, s[8:9]
                    v_cndmask_b32 v{T+2}, v9, v8, s[8:9]""")

                def const(k, s):
                    if k[0] == "half":
                        return k[1] * IMG + (k[2] >> 1) * 4096 + (k[2] & 1) * 8 + 512 * s
                    return (2 * k[1] + s) * IMG
                if k0[0] == k1[0]:
                    vb = 3 if k0[0] == "half" else 4
                else:
                    vb = 7
                    a("v_cndmask_b32 v7, v3, v4, s[8:9]")
                for s in range(2):
                    c0, c1 = const(k0, s), const(k1, s)
                    a(f"""s_mov_b32 s7, {abs(c1-c0)}
                    s_mov_b32 s{12+s}, {min(c0, c1)}
                    v_mad_u32_u24 v{10+s}, v{2 if c1 >= c0 else 12}, s7, v{vb}
                    buffer_store_dwordx2 v[{T+2*s}:{T+2*s+1}], v{10+s}, {W}, s{12+s} offen""")


def cmul(a, dr, di, xr, xi, yr, yi):
    a(f"""v_mul_f32 v{dr}, v{xr}, v{yr}
    v_mul_f32 v{di}, v{xr}, v{yi}
    v_fma_f32 v{dr}, -v{xi}, v{yi}, v{dr}
    v_fma_f32 v{di}, v{xi}, v{yr}, v{di}""")


def k1(a):
    a.label("k1_kernel")
    stamp(a, 0)
    a("s_cmp_ge_u32 s2, 256\n s_cbranch_scc1 K1_done")
    load_args(a)
    a("""v_lshrrev_b32 v1, 6, v0
    v_and_b32 v0, 63, v0
    s_and_b32 s6, s2, 7
    v_readfirstlane_b32 s5, v1
    s_lshr_b32 s7, s2, 3
    s_cmp_ge_u32 s7, 20
    s_cbranch_scc1 K1_pf
    s_lshr_b32 s3, s6, 1
    s_lshl_b32 s3, s3, 2
    s_and_b32 s4, s7, 3
    s_add_u32 s3, s3, s4
    s_and_b32 s6, s6, 1
    s_mul_i32 s6, s6, 5
    s_lshr_b32 s7, s7, 2
    s_add_u32 s4, s6, s7
    s_cmp_ge_u32 s4, 9
    s_cbranch_scc1 K1_const
    s_cmp_lt_u32 s5, 4
    s_waitcnt lgkmcnt(0)
    s_cbranch_scc1 K1_cons""")
    a("s_sub_u32 s6, s5, 4")
    rows_voff(a, 1, 1152, 8)
    a(f"""s_mul_i32 s68, s3, {128*1152}
    s_add_u32 s69, s68, {32*1152}
    s_add_u32 s70, s68, {64*1152}
    s_add_u32 s71, s68, {96*1152}
    s_mov_b32 s74, 128
    s_lshl_b32 s76, s6, 10""")
    srd(a, SRD1, P_AX, 2048 * 1152)
    srd(a, SRD2A, P_WQKV, 576 * 3456)
    srd(a, SRD2B, P_WQKV, 576 * 3456)
    for u in range(3):
        wrows_parts(a, u, 8, 9, 10)
        a(f"v_mul_u32_u24 v8, 3456, v8\n v_lshl_add_u32 v{2+u}, v9, 4, v8")
    a(f"""s_mul_i32 s72, s6, {8*3456}
    s_mul_i32 s7, s4, 384
    s_add_u32 s72, s72, s7
    s_add_u32 s73, s72, {32*3456}
    s_mov_b32 s75, {64*3456}
    s_mul_i32 s77, s6, 3072
    s_add_u32 s77, s77, 16384
    s_add_u32 s78, s77, 1024
    s_add_u32 s79, s77, 2048""")
    loader(a, False)
    a("s_endpgm")
    a.label("K1_cons")
    srd(a, SRDW, P_WS, WS_END)
    lane_parts(a)
    a("""s_and_b32 s14, s5, 1
    s_lshr_b32 s15, s5, 1
    s_cmp_ge_u32 s4, 6
    s_cbranch_scc1 K1_v""")
    a("""s_sub_u32 s46, s4, 3
    s_cmp_lt_u32 s4, 3
    s_cselect_b32 s46, s4, s46
    s_lshl_b32 s46, s46, 1
    s_add_u32 s46, s46, s15""")
    for var in range(6):
        b, wf = divmod(var, 2)
        if var:
            a(f"s_cmp_eq_u32 s46, {var}")
        for ft in range(3):
            t = [x - 48 * b for x in QK_TILES[b][3 * wf + ft]]
            for hh in range(2):
                val = sum(t[4 * hh + c] << (8 * c) for c in range(4))
                if var:
                    a(f"s_cselect_b32 s{68+2*ft+hh}, {val}, s{68+2*ft+hh}")
                else:
                    a(f"s_mov_b32 s{68+2*ft+hh}, {val}")
    tr_addr(a, 3, 384, 16384)
    a("s_lshl_b32 s7, s14, 13")
    row_addr(a, XA, 1, "s7", 8)
    stamp(a, 1)
    wx_loop(a, True)
    stamp(a, 2)
    a(f"""s_lshr_b32 s6, s3, 1
    s_mul_i32 s6, s6, {CH}
    s_cmp_lt_u32 s4, 3
    s_cselect_b32 s7, {Q_OFF}, {KV_OFF}
    s_add_u32 s6, s6, s7
    s_and_b32 s7, s3, 1
    s_lshl_b32 s7, s7, 1
    s_add_u32 s7, s7, s14
    s_lshl_b32 s12, s7, 10
    s_add_u32 s12, s12, s6
    s_and_b32 s13, s3, 1
    s_lshl_b32 s13, s13, 9
    s_lshl_b32 s7, s14, 3
    s_add_u32 s13, s13, s7
    s_add_u32 s13, s13, s6
    s_add_u32 s13, s13, 8192
    v_lshl_add_u32 v3, v1, 4, s12
    v_lshl_add_u32 v4, v1, 4, s13
    s_mov_b32 s7, {IMG}
    v_mad_i32_i24 v5, v2, s7, v3
    v_xor_b32 v12, 1, v2""")
    for var in range(6):
        if var < 5:
            a(f"s_cmp_lg_u32 s46, {var}\n s_cbranch_scc1 K1_qe{var+1}")
        qk_epilogue(a, *divmod(var, 2))
        stamp(a, 3)
        stamp_store(a, 0, 4)
        a("s_endpgm")
        if var < 5:
            a.label(f"K1_qe{var+1}")
    a.label("K1_v")
    a("s_mul_i32 s46, s15, 3")
    nat_tables(a, 3, 46)
    tr_addr(a, 3, 384, 16384)
    tau(a, 9, 8)
    a("s_lshl_b32 s7, s14, 13")
    row_addr(a, XA, 9, "s7", 8)
    a("""s_sub_u32 s6, s4, 6
    s_mul_i32 s6, s6, 192
    s_lshl_b32 s7, s46, 5
    s_add_u32 s6, s6, s7
    v_add_u32 v3, s6, v1""")
    a(f"s_mov_b32 s7, {IMG}\n v_mul_u32_u24 v8, {2*VG}, v2")
    for ft in range(3):
        a(f"""v_add_u32 v4, {32*ft}, v3
        v_mul_u32_u24 v5, 3641, v4
        v_lshrrev_b32 v5, 16, v5
        v_mul_u32_u24 v6, 18, v5
        v_sub_u32 v6, v4, v6
        v_mad_u32_u24 v5, v5, s7, v8
        v_lshl_add_u32 v{80+ft}, v6, 4, v5""")
    stamp(a, 1)
    wx_loop(a, False)
    stamp(a, 2)
    a(f"""s_lshr_b32 s6, s3, 1
    s_mul_i32 s6, s6, {CH}
    s_and_b32 s7, s3, 1
    s_lshl_b32 s7, s7, 1
    s_add_u32 s7, s7, s14
    s_mul_i32 s7, s7, {8*VG}
    s_add_u32 s12, s6, s7
    s_add_u32 s12, s12, {KV_OFF + 9216}
    s_nop 3""")
    W = f"s[{SRDW}:{SRDW+3}]"
    for ft in range(3):
        for tt in range(2):
            A = ACC + (ft * 2 + tt) * 16
            for k in range(8):
                a(f"v_cvt_pk_bf16_f32 v{A+k}, v{A+2*k}, v{A+2*k+1}")
                if k == 3:
                    a(f"buffer_store_dwordx4 v[{A}:{A+3}], v{80+ft}, {W}, s12 offen offset:{4*tt*VG}")
            a(f"buffer_store_dwordx4 v[{A+4}:{A+7}], v{80+ft}, {W}, s12 offen offset:{(4*tt+1)*VG}")
    stamp(a, 3)
    stamp_store(a, 0, 4)
    a.label("K1_done")
    a("s_endpgm")
    a.label("K1_pf")
    if OPT.get("pf1", 1):
        a(f"""s_sub_u32 s7, s7, 20
        s_lshl_b32 s7, s7, 3
        s_add_u32 s7, s7, s5
        s_mul_i32 s3, s7, 2731
        s_lshr_b32 s3, s3, 16
        s_mul_i32 s4, s3, 24
        s_sub_u32 s4, s7, s4
        s_lshr_b32 s12, s6, 1
        s_lshl_b32 s12, s12, 3
        s_add_u32 s12, s12, s4
        s_mul_i32 s12, s12, {64*1152}
        s_lshl_b32 s13, s3, 7
        s_add_u32 s12, s12, s13
        s_and_b32 s13, s6, 1
        s_mul_i32 s13, s13, 15
        s_add_u32 s13, s13, s4
        s_sub_u32 s13, s13, 8
        s_lshl_b32 s14, s13, 7
        s_mul_i32 s15, s3, {64*3456}
        s_add_u32 s14, s14, s15
        s_cmp_ge_u32 s13, 27
        s_cselect_b32 s14, {576*3456}, s14
        s_cmp_eq_u32 s4, 23
        s_cselect_b32 s14, {576*3456}, s14
        s_cmp_lt_u32 s4, 8
        s_cselect_b32 s12, s12, s14
        s_movk_i32 s13, 512
        s_cselect_b32 s13, s13, {4*64*3456}
        s_movk_i32 s14, 1152
        s_cselect_b32 s14, s14, 3456
        v_mul_u32_u24 v1, s14, v0
        s_waitcnt lgkmcnt(0)""")
        srd_sel(a, SRD1, P_AX, P_WQKV, 2048 * 1152, 576 * 3456)
        a(f"""buffer_load_dword v2, v1, s[{SRD1}:{SRD1+3}], s12 offen
        s_add_u32 s12, s12, s13
        buffer_load_dword v3, v1, s[{SRD1}:{SRD1+3}], s12 offen
        s_add_u32 s12, s12, s13
        s_cmp_lg_u32 s3, 0
        s_cselect_b32 s12, {2048*3456}, s12
        buffer_load_dword v4, v1, s[{SRD1}:{SRD1+3}], s12 offen""")
        if OPT.get("pf2", 1):
            a(f"""v_lshlrev_b32 v1, 7, v0
            s_mul_i32 s12, s6, {256*1152}
            s_mul_i32 s13, s7, {24*128}
            s_add_u32 s12, s12, s13
            s_mul_i32 s13, s7, {54*128}
            s_waitcnt vmcnt(1)""")
            srd(a, SRD2A, P_BX, 2048 * 1152)
            srd(a, SRD2B, P_BRE, 576 * 1152)
            srd(a, SRD1, P_BIM, 576 * 1152)
            a(f"""s_mov_b32 exec_hi, 0x3fffff
            buffer_load_dword v5, v1, s[{SRD2B}:{SRD2B+3}], s13 offen
            buffer_load_dword v6, v1, s[{SRD1}:{SRD1+3}], s13 offen
            s_mov_b64 exec, 0xffffff
            buffer_load_dword v7, v1, s[{SRD2A}:{SRD2A+3}], s12 offen""")
    a("s_endpgm")
    a.label("K1_const")
    a(f"""s_lshl_b32 s6, s3, 3
    s_add_u32 s6, s6, s5
    s_lshr_b32 s7, s6, 2
    s_mul_i32 s7, s7, {IMG}
    s_and_b32 s6, s6, 3
    s_mul_i32 s6, s6, {2*CH}
    s_add_u32 s6, s6, s7
    s_add_u32 s6, s6, {KV_OFF + 9216 + 288}
    s_add_u32 s7, s6, {CH}
    v_lshrrev_b32 v1, 1, v0
    v_mul_u32_u24 v1, {VG}, v1
    v_and_b32 v2, 1, v0
    v_lshl_add_u32 v1, v2, 4, v1
    v_subrev_u32 v2, 1, v2
    v_and_b32 v4, 0x3f803f80, v2
    v_mov_b32 v5, v4
    v_mov_b32 v6, v4
    v_mov_b32 v7, v4
    s_waitcnt lgkmcnt(0)""")
    srd(a, SRDW, P_WS, WS_END)
    a(f"""buffer_store_dwordx4 v[4:7], v1, {W}, s6 offen
    buffer_store_dwordx4 v[4:7], v1, {W}, s7 offen
    s_lshl_b32 s6, s3, 3
    s_add_u32 s6, s6, s5
    s_mul_i32 s6, s6, 1152
    s_add_u32 s6, s6, {ECH_OFF}
    v_lshlrev_b32 v1, 4, v0
    v_mov_b32 v8, -1
    v_mov_b32 v9, -1
    v_mov_b32 v10, -1
    v_mov_b32 v11, -1
    buffer_store_dwordx4 v[8:11], v1, {W}, s6 offen
    s_mov_b64 exec, 0xff
    buffer_store_dwordx4 v[8:11], v1, {W}, s6 offen offset:1024
    s_endpgm""")


def k2(a):
    import k2gen
    k2gen.k2(a)


def out_tiles(a, tiles, srcs=None):
    O = f"s[{SRDO}:{SRDO+3}]"
    for k, (A, so, col) in enumerate(tiles):
        for i in range(4):
            a(f"ds_write_b128 v{6+i}, v[{A+4*i}:{A+4*i+3}] offset:{4096*k}")
        if k:
            a("s_waitcnt lgkmcnt(4)")
        for j in range(4):
            a(f"ds_read_b128 v[{A+4*j}:{A+4*j+3}], v4 offset:{4096*k + 1024*j}")
        if k:
            pA, pso, pcol = tiles[k - 1]
            for j in range(4):
                a(f"buffer_store_dwordx4 v[{pA+4*j}:{pA+4*j+3}], v{10+j}, {O}, s{pso} offen offset:{pcol}")
    pA, pso, pcol = tiles[-1]
    a("s_waitcnt lgkmcnt(0)")
    for j in range(4):
        a(f"buffer_store_dwordx4 v[{pA+4*j}:{pA+4*j+3}], v{10+j}, {O}, s{pso} offen offset:{pcol}")


def out_addr(a, per_wave):
    return f"""s_mul_i32 s7, s5, {per_wave}
    s_add_u32 s7, s7, {STAGE}
    v_and_b32 v3, 7, v1
    v_xor_b32 v3, v3, v2
    v_lshlrev_b32 v3, 4, v3
    v_lshl_add_u32 v3, v1, 7, v3
    v_add_u32 v6, s7, v3
    v_xor_b32 v7, 32, v6
    v_xor_b32 v8, 64, v6
    v_xor_b32 v9, 96, v6
    v_lshrrev_b32 v3, 3, v0
    v_and_b32 v5, 7, v0
    v_xor_b32 v4, v3, v5
    v_lshlrev_b32 v4, 4, v4
    v_lshl_add_u32 v4, v3, 7, v4
    v_add_u32 v4, s7, v4
    v_mul_u32_u24 v10, 4608, v3
    v_lshl_add_u32 v10, v5, 4, v10
    v_add_u32 v11, {8*4608}, v10
    v_add_u32 v12, {16*4608}, v10
    v_add_u32 v13, {24*4608}, v10"""


def k3(a):
    a.label("k3_kernel")
    stamp(a, 0)
    a("s_cmp_ge_u32 s2, 240\n s_cbranch_scc1 K3_done")
    load_args(a)
    a("""v_lshrrev_b32 v1, 6, v0
    v_and_b32 v0, 63, v0
    s_and_b32 s6, s2, 7
    v_readfirstlane_b32 s5, v1
    s_lshr_b32 s47, s2, 3
    s_lshl_b32 s3, s6, 1
    s_and_b32 s7, s47, 1
    s_add_u32 s3, s3, s7
    s_lshr_b32 s4, s47, 1
    s_sub_u32 s12, s47, 6
    s_lshl_b32 s13, s6, 2
    s_and_b32 s7, s12, 3
    s_add_u32 s13, s13, s7
    s_lshr_b32 s12, s12, 2
    s_cmp_lt_u32 s47, 6
    s_cselect_b32 s3, s3, s13
    s_cselect_b32 s4, s4, s12
    s_cmp_lt_u32 s5, 4
    s_waitcnt lgkmcnt(0)
    s_cbranch_scc1 K3_cons""")
    a("s_sub_u32 s6, s5, 4")
    srd(a, SRD1, P_WS, WS_END)
    a(f"""s_lshl_b32 s76, s6, 10
    s_cmp_ge_u32 s47, 6""")
    srd_sel(a, SRD2A, P_CRE, P_WO, 576 * 1152, 576 * 1152)
    srd_sel(a, SRD2B, P_CIM, P_WO, 576 * 1152, 576 * 1152)
    a("s_cbranch_scc1 K3_ld_r")
    rows_voff(a, 1, 1152, 8)
    a(f"""s_mul_i32 s68, s3, {128*1152}
    s_add_u32 s68, s68, {O_OFF}
    s_add_u32 s69, s68, {32*1152}
    s_add_u32 s70, s68, {64*1152}
    s_add_u32 s71, s68, {96*1152}
    s_mov_b32 s74, 128""")
    for u in range(3):
        wrows_parts(a, u, 8, 9, 10)
        a(f"""v_lshlrev_b32 v9, 4, v9
        v_mul_u32_u24 v10, 1152, v8
        v_add_u32 v{2+u}, v9, v10
        v_lshrrev_b32 v10, 1, v8
        v_mul_u32_u24 v10, 18, v10
        v_and_b32 v8, 1, v8
        v_add3_u32 v8, v8, v10, 16
        v_mul_u32_u24 v10, 1152, v8
        v_add_u32 v{5+u}, v9, v10""")
    a(f"""s_lshl_b32 s72, s6, 3
    s_and_b32 s7, s6, 2
    s_add_u32 s72, s72, s7
    s_mul_i32 s72, s72, 1152
    s_mul_i32 s7, s4, 384
    s_add_u32 s72, s72, s7
    s_add_u32 s73, s72, {36*1152}
    s_mul_i32 s80, s6, {72*1152}
    s_add_u32 s80, s80, s7
    s_add_u32 s81, s80, {4*72*1152}
    s_mov_b32 s75, {72*1152}
    s_mul_i32 s77, s6, 3072
    s_add_u32 s77, s77, 16384
    s_add_u32 s78, s77, 1024
    s_add_u32 s79, s77, 2048
    s_branch K3_ld_go""")
    a.label("K3_ld_r")
    rows_voff(a, 2, 1152, 8)
    a(f"""v_add_u32 v3, {32*1152}, v2
    v_add_u32 v4, {64*1152}, v2
    v_mov_b32 v5, v2
    v_mov_b32 v6, v3
    v_mov_b32 v7, v4
    v_lshrrev_b32 v8, 3, v0
    v_mul_u32_u24 v8, {PLB}, v8
    v_lshrrev_b32 v9, 2, v0
    v_and_b32 v9, 4, v9
    v_and_b32 v10, 7, v0
    v_xor_b32 v9, v9, v10
    s_lshl_b32 s7, s6, 3
    v_add_u32 v9, s7, v9
    v_lshl_add_u32 v1, v9, 4, v8
    s_mul_i32 s68, s3, {4*SEGB}
    s_add_u32 s68, s68, {XT_OFF}
    s_add_u32 s69, s68, {32*16}
    s_add_u32 s70, s68, {576*16}
    s_add_u32 s71, s68, {608*16}
    s_mov_b32 s74, {64*16}
    s_mul_i32 s72, s4, {96*1152}
    s_mov_b32 s73, s72
    s_add_u32 s80, s72, {8*128}
    s_mov_b32 s81, s80
    s_mov_b32 s75, 128
    s_add_u32 s77, s76, 16384
    s_add_u32 s78, s77, 4096
    s_add_u32 s79, s77, 8192""")
    a.label("K3_ld_go")
    loader(a, True)
    a("s_endpgm")
    a.label("K3_cons")
    srd(a, SRDO, P_OUT, 2048 * 4608)
    if OPT["stamps"]:
        srd(a, SRDW, P_WS, WS_END)
    lane_parts(a)
    O = f"s[{SRDO}:{SRDO+3}]"
    a("""s_cmp_ge_u32 s47, 6
    s_cbranch_scc1 K3_r
    s_and_b32 s14, s5, 1
    s_lshr_b32 s15, s5, 1
    s_mul_i32 s46, s15, 3""")
    nat_tables(a, 3, 46)
    tr_addr(a, 3, 384, 16384)
    a("s_lshl_b32 s7, s14, 13")
    row_addr(a, XA, 1, "s7", 8)
    a(out_addr(a, 24576))
    a(f"""s_lshl_b32 s6, s3, 1
    s_add_u32 s6, s6, s14
    s_mul_i32 s6, s6, {64*4608}
    s_mul_i32 s7, s4, 768
    s_add_u32 s6, s6, s7
    s_mul_i32 s7, s15, 384
    s_add_u32 s12, s6, s7
    s_add_u32 s13, s12, {32*4608}""")
    stamp(a, 1)
    wx_loop(a, True)
    stamp(a, 2)
    a("s_nop 7")
    out_tiles(a, [(ACC + (ft * 2 + tt) * 16, 12 + tt, 128 * ft) for ft in range(3) for tt in range(2)])
    stamp(a, 3)
    stamp_store(a, 2, 4)
    a("s_endpgm")
    a.label("K3_r")
    a("""s_cmp_eq_u32 s5, 3
    s_cbranch_scc0 K3_r2""")
    for _ in range(9):
        a("s_barrier")
    a("s_endpgm")
    a.label("K3_r2")
    a(f"""s_mul_i32 s6, s4, 96
    s_lshl_b32 s7, s5, 5
    s_add_u32 s46, s6, s7
    v_lshlrev_b32 v3, 3, v2
    s_lshl_b32 s6, s46, 1
    v_add_u32 v3, s6, v3
    s_lshl_b32 s6, s3, 6
    v_add_u32 v4, s6, v1
    v_mul_u32_u24 v4, 1152, v4
    v_add_u32 v4, v4, v3
    v_add_u32 v5, {32*1152}, v4""")
    for i in range(4):
        a(f"global_load_dwordx2 v[{16+2*i}:{17+2*i}], v3, s[{P_DSK}:{P_DSK+1}] offset:{16*i}")
    for tt in range(2):
        for i in range(4):
            a(f"global_load_dwordx2 v[{24+8*tt+2*i}:{25+8*tt+2*i}], v{4+tt}, s[{P_BX}:{P_BX+1}] offset:{16*i}")
    a(f"""v_bfe_u32 v6, v0, 4, 1
    v_mul_u32_u24 v6, 320, v6
    v_lshl_add_u32 v6, v2, 10, v6
    v_and_b32 v7, 2, v0
    v_lshl_add_u32 v6, v7, 6, v6
    v_and_b32 v7, 12, v0
    v_lshl_add_u32 v6, v7, 2, v6
    v_and_b32 v7, 1, v0
    v_lshl_add_u32 v{WA}, v7, 3, v6
    v_xor_b32 v{WA+1}, 64, v{WA}""")
    a("s_lshl_b32 s7, s5, 12\n s_add_u32 s7, s7, 16384")
    row_addr(a, XA, 1, "s7", 8)
    a(out_addr(a, 8192))
    a(f"""s_mul_i32 s6, s3, {64*4608}
    s_lshl_b32 s7, s46, 2
    s_add_u32 s6, s6, s7
    s_add_u32 s12, s6, 2304
    s_add_u32 s13, s12, {32*4608}
    s_mov_b32 s14, 0xffff0000""")
    fill = ["s_waitcnt vmcnt(0)"]
    SK = 192
    for k in range(8):
        fill += [f"v_lshlrev_b32 v{40+2*k}, 16, v{16+k}", f"v_and_b32 v{41+2*k}, s14, v{16+k}"]
    for tt in range(2):
        for k in range(8):
            A = SK + 16 * tt + 2 * k
            fill += [f"v_lshlrev_b32 v{A}, 16, v{24+8*tt+k}", f"v_and_b32 v{A+1}, s14, v{24+8*tt+k}",
                     f"v_mul_f32 v{A}, v{A}, v{40+2*k}", f"v_mul_f32 v{A+1}, v{A+1}, v{41+2*k}"]

    def reads(ks, b):
        f = FR + 12 * b
        im, k4 = divmod(ks, 4)
        r = [f"ds_read_b128 v[{f}:{f+3}], v{XA+k4} offset:{12288*im}"]
        for tt in range(2):
            for e in range(2):
                r.append(f"ds_read_b64_tr_b16 v[{f+4+4*tt+2*e}:{f+5+4*tt+2*e}], v{WA+e} offset:{(8*im+2*k4)*1024+512*tt}")
        return r

    def mfmas(n, b):
        f = FR + 12 * b
        return [f"{MF} {vr(ACC+16*tt, 16)}, {vr(f, 4)}, {vr(f+4+4*tt, 4)}, {vr(ACC+16*tt, 16) if n else 0}" for tt in range(2)]
    stamp(a, 1)
    consumer2(a, 8, reads, mfmas, lambda ks: ([XA + ks - 4] if ks >= 4 else []) + ([WA, WA + 1] if ks == 7 else []),
              depth=2, bar_ks=OPT.get("bar_ks8", 3), per_gap=3, fill=fill, fill_from=10)
    assert not fill
    stamp(a, 2)
    a("s_nop 10")
    for i in range(32):
        a(f"v_add_f32 v{ACC+i}, v{ACC+i}, v{SK+i}")
    out_tiles(a, [(ACC + 16 * tt, 12 + tt, 0) for tt in range(2)])
    stamp(a, 3)
    stamp_store(a, 2, 4)
    a.label("K3_done")
    a("s_endpgm")


HEADER = """; concat_heads / MHA block / S5 SSM: three launches
; @launch kernel=k1_kernel grid=(256,1,1) block=(512,1,1) lds=163840
; @launch kernel=k2_kernel grid=(448,1,1) block=(512,1,1) lds=81920
; @launch kernel=k3_kernel grid=(240,1,1) block=(512,1,1) lds=163840
.amdgcn_target "amdgcn-amd-amdhsa--gfx950"
.text
"""


def desc(name, vg):
    return f""".amdhsa_kernel {name}
  .amdhsa_next_free_vgpr {vg}
  .amdhsa_next_free_sgpr 102
  .amdhsa_accum_offset {vg}
  .amdhsa_group_segment_fixed_size 0
  .amdhsa_kernarg_size 120
  .amdhsa_user_sgpr_count 2
  .amdhsa_user_sgpr_kernarg_segment_ptr 1
  .amdhsa_system_sgpr_workgroup_id_x 1
.end_amdhsa_kernel
"""


def build(**opt):
    OPT.update(opt)
    out = HEADER
    errs = []
    for name, fn in (("k1_kernel", k1), ("k2_kernel", k2), ("k3_kernel", k3)):
        a = Asm()
        fn(a)
        wt = {0: "", 1: " sc0 sc1", 2: " nt", 3: " sc1"}[OPT.get("wt" + name[1], 0)]
        a.lines = [ln + wt if ln.startswith("buffer_store") else ln for ln in a.lines]
        errs += check(a.lines, name)
        for body in getattr(a, "loops", []):
            errs += check(body + body, name + " loop")
        out += f".globl {name}\n.p2align 8\n.type {name},@function\n" + a.text()
    out += '.section .rodata,"a"\n'
    for name, vg in (("k1_kernel", 256), ("k2_kernel", 128), ("k3_kernel", 256)):
        out += ".p2align 6\n" + desc(name, vg)
    return out, sorted(set(errs))


if __name__ == "__main__":
    opts = {}
    path = "concat_heads__mha_block__ssm_conv_s5__prompt.s"
    for arg in sys.argv[1:]:
        if "=" in arg:
            k, v = arg.split("=")
            opts[k] = int(v)
        else:
            path = arg
    text, errs = build(**opts)
    for e in errs:
        print("HAZARD", e)
    open(path, "w").write(text)
    print("wrote", path, len(text), "bytes;", len(errs), "hazards")
```

```python
import gen as G
from asmlib import Asm, vr

MF = "v_mfma_f32_32x32x16_bf16"
MF8 = "v_mfma_f32_32x32x8bf16_1k"
OA, PP, KF, KX, VF, QB, AK, AX, AV, NK, NX, NV = 48, 64, 72, 80, 88, 104, 112, 113, 114, 115, 116, 117


def S(q, j):
    return 16 + 16 * (j & 1)


def k2(a):
    a.label("k2_kernel")
    G.stamp(a, 0)
    a("""s_cmp_ge_u32 s2, 448
    s_cbranch_scc1 K2_done""")
    G.load_args(a)
    a("""v_lshrrev_b32 v1, 6, v0
    v_and_b32 v0, 63, v0
    s_cmp_ge_u32 s2, 256
    v_readfirstlane_b32 s5, v1
    s_cbranch_scc1 K2_ssm""")
    attention(a)
    ssm(a)


def attention(a):
    OPT, IMG, CH, VG = G.OPT, G.IMG, G.CH, G.VG
    stamp, stampc = G.stamp, G.stampc
    W = f"s[{G.SRDW}:{G.SRDW+3}]"
    a(f"""s_and_b32 s3, s2, 7
    s_lshl_b32 s3, s3, 2
    s_bfe_u32 s6, s2, 0x20003
    s_add_u32 s3, s3, s6
    s_lshr_b32 s4, s2, 5
    s_mul_i32 s75, s3, {IMG}
    s_lshl_b32 s13, s5, 10
    s_add_u32 s78, s5, 16
    s_min_u32 s78, s78, 18
    s_lshl_b32 s78, s78, 10
    s_mov_b32 s12, s75
    s_mov_b32 s76, 0
    v_lshlrev_b32 v3, 4, v0""")
    G.lane_parts(a)
    a(f"""s_mul_i32 s14, s4, {CH}
    s_add_u32 s14, s14, s75
    s_add_u32 s14, s14, {G.Q_OFF}
    v_lshlrev_b32 v4, 4, v1
    v_lshl_add_u32 v5, v2, 12, v4
    s_lshl_b32 s6, s5, 9
    v_add_u32 v5, s6, v5
    s_lshr_b32 s6, s5, 2
    s_lshl_b32 s6, s6, 9
    s_and_b32 s7, s5, 3
    s_lshl_b32 s7, s7, 2
    s_add_u32 s6, s6, s7
    s_add_u32 s6, s6, 8192
    v_add_u32 v4, s6, v4
    v_add_u32 v6, s13, v3
    v_add_u32 v7, s78, v3
    s_waitcnt lgkmcnt(0)""")
    G.srd(a, G.SRDW, G.P_WS, G.WS_END)

    def dma(c, k):
        sl, g = (c & 3) * CH, c * CH
        if k < 2:
            return f"""s_add_u32 m0, s13, {sl + 8192*k}
            s_add_u32 s7, s75, {g + 8192*k}
            buffer_load_dwordx4 v6, {W}, s7 offen lds"""
        return f"""s_add_u32 m0, s78, {sl}
        s_add_u32 s7, s75, {g}
        buffer_load_dwordx4 v7, {W}, s7 offen lds"""

    a(f"""buffer_load_dwordx4 v[{QB}:{QB+3}], v5, {W}, s14 offen
    buffer_load_dword v{QB+4}, v4, {W}, s14 offen""")
    for c in range(4):
        for k in range(3):
            a(dma(c, k))
        if c == 1:
            stamp(a, 1)
            a(f"""v_and_b32 v11, 19, v1
            v_and_b32 v12, 4, v1
            v_lshl_add_u32 v11, v12, 1, v11
            v_and_b32 v12, 8, v1
            v_lshrrev_b32 v12, 1, v12
            v_add_u32 v11, v11, v12
            v_lshlrev_b32 v{AX}, 4, v11
            v_lshl_add_u32 v{AK}, v2, 12, v{AX}
            v_add_u32 v{AX}, 8192, v{AX}""")
            a(f"""v_min_u32 v12, 19, v1
            v_cmp_gt_u32 vcc, 16, v1
            v_cmp_eq_u32 s[70:71], 28, v1
            v_mul_u32_u24 v{AV}, {VG}, v2
            v_cndmask_b32 v12, v12, v11, vcc
            s_mov_b32 s72, 0xffff0000
            v_cndmask_b32 v12, v12, 18, s[70:71]
            v_lshl_add_u32 v{AV}, v12, 4, v{AV}
            v_add_u32 v{AV}, 9216, v{AV}
            v_add_u32 v{NK}, {3*CH}, v{AK}
            v_add_u32 v{NX}, {3*CH}, v{AX}
            v_add_u32 v{NV}, {3*CH}, v{AV}
            s_mov_b32 s70, {G.f2u(G.QSCALE)}""")
            for i in range(16):
                a(f"v_mov_b32 v{OA+i}, 0")
            a("s_waitcnt vmcnt(6)")
            for q in (QB, QB + 1, QB + 2, QB + 3, QB + 4):
                a(f"""v_lshlrev_b32 v12, 16, v{q}
                v_and_b32 v13, s72, v{q}
                v_mul_f32 v12, s70, v12
                v_mul_f32 v13, s70, v13
                v_cvt_pk_bf16_f32 v{q}, v12, v13""")
            for q in range(1):
                x = QB + 8 * q + 4
                a(f"""v_cndmask_b32 v{x}, v{x}, 0, s[8:9]
                v_mov_b32 v{x+1}, 0
                v_mov_b32 v{x+2}, 0
                v_mov_b32 v{x+3}, v{x}""")
    a("s_waitcnt vmcnt(6)\n s_barrier")
    stamp(a, 2)
    stampc(a, 5)

    def ad(lo, hi, c, off):
        sl = c & 3
        return (f"v{hi} offset:{off}" if sl == 3 else f"v{lo} offset:{sl * CH + off}")

    def rdK(j):
        return f"ds_read_b128 {vr(KF + 4*(j & 1), 4)}, {ad(AK, NK, j >> 3, (j & 7) * 512)}"

    def rdX(u):
        return f"ds_read_b128 {vr(KX + 4*(u & 1), 4)}, {ad(AX, NX, u >> 1, (u & 1) * 512)}"

    def rdV(j, u):
        return f"ds_read_b128 {vr(VF + 8*(j & 1) + 4*u, 4)}, {ad(AV, NV, j >> 3, (4 * (j & 7) + 2 * u) * VG)}"

    def mA(q, j):
        return f"{MF} {vr(S(q, j), 16)}, {vr(KF + 4*(j & 1), 4)}, {vr(QB + 8*q, 4)}, 0"

    def mB(q, j):
        kx = KX + 4 * ((j >> 2) & 1) + 2 * ((j >> 1) & 1)
        return f"{MF8} {vr(S(q, j), 16)}, {vr(kx, 2)}, {vr(QB + 8*q + 4 + 2*(j & 1), 2)}, {vr(S(q, j), 16)}"

    def mP(q, j, u):
        o = vr(OA + 16 * q, 16)
        return f"{MF} {o}, {vr(VF + 8*(j & 1) + 4*u, 4)}, {vr(PP + 8*q + 4*u, 4)}, {o}"

    a(f"""{rdK(0)}
    {rdX(0)}
    {rdK(1)}
    {rdV(0, 0)}
    {rdV(0, 1)}
    s_waitcnt lgkmcnt(3)
    {mA(0, 0)}
    {mB(0, 0)}
    s_waitcnt lgkmcnt(0)
    s_nop 8""")
    a(".p2align 3")
    pat = "A k v0 e e e e P1 v1 x e e e e B d e e c c c c e e P0 e e e e w n c c c c"
    for jj in range(64):
        c8, j8 = divmod(jj, 8)
        last = jj == 63
        s, P = S(0, jj), PP
        ne = nc = 0
        for tok in pat.split():
            if tok == "e":
                a(f"v_exp_f32 v{s+ne}, v{s+ne}")
                ne += 1
            elif tok == "c":
                a(f"v_cvt_pk_bf16_f32 v{P+nc}, v{s+2*nc}, v{s+2*nc+1}")
                nc += 1
            elif tok == "A" and not last:
                a(mA(0, jj + 1))
            elif tok == "B" and not last:
                a(mB(0, jj + 1))
            elif tok == "P1" and jj:
                a(mP(0, jj - 1, 1))
            elif tok == "P0":
                a(mP(0, jj, 0))
            elif tok == "k" and jj + 2 < 64:
                a(rdK(jj + 2))
            elif tok == "v0" and not last:
                a(rdV(jj + 1, 0))
            elif tok == "v1" and not last:
                a(rdV(jj + 1, 1))
            elif tok == "x" and jj % 4 == 0 and jj < 60:
                a(rdX(jj // 4 + 1))
            elif tok == "d" and j8 < 3 and 1 <= c8 <= 4:
                a(dma(c8 + 3, j8))
            elif tok == "w" and not last:
                if j8 == 7 and c8 <= 5:
                    a(f"s_waitcnt vmcnt({3 if c8 <= 4 else 0}) lgkmcnt(0)")
                else:
                    a("s_waitcnt lgkmcnt(0)")
            elif tok == "n" and not last:
                a("s_barrier" if j8 == 7 and c8 <= 5 else "s_nop 0")
    a(f"s_nop 1\n{mP(0, 63, 1)}")
    a.loops = getattr(a, "loops", [])
    stamp(a, 3)
    stampc(a, 6)
    a(f"""s_lshl_b32 s6, s4, 8
    s_lshl_b32 s7, s5, 5
    s_add_u32 s6, s6, s7
    v_add_u32 v4, s6, v1
    v_mul_u32_u24 v4, 1152, v4
    v_lshl_add_u32 v5, v2, 4, v4
    s_lshl_b32 s12, s3, 5
    s_add_u32 s12, s12, {G.O_OFF}
    s_lshl_b32 s13, s3, 2
    s_add_u32 s13, s13, {G.O_OFF + 1024}
    s_mov_b32 s14, {G.f2u(2.0**-60)}
    s_mov_b32 s15, {G.f2u(2.0**60)}
    s_movk_i32 s46, 0x207""")
    a(f"""v_cndmask_b32 v6, v{OA+10}, v{OA+12}, s[8:9]
    v_add_f32 v7, |v{OA}|, |v{OA+1}|""")
    for i in range(2, 10):
        a(f"v_add_f32 v7, v7, |v{OA+i}|")
    a(f"""v_cmp_nle_f32 vcc, s14, v6
    v_cmp_lt_f32 s[68:69], s15, v6
    v_cmp_class_f32 s[70:71], v7, s46
    s_or_b64 vcc, vcc, s[68:69]
    s_or_b64 vcc, vcc, s[70:71]
    {"s_branch K2_slow" if OPT.get("slow") else "s_cbranch_vccnz K2_slow"}""")
    a.label("K2_fin")
    a("v_rcp_f32 v6, v6\n s_nop 0")
    for i in range(10):
        a(f"v_mul_f32 v{OA+i}, v6, v{OA+i}")
    for k in range(5):
        a(f"v_cvt_pk_bf16_f32 v{16+k}, v{OA+2*k}, v{OA+2*k+1}")
    a(f"""buffer_store_dwordx4 v[16:19], v5, {W}, s12 offen
    s_mov_b64 exec, 0xffffffff
    buffer_store_dword v20, v4, {W}, s13 offen""")
    stamp(a, 4)
    G.stamp_store(a, 1, 7)
    a.label("K2_done")
    a("s_endpgm")
    a.label("K2_slow")
    for ps in range(2):
        a("s_mov_b32 s6, 0")
        if ps == 0:
            a("v_mov_b32 v7, 0xff800000")
        else:
            for i in range(16):
                a(f"v_mov_b32 v{OA+i}, 0")
        a.label(f"K2_sl{ps}")
        st = len(a.lines)
        a(f"""s_lshr_b32 s7, s6, 2
        s_mul_i32 s7, s7, {CH}
        s_add_u32 s7, s7, s75
        s_and_b32 s68, s6, 3
        s_mul_i32 s70, s68, {8*VG}
        s_add_u32 s70, s70, s7
        s_lshr_b32 s69, s68, 1
        s_lshl_b32 s69, s69, 9
        s_add_u32 s69, s69, s7
        s_bitcmp1_b32 s6, 0
        s_cselect_b32 s71, 8, 0
        s_add_u32 s69, s69, s71
        s_lshl_b32 s68, s68, 10
        s_add_u32 s68, s68, s7
        buffer_load_dwordx4 {vr(KF, 4)}, v{AK}, {W}, s68 offen
        buffer_load_dwordx4 {vr(KF + 4, 4)}, v{AK}, {W}, s68 offen offset:512
        buffer_load_dwordx2 {vr(KX, 2)}, v{AX}, {W}, s69 offen""")
        if ps:
            for i in range(4):
                a(f"buffer_load_dwordx4 {vr(VF + 4*i, 4)}, v{AV}, {W}, s70 offen offset:{2*i*VG}")
        a(f"s_waitcnt vmcnt(0)\n{mA(0, 0)}\n{mA(0, 1)}\n{mB(0, 0)}\n{mB(0, 1)}\n s_nop 15")
        for j in range(2):
            s = S(0, j)
            if ps == 0:
                for i in range(0, 16, 2):
                    a(f"v_max3_f32 v7, v7, v{s+i}, v{s+i+1}")
            else:
                for i in range(16):
                    a(f"v_sub_f32 v{s+i}, v{s+i}, v7")
                for i in range(16):
                    a(f"v_exp_f32 v{s+i}, v{s+i}")
                a("s_nop 0")
                for k in range(8):
                    a(f"v_cvt_pk_bf16_f32 v{PP+k}, v{s+2*k}, v{s+2*k+1}")
                a(f"s_nop 1\n{mP(0, j, 0)}\n{mP(0, j, 1)}")
        a(f"""s_add_u32 s6, s6, 1
        s_cmp_lt_u32 s6, 32
        s_cbranch_scc1 K2_sl{ps}""")
        a.loops.append(a.lines[st:])
        if ps == 0:
            a("""v_mov_b32 v8, v7
            s_nop 1
            v_permlane32_swap_b32 v7, v8
            s_nop 1
            v_max_f32 v7, v7, v8""")
    a(f"""s_nop 15
    v_cndmask_b32 v6, v{OA+10}, v{OA+12}, s[8:9]
    s_branch K2_fin""")


def cstep(a, nr, ni, lr, li, er, ei, xr, xi):
    a(f"""v_fma_f32 v{nr}, v{lr}, v{er}, v{xr}
    v_fma_f32 v{ni}, v{lr}, v{ei}, v{xi}
    v_fma_f32 v{nr}, -v{li}, v{ei}, v{nr}
    v_fma_f32 v{ni}, v{li}, v{er}, v{ni}""")


def ssm(a):
    OPT, PLB = G.OPT, G.PLB
    stamp = G.stamp
    ST = 32768
    W = f"s[{G.SRDW}:{G.SRDW+3}]"
    ACC, FR, XA, WA = 64, 32, 24, 28
    a.label("K2_ssm")
    a(f"""s_sub_u32 s7, s2, 256
    s_and_b32 s6, s7, 7
    s_lshr_b32 s47, s7, 3
    s_lshl_b32 s3, s6, 2
    s_and_b32 s7, s47, 3
    s_add_u32 s3, s3, s7
    s_lshr_b32 s4, s47, 2
    s_setprio {OPT.get("prio", 0)}
    s_cmp_ge_u32 s5, 4
    s_cbranch_scc1 K2_done
    s_cmp_lt_u32 s5, 3
    s_waitcnt lgkmcnt(0)
    s_cbranch_scc1 K2_sc""")
    G.srd(a, G.SRD1, G.P_BX, 2048 * 1152)
    G.srd(a, G.SRD2A, G.P_BRE, 576 * 1152)
    G.srd(a, G.SRD2B, G.P_BIM, 576 * 1152)
    a("s_mov_b32 s6, 0")
    G.rows_voff(a, 1, 1152, 8)
    a("s_mov_b32 s6, 1")
    G.rows_voff(a, 2, 1152, 8)
    a(f"""s_mul_i32 s68, s3, {64*1152}
    s_mul_i32 s69, s4, {96*1152}""")

    def issue(st):
        base = (st & 1) * ST
        for i in range(32):
            d, so, row = (G.SRD1, 68, 8 * i) if i < 8 else ((G.SRD2A, 69, 8 * (i - 8)) if i < 20 else (G.SRD2B, 69, 8 * (i - 20)))
            if st == 1 and i == 31:
                a("s_waitcnt vmcnt(60)")
            a(f"""s_mov_b32 m0, {base + 1024*i}
            s_add_u32 s7, s{so}, {(row & ~8) * 1152 + 128*st}
            buffer_load_dwordx4 v{1 + (i & 1)}, s[{d}:{d+3}], s7 offen lds""")
    issue(0)
    issue(1)
    for st in range(9):
        a(f"s_waitcnt vmcnt({32 if st == 0 else 0})\n s_barrier")
        if 1 <= st <= 7:
            issue(st + 1)
    if OPT.get("k3pf", 1):
        a(f"""v_lshlrev_b32 v1, 7, v0
        s_mul_i32 s6, s47, {216*128}""")
        for p in (G.P_CRE, G.P_CIM, G.P_WO):
            G.srd(a, G.SRD1, p, 576 * 1152)
            for i in range(4):
                if i == 3:
                    a("s_mov_b64 exec, 0xffffff")
                a(f"s_add_u32 s7, s6, {8192*i}\n buffer_load_dword v2, v1, s[{G.SRD1}:{G.SRD1+3}], s7 offen")
            a("s_mov_b64 exec, -1")
    a("s_endpgm")
    a.label("K2_sc")
    G.srd(a, G.SRDW, G.P_WS, G.WS_END)
    G.lane_parts(a)
    PR = 8
    a(f"""s_mul_i32 s46, s4, 96
    s_lshl_b32 s6, s5, 5
    s_add_u32 s46, s46, s6
    v_add_u32 v3, s46, v1
    v_lshlrev_b32 v3, 1, v3
    global_load_ushort v{PR}, v3, s[{G.P_LRE}:{G.P_LRE+1}]
    global_load_ushort v{PR+1}, v3, s[{G.P_LIM}:{G.P_LIM+1}]
    global_load_ushort v{PR+2}, v3, s[{G.P_LDT}:{G.P_LDT+1}]
    v_and_b32 v5, 3, v1
    v_lshrrev_b32 v4, 3, v1
    v_lshl_add_u32 v5, v4, 2, v5
    v_and_b32 v4, 4, v1
    v_lshl_add_u32 v5, v4, 3, v5""")
    G.row_addr(a, XA, 5, "0", 4)
    a("s_lshl_b32 s7, s5, 12\n s_add_u32 s7, s7, 8192")
    G.row_addr(a, WA, 1, "s7", 4)
    a0, a = a, Asm()
    p = PR
    a(f"""s_mov_b32 s12, {G.f2u(G.LOG2E)}
    s_waitcnt vmcnt(0)
    v_lshlrev_b32 v{p}, 16, v{p}
    v_lshlrev_b32 v{p+1}, 16, v{p+1}
    v_lshlrev_b32 v{p+2}, 16, v{p+2}
    v_mul_f32 v{p+2}, s12, v{p+2}
    v_exp_f32 v{p+2}, v{p+2}
    s_nop 0
    v_cvt_pk_bf16_f32 v{p+2}, v{p+2}, v{p+2}
    v_lshlrev_b32 v{p+2}, 16, v{p+2}
    v_mul_f32 v{p+3}, v{p+2}, v{p}
    v_mul_f32 v{p+2}, v{p+2}, v{p+1}
    v_mul_f32 v{p+3}, s12, v{p+3}
    v_mul_f32 v{p+2}, 0.15915494309189532, v{p+2}
    v_exp_f32 v{p+3}, v{p+3}
    v_fract_f32 v{p+2}, v{p+2}
    v_cos_f32 v{p+4}, v{p+2}
    v_sin_f32 v{p+5}, v{p+2}
    v_mul_f32 v{p+12}, v{p}, v{p}
    v_mul_f32 v{p+4}, v{p+4}, v{p+3}
    v_mul_f32 v{p+5}, v{p+5}, v{p+3}
    v_fma_f32 v{p+12}, v{p+1}, v{p+1}, v{p+12}
    v_rcp_f32 v{p+12}, v{p+12}
    v_add_f32 v{p+13}, -1.0, v{p+4}
    v_mul_f32 v{p+10}, v{p+13}, v{p}
    v_mul_f32 v{p+11}, v{p+5}, v{p}
    v_add_f32 v{p+12}, v{p+12}, v{p+12}
    v_fma_f32 v{p+10}, v{p+5}, v{p+1}, v{p+10}
    v_fma_f32 v{p+11}, -v{p+13}, v{p+1}, v{p+11}
    v_mul_f32 v{p+10}, v{p+10}, v{p+12}
    v_mul_f32 v{p+11}, v{p+11}, v{p+12}""")
    G.cmul(a, p + 12, p + 13, p + 4, p + 5, p + 4, p + 5)
    G.cmul(a, p + 14, p + 15, p + 12, p + 13, p + 12, p + 13)
    G.cmul(a, p + 12, p + 13, p + 14, p + 15, p + 14, p + 15)
    G.cmul(a, p + 14, p + 15, p + 12, p + 13, p + 12, p + 13)
    G.cmul(a, p + 6, p + 7, p + 14, p + 15, p + 14, p + 15)
    G.cmul(a, p + 8, p + 9, p + 6, p + 7, p + 6, p + 7)
    fill, a = a.lines, a0
    LR, LI, L32R, L32I, L64R, L64I, CR, CI = p + 4, p + 5, p + 6, p + 7, p + 8, p + 9, p + 10, p + 11

    def reads(ks, b):
        f = FR + 16 * b
        return [f"ds_read_b128 {vr(f, 4)}, v{XA+ks}", f"ds_read_b128 {vr(f+8, 4)}, v{WA+ks}",
                f"ds_read_b128 {vr(f+12, 4)}, v{WA+ks} offset:12288", f"ds_read_b128 {vr(f+4, 4)}, v{XA+ks} offset:2048"]

    def acc(tt, im):
        return ACC + 32 * im + 16 * tt

    def mfmas(n, b):
        f = FR + 16 * b
        return [f"{MF} {vr(acc(tt, im), 16)}, {vr(f+4*tt, 4)}, {vr(f+8+4*im, 4)}, {vr(acc(tt, im), 16) if n else 0}"
                for tt in range(2) for im in range(2)]
    stamp(a, 1)
    G.consumer(a, 4, reads, mfmas, [XA + i for i in range(4)] + [WA + i for i in range(4)], 2, fill=fill, fill_from=4, ring=2, stage=ST)
    assert not fill
    stamp(a, 2)
    a(f"""v_lshlrev_b32 v3, 3, v1
    s_mul_i32 s13, s3, 4608
    s_lshl_b32 s6, s46, 3
    s_add_u32 s15, s6, {G.ECH_OFF}
    s_add_u32 s13, s13, s15
    v_mul_u32_u24 v4, {4*PLB}, v2
    v_lshl_add_u32 v4, v1, 4, v4
    s_mul_i32 s47, s3, {8*PLB}
    s_lshl_b32 s6, s46, 4
    s_add_u32 s47, s47, s6
    s_add_u32 s47, s47, {G.XT_OFF}""")
    a(f"s_setprio {OPT.get('prio2', 1)}")
    e = (ACC, ACC + 32)
    for r in range(1, 32):
        n_ = (20, 21) if r & 1 else (22, 23)
        cstep(a, n_[0], n_[1], LR, LI, e[0], e[1], ACC + r, ACC + 32 + r)
        e = n_
    a("""v_mov_b32 v24, v20
    v_mov_b32 v25, v21
    v_mov_b32 v26, v20
    v_mov_b32 v27, v21
    s_nop 1
    v_permlane32_swap_b32 v24, v26
    v_permlane32_swap_b32 v25, v27
    s_nop 1""")
    cstep(a, 28, 29, L32R, L32I, 24, 25, 26, 27)
    a(f"""v_min_u32 v28, -2, v28
    v_min_u32 v29, -2, v29
    s_mov_b64 exec, 0xffffffff
    buffer_store_dwordx2 v[28:29], v3, {W}, s13 offen sc0 sc1
    s_mov_b64 exec, -1
    v_mov_b32 v30, 0
    v_mov_b32 v31, 0
    s_mov_b32 s12, 0""")
    EB = 32
    a.label("K2_poll")
    a("s_mov_b32 s14, s15")
    for c in range(16):
        a(f"""s_cmp_le_u32 s3, {c}
        s_cbranch_scc1 K2_ld
        buffer_load_dwordx2 v[{EB+2*c}:{EB+2*c+1}], v3, {W}, s14 offen sc0 sc1
        s_add_u32 s14, s14, 4608""")
    a.label("K2_ld")
    a("v_mov_b32 v6, 0\n s_waitcnt vmcnt(0)")
    for c in range(16):
        a(f"""s_cmp_le_u32 s3, {c}
        s_cbranch_scc1 K2_ck
        v_max3_u32 v6, v6, v{EB+2*c}, v{EB+2*c+1}""")
    a.label("K2_ck")
    a(f"""v_cmp_eq_u32 vcc, -1, v6
    s_add_u32 s12, s12, 1
    s_cbranch_vccz K2_got
    s_sleep {OPT.get("psleep", 16)}
    s_cmp_lt_u32 s12, 0x40000
    s_cbranch_scc1 K2_poll""")
    a.label("K2_got")
    for c in range(16):
        a(f"s_cmp_le_u32 s3, {c}\n s_cbranch_scc1 K2_h{c}")
        cstep(a, EB + 2 * c, EB + 2 * c + 1, L64R, L64I, EB + 2 * c - 2, EB + 2 * c - 1, EB + 2 * c, EB + 2 * c + 1)
    a(f"""v_mov_b32 v30, v{EB+30}
    v_mov_b32 v31, v{EB+31}
    s_sub_u32 s3, s3, 16
    s_mov_b32 s15, s14
    s_branch K2_poll""")
    for c in range(15, 0, -1):
        a.label(f"K2_h{c}")
        a(f"v_mov_b32 v30, v{EB+2*c-2}\n v_mov_b32 v31, v{EB+2*c-1}")
        if c > 1:
            a("s_branch K2_h0")
    a.label("K2_h0")
    stamp(a, 3)
    cstep(a, 28, 29, L32R, L32I, 30, 31, 24, 25)
    a("""v_cndmask_b32 v30, v30, v28, s[8:9]
    v_cndmask_b32 v31, v31, v29, s[8:9]""")
    g = (30, 31)
    HO = 32
    for r in range(32):
        nr, ni = ACC + r, ACC + 32 + r
        cstep(a, nr, ni, LR, LI, g[0], g[1], nr, ni)
        o = 20 + 2 * (r & 1)
        a(f"""v_mul_f32 v{o}, v{CR}, v{nr}
        v_mul_f32 v{o+1}, v{CR}, v{ni}
        v_fma_f32 v{o}, -v{CI}, v{ni}, v{o}
        v_fma_f32 v{o+1}, -v{CI}, v{nr}, -v{o+1}""")
        if r & 1:
            a(f"v_cvt_pk_bf16_f32 v{HO+(r>>1)}, v20, v22\n v_cvt_pk_bf16_f32 v{HO+16+(r>>1)}, v21, v23")
        if r & 7 == 7:
            pl = r >> 3
            a(f"""s_add_u32 s6, s47, {pl*PLB}
            s_add_u32 s7, s47, {pl*PLB + 576*16}
            buffer_store_dwordx4 {vr(HO+4*pl, 4)}, v4, {W}, s6 offen
            buffer_store_dwordx4 {vr(HO+16+4*pl, 4)}, v4, {W}, s7 offen""")
        g = (nr, ni)
    stamp(a, 4)
    G.stamp_store(a, 2, 5)
    a("s_endpgm")
```

```python
import math
import struct
import sys
from asmlib import Asm, Ins, check, vr, sr

IMG = 155648
CH = 19456
KV_OFF = 0
Q_OFF = 32 * IMG
XT_OFF = 64 * IMG
PLB = 1152 * 16 + 128
SEGB = 2 * PLB
O_OFF = XT_OFF + 256 * PLB
ECH_OFF = O_OFF + 2048 * 1152
WS_END = ECH_OFF + 32 * 4608
STAMP_OFF = 32 << 20

VG = 320
STAGE = 40960
OPT = dict(ring=4, pre=2, prebar=3, stamps=0)


def f2u(x):
    return struct.unpack("<I", struct.pack("<f", x))[0]


LOG2E = 1.4426950408889634
QSCALE = LOG2E / math.sqrt(18.0)

P_AX, P_WQKV, P_WO, P_BX, P_LRE, P_LIM, P_BRE, P_BIM = 16, 18, 20, 22, 24, 26, 28, 30
P_CRE, P_CIM, P_LDT, P_DSK = 32, 34, 36, 38
P_OUT, P_DBG, P_WS = 40, 42, 44
SRD1, SRD2A, SRD2B, SRDW, SRDO = 48, 52, 56, 60, 64


def srd(a, d, p, nbytes):
    a(f"""s_mov_b32 s{d}, s{p}
    s_mov_b32 s{d+1}, s{p+1}
    s_mov_b32 s{d+2}, {nbytes}
    s_mov_b32 s{d+3}, 0x00020000""")


def srd_sel(a, d, p1, p0, n1, n0):
    a(f"""s_cselect_b32 s{d}, s{p1}, s{p0}
    s_cselect_b32 s{d+1}, s{p1+1}, s{p0+1}
    s_mov_b32 s{d+2}, {n0}
    s_cselect_b32 s{d+2}, {n1}, s{d+2}""")
    a(f"s_mov_b32 s{d+3}, 0x00020000")


def load_args(a):
    a("""s_load_dwordx16 s[16:31], s[0:1], 0
    s_load_dwordx8 s[32:39], s[0:1], 64
    s_load_dwordx4 s[40:43], s[0:1], 96
    s_load_dwordx2 s[44:45], s[0:1], 112""")


def stamp(a, idx):
    if OPT["stamps"] == 3 and idx:
        return
    if OPT["stamps"]:
        a(f"{'s_memtime' if OPT['stamps'] == 2 else 's_memrealtime'} s[{84+2*idx}:{85+2*idx}]")


def stampc(a, idx):
    if OPT["stamps"]:
        a(f"s_memtime s[{84+2*idx}:{85+2*idx}]")


def stamp_store(a, kidx, n, tmp=8):
    if not OPT["stamps"]:
        return
    if OPT["stamps"] == 3:
        n = 8
    a(f"""s_waitcnt lgkmcnt(0)
    s_mov_b64 exec, 1
    s_lshl_b32 s6, s2, 3
    s_add_u32 s6, s6, s5
    s_lshl_b32 s6, s6, 5
    s_add_u32 s6, s6, {STAMP_OFF + kidx * 65536}
    s_mov_b32 s{SRDW+2}, {STAMP_OFF + 4 * 65536}
    v_mov_b32 v{tmp+8}, 0""")
    for i in range(8):
        a(f"v_mov_b32 v{tmp+i}, s{84+2*i}" if i < n else f"v_mov_b32 v{tmp+i}, 0")
    a(f"""buffer_store_dwordx4 v[{tmp}:{tmp+3}], v{tmp+8}, s[{SRDW}:{SRDW+3}], s6 offen
    buffer_store_dwordx4 v[{tmp+4}:{tmp+7}], v{tmp+8}, s[{SRDW}:{SRDW+3}], s6 offen offset:16""")


def loader(a, alt_last):
    ring, pre = OPT["ring"], OPT["pre"]

    def issue(st):
        if OPT.get("noload") and st > 1:
            return
        base = (st % ring) * STAGE
        for j in range(4):
            a(f"s_add_u32 m0, s76, {base + 4096*j}")
            if st > 0:
                a(f"s_add_u32 s{68+j}, s{68+j}, s74")
            else:
                a("s_nop 0")
            a(f"buffer_load_dwordx4 v1, s[{SRD1}:{SRD1+3}], s{68+j} offen lds")
        alt = alt_last and st == 8
        for g in range(2):
            for u in range(3):
                a(f"s_add_u32 m0, s{77+u}, {base + 12288*g}")
                if u == 0 and st > 0 and not alt:
                    a(f"s_add_u32 s{72+g}, s{72+g}, s75")
                else:
                    a("s_nop 0")
                d = SRD2A if g == 0 else SRD2B
                a(f"buffer_load_dwordx4 v{(5 if alt else 2)+u}, s[{d}:{d+3}], s{(80 if alt else 72)+g} offen lds")

    for st in range(pre):
        issue(st)
    nxt = pre
    for st in range(9):
        a(f"s_waitcnt vmcnt({0 if OPT.get('noload') else 10*(nxt-1-st)})")
        a("s_barrier")
        while nxt < 9 and nxt <= st - 1 + ring and (nxt - st <= pre or nxt <= st + ring - 1 and OPT.get("greedy")):
            issue(nxt)
            nxt += 1


def rows_voff(a, dst, stride, tmp):
    a(f"""v_lshrrev_b32 v{tmp}, 3, v0
    v_lshrrev_b32 v{tmp+1}, 4, v0
    s_and_b32 s7, s6, 1
    s_lshl_b32 s7, s7, 2
    v_add_u32 v{tmp+1}, s7, v{tmp+1}
    v_and_b32 v{tmp+2}, 7, v0
    v_xor_b32 v{tmp+1}, v{tmp+1}, v{tmp+2}
    s_lshl_b32 s7, s6, 3
    v_add_u32 v{tmp}, s7, v{tmp}
    v_mul_u32_u24 v{tmp}, {stride}, v{tmp}
    v_lshl_add_u32 v{dst}, v{tmp+1}, 4, v{tmp}""")


def wrows_parts(a, u, kr, pc, tmp):
    a(f"""v_add_u32 v{tmp}, {64*u}, v0
    v_mul_u32_u24 v{kr}, 2731, v{tmp}
    v_lshrrev_b32 v{kr}, 16, v{kr}
    v_mul_u32_u24 v{pc}, 24, v{kr}
    v_sub_u32 v{pc}, v{tmp}, v{pc}
    v_and_b32 v{tmp}, 2, v{kr}
    v_lshlrev_b32 v{tmp}, 1, v{tmp}
    v_xor_b32 v{pc}, v{pc}, v{tmp}""")


def consumer(a, steps_per_stage, reads, mfmas, addr_regs, prebar, per_gap=2, pf=0, fill=None, fill_from=2, ring=None, stage=STAGE):
    ring = ring or OPT["ring"]
    if OPT.get("nocomp"):
        rd0, mf0 = reads, mfmas
        if OPT["nocomp"] == 1:
            reads = lambda ks, b: []
        mfmas = lambda n, b: mf0(n, b)[:1] if n == 0 else ["s_nop 0", "s_nop 0", "s_nop 0", "s_nop 0"]
    nsteps = 9 * steps_per_stage
    a("s_barrier")
    for x in reads(0, 0):
        a(x)
    for n in range(nsteps):
        ks = n % steps_per_stage
        st = n // steps_per_stage
        m = mfmas(n, n & 1)
        a("s_waitcnt lgkmcnt(0)")
        rd = []
        if n + 1 < nsteps:
            if ks == steps_per_stage - 1:
                pb = min(prebar, len(m) - 1)
                for x in m[:pb]:
                    a(x)
                m = m[pb:]
                a("s_barrier")
                if OPT["stamps"] == 3 and st < 7:
                    a(f"s_memrealtime s[{86+2*st}:{87+2*st}]")
                delta = stage if (st + 1) % ring else -(ring - 1) * stage
                for rg in addr_regs:
                    a(f"v_add_u32 v{rg}, {delta & 0xffffffff}, v{rg}")
                rd = reads((n + 1) % steps_per_stage, (n + 1) & 1)
                k = -(-len(rd) // 2)
                for x in rd[:k]:
                    a(x)
                rd = rd[k:]
            else:
                rd = reads((n + 1) % steps_per_stage, (n + 1) & 1)
        for x in m:
            a(x)
            nf = 0 if len(rd) >= per_gap else (3 if not rd else 1)
            for y in rd[:per_gap]:
                a(y)
            rd = rd[per_gap:]
            while fill and n >= fill_from and nf > 0:
                a(fill.pop(0))
                nf -= 1
        for y in rd:
            a(y)


def consumer2(a, sps, reads, mfmas, upd, depth=1, bar_ks=1, per_gap=2, fill=None, fill_from=2):
    ring = OPT["ring"]
    assert OPT["pre"] <= ring - 2 and bar_ks + depth <= sps
    nsteps = 9 * sps
    nb = depth + 1
    out = []

    def issue(x):
        a(x)
        if x.startswith("ds_read"):
            out.append(Ins(x).w)
            assert len(out) <= 15

    def rds(n):
        st, ks = divmod(n, sps)
        r = list(reads(ks, n % nb))
        if st < 8:
            delta = STAGE if (st + 1) % ring else -(ring - 1) * STAGE
            r += [f"v_add_u32 v{rg}, {delta & 0xffffffff}, v{rg}" for rg in upd(ks)]
        return r
    a("s_barrier")
    for n in range(depth):
        for x in rds(n):
            issue(x)
    for n in range(nsteps):
        st, ks = divmod(n, sps)
        rd = rds(n + depth) if n + depth < nsteps else []
        for mi, x in enumerate(mfmas(n, n % nb)):
            need = Ins(x).srcab
            last = max((i for i, w in enumerate(out) if w & need), default=-1)
            if last >= 0:
                a(f"s_waitcnt lgkmcnt({len(out) - 1 - last})")
                del out[:last + 1]
            a(x)
            if mi == 0 and ks == bar_ks and st < 8:
                a("s_barrier")
                if OPT["stamps"] == 3 and st < 7:
                    a(f"s_memrealtime s[{86+2*st}:{87+2*st}]")
            nf = 0 if len(rd) > per_gap else (3 if not rd else 2)
            for y in rd[:per_gap]:
                issue(y)
            rd = rd[per_gap:]
            while fill and n >= fill_from and nf > 0:
                a(fill.pop(0))
                nf -= 1
        for y in rd:
            issue(y)


MF = "v_mfma_f32_32x32x16_bf16"
ACC = 160
FR = 100
XA, WA = 90, 94


def lane_parts(a):
    a("""v_and_b32 v1, 31, v0
    v_lshrrev_b32 v2, 5, v0
    s_mov_b32 s8, 0
    s_mov_b32 s9, -1
    s_mov_b32 s10, 0xffff0000
    s_mov_b32 s11, 0xffff0000""")


def tau(a, dst, tmp):
    a(f"""v_and_b32 v{dst}, 3, v1
    v_lshrrev_b32 v{tmp}, 3, v1
    v_lshl_add_u32 v{dst}, v{tmp}, 2, v{dst}
    v_and_b32 v{tmp}, 4, v1
    v_lshl_add_u32 v{dst}, v{tmp}, 2, v{dst}""")


def row_addr(a, dst, rowreg, sbase, tmp):
    a(f"""v_bfe_u32 v{tmp}, v{rowreg}, 1, 3
    v_xor_b32 v{tmp}, v{tmp}, v2
    v_lshlrev_b32 v{tmp}, 4, v{tmp}
    v_lshl_add_u32 v{tmp}, v{rowreg}, 7, v{tmp}
    v_add_u32 v{dst}, {sbase}, v{tmp}
    v_xor_b32 v{dst+1}, 32, v{dst}
    v_xor_b32 v{dst+2}, 64, v{dst}
    v_xor_b32 v{dst+3}, 96, v{dst}""")


def tr_addr(a, ntile, stride, base):
    a(f"""v_bfe_u32 v3, v0, 2, 2
    v_lshl_add_u32 v3, v2, 3, v3
    v_mul_u32_u24 v3, {stride}, v3
    v_add_u32 v3, {base}, v3
    v_and_b32 v4, 8, v0
    v_lshlrev_b32 v4, 3, v4
    v_and_b32 v5, 3, v0
    v_lshlrev_b32 v5, 3, v5""")
    for ft in range(ntile):
        a(f"""v_mov_b32 v6, s{68+2*ft}
        v_mov_b32 v7, s{69+2*ft}
        v_cndmask_b32 v6, v6, v7, s[10:11]
        v_bfe_u32 v6, v6, v5, 8
        v_lshlrev_b32 v6, 3, v6
        v_xor_b32 v6, v6, v4
        v_add_u32 v{WA+ft}, v3, v6""")


def nat_tables(a, ntile, first):
    for ft in range(ntile):
        a(f"""s_add_u32 s7, s{first}, {ft}
        s_mul_i32 s7, s7, 0x08080808
        s_add_u32 s{68+2*ft}, s7, 0x03020100
        s_add_u32 s{69+2*ft}, s7, 0x07060504""")


def wx_loop(a, w_is_a, pf=0):
    def reads(ks, b):
        f = FR + 20 * b
        r = []
        for e in range(2):
            r.append(f"ds_read_b64_tr_b16 v[{f+8+2*e}:{f+9+2*e}], v{WA} offset:{(16*ks+4*e)*384}")
        r.append(f"ds_read_b128 v[{f}:{f+3}], v{XA+ks}")
        r.append(f"ds_read_b128 v[{f+4}:{f+7}], v{XA+ks} offset:4096")
        for ft in (1, 2):
            for e in range(2):
                r.append(f"ds_read_b64_tr_b16 v[{f+8+4*ft+2*e}:{f+9+4*ft+2*e}], v{WA+ft} offset:{(16*ks+4*e)*384}")
        return r

    def mfmas(n, b):
        f = FR + 20 * b
        m = []
        for ft in range(3):
            for tt in range(2):
                acc = vr(ACC + (ft * 2 + tt) * 16, 16)
                w, x = vr(f + 8 + 4 * ft, 4), vr(f + 4 * tt, 4)
                A, B = (w, x) if w_is_a else (x, w)
                m.append(f"{MF} {acc}, {A}, {B}, {acc if n else 0}")
        return m
    if OPT.get("c2", 1):
        consumer2(a, 4, reads, mfmas, lambda ks: [XA + ks] + ([WA, WA + 1, WA + 2] if ks == 3 else []), bar_ks=OPT.get("bar_ks", 1))
    else:
        consumer(a, 4, reads, mfmas, [XA, XA + 1, XA + 2, XA + 3, WA, WA + 1, WA + 2], OPT["prebar"], pf=pf)


def chunk_info(q):
    j, pos = divmod(q, 9)
    if pos < 4:
        return ("half", 2 * j, pos)
    if pos == 4:
        return ("mid", j, 0)
    return ("half", 2 * j + 1, pos - 5)


def reg_tile(qa, qb):
    return [(qb if c & 1 else qa) + (c >> 1) for c in range(8)]


def spec_tile(slots):
    t = [0] * 8
    for i, (x, y) in enumerate(slots):
        t[2 * i], t[2 * i + 1] = x, y
    return t


QK_TILES = [
    [reg_tile(5, 9), reg_tile(14, 18), reg_tile(0, 41), reg_tile(23, 27), reg_tile(32, 36),
     spec_tile([(45, 46), (47, 4), (13, 22), (31, 40)])],
    [reg_tile(50, 54), reg_tile(59, 63), reg_tile(68, 72), reg_tile(77, 81), reg_tile(86, 90),
     spec_tile([(48, 95), (49, 58), (67, 76), (85, 94)])],
    [reg_tile(104, 108), reg_tile(113, 117), reg_tile(99, 140), reg_tile(122, 126), reg_tile(131, 135),
     spec_tile([(96, 97), (98, 103), (112, 121), (130, 139)])],
]
for _b in range(3):
    assert sorted(sum(QK_TILES[_b], [])) == list(range(48 * _b, 48 * _b + 48))


def is_regular(t):
    for hh in range(2):
        inf = [chunk_info(t[2 * i + hh]) for i in range(4)]
        if not all(x[0] == "half" and x[1] == inf[0][1] and x[2] == i for i, x in enumerate(inf)):
            return False
    return True


def qk_epilogue(a, b, wf):
    W = f"s[{SRDW}:{SRDW+3}]"
    tmp = FR
    for ft in range(3):
        t = QK_TILES[b][3 * wf + ft]
        A = [ACC + (ft * 2 + tt) * 16 for tt in range(2)]
        if is_regular(t):
            h0, h1 = chunk_info(t[0])[1], chunk_info(t[1])[1]
            if h1 - h0 == 1:
                va = 5
            else:
                va = 6
                a(f"s_mov_b32 s7, {(h1-h0)*IMG}\n v_mad_i32_i24 v6, v2, s7, v3")
            a(f"s_mov_b32 s12, {h0*IMG}\n s_mov_b32 s13, {h0*IMG+4096}")
            for tt in range(2):
                for k in range(8):
                    a(f"v_cvt_pk_bf16_f32 v{A[tt]+k}, v{A[tt]+2*k}, v{A[tt]+2*k+1}")
                    if k == 3:
                        a(f"buffer_store_dwordx4 v[{A[tt]}:{A[tt]+3}], v{va}, {W}, s12 offen offset:{512*tt}")
                a(f"buffer_store_dwordx4 v[{A[tt]+4}:{A[tt]+7}], v{va}, {W}, s13 offen offset:{512*tt}")
        else:
            for i in range(4):
                k0, k1 = chunk_info(t[2 * i]), chunk_info(t[2 * i + 1])
                T = tmp
                tmp += 4
                d00 = f"v{A[0]+4*i}, v{A[0]+4*i+1}"
                d01 = f"v{A[0]+4*i+2}, v{A[0]+4*i+3}"
                d10 = f"v{A[1]+4*i}, v{A[1]+4*i+1}"
                d11 = f"v{A[1]+4*i+2}, v{A[1]+4*i+3}"
                a(f"v_cvt_pk_bf16_f32 v{T}, {d00}\n v_cvt_pk_bf16_f32 v{T+3}, {d11}")
                if k0[0] == k1[0] == "half":
                    a(f"v_cvt_pk_bf16_f32 v{T+1}, {d01}\n v_cvt_pk_bf16_f32 v{T+2}, {d10}")
                elif k0[0] == k1[0] == "mid":
                    a(f"v_cvt_pk_bf16_f32 v{T+1}, {d10}\n v_cvt_pk_bf16_f32 v{T+2}, {d01}")
                else:
                    assert k0[0] == "half" and k1[0] == "mid"
                    a(f"""v_cvt_pk_bf16_f32 v8, {d01}
                    v_cvt_pk_bf16_f32 v9, {d10}
                    v_cndmask_b32 v{T+1}, v8, v9, s[8:9]
                    v_cndmask_b32 v{T+2}, v9, v8, s[8:9]""")

                def const(k, s):
                    if k[0] == "half":
                        return k[1] * IMG + (k[2] >> 1) * 4096 + (k[2] & 1) * 8 + 512 * s
                    return (2 * k[1] + s) * IMG
                if k0[0] == k1[0]:
                    vb = 3 if k0[0] == "half" else 4
                else:
                    vb = 7
                    a("v_cndmask_b32 v7, v3, v4, s[8:9]")
                for s in range(2):
                    c0, c1 = const(k0, s), const(k1, s)
                    a(f"""s_mov_b32 s7, {abs(c1-c0)}
                    s_mov_b32 s{12+s}, {min(c0, c1)}
                    v_mad_u32_u24 v{10+s}, v{2 if c1 >= c0 else 12}, s7, v{vb}
                    buffer_store_dwordx2 v[{T+2*s}:{T+2*s+1}], v{10+s}, {W}, s{12+s} offen""")


def cmul(a, dr, di, xr, xi, yr, yi):
    a(f"""v_mul_f32 v{dr}, v{xr}, v{yr}
    v_mul_f32 v{di}, v{xr}, v{yi}
    v_fma_f32 v{dr}, -v{xi}, v{yi}, v{dr}
    v_fma_f32 v{di}, v{xi}, v{yr}, v{di}""")


def k1(a):
    a.label("k1_kernel")
    stamp(a, 0)
    a("s_cmp_ge_u32 s2, 256\n s_cbranch_scc1 K1_done")
    load_args(a)
    a("""v_lshrrev_b32 v1, 6, v0
    v_and_b32 v0, 63, v0
    s_and_b32 s6, s2, 7
    v_readfirstlane_b32 s5, v1
    s_lshr_b32 s7, s2, 3
    s_cmp_lt_u32 s7, 20
    s_cbranch_scc1 K1_gemm""")
    a.label("K1_pf")
    if OPT.get("pfc", 1):
        a(f"""s_getpc_b64 s[12:13]""")
        a.label("K1_pc")
        a(f"""s_sub_u32 s14, s7, 20
        s_lshl_b32 s14, s14, 3
        s_add_u32 s14, s14, s5
        s_lshl_b32 s14, s14, 10
        s_sub_u32 s12, s12, K1_pc-k1_kernel
        s_subb_u32 s13, s13, 0
        v_and_b32 v10, 7, v0
        v_lshl_add_u32 v10, v10, 7, s14
        v_min_u32 v10, K3_last-k1_kernel, v10
        v_mov_b32 v11, s13
        v_add_co_u32 v10, vcc, s12, v10
        s_nop 1
        v_addc_co_u32 v11, vcc, 0, v11, vcc
        global_load_dword v12, v[10:11], off""")
    if OPT.get("pf1", 1):
        a(f"""s_sub_u32 s7, s7, 20
        s_lshl_b32 s7, s7, 3
        s_add_u32 s7, s7, s5
        s_mul_i32 s3, s7, 2731
        s_lshr_b32 s3, s3, 16
        s_mul_i32 s4, s3, 24
        s_sub_u32 s4, s7, s4
        s_lshr_b32 s12, s6, 1
        s_lshl_b32 s12, s12, 3
        s_add_u32 s12, s12, s4
        s_mul_i32 s12, s12, {64*1152}
        s_lshl_b32 s13, s3, 7
        s_add_u32 s12, s12, s13
        s_and_b32 s13, s6, 1
        s_mul_i32 s13, s13, 15
        s_add_u32 s13, s13, s4
        s_sub_u32 s13, s13, 8
        s_lshl_b32 s14, s13, 7
        s_mul_i32 s15, s3, {64*3456}
        s_add_u32 s14, s14, s15
        s_cmp_ge_u32 s13, 27
        s_cselect_b32 s14, {576*3456}, s14
        s_cmp_eq_u32 s4, 23
        s_cselect_b32 s14, {576*3456}, s14
        s_cmp_lt_u32 s4, 8
        s_cselect_b32 s12, s12, s14
        s_movk_i32 s13, 512
        s_cselect_b32 s13, s13, {4*64*3456}
        s_movk_i32 s14, 1152
        s_cselect_b32 s14, s14, 3456
        v_mul_u32_u24 v1, s14, v0
        s_waitcnt lgkmcnt(0)""")
        srd_sel(a, SRD1, P_AX, P_WQKV, 2048 * 1152, 576 * 3456)
        a(f"""buffer_load_dword v2, v1, s[{SRD1}:{SRD1+3}], s12 offen
        s_add_u32 s12, s12, s13
        buffer_load_dword v3, v1, s[{SRD1}:{SRD1+3}], s12 offen
        s_add_u32 s12, s12, s13
        s_cmp_lg_u32 s3, 0
        s_cselect_b32 s12, {2048*3456}, s12
        buffer_load_dword v4, v1, s[{SRD1}:{SRD1+3}], s12 offen""")
        if OPT.get("pf2", 1):
            a(f"""v_lshlrev_b32 v1, 7, v0
            s_mul_i32 s12, s6, {256*1152}
            s_mul_i32 s13, s7, {24*128}
            s_add_u32 s12, s12, s13
            s_mul_i32 s13, s7, {54*128}
            s_waitcnt vmcnt(1)""")
            srd(a, SRD2A, P_BX, 2048 * 1152)
            srd(a, SRD2B, P_BRE, 576 * 1152)
            srd(a, SRD1, P_BIM, 576 * 1152)
            a(f"""s_mov_b32 exec_hi, 0x3fffff
            buffer_load_dword v5, v1, s[{SRD2B}:{SRD2B+3}], s13 offen
            buffer_load_dword v6, v1, s[{SRD1}:{SRD1+3}], s13 offen
            s_mov_b64 exec, 0xffffff
            buffer_load_dword v7, v1, s[{SRD2A}:{SRD2A+3}], s12 offen""")
    a("s_endpgm")
    a.label("K1_gemm")
    a("""s_lshr_b32 s3, s6, 1
    s_lshl_b32 s3, s3, 2
    s_and_b32 s4, s7, 3
    s_add_u32 s3, s3, s4
    s_and_b32 s6, s6, 1
    s_mul_i32 s6, s6, 5
    s_lshr_b32 s7, s7, 2
    s_add_u32 s4, s6, s7
    s_cmp_ge_u32 s4, 9
    s_cbranch_scc1 K1_const
    s_cmp_lt_u32 s5, 4
    s_waitcnt lgkmcnt(0)
    s_cbranch_scc1 K1_cons""")
    a("s_sub_u32 s6, s5, 4")
    rows_voff(a, 1, 1152, 8)
    a(f"""s_mul_i32 s68, s3, {128*1152}
    s_add_u32 s69, s68, {32*1152}
    s_add_u32 s70, s68, {64*1152}
    s_add_u32 s71, s68, {96*1152}
    s_mov_b32 s74, 128
    s_lshl_b32 s76, s6, 10""")
    srd(a, SRD1, P_AX, 2048 * 1152)
    srd(a, SRD2A, P_WQKV, 576 * 3456)
    srd(a, SRD2B, P_WQKV, 576 * 3456)
    for u in range(3):
        wrows_parts(a, u, 8, 9, 10)
        a(f"v_mul_u32_u24 v8, 3456, v8\n v_lshl_add_u32 v{2+u}, v9, 4, v8")
    a(f"""s_mul_i32 s72, s6, {8*3456}
    s_mul_i32 s7, s4, 384
    s_add_u32 s72, s72, s7
    s_add_u32 s73, s72, {32*3456}
    s_mov_b32 s75, {64*3456}
    s_mul_i32 s77, s6, 3072
    s_add_u32 s77, s77, 16384
    s_add_u32 s78, s77, 1024
    s_add_u32 s79, s77, 2048""")
    loader(a, False)
    a("s_endpgm")
    a.label("K1_cons")
    srd(a, SRDW, P_WS, WS_END)
    lane_parts(a)
    a("""s_and_b32 s14, s5, 1
    s_lshr_b32 s15, s5, 1
    s_cmp_ge_u32 s4, 6
    s_cbranch_scc1 K1_v""")
    a("""s_sub_u32 s46, s4, 3
    s_cmp_lt_u32 s4, 3
    s_cselect_b32 s46, s4, s46
    s_lshl_b32 s46, s46, 1
    s_add_u32 s46, s46, s15""")
    for var in range(6):
        b, wf = divmod(var, 2)
        if var:
            a(f"s_cmp_eq_u32 s46, {var}")
        for ft in range(3):
            t = [x - 48 * b for x in QK_TILES[b][3 * wf + ft]]
            for hh in range(2):
                val = sum(t[4 * hh + c] << (8 * c) for c in range(4))
                if var:
                    a(f"s_cselect_b32 s{68+2*ft+hh}, {val}, s{68+2*ft+hh}")
                else:
                    a(f"s_mov_b32 s{68+2*ft+hh}, {val}")
    tr_addr(a, 3, 384, 16384)
    a("s_lshl_b32 s7, s14, 13")
    row_addr(a, XA, 1, "s7", 8)
    stamp(a, 1)
    wx_loop(a, True)
    stamp(a, 2)
    a(f"""s_lshr_b32 s6, s3, 1
    s_mul_i32 s6, s6, {CH}
    s_cmp_lt_u32 s4, 3
    s_cselect_b32 s7, {Q_OFF}, {KV_OFF}
    s_add_u32 s6, s6, s7
    s_and_b32 s7, s3, 1
    s_lshl_b32 s7, s7, 1
    s_add_u32 s7, s7, s14
    s_lshl_b32 s12, s7, 10
    s_add_u32 s12, s12, s6
    s_and_b32 s13, s3, 1
    s_lshl_b32 s13, s13, 9
    s_lshl_b32 s7, s14, 3
    s_add_u32 s13, s13, s7
    s_add_u32 s13, s13, s6
    s_add_u32 s13, s13, 8192
    v_lshl_add_u32 v3, v1, 4, s12
    v_lshl_add_u32 v4, v1, 4, s13
    s_mov_b32 s7, {IMG}
    v_mad_i32_i24 v5, v2, s7, v3
    v_xor_b32 v12, 1, v2""")
    for var in range(6):
        if var < 5:
            a(f"s_cmp_lg_u32 s46, {var}\n s_cbranch_scc1 K1_qe{var+1}")
        qk_epilogue(a, *divmod(var, 2))
        stamp(a, 3)
        stamp_store(a, 0, 4)
        a("s_endpgm")
        if var < 5:
            a.label(f"K1_qe{var+1}")
    a.label("K1_v")
    a("s_mul_i32 s46, s15, 3")
    nat_tables(a, 3, 46)
    tr_addr(a, 3, 384, 16384)
    tau(a, 9, 8)
    a("s_lshl_b32 s7, s14, 13")
    row_addr(a, XA, 9, "s7", 8)
    a("""s_sub_u32 s6, s4, 6
    s_mul_i32 s6, s6, 192
    s_lshl_b32 s7, s46, 5
    s_add_u32 s6, s6, s7
    v_add_u32 v3, s6, v1""")
    a(f"s_mov_b32 s7, {IMG}\n v_mul_u32_u24 v8, {2*VG}, v2")
    for ft in range(3):
        a(f"""v_add_u32 v4, {32*ft}, v3
        v_mul_u32_u24 v5, 3641, v4
        v_lshrrev_b32 v5, 16, v5
        v_mul_u32_u24 v6, 18, v5
        v_sub_u32 v6, v4, v6
        v_mad_u32_u24 v5, v5, s7, v8
        v_lshl_add_u32 v{80+ft}, v6, 4, v5""")
    stamp(a, 1)
    wx_loop(a, False)
    stamp(a, 2)
    a(f"""s_lshr_b32 s6, s3, 1
    s_mul_i32 s6, s6, {CH}
    s_and_b32 s7, s3, 1
    s_lshl_b32 s7, s7, 1
    s_add_u32 s7, s7, s14
    s_mul_i32 s7, s7, {8*VG}
    s_add_u32 s12, s6, s7
    s_add_u32 s12, s12, {KV_OFF + 9216}
    s_nop 3""")
    W = f"s[{SRDW}:{SRDW+3}]"
    for ft in range(3):
        for tt in range(2):
            A = ACC + (ft * 2 + tt) * 16
            for k in range(8):
                a(f"v_cvt_pk_bf16_f32 v{A+k}, v{A+2*k}, v{A+2*k+1}")
                if k == 3:
                    a(f"buffer_store_dwordx4 v[{A}:{A+3}], v{80+ft}, {W}, s12 offen offset:{4*tt*VG}")
            a(f"buffer_store_dwordx4 v[{A+4}:{A+7}], v{80+ft}, {W}, s12 offen offset:{(4*tt+1)*VG}")
    stamp(a, 3)
    stamp_store(a, 0, 4)
    a.label("K1_done")
    a("s_endpgm")
    a.label("K1_const")
    a(f"""s_lshl_b32 s6, s3, 3
    s_add_u32 s6, s6, s5
    s_lshr_b32 s7, s6, 2
    s_mul_i32 s7, s7, {IMG}
    s_and_b32 s6, s6, 3
    s_mul_i32 s6, s6, {2*CH}
    s_add_u32 s6, s6, s7
    s_add_u32 s6, s6, {KV_OFF + 9216 + 288}
    s_add_u32 s7, s6, {CH}
    v_lshrrev_b32 v1, 1, v0
    v_mul_u32_u24 v1, {VG}, v1
    v_and_b32 v2, 1, v0
    v_lshl_add_u32 v1, v2, 4, v1
    v_subrev_u32 v2, 1, v2
    v_and_b32 v4, 0x3f803f80, v2
    v_mov_b32 v5, v4
    v_mov_b32 v6, v4
    v_mov_b32 v7, v4
    s_waitcnt lgkmcnt(0)""")
    srd(a, SRDW, P_WS, WS_END)
    a(f"""buffer_store_dwordx4 v[4:7], v1, {W}, s6 offen
    buffer_store_dwordx4 v[4:7], v1, {W}, s7 offen
    s_lshl_b32 s6, s3, 3
    s_add_u32 s6, s6, s5
    s_mul_i32 s6, s6, 1152
    s_add_u32 s6, s6, {ECH_OFF}
    v_lshlrev_b32 v1, 4, v0
    v_mov_b32 v8, -1
    v_mov_b32 v9, -1
    v_mov_b32 v10, -1
    v_mov_b32 v11, -1
    buffer_store_dwordx4 v[8:11], v1, {W}, s6 offen
    s_mov_b64 exec, 0xff
    buffer_store_dwordx4 v[8:11], v1, {W}, s6 offen offset:1024
    s_endpgm""")


def k2(a):
    import k2gen
    k2gen.k2(a)


def out_tiles(a, tiles, srcs=None):
    O = f"s[{SRDO}:{SRDO+3}]"
    for k, (A, so, col) in enumerate(tiles):
        for i in range(4):
            a(f"ds_write_b128 v{6+i}, v[{A+4*i}:{A+4*i+3}] offset:{4096*k}")
        if k:
            a("s_waitcnt lgkmcnt(4)")
        for j in range(4):
            a(f"ds_read_b128 v[{A+4*j}:{A+4*j+3}], v4 offset:{4096*k + 1024*j}")
        if k:
            pA, pso, pcol = tiles[k - 1]
            for j in range(4):
                a(f"buffer_store_dwordx4 v[{pA+4*j}:{pA+4*j+3}], v{10+j}, {O}, s{pso} offen offset:{pcol}")
    pA, pso, pcol = tiles[-1]
    a("s_waitcnt lgkmcnt(0)")
    for j in range(4):
        a(f"buffer_store_dwordx4 v[{pA+4*j}:{pA+4*j+3}], v{10+j}, {O}, s{pso} offen offset:{pcol}")


def out_addr(a, per_wave):
    return f"""s_mul_i32 s7, s5, {per_wave}
    s_add_u32 s7, s7, {STAGE}
    v_and_b32 v3, 7, v1
    v_xor_b32 v3, v3, v2
    v_lshlrev_b32 v3, 4, v3
    v_lshl_add_u32 v3, v1, 7, v3
    v_add_u32 v6, s7, v3
    v_xor_b32 v7, 32, v6
    v_xor_b32 v8, 64, v6
    v_xor_b32 v9, 96, v6
    v_lshrrev_b32 v3, 3, v0
    v_and_b32 v5, 7, v0
    v_xor_b32 v4, v3, v5
    v_lshlrev_b32 v4, 4, v4
    v_lshl_add_u32 v4, v3, 7, v4
    v_add_u32 v4, s7, v4
    v_mul_u32_u24 v10, 4608, v3
    v_lshl_add_u32 v10, v5, 4, v10
    v_add_u32 v11, {8*4608}, v10
    v_add_u32 v12, {16*4608}, v10
    v_add_u32 v13, {24*4608}, v10"""


def k3(a):
    a.label("k3_kernel")
    stamp(a, 0)
    a("s_cmp_ge_u32 s2, 240\n s_cbranch_scc1 K3_done")
    load_args(a)
    a("""v_lshrrev_b32 v1, 6, v0
    v_and_b32 v0, 63, v0
    s_and_b32 s6, s2, 7
    v_readfirstlane_b32 s5, v1
    s_lshr_b32 s47, s2, 3
    s_lshl_b32 s3, s6, 1
    s_and_b32 s7, s47, 1
    s_add_u32 s3, s3, s7
    s_lshr_b32 s4, s47, 1
    s_sub_u32 s12, s47, 6
    s_lshl_b32 s13, s6, 2
    s_and_b32 s7, s12, 3
    s_add_u32 s13, s13, s7
    s_lshr_b32 s12, s12, 2
    s_cmp_lt_u32 s47, 6
    s_cselect_b32 s3, s3, s13
    s_cselect_b32 s4, s4, s12
    s_cmp_lt_u32 s5, 4
    s_waitcnt lgkmcnt(0)
    s_cbranch_scc1 K3_cons""")
    a("s_sub_u32 s6, s5, 4")
    srd(a, SRD1, P_WS, WS_END)
    a(f"""s_lshl_b32 s76, s6, 10
    s_cmp_ge_u32 s47, 6""")
    srd_sel(a, SRD2A, P_CRE, P_WO, 576 * 1152, 576 * 1152)
    srd_sel(a, SRD2B, P_CIM, P_WO, 576 * 1152, 576 * 1152)
    a("s_cbranch_scc1 K3_ld_r")
    rows_voff(a, 1, 1152, 8)
    a(f"""s_mul_i32 s68, s3, {128*1152}
    s_add_u32 s68, s68, {O_OFF}
    s_add_u32 s69, s68, {32*1152}
    s_add_u32 s70, s68, {64*1152}
    s_add_u32 s71, s68, {96*1152}
    s_mov_b32 s74, 128""")
    for u in range(3):
        wrows_parts(a, u, 8, 9, 10)
        a(f"""v_lshlrev_b32 v9, 4, v9
        v_mul_u32_u24 v10, 1152, v8
        v_add_u32 v{2+u}, v9, v10
        v_lshrrev_b32 v10, 1, v8
        v_mul_u32_u24 v10, 18, v10
        v_and_b32 v8, 1, v8
        v_add3_u32 v8, v8, v10, 16
        v_mul_u32_u24 v10, 1152, v8
        v_add_u32 v{5+u}, v9, v10""")
    a(f"""s_lshl_b32 s72, s6, 3
    s_and_b32 s7, s6, 2
    s_add_u32 s72, s72, s7
    s_mul_i32 s72, s72, 1152
    s_mul_i32 s7, s4, 384
    s_add_u32 s72, s72, s7
    s_add_u32 s73, s72, {36*1152}
    s_mul_i32 s80, s6, {72*1152}
    s_add_u32 s80, s80, s7
    s_add_u32 s81, s80, {4*72*1152}
    s_mov_b32 s75, {72*1152}
    s_mul_i32 s77, s6, 3072
    s_add_u32 s77, s77, 16384
    s_add_u32 s78, s77, 1024
    s_add_u32 s79, s77, 2048
    s_branch K3_ld_go""")
    a.label("K3_ld_r")
    rows_voff(a, 2, 1152, 8)
    a(f"""v_add_u32 v3, {32*1152}, v2
    v_add_u32 v4, {64*1152}, v2
    v_mov_b32 v5, v2
    v_mov_b32 v6, v3
    v_mov_b32 v7, v4
    v_lshrrev_b32 v8, 3, v0
    v_mul_u32_u24 v8, {PLB}, v8
    v_lshrrev_b32 v9, 2, v0
    v_and_b32 v9, 4, v9
    v_and_b32 v10, 7, v0
    v_xor_b32 v9, v9, v10
    s_lshl_b32 s7, s6, 3
    v_add_u32 v9, s7, v9
    v_lshl_add_u32 v1, v9, 4, v8
    s_mul_i32 s68, s3, {4*SEGB}
    s_add_u32 s68, s68, {XT_OFF}
    s_add_u32 s69, s68, {32*16}
    s_add_u32 s70, s68, {576*16}
    s_add_u32 s71, s68, {608*16}
    s_mov_b32 s74, {64*16}
    s_mul_i32 s72, s4, {96*1152}
    s_mov_b32 s73, s72
    s_add_u32 s80, s72, {8*128}
    s_mov_b32 s81, s80
    s_mov_b32 s75, 128
    s_add_u32 s77, s76, 16384
    s_add_u32 s78, s77, 4096
    s_add_u32 s79, s77, 8192""")
    a.label("K3_ld_go")
    loader(a, True)
    a("s_endpgm")
    a.label("K3_cons")
    srd(a, SRDO, P_OUT, 2048 * 4608)
    if OPT["stamps"]:
        srd(a, SRDW, P_WS, WS_END)
    lane_parts(a)
    O = f"s[{SRDO}:{SRDO+3}]"
    a("""s_cmp_ge_u32 s47, 6
    s_cbranch_scc1 K3_r
    s_and_b32 s14, s5, 1
    s_lshr_b32 s15, s5, 1
    s_mul_i32 s46, s15, 3""")
    nat_tables(a, 3, 46)
    tr_addr(a, 3, 384, 16384)
    a("s_lshl_b32 s7, s14, 13")
    row_addr(a, XA, 1, "s7", 8)
    a(out_addr(a, 24576))
    a(f"""s_lshl_b32 s6, s3, 1
    s_add_u32 s6, s6, s14
    s_mul_i32 s6, s6, {64*4608}
    s_mul_i32 s7, s4, 768
    s_add_u32 s6, s6, s7
    s_mul_i32 s7, s15, 384
    s_add_u32 s12, s6, s7
    s_add_u32 s13, s12, {32*4608}""")
    stamp(a, 1)
    wx_loop(a, True)
    stamp(a, 2)
    a("s_nop 7")
    out_tiles(a, [(ACC + (ft * 2 + tt) * 16, 12 + tt, 128 * ft) for ft in range(3) for tt in range(2)])
    stamp(a, 3)
    stamp_store(a, 2, 4)
    a("s_endpgm")
    a.label("K3_r")
    a("""s_cmp_eq_u32 s5, 3
    s_cbranch_scc0 K3_r2""")
    for _ in range(9):
        a("s_barrier")
    a("s_endpgm")
    a.label("K3_r2")
    a(f"""s_mul_i32 s6, s4, 96
    s_lshl_b32 s7, s5, 5
    s_add_u32 s46, s6, s7
    v_lshlrev_b32 v3, 3, v2
    s_lshl_b32 s6, s46, 1
    v_add_u32 v3, s6, v3
    s_lshl_b32 s6, s3, 6
    v_add_u32 v4, s6, v1
    v_mul_u32_u24 v4, 1152, v4
    v_add_u32 v4, v4, v3
    v_add_u32 v5, {32*1152}, v4""")
    for i in range(4):
        a(f"global_load_dwordx2 v[{16+2*i}:{17+2*i}], v3, s[{P_DSK}:{P_DSK+1}] offset:{16*i}")
    for tt in range(2):
        for i in range(4):
            a(f"global_load_dwordx2 v[{24+8*tt+2*i}:{25+8*tt+2*i}], v{4+tt}, s[{P_BX}:{P_BX+1}] offset:{16*i}")
    a(f"""v_bfe_u32 v6, v0, 4, 1
    v_mul_u32_u24 v6, 320, v6
    v_lshl_add_u32 v6, v2, 10, v6
    v_and_b32 v7, 2, v0
    v_lshl_add_u32 v6, v7, 6, v6
    v_and_b32 v7, 12, v0
    v_lshl_add_u32 v6, v7, 2, v6
    v_and_b32 v7, 1, v0
    v_lshl_add_u32 v{WA}, v7, 3, v6
    v_xor_b32 v{WA+1}, 64, v{WA}""")
    a("s_lshl_b32 s7, s5, 12\n s_add_u32 s7, s7, 16384")
    row_addr(a, XA, 1, "s7", 8)
    a(out_addr(a, 8192))
    a(f"""s_mul_i32 s6, s3, {64*4608}
    s_lshl_b32 s7, s46, 2
    s_add_u32 s6, s6, s7
    s_add_u32 s12, s6, 2304
    s_add_u32 s13, s12, {32*4608}
    s_mov_b32 s14, 0xffff0000""")
    fill = ["s_waitcnt vmcnt(0)"]
    SK = 192
    for k in range(8):
        fill += [f"v_lshlrev_b32 v{40+2*k}, 16, v{16+k}", f"v_and_b32 v{41+2*k}, s14, v{16+k}"]
    for tt in range(2):
        for k in range(8):
            A = SK + 16 * tt + 2 * k
            fill += [f"v_lshlrev_b32 v{A}, 16, v{24+8*tt+k}", f"v_and_b32 v{A+1}, s14, v{24+8*tt+k}",
                     f"v_mul_f32 v{A}, v{A}, v{40+2*k}", f"v_mul_f32 v{A+1}, v{A+1}, v{41+2*k}"]

    def reads(ks, b):
        f = FR + 12 * b
        im, k4 = divmod(ks, 4)
        r = [f"ds_read_b128 v[{f}:{f+3}], v{XA+k4} offset:{12288*im}"]
        for tt in range(2):
            for e in range(2):
                r.append(f"ds_read_b64_tr_b16 v[{f+4+4*tt+2*e}:{f+5+4*tt+2*e}], v{WA+e} offset:{(8*im+2*k4)*1024+512*tt}")
        return r

    def mfmas(n, b):
        f = FR + 12 * b
        return [f"{MF} {vr(ACC+16*tt, 16)}, {vr(f, 4)}, {vr(f+4+4*tt, 4)}, {vr(ACC+16*tt, 16) if n else 0}" for tt in range(2)]
    stamp(a, 1)
    consumer2(a, 8, reads, mfmas, lambda ks: ([XA + ks - 4] if ks >= 4 else []) + ([WA, WA + 1] if ks == 7 else []),
              depth=2, bar_ks=OPT.get("bar_ks8", 3), per_gap=3, fill=fill, fill_from=10)
    assert not fill
    stamp(a, 2)
    a("s_nop 10")
    for i in range(32):
        a(f"v_add_f32 v{ACC+i}, v{ACC+i}, v{SK+i}")
    out_tiles(a, [(ACC + 16 * tt, 12 + tt, 0) for tt in range(2)])
    stamp(a, 3)
    stamp_store(a, 2, 4)
    a.label("K3_done")
    a.label("K3_last")
    a("s_endpgm")


HEADER = """; concat_heads / MHA block / S5 SSM: three launches
; @launch kernel=k1_kernel grid=(256,1,1) block=(512,1,1) lds=163840
; @launch kernel=k2_kernel grid=(448,1,1) block=(512,1,1) lds=81920
; @launch kernel=k3_kernel grid=(240,1,1) block=(512,1,1) lds=163840
.amdgcn_target "amdgcn-amd-amdhsa--gfx950"
.text
"""


def desc(name, vg):
    return f""".amdhsa_kernel {name}
  .amdhsa_next_free_vgpr {vg}
  .amdhsa_next_free_sgpr 102
  .amdhsa_accum_offset {vg}
  .amdhsa_group_segment_fixed_size 0
  .amdhsa_kernarg_size 120
  .amdhsa_user_sgpr_count 2
  .amdhsa_user_sgpr_kernarg_segment_ptr 1
  .amdhsa_system_sgpr_workgroup_id_x 1
.end_amdhsa_kernel
"""


def build(**opt):
    OPT.update(opt)
    out = HEADER
    errs = []
    for name, fn in (("k1_kernel", k1), ("k2_kernel", k2), ("k3_kernel", k3)):
        a = Asm()
        fn(a)
        wt = {0: "", 1: " sc0 sc1", 2: " nt", 3: " sc1"}[OPT.get("wt" + name[1], 0)]
        a.lines = [ln + wt if ln.startswith("buffer_store") else ln for ln in a.lines]
        errs += check(a.lines, name)
        for body in getattr(a, "loops", []):
            errs += check(body + body, name + " loop")
        out += f".globl {name}\n.p2align 8\n.type {name},@function\n" + a.text()
    out += '.section .rodata,"a"\n'
    for name, vg in (("k1_kernel", 256), ("k2_kernel", 128), ("k3_kernel", 256)):
        out += ".p2align 6\n" + desc(name, vg)
    return out, sorted(set(errs))


if __name__ == "__main__":
    opts = {}
    path = "concat_heads__mha_block__ssm_conv_s5__prompt.s"
    for arg in sys.argv[1:]:
        if "=" in arg:
            k, v = arg.split("=")
            opts[k] = int(v)
        else:
            path = arg
    text, errs = build(**opts)
    for e in errs:
        print("HAZARD", e)
    open(path, "w").write(text)
    print("wrote", path, len(text), "bytes;", len(errs), "hazards")
```

```python
import math
import struct
import sys
from asmlib import Asm, Ins, check, vr, sr

IMG = 155648
CH = 19456
KV_OFF = 0
Q_OFF = 32 * IMG
XT_OFF = 64 * IMG
PLB = 1152 * 16 + 128
SEGB = 2 * PLB
O_OFF = XT_OFF + 256 * PLB
ECH_OFF = O_OFF + 96 * 32768
FLG_OFF = ECH_OFF + 32 * 4608
WS_END = FLG_OFF + 40 * 128
STAMP_OFF = 32 << 20

VG = 320
STAGE = 40960
OPT = dict(ring=4, pre=2, prebar=3, stamps=0)


def f2u(x):
    return struct.unpack("<I", struct.pack("<f", x))[0]


LOG2E = 1.4426950408889634
QSCALE = LOG2E / math.sqrt(18.0)

P_AX, P_WQKV, P_WO, P_BX, P_LRE, P_LIM, P_BRE, P_BIM = 16, 18, 20, 22, 24, 26, 28, 30
P_CRE, P_CIM, P_LDT, P_DSK = 32, 34, 36, 38
P_OUT, P_DBG, P_WS = 40, 42, 44
SRD1, SRD2A, SRD2B, SRDW, SRDO = 48, 52, 56, 60, 64


def srd(a, d, p, nbytes):
    a(f"""s_mov_b32 s{d}, s{p}
    s_mov_b32 s{d+1}, s{p+1}
    s_mov_b32 s{d+2}, {nbytes}
    s_mov_b32 s{d+3}, 0x00020000""")


def srd_sel(a, d, p1, p0, n1, n0):
    a(f"""s_cselect_b32 s{d}, s{p1}, s{p0}
    s_cselect_b32 s{d+1}, s{p1+1}, s{p0+1}
    s_mov_b32 s{d+2}, {n0}
    s_cselect_b32 s{d+2}, {n1}, s{d+2}""")
    a(f"s_mov_b32 s{d+3}, 0x00020000")


def load_args(a):
    a("""s_load_dwordx16 s[16:31], s[0:1], 0
    s_load_dwordx8 s[32:39], s[0:1], 64
    s_load_dwordx4 s[40:43], s[0:1], 96
    s_load_dwordx2 s[44:45], s[0:1], 112""")


def stamp(a, idx):
    if OPT["stamps"] == 3 and idx:
        return
    if OPT["stamps"]:
        a(f"{'s_memtime' if OPT['stamps'] == 2 else 's_memrealtime'} s[{84+2*idx}:{85+2*idx}]")


def stampc(a, idx):
    if OPT["stamps"]:
        a(f"s_memtime s[{84+2*idx}:{85+2*idx}]")


def stamp_store(a, kidx, n, tmp=8):
    if not OPT["stamps"]:
        return
    if OPT["stamps"] == 3:
        n = 8
    a(f"""s_waitcnt lgkmcnt(0)
    s_mov_b64 exec, 1
    s_lshl_b32 s6, s2, 3
    s_add_u32 s6, s6, s5
    s_lshl_b32 s6, s6, 5
    s_add_u32 s6, s6, {STAMP_OFF + kidx * 65536}
    s_mov_b32 s{SRDW+2}, {STAMP_OFF + 4 * 65536}
    v_mov_b32 v{tmp+8}, 0""")
    for i in range(8):
        a(f"v_mov_b32 v{tmp+i}, s{84+2*i}" if i < n else f"v_mov_b32 v{tmp+i}, 0")
    a(f"""buffer_store_dwordx4 v[{tmp}:{tmp+3}], v{tmp+8}, s[{SRDW}:{SRDW+3}], s6 offen
    buffer_store_dwordx4 v[{tmp+4}:{tmp+7}], v{tmp+8}, s[{SRDW}:{SRDW+3}], s6 offen offset:16""")


def loader(a, alt_last):
    ring, pre = OPT["ring"], OPT["pre"]

    def issue(st):
        if OPT.get("noload") and st > 1:
            return
        base = (st % ring) * STAGE
        for j in range(4):
            a(f"s_add_u32 m0, s76, {base + 4096*j}")
            if st > 0:
                a(f"s_add_u32 s{68+j}, s{68+j}, s74")
            else:
                a("s_nop 0")
            a(f"buffer_load_dwordx4 v1, s[{SRD1}:{SRD1+3}], s{68+j} offen lds")
        alt = alt_last and st == 8
        for g in range(2):
            for u in range(3):
                a(f"s_add_u32 m0, s{77+u}, {base + 12288*g}")
                if u == 0 and st > 0 and not alt:
                    a(f"s_add_u32 s{72+g}, s{72+g}, s75")
                else:
                    a("s_nop 0")
                d = SRD2A if g == 0 else SRD2B
                a(f"buffer_load_dwordx4 v{(5 if alt else 2)+u}, s[{d}:{d+3}], s{(80 if alt else 72)+g} offen lds")

    for st in range(pre):
        issue(st)
    nxt = pre
    for st in range(9):
        a(f"s_waitcnt vmcnt({0 if OPT.get('noload') else 10*(nxt-1-st)})")
        a("s_barrier")
        while nxt < 9 and nxt <= st - 1 + ring and (nxt - st <= pre or nxt <= st + ring - 1 and OPT.get("greedy")):
            issue(nxt)
            nxt += 1


def rows_voff(a, dst, stride, tmp):
    a(f"""v_lshrrev_b32 v{tmp}, 3, v0
    v_lshrrev_b32 v{tmp+1}, 4, v0
    s_and_b32 s7, s6, 1
    s_lshl_b32 s7, s7, 2
    v_add_u32 v{tmp+1}, s7, v{tmp+1}
    v_and_b32 v{tmp+2}, 7, v0
    v_xor_b32 v{tmp+1}, v{tmp+1}, v{tmp+2}
    s_lshl_b32 s7, s6, 3
    v_add_u32 v{tmp}, s7, v{tmp}
    v_mul_u32_u24 v{tmp}, {stride}, v{tmp}
    v_lshl_add_u32 v{dst}, v{tmp+1}, 4, v{tmp}""")


def wrows_parts(a, u, kr, pc, tmp):
    a(f"""v_add_u32 v{tmp}, {64*u}, v0
    v_mul_u32_u24 v{kr}, 2731, v{tmp}
    v_lshrrev_b32 v{kr}, 16, v{kr}
    v_mul_u32_u24 v{pc}, 24, v{kr}
    v_sub_u32 v{pc}, v{tmp}, v{pc}
    v_and_b32 v{tmp}, 2, v{kr}
    v_lshlrev_b32 v{tmp}, 1, v{tmp}
    v_xor_b32 v{pc}, v{pc}, v{tmp}""")


def consumer(a, steps_per_stage, reads, mfmas, addr_regs, prebar, per_gap=2, pf=0, fill=None, fill_from=2, ring=None, stage=STAGE):
    ring = ring or OPT["ring"]
    if OPT.get("nocomp"):
        rd0, mf0 = reads, mfmas
        if OPT["nocomp"] == 1:
            reads = lambda ks, b: []
        mfmas = lambda n, b: mf0(n, b)[:1] if n == 0 else ["s_nop 0", "s_nop 0", "s_nop 0", "s_nop 0"]
    nsteps = 9 * steps_per_stage
    a("s_barrier")
    for x in reads(0, 0):
        a(x)
    for n in range(nsteps):
        ks = n % steps_per_stage
        st = n // steps_per_stage
        m = mfmas(n, n & 1)
        a("s_waitcnt lgkmcnt(0)")
        rd = []
        if n + 1 < nsteps:
            if ks == steps_per_stage - 1:
                pb = min(prebar, len(m) - 1)
                for x in m[:pb]:
                    a(x)
                m = m[pb:]
                a("s_barrier")
                if OPT["stamps"] == 3 and st < 7:
                    a(f"s_memrealtime s[{86+2*st}:{87+2*st}]")
                delta = stage if (st + 1) % ring else -(ring - 1) * stage
                for rg in addr_regs:
                    a(f"v_add_u32 v{rg}, {delta & 0xffffffff}, v{rg}")
                rd = reads((n + 1) % steps_per_stage, (n + 1) & 1)
                k = -(-len(rd) // 2)
                for x in rd[:k]:
                    a(x)
                rd = rd[k:]
            else:
                rd = reads((n + 1) % steps_per_stage, (n + 1) & 1)
        for x in m:
            a(x)
            nf = 0 if len(rd) >= per_gap else (3 if not rd else 1)
            for y in rd[:per_gap]:
                a(y)
            rd = rd[per_gap:]
            while fill and n >= fill_from and nf > 0:
                a(fill.pop(0))
                nf -= 1
        for y in rd:
            a(y)


def consumer2(a, sps, reads, mfmas, upd, depth=1, bar_ks=1, per_gap=2, fill=None, fill_from=2, nst=9, stage=STAGE, ring=None):
    ring = ring or OPT["ring"]
    assert OPT["pre"] <= OPT["ring"] - 2 and bar_ks + depth <= sps
    nsteps = nst * sps
    nb = depth + 1
    out = []

    def issue(x):
        a(x)
        if x.startswith("ds_read"):
            out.append(Ins(x).w)
            assert len(out) <= 15

    def rds(n):
        st, ks = divmod(n, sps)
        r = list(reads(ks, n % nb))
        if st < nst - 1:
            delta = stage if (st + 1) % ring else -(ring - 1) * stage
            r += [f"v_add_u32 v{rg}, {delta & 0xffffffff}, v{rg}" for rg in upd(ks)]
        return r
    a("s_barrier")
    for n in range(depth):
        for x in rds(n):
            issue(x)
    for n in range(nsteps):
        st, ks = divmod(n, sps)
        rd = rds(n + depth) if n + depth < nsteps else []
        for mi, x in enumerate(mfmas(n, n % nb)):
            need = Ins(x).srcab
            last = max((i for i, w in enumerate(out) if w & need), default=-1)
            if last >= 0:
                a(f"s_waitcnt lgkmcnt({len(out) - 1 - last})")
                del out[:last + 1]
            a(x)
            if mi == 0 and ks == bar_ks and st < nst - 1:
                a("s_barrier")
                if OPT["stamps"] == 3 and st < 7:
                    a(f"s_memrealtime s[{86+2*st}:{87+2*st}]")
            nf = 0 if len(rd) > per_gap else (3 if not rd else 2)
            for y in rd[:per_gap]:
                issue(y)
            rd = rd[per_gap:]
            while fill and n >= fill_from and nf > 0:
                a(fill.pop(0))
                nf -= 1
        for y in rd:
            issue(y)


MF = "v_mfma_f32_32x32x16_bf16"
ACC = 160
FR = 100
XA, WA = 90, 94


def lane_parts(a):
    a("""v_and_b32 v1, 31, v0
    v_lshrrev_b32 v2, 5, v0
    s_mov_b32 s8, 0
    s_mov_b32 s9, -1
    s_mov_b32 s10, 0xffff0000
    s_mov_b32 s11, 0xffff0000""")


def tau(a, dst, tmp):
    a(f"""v_and_b32 v{dst}, 3, v1
    v_lshrrev_b32 v{tmp}, 3, v1
    v_lshl_add_u32 v{dst}, v{tmp}, 2, v{dst}
    v_and_b32 v{tmp}, 4, v1
    v_lshl_add_u32 v{dst}, v{tmp}, 2, v{dst}""")


def row_addr(a, dst, rowreg, sbase, tmp):
    a(f"""v_bfe_u32 v{tmp}, v{rowreg}, 1, 3
    v_xor_b32 v{tmp}, v{tmp}, v2
    v_lshlrev_b32 v{tmp}, 4, v{tmp}
    v_lshl_add_u32 v{tmp}, v{rowreg}, 7, v{tmp}
    v_add_u32 v{dst}, {sbase}, v{tmp}
    v_xor_b32 v{dst+1}, 32, v{dst}
    v_xor_b32 v{dst+2}, 64, v{dst}
    v_xor_b32 v{dst+3}, 96, v{dst}""")


def tr_addr(a, ntile, stride, base):
    a(f"""v_bfe_u32 v3, v0, 2, 2
    v_lshl_add_u32 v3, v2, 3, v3
    v_mul_u32_u24 v3, {stride}, v3
    v_add_u32 v3, {base}, v3
    v_and_b32 v4, 8, v0
    v_lshlrev_b32 v4, 3, v4
    v_and_b32 v5, 3, v0
    v_lshlrev_b32 v5, 3, v5""")
    for ft in range(ntile):
        a(f"""v_mov_b32 v6, s{68+2*ft}
        v_mov_b32 v7, s{69+2*ft}
        v_cndmask_b32 v6, v6, v7, s[10:11]
        v_bfe_u32 v6, v6, v5, 8
        v_lshlrev_b32 v6, 3, v6
        v_xor_b32 v6, v6, v4
        v_add_u32 v{WA+ft}, v3, v6""")


def nat_tables(a, ntile, first):
    for ft in range(ntile):
        a(f"""s_add_u32 s7, s{first}, {ft}
        s_mul_i32 s7, s7, 0x08080808
        s_add_u32 s{68+2*ft}, s7, 0x03020100
        s_add_u32 s{69+2*ft}, s7, 0x07060504""")


def wx_loop(a, w_is_a, pf=0):
    def reads(ks, b):
        f = FR + 20 * b
        r = []
        for e in range(2):
            r.append(f"ds_read_b64_tr_b16 v[{f+8+2*e}:{f+9+2*e}], v{WA} offset:{(16*ks+4*e)*384}")
        r.append(f"ds_read_b128 v[{f}:{f+3}], v{XA+ks}")
        r.append(f"ds_read_b128 v[{f+4}:{f+7}], v{XA+ks} offset:4096")
        for ft in (1, 2):
            for e in range(2):
                r.append(f"ds_read_b64_tr_b16 v[{f+8+4*ft+2*e}:{f+9+4*ft+2*e}], v{WA+ft} offset:{(16*ks+4*e)*384}")
        return r

    def mfmas(n, b):
        f = FR + 20 * b
        m = []
        for ft in range(3):
            for tt in range(2):
                acc = vr(ACC + (ft * 2 + tt) * 16, 16)
                w, x = vr(f + 8 + 4 * ft, 4), vr(f + 4 * tt, 4)
                A, B = (w, x) if w_is_a else (x, w)
                m.append(f"{MF} {acc}, {A}, {B}, {acc if n else 0}")
        return m
    if OPT.get("c2", 1):
        consumer2(a, 4, reads, mfmas, lambda ks: [XA + ks] + ([WA, WA + 1, WA + 2] if ks == 3 else []), bar_ks=OPT.get("bar_ks", 1))
    else:
        consumer(a, 4, reads, mfmas, [XA, XA + 1, XA + 2, XA + 3, WA, WA + 1, WA + 2], OPT["prebar"], pf=pf)


def chunk_info(q):
    j, pos = divmod(q, 9)
    if pos < 4:
        return ("half", 2 * j, pos)
    if pos == 4:
        return ("mid", j, 0)
    return ("half", 2 * j + 1, pos - 5)


def reg_tile(qa, qb):
    return [(qb if c & 1 else qa) + (c >> 1) for c in range(8)]


def spec_tile(slots):
    t = [0] * 8
    for i, (x, y) in enumerate(slots):
        t[2 * i], t[2 * i + 1] = x, y
    return t


QK_TILES = [
    [reg_tile(5, 9), reg_tile(14, 18), reg_tile(0, 41), reg_tile(23, 27), reg_tile(32, 36),
     spec_tile([(45, 46), (47, 4), (13, 22), (31, 40)])],
    [reg_tile(50, 54), reg_tile(59, 63), reg_tile(68, 72), reg_tile(77, 81), reg_tile(86, 90),
     spec_tile([(48, 95), (49, 58), (67, 76), (85, 94)])],
    [reg_tile(104, 108), reg_tile(113, 117), reg_tile(99, 140), reg_tile(122, 126), reg_tile(131, 135),
     spec_tile([(96, 97), (98, 103), (112, 121), (130, 139)])],
]
for _b in range(3):
    assert sorted(sum(QK_TILES[_b], [])) == list(range(48 * _b, 48 * _b + 48))


def is_regular(t):
    for hh in range(2):
        inf = [chunk_info(t[2 * i + hh]) for i in range(4)]
        if not all(x[0] == "half" and x[1] == inf[0][1] and x[2] == i for i, x in enumerate(inf)):
            return False
    return True


def qk_epilogue(a, b, wf):
    W = f"s[{SRDW}:{SRDW+3}]"
    tmp = FR
    for ft in range(3):
        t = QK_TILES[b][3 * wf + ft]
        A = [ACC + (ft * 2 + tt) * 16 for tt in range(2)]
        if is_regular(t):
            h0, h1 = chunk_info(t[0])[1], chunk_info(t[1])[1]
            if h1 - h0 == 1:
                va = 5
            else:
                va = 6
                a(f"s_mov_b32 s7, {(h1-h0)*IMG}\n v_mad_i32_i24 v6, v2, s7, v3")
            a(f"s_mov_b32 s12, {h0*IMG}\n s_mov_b32 s13, {h0*IMG+4096}")
            for tt in range(2):
                for k in range(8):
                    a(f"v_cvt_pk_bf16_f32 v{A[tt]+k}, v{A[tt]+2*k}, v{A[tt]+2*k+1}")
                    if k == 3:
                        a(f"buffer_store_dwordx4 v[{A[tt]}:{A[tt]+3}], v{va}, {W}, s12 offen offset:{512*tt}")
                a(f"buffer_store_dwordx4 v[{A[tt]+4}:{A[tt]+7}], v{va}, {W}, s13 offen offset:{512*tt}")
        else:
            for i in range(4):
                k0, k1 = chunk_info(t[2 * i]), chunk_info(t[2 * i + 1])
                T = tmp
                tmp += 4
                d00 = f"v{A[0]+4*i}, v{A[0]+4*i+1}"
                d01 = f"v{A[0]+4*i+2}, v{A[0]+4*i+3}"
                d10 = f"v{A[1]+4*i}, v{A[1]+4*i+1}"
                d11 = f"v{A[1]+4*i+2}, v{A[1]+4*i+3}"
                a(f"v_cvt_pk_bf16_f32 v{T}, {d00}\n v_cvt_pk_bf16_f32 v{T+3}, {d11}")
                if k0[0] == k1[0] == "half":
                    a(f"v_cvt_pk_bf16_f32 v{T+1}, {d01}\n v_cvt_pk_bf16_f32 v{T+2}, {d10}")
                elif k0[0] == k1[0] == "mid":
                    a(f"v_cvt_pk_bf16_f32 v{T+1}, {d10}\n v_cvt_pk_bf16_f32 v{T+2}, {d01}")
                else:
                    assert k0[0] == "half" and k1[0] == "mid"
                    a(f"""v_cvt_pk_bf16_f32 v8, {d01}
                    v_cvt_pk_bf16_f32 v9, {d10}
                    v_cndmask_b32 v{T+1}, v8, v9, s[8:9]
                    v_cndmask_b32 v{T+2}, v9, v8, s[8:9]""")

                def const(k, s):
                    if k[0] == "half":
                        return k[1] * IMG + (k[2] >> 1) * 4096 + (k[2] & 1) * 8 + 512 * s
                    return (2 * k[1] + s) * IMG
                if k0[0] == k1[0]:
                    vb = 3 if k0[0] == "half" else 4
                else:
                    vb = 7
                    a("v_cndmask_b32 v7, v3, v4, s[8:9]")
                for s in range(2):
                    c0, c1 = const(k0, s), const(k1, s)
                    a(f"""s_mov_b32 s7, {abs(c1-c0)}
                    s_mov_b32 s{12+s}, {min(c0, c1)}
                    v_mad_u32_u24 v{10+s}, v{2 if c1 >= c0 else 12}, s7, v{vb}
                    buffer_store_dwordx2 v[{T+2*s}:{T+2*s+1}], v{10+s}, {W}, s{12+s} offen""")


def cmul(a, dr, di, xr, xi, yr, yi):
    a(f"""v_mul_f32 v{dr}, v{xr}, v{yr}
    v_mul_f32 v{di}, v{xr}, v{yi}
    v_fma_f32 v{dr}, -v{xi}, v{yi}, v{dr}
    v_fma_f32 v{di}, v{xi}, v{yr}, v{di}""")


def k1(a):
    a.label("k1_kernel")
    stamp(a, 0)
    a("s_cmp_ge_u32 s2, 256\n s_cbranch_scc1 K1_done")
    load_args(a)
    a("""v_lshrrev_b32 v1, 6, v0
    v_and_b32 v0, 63, v0
    s_and_b32 s6, s2, 7
    v_readfirstlane_b32 s5, v1
    s_lshr_b32 s7, s2, 3
    s_cmp_lt_u32 s7, 20
    s_cbranch_scc1 K1_gemm""")
    a.label("K1_pf")
    if OPT.get("pfc", 1):
        a(f"""s_getpc_b64 s[12:13]""")
        a.label("K1_pc")
        a(f"""s_sub_u32 s14, s7, 20
        s_lshl_b32 s14, s14, 3
        s_add_u32 s14, s14, s5
        s_lshl_b32 s14, s14, 10
        s_sub_u32 s12, s12, K1_pc-k1_kernel
        s_subb_u32 s13, s13, 0
        v_and_b32 v10, 7, v0
        v_lshl_add_u32 v10, v10, 7, s14
        v_min_u32 v10, K2_last-k1_kernel, v10
        v_mov_b32 v11, s13
        v_add_co_u32 v10, vcc, s12, v10
        s_nop 1
        v_addc_co_u32 v11, vcc, 0, v11, vcc
        global_load_dword v12, v[10:11], off""")
    if OPT.get("pf1", 1):
        a(f"""s_sub_u32 s7, s7, 20
        s_lshl_b32 s7, s7, 3
        s_add_u32 s7, s7, s5
        s_mul_i32 s3, s7, 2731
        s_lshr_b32 s3, s3, 16
        s_mul_i32 s4, s3, 24
        s_sub_u32 s4, s7, s4
        s_lshr_b32 s12, s6, 1
        s_lshl_b32 s12, s12, 3
        s_add_u32 s12, s12, s4
        s_mul_i32 s12, s12, {64*1152}
        s_lshl_b32 s13, s3, 7
        s_add_u32 s12, s12, s13
        s_and_b32 s13, s6, 1
        s_mul_i32 s13, s13, 15
        s_add_u32 s13, s13, s4
        s_sub_u32 s13, s13, 8
        s_lshl_b32 s14, s13, 7
        s_mul_i32 s15, s3, {64*3456}
        s_add_u32 s14, s14, s15
        s_cmp_ge_u32 s13, 27
        s_cselect_b32 s14, {576*3456}, s14
        s_cmp_eq_u32 s4, 23
        s_cselect_b32 s14, {576*3456}, s14
        s_cmp_lt_u32 s4, 8
        s_cselect_b32 s12, s12, s14
        s_movk_i32 s13, 512
        s_cselect_b32 s13, s13, {4*64*3456}
        s_movk_i32 s14, 1152
        s_cselect_b32 s14, s14, 3456
        v_mul_u32_u24 v1, s14, v0
        s_waitcnt lgkmcnt(0)""")
        srd_sel(a, SRD1, P_AX, P_WQKV, 2048 * 1152, 576 * 3456)
        a(f"""buffer_load_dword v2, v1, s[{SRD1}:{SRD1+3}], s12 offen
        s_add_u32 s12, s12, s13
        buffer_load_dword v3, v1, s[{SRD1}:{SRD1+3}], s12 offen
        s_add_u32 s12, s12, s13
        s_cmp_lg_u32 s3, 0
        s_cselect_b32 s12, {2048*3456}, s12
        buffer_load_dword v4, v1, s[{SRD1}:{SRD1+3}], s12 offen""")
        if OPT.get("pf2", 1):
            a(f"""v_lshlrev_b32 v1, 7, v0
            s_mul_i32 s12, s6, {256*1152}
            s_mul_i32 s13, s7, {24*128}
            s_add_u32 s12, s12, s13
            s_mul_i32 s13, s7, {54*128}
            s_waitcnt vmcnt(1)""")
            srd(a, SRD2A, P_BX, 2048 * 1152)
            srd(a, SRD2B, P_BRE, 576 * 1152)
            srd(a, SRD1, P_BIM, 576 * 1152)
            a(f"""s_mov_b32 exec_hi, 0x3fffff
            buffer_load_dword v5, v1, s[{SRD2B}:{SRD2B+3}], s13 offen
            buffer_load_dword v6, v1, s[{SRD1}:{SRD1+3}], s13 offen
            s_mov_b64 exec, 0xffffff
            buffer_load_dword v7, v1, s[{SRD2A}:{SRD2A+3}], s12 offen""")
    a("s_endpgm")
    a.label("K1_gemm")
    a("""s_lshr_b32 s3, s6, 1
    s_lshl_b32 s3, s3, 2
    s_and_b32 s4, s7, 3
    s_add_u32 s3, s3, s4
    s_and_b32 s6, s6, 1
    s_mul_i32 s6, s6, 5
    s_lshr_b32 s7, s7, 2
    s_add_u32 s4, s6, s7
    s_cmp_ge_u32 s4, 9
    s_cbranch_scc1 K1_const
    s_cmp_lt_u32 s5, 4
    s_waitcnt lgkmcnt(0)
    s_cbranch_scc1 K1_cons""")
    a("s_sub_u32 s6, s5, 4")
    rows_voff(a, 1, 1152, 8)
    a(f"""s_mul_i32 s68, s3, {128*1152}
    s_add_u32 s69, s68, {32*1152}
    s_add_u32 s70, s68, {64*1152}
    s_add_u32 s71, s68, {96*1152}
    s_mov_b32 s74, 128
    s_lshl_b32 s76, s6, 10""")
    srd(a, SRD1, P_AX, 2048 * 1152)
    srd(a, SRD2A, P_WQKV, 576 * 3456)
    srd(a, SRD2B, P_WQKV, 576 * 3456)
    for u in range(3):
        wrows_parts(a, u, 8, 9, 10)
        a(f"v_mul_u32_u24 v8, 3456, v8\n v_lshl_add_u32 v{2+u}, v9, 4, v8")
    a(f"""s_mul_i32 s72, s6, {8*3456}
    s_mul_i32 s7, s4, 384
    s_add_u32 s72, s72, s7
    s_add_u32 s73, s72, {32*3456}
    s_mov_b32 s75, {64*3456}
    s_mul_i32 s77, s6, 3072
    s_add_u32 s77, s77, 16384
    s_add_u32 s78, s77, 1024
    s_add_u32 s79, s77, 2048""")
    loader(a, False)
    a("s_endpgm")
    a.label("K1_cons")
    srd(a, SRDW, P_WS, WS_END)
    lane_parts(a)
    a("""s_and_b32 s14, s5, 1
    s_lshr_b32 s15, s5, 1
    s_cmp_ge_u32 s4, 6
    s_cbranch_scc1 K1_v""")
    a("""s_sub_u32 s46, s4, 3
    s_cmp_lt_u32 s4, 3
    s_cselect_b32 s46, s4, s46
    s_lshl_b32 s46, s46, 1
    s_add_u32 s46, s46, s15""")
    for var in range(6):
        b, wf = divmod(var, 2)
        if var:
            a(f"s_cmp_eq_u32 s46, {var}")
        for ft in range(3):
            t = [x - 48 * b for x in QK_TILES[b][3 * wf + ft]]
            for hh in range(2):
                val = sum(t[4 * hh + c] << (8 * c) for c in range(4))
                if var:
                    a(f"s_cselect_b32 s{68+2*ft+hh}, {val}, s{68+2*ft+hh}")
                else:
                    a(f"s_mov_b32 s{68+2*ft+hh}, {val}")
    tr_addr(a, 3, 384, 16384)
    a("s_lshl_b32 s7, s14, 13")
    row_addr(a, XA, 1, "s7", 8)
    stamp(a, 1)
    wx_loop(a, True)
    stamp(a, 2)
    a(f"""s_lshr_b32 s6, s3, 1
    s_mul_i32 s6, s6, {CH}
    s_cmp_lt_u32 s4, 3
    s_cselect_b32 s7, {Q_OFF}, {KV_OFF}
    s_add_u32 s6, s6, s7
    s_and_b32 s7, s3, 1
    s_lshl_b32 s7, s7, 1
    s_add_u32 s7, s7, s14
    s_lshl_b32 s12, s7, 10
    s_add_u32 s12, s12, s6
    s_and_b32 s13, s3, 1
    s_lshl_b32 s13, s13, 9
    s_lshl_b32 s7, s14, 3
    s_add_u32 s13, s13, s7
    s_add_u32 s13, s13, s6
    s_add_u32 s13, s13, 8192
    v_lshl_add_u32 v3, v1, 4, s12
    v_lshl_add_u32 v4, v1, 4, s13
    s_mov_b32 s7, {IMG}
    v_mad_i32_i24 v5, v2, s7, v3
    v_xor_b32 v12, 1, v2""")
    for var in range(6):
        if var < 5:
            a(f"s_cmp_lg_u32 s46, {var}\n s_cbranch_scc1 K1_qe{var+1}")
        qk_epilogue(a, *divmod(var, 2))
        stamp(a, 3)
        stamp_store(a, 0, 4)
        a("s_endpgm")
        if var < 5:
            a.label(f"K1_qe{var+1}")
    a.label("K1_v")
    a("s_mul_i32 s46, s15, 3")
    nat_tables(a, 3, 46)
    tr_addr(a, 3, 384, 16384)
    tau(a, 9, 8)
    a("s_lshl_b32 s7, s14, 13")
    row_addr(a, XA, 9, "s7", 8)
    a("""s_sub_u32 s6, s4, 6
    s_mul_i32 s6, s6, 192
    s_lshl_b32 s7, s46, 5
    s_add_u32 s6, s6, s7
    v_add_u32 v3, s6, v1""")
    a(f"s_mov_b32 s7, {IMG}\n v_mul_u32_u24 v8, {2*VG}, v2")
    for ft in range(3):
        a(f"""v_add_u32 v4, {32*ft}, v3
        v_mul_u32_u24 v5, 3641, v4
        v_lshrrev_b32 v5, 16, v5
        v_mul_u32_u24 v6, 18, v5
        v_sub_u32 v6, v4, v6
        v_mad_u32_u24 v5, v5, s7, v8
        v_lshl_add_u32 v{80+ft}, v6, 4, v5""")
    stamp(a, 1)
    wx_loop(a, False)
    stamp(a, 2)
    a(f"""s_lshr_b32 s6, s3, 1
    s_mul_i32 s6, s6, {CH}
    s_and_b32 s7, s3, 1
    s_lshl_b32 s7, s7, 1
    s_add_u32 s7, s7, s14
    s_mul_i32 s7, s7, {8*VG}
    s_add_u32 s12, s6, s7
    s_add_u32 s12, s12, {KV_OFF + 9216}
    s_nop 3""")
    W = f"s[{SRDW}:{SRDW+3}]"
    for ft in range(3):
        for tt in range(2):
            A = ACC + (ft * 2 + tt) * 16
            for k in range(8):
                a(f"v_cvt_pk_bf16_f32 v{A+k}, v{A+2*k}, v{A+2*k+1}")
                if k == 3:
                    a(f"buffer_store_dwordx4 v[{A}:{A+3}], v{80+ft}, {W}, s12 offen offset:{4*tt*VG}")
            a(f"buffer_store_dwordx4 v[{A+4}:{A+7}], v{80+ft}, {W}, s12 offen offset:{(4*tt+1)*VG}")
    stamp(a, 3)
    stamp_store(a, 0, 4)
    a.label("K1_done")
    a("s_endpgm")
    a.label("K1_const")
    a(f"""s_lshl_b32 s6, s3, 3
    s_add_u32 s6, s6, s5
    s_lshr_b32 s7, s6, 2
    s_mul_i32 s7, s7, {IMG}
    s_and_b32 s6, s6, 3
    s_mul_i32 s6, s6, {2*CH}
    s_add_u32 s6, s6, s7
    s_add_u32 s6, s6, {KV_OFF + 9216 + 288}
    s_add_u32 s7, s6, {CH}
    v_lshrrev_b32 v1, 1, v0
    v_mul_u32_u24 v1, {VG}, v1
    v_and_b32 v2, 1, v0
    v_lshl_add_u32 v1, v2, 4, v1
    v_subrev_u32 v2, 1, v2
    v_and_b32 v4, 0x3f803f80, v2
    v_mov_b32 v5, v4
    v_mov_b32 v6, v4
    v_mov_b32 v7, v4
    s_waitcnt lgkmcnt(0)""")
    srd(a, SRDW, P_WS, WS_END)
    a(f"""buffer_store_dwordx4 v[4:7], v1, {W}, s6 offen
    buffer_store_dwordx4 v[4:7], v1, {W}, s7 offen
    s_lshl_b32 s6, s3, 3
    s_add_u32 s6, s6, s5
    s_mul_i32 s6, s6, 1152
    s_add_u32 s6, s6, {ECH_OFF}
    v_lshlrev_b32 v1, 4, v0
    v_mov_b32 v8, -1
    v_mov_b32 v9, -1
    v_mov_b32 v10, -1
    v_mov_b32 v11, -1
    buffer_store_dwordx4 v[8:11], v1, {W}, s6 offen
    s_mov_b64 exec, 0xff
    buffer_store_dwordx4 v[8:11], v1, {W}, s6 offen offset:1024
    s_or_b32 s6, s3, s5
    s_cmp_lg_u32 s6, 0
    s_cbranch_scc1 K1_done
    s_mov_b32 exec_lo, -1
    s_mov_b32 exec_hi, 0xff
    v_lshlrev_b32 v1, 7, v0
    v_mov_b32 v2, 0
    s_mov_b32 s6, {FLG_OFF}
    buffer_store_dword v2, v1, {W}, s6 offen""")
    a.label("K1_last")
    a("s_endpgm")


def k2(a):
    import k2gen
    k2gen.k2(a)


def out_tiles(a, tiles, srcs=None):
    O = f"s[{SRDO}:{SRDO+3}]"
    for k, (A, so, col) in enumerate(tiles):
        for i in range(4):
            a(f"ds_write_b128 v{6+i}, v[{A+4*i}:{A+4*i+3}] offset:{4096*k}")
        if k:
            a("s_waitcnt lgkmcnt(4)")
        for j in range(4):
            a(f"ds_read_b128 v[{A+4*j}:{A+4*j+3}], v4 offset:{4096*k + 1024*j}")
        if k:
            pA, pso, pcol = tiles[k - 1]
            for j in range(4):
                a(f"buffer_store_dwordx4 v[{pA+4*j}:{pA+4*j+3}], v{10+j}, {O}, s{pso} offen offset:{pcol}")
    pA, pso, pcol = tiles[-1]
    a("s_waitcnt lgkmcnt(0)")
    for j in range(4):
        a(f"buffer_store_dwordx4 v[{pA+4*j}:{pA+4*j+3}], v{10+j}, {O}, s{pso} offen offset:{pcol}")


def out_addr(a, per_wave, base=STAGE):
    return f"""s_mul_i32 s7, s5, {per_wave}
    s_add_u32 s7, s7, {base}
    v_and_b32 v3, 7, v1
    v_xor_b32 v3, v3, v2
    v_lshlrev_b32 v3, 4, v3
    v_lshl_add_u32 v3, v1, 7, v3
    v_add_u32 v6, s7, v3
    v_xor_b32 v7, 32, v6
    v_xor_b32 v8, 64, v6
    v_xor_b32 v9, 96, v6
    v_lshrrev_b32 v3, 3, v0
    v_and_b32 v5, 7, v0
    v_xor_b32 v4, v3, v5
    v_lshlrev_b32 v4, 4, v4
    v_lshl_add_u32 v4, v3, 7, v4
    v_add_u32 v4, s7, v4
    v_mul_u32_u24 v10, 4608, v3
    v_lshl_add_u32 v10, v5, 4, v10
    v_add_u32 v11, {8*4608}, v10
    v_add_u32 v12, {16*4608}, v10
    v_add_u32 v13, {24*4608}, v10"""


def k3(a):
    a.label("k3_kernel")
    stamp(a, 0)
    a("s_cmp_ge_u32 s2, 240\n s_cbranch_scc1 K3_done")
    load_args(a)
    a("""v_lshrrev_b32 v1, 6, v0
    v_and_b32 v0, 63, v0
    s_and_b32 s6, s2, 7
    v_readfirstlane_b32 s5, v1
    s_lshr_b32 s47, s2, 3
    s_lshl_b32 s3, s6, 1
    s_and_b32 s7, s47, 1
    s_add_u32 s3, s3, s7
    s_lshr_b32 s4, s47, 1
    s_sub_u32 s12, s47, 6
    s_lshl_b32 s13, s6, 2
    s_and_b32 s7, s12, 3
    s_add_u32 s13, s13, s7
    s_lshr_b32 s12, s12, 2
    s_cmp_lt_u32 s47, 6
    s_cselect_b32 s3, s3, s13
    s_cselect_b32 s4, s4, s12
    s_cmp_lt_u32 s5, 4
    s_waitcnt lgkmcnt(0)
    s_cbranch_scc1 K3_cons""")
    a("s_sub_u32 s6, s5, 4")
    srd(a, SRD1, P_WS, WS_END)
    a(f"""s_lshl_b32 s76, s6, 10
    s_cmp_ge_u32 s47, 6""")
    srd_sel(a, SRD2A, P_CRE, P_WO, 576 * 1152, 576 * 1152)
    srd_sel(a, SRD2B, P_CIM, P_WO, 576 * 1152, 576 * 1152)
    a("s_cbranch_scc1 K3_ld_r")
    rows_voff(a, 1, 1152, 8)
    a(f"""s_mul_i32 s68, s3, {128*1152}
    s_add_u32 s68, s68, {O_OFF}
    s_add_u32 s69, s68, {32*1152}
    s_add_u32 s70, s68, {64*1152}
    s_add_u32 s71, s68, {96*1152}
    s_mov_b32 s74, 128""")
    for u in range(3):
        wrows_parts(a, u, 8, 9, 10)
        a(f"""v_lshlrev_b32 v9, 4, v9
        v_mul_u32_u24 v10, 1152, v8
        v_add_u32 v{2+u}, v9, v10
        v_lshrrev_b32 v10, 1, v8
        v_mul_u32_u24 v10, 18, v10
        v_and_b32 v8, 1, v8
        v_add3_u32 v8, v8, v10, 16
        v_mul_u32_u24 v10, 1152, v8
        v_add_u32 v{5+u}, v9, v10""")
    a(f"""s_lshl_b32 s72, s6, 3
    s_and_b32 s7, s6, 2
    s_add_u32 s72, s72, s7
    s_mul_i32 s72, s72, 1152
    s_mul_i32 s7, s4, 384
    s_add_u32 s72, s72, s7
    s_add_u32 s73, s72, {36*1152}
    s_mul_i32 s80, s6, {72*1152}
    s_add_u32 s80, s80, s7
    s_add_u32 s81, s80, {4*72*1152}
    s_mov_b32 s75, {72*1152}
    s_mul_i32 s77, s6, 3072
    s_add_u32 s77, s77, 16384
    s_add_u32 s78, s77, 1024
    s_add_u32 s79, s77, 2048
    s_branch K3_ld_go""")
    a.label("K3_ld_r")
    rows_voff(a, 2, 1152, 8)
    a(f"""v_add_u32 v3, {32*1152}, v2
    v_add_u32 v4, {64*1152}, v2
    v_mov_b32 v5, v2
    v_mov_b32 v6, v3
    v_mov_b32 v7, v4
    v_lshrrev_b32 v8, 3, v0
    v_mul_u32_u24 v8, {PLB}, v8
    v_lshrrev_b32 v9, 2, v0
    v_and_b32 v9, 4, v9
    v_and_b32 v10, 7, v0
    v_xor_b32 v9, v9, v10
    s_lshl_b32 s7, s6, 3
    v_add_u32 v9, s7, v9
    v_lshl_add_u32 v1, v9, 4, v8
    s_mul_i32 s68, s3, {4*SEGB}
    s_add_u32 s68, s68, {XT_OFF}
    s_add_u32 s69, s68, {32*16}
    s_add_u32 s70, s68, {576*16}
    s_add_u32 s71, s68, {608*16}
    s_mov_b32 s74, {64*16}
    s_mul_i32 s72, s4, {96*1152}
    s_mov_b32 s73, s72
    s_add_u32 s80, s72, {8*128}
    s_mov_b32 s81, s80
    s_mov_b32 s75, 128
    s_add_u32 s77, s76, 16384
    s_add_u32 s78, s77, 4096
    s_add_u32 s79, s77, 8192""")
    a.label("K3_ld_go")
    loader(a, True)
    a("s_endpgm")
    a.label("K3_cons")
    srd(a, SRDO, P_OUT, 2048 * 4608)
    if OPT["stamps"]:
        srd(a, SRDW, P_WS, WS_END)
    lane_parts(a)
    O = f"s[{SRDO}:{SRDO+3}]"
    a("""s_cmp_ge_u32 s47, 6
    s_cbranch_scc1 K3_r
    s_and_b32 s14, s5, 1
    s_lshr_b32 s15, s5, 1
    s_mul_i32 s46, s15, 3""")
    nat_tables(a, 3, 46)
    tr_addr(a, 3, 384, 16384)
    a("s_lshl_b32 s7, s14, 13")
    row_addr(a, XA, 1, "s7", 8)
    a(out_addr(a, 24576))
    a(f"""s_lshl_b32 s6, s3, 1
    s_add_u32 s6, s6, s14
    s_mul_i32 s6, s6, {64*4608}
    s_mul_i32 s7, s4, 768
    s_add_u32 s6, s6, s7
    s_mul_i32 s7, s15, 384
    s_add_u32 s12, s6, s7
    s_add_u32 s13, s12, {32*4608}""")
    stamp(a, 1)
    wx_loop(a, True)
    stamp(a, 2)
    a("s_nop 7")
    out_tiles(a, [(ACC + (ft * 2 + tt) * 16, 12 + tt, 128 * ft) for ft in range(3) for tt in range(2)])
    stamp(a, 3)
    stamp_store(a, 2, 4)
    a("s_endpgm")
    a.label("K3_r")
    a("""s_cmp_eq_u32 s5, 3
    s_cbranch_scc0 K3_r2""")
    for _ in range(9):
        a("s_barrier")
    a("s_endpgm")
    a.label("K3_r2")
    a(f"""s_mul_i32 s6, s4, 96
    s_lshl_b32 s7, s5, 5
    s_add_u32 s46, s6, s7
    v_lshlrev_b32 v3, 3, v2
    s_lshl_b32 s6, s46, 1
    v_add_u32 v3, s6, v3
    s_lshl_b32 s6, s3, 6
    v_add_u32 v4, s6, v1
    v_mul_u32_u24 v4, 1152, v4
    v_add_u32 v4, v4, v3
    v_add_u32 v5, {32*1152}, v4""")
    for i in range(4):
        a(f"global_load_dwordx2 v[{16+2*i}:{17+2*i}], v3, s[{P_DSK}:{P_DSK+1}] offset:{16*i}")
    for tt in range(2):
        for i in range(4):
            a(f"global_load_dwordx2 v[{24+8*tt+2*i}:{25+8*tt+2*i}], v{4+tt}, s[{P_BX}:{P_BX+1}] offset:{16*i}")
    a(f"""v_bfe_u32 v6, v0, 4, 1
    v_mul_u32_u24 v6, 320, v6
    v_lshl_add_u32 v6, v2, 10, v6
    v_and_b32 v7, 2, v0
    v_lshl_add_u32 v6, v7, 6, v6
    v_and_b32 v7, 12, v0
    v_lshl_add_u32 v6, v7, 2, v6
    v_and_b32 v7, 1, v0
    v_lshl_add_u32 v{WA}, v7, 3, v6
    v_xor_b32 v{WA+1}, 64, v{WA}""")
    a("s_lshl_b32 s7, s5, 12\n s_add_u32 s7, s7, 16384")
    row_addr(a, XA, 1, "s7", 8)
    a(out_addr(a, 8192))
    a(f"""s_mul_i32 s6, s3, {64*4608}
    s_lshl_b32 s7, s46, 2
    s_add_u32 s6, s6, s7
    s_add_u32 s12, s6, 2304
    s_add_u32 s13, s12, {32*4608}
    s_mov_b32 s14, 0xffff0000""")
    fill = ["s_waitcnt vmcnt(0)"]
    SK = 192
    for k in range(8):
        fill += [f"v_lshlrev_b32 v{40+2*k}, 16, v{16+k}", f"v_and_b32 v{41+2*k}, s14, v{16+k}"]
    for tt in range(2):
        for k in range(8):
            A = SK + 16 * tt + 2 * k
            fill += [f"v_lshlrev_b32 v{A}, 16, v{24+8*tt+k}", f"v_and_b32 v{A+1}, s14, v{24+8*tt+k}",
                     f"v_mul_f32 v{A}, v{A}, v{40+2*k}", f"v_mul_f32 v{A+1}, v{A+1}, v{41+2*k}"]

    def reads(ks, b):
        f = FR + 12 * b
        im, k4 = divmod(ks, 4)
        r = [f"ds_read_b128 v[{f}:{f+3}], v{XA+k4} offset:{12288*im}"]
        for tt in range(2):
            for e in range(2):
                r.append(f"ds_read_b64_tr_b16 v[{f+4+4*tt+2*e}:{f+5+4*tt+2*e}], v{WA+e} offset:{(8*im+2*k4)*1024+512*tt}")
        return r

    def mfmas(n, b):
        f = FR + 12 * b
        return [f"{MF} {vr(ACC+16*tt, 16)}, {vr(f, 4)}, {vr(f+4+4*tt, 4)}, {vr(ACC+16*tt, 16) if n else 0}" for tt in range(2)]
    stamp(a, 1)
    consumer2(a, 8, reads, mfmas, lambda ks: ([XA + ks - 4] if ks >= 4 else []) + ([WA, WA + 1] if ks == 7 else []),
              depth=2, bar_ks=OPT.get("bar_ks8", 3), per_gap=3, fill=fill, fill_from=10)
    assert not fill
    stamp(a, 2)
    a("s_nop 10")
    for i in range(32):
        a(f"v_add_f32 v{ACC+i}, v{ACC+i}, v{SK+i}")
    out_tiles(a, [(ACC + 16 * tt, 12 + tt, 0) for tt in range(2)])
    stamp(a, 3)
    stamp_store(a, 2, 4)
    a.label("K3_done")
    a.label("K3_last")
    a("s_endpgm")


HEADER = """; concat_heads / MHA block / S5 SSM: two launches
;       workgroups 256..447: SSM input GEMM + exact chunked scan (chunk end states handed over through d_ws, marked empty by k1)
; @launch kernel=k1_kernel grid=(256,1,1) block=(512,1,1) lds=163840
; @launch kernel=k2_kernel grid=(448,1,1) block=(512,1,1) lds=81920
.amdgcn_target "amdgcn-amd-amdhsa--gfx950"
.text
"""


def desc(name, vg):
    return f""".amdhsa_kernel {name}
  .amdhsa_next_free_vgpr {vg}
  .amdhsa_next_free_sgpr 102
  .amdhsa_accum_offset {vg}
  .amdhsa_group_segment_fixed_size 0
  .amdhsa_kernarg_size 120
  .amdhsa_user_sgpr_count 2
  .amdhsa_user_sgpr_kernarg_segment_ptr 1
  .amdhsa_system_sgpr_workgroup_id_x 1
.end_amdhsa_kernel
"""


def build(**opt):
    OPT.update(opt)
    out = HEADER
    errs = []
    for name, fn in (("k1_kernel", k1), ("k2_kernel", k2)):
        a = Asm()
        fn(a)
        wt = {0: "", 1: " sc0 sc1", 2: " nt", 3: " sc1"}[OPT.get("wt" + name[1], 0)]
        a.lines = [ln + wt if ln.startswith("buffer_store") else ln for ln in a.lines]
        if OPT.get("sc", 1) == 1:
            a.lines = [ln.replace(" sc0 sc1", " sc1") for ln in a.lines]
        errs += check(a.lines, name)
        for body in getattr(a, "loops", []):
            errs += check(body + body, name + " loop")
        out += f".globl {name}\n.p2align 8\n.type {name},@function\n" + a.text()
    out += '.section .rodata,"a"\n'
    for name, vg in (("k1_kernel", 256), ("k2_kernel", 128)):
        out += ".p2align 6\n" + desc(name, vg)
    return out, sorted(set(errs))


if __name__ == "__main__":
    opts = {}
    path = "concat_heads__mha_block__ssm_conv_s5__prompt.s"
    for arg in sys.argv[1:]:
        if "=" in arg:
            k, v = arg.split("=")
            opts[k] = int(v)
        else:
            path = arg
    text, errs = build(**opts)
    for e in errs:
        print("HAZARD", e)
    open(path, "w").write(text)
    print("wrote", path, len(text), "bytes;", len(errs), "hazards")
```

```python
import gen as G
from asmlib import Asm, vr

MF = "v_mfma_f32_32x32x16_bf16"
MF8 = "v_mfma_f32_32x32x8bf16_1k"
OA, PP, KF, KX, VF, QB, AK, AX, AV, NK, NX, NV = 48, 64, 72, 80, 88, 104, 112, 113, 114, 115, 116, 117


def S(q, j):
    return 16 + 16 * (j & 1)


def k2(a):
    a.label("k2_kernel")
    G.stamp(a, 0)
    a("""s_cmp_ge_u32 s2, 448
    s_cbranch_scc1 K2_done""")
    G.load_args(a)
    a("""v_lshrrev_b32 v1, 6, v0
    v_and_b32 v0, 63, v0
    s_cmp_ge_u32 s2, 256
    v_readfirstlane_b32 s5, v1
    s_cbranch_scc1 K2_ssm""")
    attention(a)
    ssm(a)


ST2 = 20480


def tail_loader(a, nst, issue, per=5, pre=2):
    for st in range(pre):
        issue(st)
    for st in range(nst):
        a(f"s_waitcnt vmcnt({per * min(pre - 1, nst - 1 - st)})\n s_barrier")
        if st + pre < nst:
            issue(st + pre)
    a("s_endpgm")


def poll(a, tag, off, target):
    W = f"s[{G.SRDW}:{G.SRDW+3}]"
    a(f"s_mov_b64 exec, 1\n v_mov_b32 v14, 0\n s_mov_b32 s72, 0")
    a.label(tag)
    a(f"""buffer_load_dword v15, v14, {W}, s{off} offen sc0 sc1
    s_waitcnt vmcnt(0)
    v_readfirstlane_b32 s73, v15
    s_add_u32 s72, s72, 1
    s_cmp_ge_u32 s73, {target}
    s_cbranch_scc1 {tag}_ok
    s_sleep 2
    s_cmp_lt_u32 s72, 0x100000
    s_cbranch_scc1 {tag}""")
    a.label(tag + "_ok")
    a("s_mov_b64 exec, -1")


def arrive(a, off):
    W = f"s[{G.SRDW}:{G.SRDW+3}]"
    a(f"""s_mov_b64 exec, 1
    v_mov_b32 v14, 0
    v_mov_b32 v15, 1
    buffer_atomic_add v15, v14, {W}, s{off} offen sc1
    s_mov_b64 exec, -1""")


def attention(a):
    OPT, IMG, CH, VG = G.OPT, G.IMG, G.CH, G.VG
    stamp, stampc = G.stamp, G.stampc
    W = f"s[{G.SRDW}:{G.SRDW+3}]"
    a(f"""s_and_b32 s3, s2, 7
    s_lshl_b32 s3, s3, 2
    s_bfe_u32 s6, s2, 0x20003
    s_add_u32 s3, s3, s6
    s_lshr_b32 s4, s2, 5
    s_mul_i32 s75, s3, {IMG}
    s_lshl_b32 s13, s5, 10
    s_add_u32 s78, s5, 16
    s_min_u32 s78, s78, 18
    s_lshl_b32 s78, s78, 10
    s_mov_b32 s12, s75
    s_mov_b32 s76, 0
    v_lshlrev_b32 v3, 4, v0""")
    G.lane_parts(a)
    a(f"""s_mul_i32 s14, s4, {CH}
    s_add_u32 s14, s14, s75
    s_add_u32 s14, s14, {G.Q_OFF}
    v_lshlrev_b32 v4, 4, v1
    v_lshl_add_u32 v5, v2, 12, v4
    s_lshl_b32 s6, s5, 9
    v_add_u32 v5, s6, v5
    s_lshr_b32 s6, s5, 2
    s_lshl_b32 s6, s6, 9
    s_and_b32 s7, s5, 3
    s_lshl_b32 s7, s7, 2
    s_add_u32 s6, s6, s7
    s_add_u32 s6, s6, 8192
    v_add_u32 v4, s6, v4
    v_add_u32 v6, s13, v3
    v_add_u32 v7, s78, v3
    s_waitcnt lgkmcnt(0)""")
    G.srd(a, G.SRDW, G.P_WS, G.WS_END)

    def dma(c, k):
        sl, g = (c & 3) * CH, c * CH
        if k < 2:
            return f"""s_add_u32 m0, s13, {sl + 8192*k}
            s_add_u32 s7, s75, {g + 8192*k}
            buffer_load_dwordx4 v6, {W}, s7 offen lds"""
        return f"""s_add_u32 m0, s78, {sl}
        s_add_u32 s7, s75, {g}
        buffer_load_dwordx4 v7, {W}, s7 offen lds"""

    a(f"""buffer_load_dwordx4 v[{QB}:{QB+3}], v5, {W}, s14 offen
    buffer_load_dword v{QB+4}, v4, {W}, s14 offen""")
    for c in range(4):
        for k in range(3):
            a(dma(c, k))
        if c == 1:
            stamp(a, 1)
            a(f"""v_and_b32 v11, 19, v1
            v_and_b32 v12, 4, v1
            v_lshl_add_u32 v11, v12, 1, v11
            v_and_b32 v12, 8, v1
            v_lshrrev_b32 v12, 1, v12
            v_add_u32 v11, v11, v12
            v_lshlrev_b32 v{AX}, 4, v11
            v_lshl_add_u32 v{AK}, v2, 12, v{AX}
            v_add_u32 v{AX}, 8192, v{AX}""")
            a(f"""v_min_u32 v12, 19, v1
            v_cmp_gt_u32 vcc, 16, v1
            v_cmp_eq_u32 s[70:71], 28, v1
            v_mul_u32_u24 v{AV}, {VG}, v2
            v_cndmask_b32 v12, v12, v11, vcc
            s_mov_b32 s72, 0xffff0000
            v_cndmask_b32 v12, v12, 18, s[70:71]
            v_lshl_add_u32 v{AV}, v12, 4, v{AV}
            v_add_u32 v{AV}, 9216, v{AV}
            v_add_u32 v{NK}, {3*CH}, v{AK}
            v_add_u32 v{NX}, {3*CH}, v{AX}
            v_add_u32 v{NV}, {3*CH}, v{AV}
            s_mov_b32 s70, {G.f2u(G.QSCALE)}""")
            for i in range(16):
                a(f"v_mov_b32 v{OA+i}, 0")
            a("s_waitcnt vmcnt(6)")
            for q in (QB, QB + 1, QB + 2, QB + 3, QB + 4):
                a(f"""v_lshlrev_b32 v12, 16, v{q}
                v_and_b32 v13, s72, v{q}
                v_mul_f32 v12, s70, v12
                v_mul_f32 v13, s70, v13
                v_cvt_pk_bf16_f32 v{q}, v12, v13""")
            for q in range(1):
                x = QB + 8 * q + 4
                a(f"""v_cndmask_b32 v{x}, v{x}, 0, s[8:9]
                v_mov_b32 v{x+1}, 0
                v_mov_b32 v{x+2}, 0
                v_mov_b32 v{x+3}, v{x}""")
    a("s_waitcnt vmcnt(6)\n s_barrier")
    stamp(a, 2)
    stampc(a, 5)

    def ad(lo, hi, c, off):
        sl = c & 3
        return (f"v{hi} offset:{off}" if sl == 3 else f"v{lo} offset:{sl * CH + off}")

    def rdK(j):
        return f"ds_read_b128 {vr(KF + 4*(j & 1), 4)}, {ad(AK, NK, j >> 3, (j & 7) * 512)}"

    def rdX(u):
        return f"ds_read_b128 {vr(KX + 4*(u & 1), 4)}, {ad(AX, NX, u >> 1, (u & 1) * 512)}"

    def rdV(j, u):
        return f"ds_read_b128 {vr(VF + 8*(j & 1) + 4*u, 4)}, {ad(AV, NV, j >> 3, (4 * (j & 7) + 2 * u) * VG)}"

    def mA(q, j):
        return f"{MF} {vr(S(q, j), 16)}, {vr(KF + 4*(j & 1), 4)}, {vr(QB + 8*q, 4)}, 0"

    def mB(q, j):
        kx = KX + 4 * ((j >> 2) & 1) + 2 * ((j >> 1) & 1)
        return f"{MF8} {vr(S(q, j), 16)}, {vr(kx, 2)}, {vr(QB + 8*q + 4 + 2*(j & 1), 2)}, {vr(S(q, j), 16)}"

    def mP(q, j, u):
        o = vr(OA + 16 * q, 16)
        return f"{MF} {o}, {vr(VF + 8*(j & 1) + 4*u, 4)}, {vr(PP + 8*q + 4*u, 4)}, {o}"

    a(f"""{rdK(0)}
    {rdX(0)}
    {rdK(1)}
    {rdV(0, 0)}
    {rdV(0, 1)}
    s_waitcnt lgkmcnt(3)
    {mA(0, 0)}
    {mB(0, 0)}
    s_waitcnt lgkmcnt(0)
    s_nop 8""")
    a(".p2align 3")
    pat = "A k v0 e e e e P1 v1 x e e e e B d e e c c c c e e P0 e e e e w n c c c c"
    for jj in range(64):
        c8, j8 = divmod(jj, 8)
        last = jj == 63
        s, P = S(0, jj), PP
        ne = nc = 0
        for tok in pat.split():
            if tok == "e":
                a(f"v_exp_f32 v{s+ne}, v{s+ne}")
                ne += 1
            elif tok == "c":
                a(f"v_cvt_pk_bf16_f32 v{P+nc}, v{s+2*nc}, v{s+2*nc+1}")
                nc += 1
            elif tok == "A" and not last:
                a(mA(0, jj + 1))
            elif tok == "B" and not last:
                a(mB(0, jj + 1))
            elif tok == "P1" and jj:
                a(mP(0, jj - 1, 1))
            elif tok == "P0":
                a(mP(0, jj, 0))
            elif tok == "k" and jj + 2 < 64:
                a(rdK(jj + 2))
            elif tok == "v0" and not last:
                a(rdV(jj + 1, 0))
            elif tok == "v1" and not last:
                a(rdV(jj + 1, 1))
            elif tok == "x" and jj % 4 == 0 and jj < 60:
                a(rdX(jj // 4 + 1))
            elif tok == "d" and j8 < 3 and 1 <= c8 <= 4:
                a(dma(c8 + 3, j8))
            elif tok == "w" and not last:
                if j8 == 7 and c8 <= 5:
                    a(f"s_waitcnt vmcnt({3 if c8 <= 4 else 0}) lgkmcnt(0)")
                else:
                    a("s_waitcnt lgkmcnt(0)")
            elif tok == "n" and not last:
                a("s_barrier" if j8 == 7 and c8 <= 5 else "s_nop 0")
    a(f"s_nop 1\n{mP(0, 63, 1)}")
    a.loops = getattr(a, "loops", [])
    stamp(a, 3)
    stampc(a, 6)
    a(f"""s_lshl_b32 s6, s4, 8
    s_lshl_b32 s7, s5, 5
    s_add_u32 s6, s6, s7
    v_add_u32 v4, s6, v1
    v_lshlrev_b32 v4, 4, v4
    v_lshl_add_u32 v5, v2, 15, v4
    s_mul_i32 s12, s3, {3*32768}
    s_add_u32 s12, s12, {G.O_OFF}
    s_add_u32 s13, s12, {2*32768}
    v_mov_b32 v9, 0
    v_mov_b32 v10, 0
    v_mov_b32 v11, 0
    s_mov_b32 s14, {G.f2u(2.0**-60)}
    s_mov_b32 s15, {G.f2u(2.0**60)}
    s_movk_i32 s46, 0x207""")
    a(f"""v_cndmask_b32 v6, v{OA+10}, v{OA+12}, s[8:9]
    v_add_f32 v7, |v{OA}|, |v{OA+1}|""")
    for i in range(2, 10):
        a(f"v_add_f32 v7, v7, |v{OA+i}|")
    a(f"""v_cmp_nle_f32 vcc, s14, v6
    v_cmp_lt_f32 s[68:69], s15, v6
    v_cmp_class_f32 s[70:71], v7, s46
    s_or_b64 vcc, vcc, s[68:69]
    s_or_b64 vcc, vcc, s[70:71]
    {"s_branch K2_slow" if OPT.get("slow") else "s_cbranch_vccnz K2_slow"}""")
    a.label("K2_fin")
    a("v_rcp_f32 v6, v6\n s_nop 0")
    for i in range(10):
        a(f"v_mul_f32 v{OA+i}, v6, v{OA+i}")
    for k in range(5):
        a(f"v_cvt_pk_bf16_f32 v{16+k if k < 4 else 8}, v{OA+2*k}, v{OA+2*k+1}")
    a(f"""buffer_store_dwordx4 v[16:19], v5, {W}, s12 offen sc0 sc1
    s_mov_b64 exec, 0xffffffff
    buffer_store_dwordx4 v[8:11], v4, {W}, s13 offen sc0 sc1
    s_mov_b64 exec, -1
    s_lshl_b32 s74, s4, 7
    s_add_u32 s74, s74, {G.FLG_OFF + 32*128}
    s_mul_i32 s14, s3, 43
    s_lshr_b32 s14, s14, 8
    s_mul_i32 s15, s14, 6
    s_sub_u32 s15, s3, s15
    s_lshl_b32 s6, s4, 2
    s_add_u32 s14, s14, s6""")
    stamp(a, 4)
    ACC, FR, XA, WA = 64, 28, 20, 24
    a("""s_cmp_lt_u32 s5, 4
    s_cbranch_scc1 K2_pc
    s_sub_u32 s6, s5, 4""")
    SP, RP = 13312, 6
    G.srd(a, G.SRD2A, G.P_WO, 576 * 1152)
    a(f"""s_nop 0
    v_lshlrev_b32 v1, 4, v0
    s_lshl_b32 s7, s6, 6""")
    for u in range(2):
        a(f"""v_add_u32 v12, s7, v0
        v_add_u32 v12, {256*u}, v12
        v_min_u32 v12, 431, v12
        v_mul_u32_u24 v13, 5462, v12
        v_lshrrev_b32 v13, 16, v13
        v_mul_u32_u24 v13, {1152 - 192}, v13
        v_lshl_add_u32 v{2+u}, v12, 4, v13""")
    a(f"""s_lshl_b32 s68, s14, 10
    s_lshl_b32 s7, s6, 15
    s_add_u32 s68, s68, s7
    s_add_u32 s68, s68, {G.O_OFF}
    s_mul_i32 s69, s15, 192
    s_lshl_b32 s76, s6, 10
    s_cmp_lt_u32 s6, 2
    s_mov_b32 s70, {0x7f000000}
    s_cselect_b32 s70, {4*32768}, s70
    s_cselect_b32 s71, 1, 0
    s_cmp_lt_u32 s6, 3
    s_cselect_b32 s77, 1, 0
    s_waitcnt vmcnt(0)
    {"s_memrealtime s[86:87]" if OPT["stamps"] == 4 else ""}
    s_barrier
    {"s_memrealtime s[88:89]" if OPT["stamps"] == 4 else ""}
    s_cmp_ge_u32 s3, 24
    s_cbranch_scc1 K2_done""")
    a(f"""s_add_u32 s70, s70, s68
    s_cmp_eq_u32 s77, 0
    s_cselect_b32 s78, {0x7f000000}, 0
    v_add_u32 v3, s78, v3""")

    def slot(mask, here):
        return f"""s_add_u32 s7, s76, {here}
        s_cmp_eq_u32 s{mask}, 0
        s_cselect_b32 m0, {RP*SP}, s7"""

    def issue_w(st):
        base = (st % RP) * SP
        a(f"""s_add_u32 m0, s76, {base + 6144}
        s_add_u32 s72, s69, {36*1152*st}
        buffer_load_dwordx4 v2, s[{G.SRD2A}:{G.SRD2A+3}], s72 offen lds
        {slot(77, base + 6144 + 4096)}
        s_nop 0
        buffer_load_dwordx4 v3, s[{G.SRD2A}:{G.SRD2A+3}], s72 offen lds""")

    def issue_o(st):
        base = (st % RP) * SP
        a(f"""s_add_u32 m0, s76, {base}
        s_add_u32 s72, s68, {6*32768*st}
        buffer_load_dwordx4 v1, {W}, s72 offen sc0 sc1 lds
        {slot(71, base + 4096)}
        s_add_u32 s72, s70, {6*32768*st}
        buffer_load_dwordx4 v1, {W}, s72 offen sc0 sc1 lds""")
    for st in range(4):
        issue_w(st)
    a("s_barrier")
    if OPT["stamps"] == 4:
        a("s_memrealtime s[90:91]")

    def issue_p(st):
        if st >= 4:
            issue_w(st)
        issue_o(st)
    for st in range(4):
        issue_o(st)
    for st in range(16):
        n = (2 * (3 - st) + 4 * st) if st < 4 else 4 * min(3, 15 - st)
        a(f"s_waitcnt vmcnt({n})\n s_barrier")
        if OPT["stamps"] == 4 and st in (0, 5, 15):
            a(f"s_memrealtime s[{94 + 2*(0, 5, 15).index(st)}:{95 + 2*(0, 5, 15).index(st)}]")
        if st + 4 < 16:
            issue_p(st + 4)
    if OPT["stamps"] == 4:
        G.stamp_store(a, 1, 8)
    a("s_endpgm")
    a.label("K2_pc")
    G.srd(a, G.SRDO, G.P_OUT, 2048 * 4608)
    a(f"""v_lshlrev_b32 v{XA}, 4, v1
    v_lshl_add_u32 v{XA}, v2, 10, v{XA}
    v_bfe_u32 v12, v0, 2, 2
    v_and_b32 v13, 3, v0
    v_lshlrev_b32 v13, 3, v13
    v_and_b32 v14, 16, v0
    v_lshl_add_u32 v13, v14, 1, v13
    s_lshl_b32 s7, s5, 6
    s_add_u32 s7, s7, 6144
    v_add_u32 v13, s7, v13
    s_movk_i32 s7, 192""")
    for i, (r0, r1) in enumerate(((0, 8), (16, 18), (26, 34), (30, 38))):
        a(f"""v_mad_u32_u24 v14, v2, {r1 - r0}, v12
        v_add_u32 v14, {r0}, v14
        v_min_u32 v14, 35, v14
        v_mad_u32_u24 v{WA+i}, v14, s7, v13""")
    a(G.out_addr(a, 8192, 0))
    a(f"""s_mul_i32 s6, s14, {64*4608}
    s_mul_i32 s7, s15, 384
    s_add_u32 s6, s6, s7
    s_lshl_b32 s7, s5, 7
    s_add_u32 s12, s6, s7
    s_add_u32 s13, s12, {32*4608}
    s_waitcnt vmcnt(0)
    s_barrier
    s_cmp_lg_u32 s5, 3
    s_cbranch_scc1 K2_pw""")
    arrive(a, 74)
    a("s_cmp_ge_u32 s3, 24\n s_cbranch_scc1 K2_done")
    poll(a, "K2_pp", 74, 32)
    a("s_barrier\n s_endpgm")
    a.label("K2_pw")
    a("s_cmp_ge_u32 s3, 24\n s_cbranch_scc1 K2_end\n s_barrier")
    stamp(a, 7)

    def reads_p(ks, b):
        f = FR + 12 * b
        return [f"ds_read_b64_tr_b16 {vr(f, 2)}, v{WA+ks}", f"ds_read_b64_tr_b16 {vr(f+2, 2)}, " + (f"v{WA+ks} offset:768" if ks < 2 else f"v{WA+3}"),
                f"ds_read_b128 {vr(f+4, 4)}, v{XA} offset:{2048*ks}", f"ds_read_b128 {vr(f+8, 4)}, v{XA} offset:{2048*ks+512}"]

    def mfmas_t(n, b, init=True):
        f = FR + 12 * b
        return [f"{MF} {vr(ACC+16*tt, 16)}, {vr(f, 4)}, {vr(f+4+4*tt, 4)}, {vr(ACC+16*tt, 16) if n or not init else 0}" for tt in range(2)]
    G.consumer2(a, 3, reads_p, mfmas_t, lambda ks: [WA + ks] + ([XA, WA + 3] if ks == 2 else []), depth=2, bar_ks=0, per_gap=3, nst=16, stage=SP, ring=RP)
    a("s_nop 10")
    G.out_tiles(a, [(ACC + 16 * tt, 12 + tt, 0) for tt in range(2)])
    a.label("K2_end")
    if OPT["stamps"]:
        a("s_memrealtime s[86:87]")
    G.stamp_store(a, 1, 8)
    a.label("K2_done")
    a("s_endpgm")
    a.label("K2_slow")
    for ps in range(2):
        a("s_mov_b32 s6, 0")
        if ps == 0:
            a("v_mov_b32 v7, 0xff800000")
        else:
            for i in range(16):
                a(f"v_mov_b32 v{OA+i}, 0")
        a.label(f"K2_sl{ps}")
        st = len(a.lines)
        a(f"""s_lshr_b32 s7, s6, 2
        s_mul_i32 s7, s7, {CH}
        s_add_u32 s7, s7, s75
        s_and_b32 s68, s6, 3
        s_mul_i32 s70, s68, {8*VG}
        s_add_u32 s70, s70, s7
        s_lshr_b32 s69, s68, 1
        s_lshl_b32 s69, s69, 9
        s_add_u32 s69, s69, s7
        s_bitcmp1_b32 s6, 0
        s_cselect_b32 s71, 8, 0
        s_add_u32 s69, s69, s71
        s_lshl_b32 s68, s68, 10
        s_add_u32 s68, s68, s7
        buffer_load_dwordx4 {vr(KF, 4)}, v{AK}, {W}, s68 offen
        buffer_load_dwordx4 {vr(KF + 4, 4)}, v{AK}, {W}, s68 offen offset:512
        buffer_load_dwordx2 {vr(KX, 2)}, v{AX}, {W}, s69 offen""")
        if ps:
            for i in range(4):
                a(f"buffer_load_dwordx4 {vr(VF + 4*i, 4)}, v{AV}, {W}, s70 offen offset:{2*i*VG}")
        a(f"s_waitcnt vmcnt(0)\n{mA(0, 0)}\n{mA(0, 1)}\n{mB(0, 0)}\n{mB(0, 1)}\n s_nop 15")
        for j in range(2):
            s = S(0, j)
            if ps == 0:
                for i in range(0, 16, 2):
                    a(f"v_max3_f32 v7, v7, v{s+i}, v{s+i+1}")
            else:
                for i in range(16):
                    a(f"v_sub_f32 v{s+i}, v{s+i}, v7")
                for i in range(16):
                    a(f"v_exp_f32 v{s+i}, v{s+i}")
                a("s_nop 0")
                for k in range(8):
                    a(f"v_cvt_pk_bf16_f32 v{PP+k}, v{s+2*k}, v{s+2*k+1}")
                a(f"s_nop 1\n{mP(0, j, 0)}\n{mP(0, j, 1)}")
        a(f"""s_add_u32 s6, s6, 1
        s_cmp_lt_u32 s6, 32
        s_cbranch_scc1 K2_sl{ps}""")
        a.loops.append(a.lines[st:])
        if ps == 0:
            a("""v_mov_b32 v8, v7
            s_nop 1
            v_permlane32_swap_b32 v7, v8
            s_nop 1
            v_max_f32 v7, v7, v8""")
    a(f"""s_nop 15
    v_cndmask_b32 v6, v{OA+10}, v{OA+12}, s[8:9]
    s_branch K2_fin""")


def cstep(a, nr, ni, lr, li, er, ei, xr, xi):
    a(f"""v_fma_f32 v{nr}, v{lr}, v{er}, v{xr}
    v_fma_f32 v{ni}, v{lr}, v{ei}, v{xi}
    v_fma_f32 v{nr}, -v{li}, v{ei}, v{nr}
    v_fma_f32 v{ni}, v{li}, v{er}, v{ni}""")


def ssm(a):
    OPT, PLB = G.OPT, G.PLB
    stamp = G.stamp
    ST = 32768
    W = f"s[{G.SRDW}:{G.SRDW+3}]"
    ACC, FR, XA, WA = 64, 32, 24, 28
    a.label("K2_ssm")
    a(f"""s_sub_u32 s7, s2, 256
    s_and_b32 s6, s7, 7
    s_lshr_b32 s47, s7, 3
    s_lshl_b32 s3, s6, 2
    s_and_b32 s7, s47, 3
    s_add_u32 s3, s3, s7
    s_lshr_b32 s4, s47, 2
    s_setprio {OPT.get("prio", 0)}
    s_cmp_eq_u32 s5, 3
    s_cbranch_scc1 K2_done
    s_cmp_lt_u32 s5, 3
    s_waitcnt lgkmcnt(0)
    s_cbranch_scc1 K2_sc""")
    G.srd(a, G.SRD1, G.P_BX, 2048 * 1152)
    G.srd(a, G.SRD2A, G.P_BRE, 576 * 1152)
    G.srd(a, G.SRD2B, G.P_BIM, 576 * 1152)
    a("s_sub_u32 s6, s5, 4")
    G.rows_voff(a, 1, 1152, 8)
    a(f"""s_mul_i32 s68, s3, {64*1152}
    s_mul_i32 s69, s4, {96*1152}
    s_lshl_b32 s76, s6, 10""")

    def issue(st):
        base = (st & 1) * ST
        for j in range(8):
            d, so, row = (G.SRD1, 68, 32 * j) if j < 2 else ((G.SRD2A, 69, 32 * (j - 2)) if j < 5 else (G.SRD2B, 69, 32 * (j - 5)))
            a(f"""s_add_u32 m0, s76, {base + 4096*j}
            s_add_u32 s7, s{so}, {row * 1152 + 128*st}
            buffer_load_dwordx4 v1, s[{d}:{d+3}], s7 offen lds""")
    issue(0)
    issue(1)
    for st in range(9):
        a(f"s_waitcnt vmcnt({8 if st == 0 else 0})\n s_barrier")
        if 1 <= st <= 7:
            issue(st + 1)
    a(f"""v_lshlrev_b32 v2, 7, v0
    s_lshl_b32 s7, s47, 2
    s_add_u32 s7, s7, s6
    s_mul_i32 s7, s7, {54*128}
    s_mov_b32 exec_hi, 0x3fffff""")
    G.srd(a, G.SRD1, G.P_WO, 576 * 1152)
    G.srd(a, G.SRD2A, G.P_CRE, 576 * 1152)
    G.srd(a, G.SRD2B, G.P_CIM, 576 * 1152)
    for d in (G.SRD2A, G.SRD2B, G.SRD1):
        a(f"buffer_load_dword v3, v2, s[{d}:{d+3}], s7 offen")
    G.srd(a, G.SRDW, G.P_WS, G.WS_END)
    a(f"""s_mov_b64 exec, -1
    v_lshrrev_b32 v8, 3, v0
    v_mul_u32_u24 v8, {PLB}, v8
    v_lshrrev_b32 v9, 2, v0
    v_and_b32 v9, 4, v9
    v_and_b32 v10, 7, v0
    v_xor_b32 v9, v9, v10
    s_lshl_b32 s7, s6, 3
    v_add_u32 v9, s7, v9
    v_lshl_add_u32 v4, v9, 4, v8
    s_mul_i32 s68, s3, {8*PLB}
    s_add_u32 s68, s68, {G.XT_OFF}
    s_waitcnt vmcnt(0)
    s_barrier""")

    def issue_r(st):
        base = (st & 3) * ST2
        kb, im = st >> 1, st & 1
        d = G.SRD2B if im else G.SRD2A
        for j in range(3):
            a(f"""s_add_u32 m0, s76, {base + 8192 + 4096*j}
            s_add_u32 s7, s69, {32*1152*j + 128*kb}
            buffer_load_dwordx4 v1, s[{d}:{d+3}], s7 offen lds""")
        for j in range(2):
            a(f"""s_add_u32 m0, s76, {base + 4096*j}
            s_add_u32 s7, s68, {(576*im + 64*kb + 32*j) * 16}
            buffer_load_dwordx4 v4, {W}, s7 offen sc0 sc1 lds""")
    tail_loader(a, 18, issue_r)
    a.label("K2_sc")
    G.srd(a, G.SRDW, G.P_WS, G.WS_END)
    G.lane_parts(a)
    PR = 8
    a(f"""s_mul_i32 s46, s4, 96
    s_lshl_b32 s6, s5, 5
    s_add_u32 s46, s46, s6
    v_add_u32 v3, s46, v1
    v_lshlrev_b32 v3, 1, v3
    global_load_ushort v{PR}, v3, s[{G.P_LRE}:{G.P_LRE+1}]
    global_load_ushort v{PR+1}, v3, s[{G.P_LIM}:{G.P_LIM+1}]
    global_load_ushort v{PR+2}, v3, s[{G.P_LDT}:{G.P_LDT+1}]
    v_and_b32 v5, 3, v1
    v_lshrrev_b32 v4, 3, v1
    v_lshl_add_u32 v5, v4, 2, v5
    v_and_b32 v4, 4, v1
    v_lshl_add_u32 v5, v4, 3, v5""")
    G.row_addr(a, XA, 5, "0", 4)
    a("s_lshl_b32 s7, s5, 12\n s_add_u32 s7, s7, 8192")
    G.row_addr(a, WA, 1, "s7", 4)
    a0, a = a, Asm()
    p = PR
    a(f"""s_mov_b32 s12, {G.f2u(G.LOG2E)}
    s_waitcnt vmcnt(0)
    v_lshlrev_b32 v{p}, 16, v{p}
    v_lshlrev_b32 v{p+1}, 16, v{p+1}
    v_lshlrev_b32 v{p+2}, 16, v{p+2}
    v_mul_f32 v{p+2}, s12, v{p+2}
    v_exp_f32 v{p+2}, v{p+2}
    s_nop 0
    v_cvt_pk_bf16_f32 v{p+2}, v{p+2}, v{p+2}
    v_lshlrev_b32 v{p+2}, 16, v{p+2}
    v_mul_f32 v{p+3}, v{p+2}, v{p}
    v_mul_f32 v{p+2}, v{p+2}, v{p+1}
    v_mul_f32 v{p+3}, s12, v{p+3}
    v_mul_f32 v{p+2}, 0.15915494309189532, v{p+2}
    v_exp_f32 v{p+3}, v{p+3}
    v_fract_f32 v{p+2}, v{p+2}
    v_cos_f32 v{p+4}, v{p+2}
    v_sin_f32 v{p+5}, v{p+2}
    v_mul_f32 v{p+12}, v{p}, v{p}
    v_mul_f32 v{p+4}, v{p+4}, v{p+3}
    v_mul_f32 v{p+5}, v{p+5}, v{p+3}
    v_fma_f32 v{p+12}, v{p+1}, v{p+1}, v{p+12}
    v_rcp_f32 v{p+12}, v{p+12}
    v_add_f32 v{p+13}, -1.0, v{p+4}
    v_mul_f32 v{p+10}, v{p+13}, v{p}
    v_mul_f32 v{p+11}, v{p+5}, v{p}
    v_add_f32 v{p+12}, v{p+12}, v{p+12}
    v_fma_f32 v{p+10}, v{p+5}, v{p+1}, v{p+10}
    v_fma_f32 v{p+11}, -v{p+13}, v{p+1}, v{p+11}
    v_mul_f32 v{p+10}, v{p+10}, v{p+12}
    v_mul_f32 v{p+11}, v{p+11}, v{p+12}""")
    G.cmul(a, p + 12, p + 13, p + 4, p + 5, p + 4, p + 5)
    G.cmul(a, p + 14, p + 15, p + 12, p + 13, p + 12, p + 13)
    G.cmul(a, p + 12, p + 13, p + 14, p + 15, p + 14, p + 15)
    G.cmul(a, p + 14, p + 15, p + 12, p + 13, p + 12, p + 13)
    G.cmul(a, p + 6, p + 7, p + 14, p + 15, p + 14, p + 15)
    G.cmul(a, p + 8, p + 9, p + 6, p + 7, p + 6, p + 7)
    fill, a = a.lines, a0
    LR, LI, L32R, L32I, L64R, L64I, CR, CI = p + 4, p + 5, p + 6, p + 7, p + 8, p + 9, p + 10, p + 11

    def reads(ks, b):
        f = FR + 16 * b
        return [f"ds_read_b128 {vr(f, 4)}, v{XA+ks}", f"ds_read_b128 {vr(f+8, 4)}, v{WA+ks}",
                f"ds_read_b128 {vr(f+12, 4)}, v{WA+ks} offset:12288", f"ds_read_b128 {vr(f+4, 4)}, v{XA+ks} offset:2048"]

    def acc(tt, im):
        return ACC + 32 * im + 16 * tt

    def mfmas(n, b):
        f = FR + 16 * b
        return [f"{MF} {vr(acc(tt, im), 16)}, {vr(f+4*tt, 4)}, {vr(f+8+4*im, 4)}, {vr(acc(tt, im), 16) if n else 0}"
                for tt in range(2) for im in range(2)]
    stamp(a, 1)
    G.consumer(a, 4, reads, mfmas, [XA + i for i in range(4)] + [WA + i for i in range(4)], 2, fill=fill, fill_from=4, ring=2, stage=ST)
    assert not fill
    stamp(a, 2)
    a(f"""s_mov_b32 s79, s3
    v_lshlrev_b32 v3, 3, v1
    s_mul_i32 s13, s3, 4608
    s_lshl_b32 s6, s46, 3
    s_add_u32 s15, s6, {G.ECH_OFF}
    s_add_u32 s13, s13, s15
    v_mul_u32_u24 v4, {4*PLB}, v2
    v_lshl_add_u32 v4, v1, 4, v4
    s_mul_i32 s47, s3, {8*PLB}
    s_lshl_b32 s6, s46, 4
    s_add_u32 s47, s47, s6
    s_add_u32 s47, s47, {G.XT_OFF}""")
    a(f"s_setprio {OPT.get('prio2', 1)}")
    e = (ACC, ACC + 32)
    for r in range(1, 32):
        n_ = (20, 21) if r & 1 else (22, 23)
        cstep(a, n_[0], n_[1], LR, LI, e[0], e[1], ACC + r, ACC + 32 + r)
        e = n_
    a("""v_mov_b32 v24, v20
    v_mov_b32 v25, v21
    v_mov_b32 v26, v20
    v_mov_b32 v27, v21
    s_nop 1
    v_permlane32_swap_b32 v24, v26
    v_permlane32_swap_b32 v25, v27
    s_nop 1""")
    cstep(a, 28, 29, L32R, L32I, 24, 25, 26, 27)
    a(f"""v_min_u32 v28, -2, v28
    v_min_u32 v29, -2, v29
    s_mov_b64 exec, 0xffffffff
    buffer_store_dwordx2 v[28:29], v3, {W}, s13 offen sc0 sc1
    s_mov_b64 exec, -1
    v_mov_b32 v30, 0
    v_mov_b32 v31, 0
    s_mov_b32 s12, 0""")
    EB = 32
    a.label("K2_poll")
    a("s_mov_b32 s14, s15")
    for c in range(16):
        a(f"""s_cmp_le_u32 s3, {c}
        s_cbranch_scc1 K2_ld
        buffer_load_dwordx2 v[{EB+2*c}:{EB+2*c+1}], v3, {W}, s14 offen sc0 sc1
        s_add_u32 s14, s14, 4608""")
    a.label("K2_ld")
    a("v_mov_b32 v6, 0\n s_waitcnt vmcnt(0)")
    for c in range(16):
        a(f"""s_cmp_le_u32 s3, {c}
        s_cbranch_scc1 K2_ck
        v_max3_u32 v6, v6, v{EB+2*c}, v{EB+2*c+1}""")
    a.label("K2_ck")
    a(f"""v_cmp_eq_u32 vcc, -1, v6
    s_add_u32 s12, s12, 1
    s_cbranch_vccz K2_got
    s_sleep {OPT.get("psleep", 16)}
    s_cmp_lt_u32 s12, 0x40000
    s_cbranch_scc1 K2_poll""")
    a.label("K2_got")
    for c in range(16):
        a(f"s_cmp_le_u32 s3, {c}\n s_cbranch_scc1 K2_h{c}")
        cstep(a, EB + 2 * c, EB + 2 * c + 1, L64R, L64I, EB + 2 * c - 2, EB + 2 * c - 1, EB + 2 * c, EB + 2 * c + 1)
    a(f"""v_mov_b32 v30, v{EB+30}
    v_mov_b32 v31, v{EB+31}
    s_sub_u32 s3, s3, 16
    s_mov_b32 s15, s14
    s_branch K2_poll""")
    for c in range(15, 0, -1):
        a.label(f"K2_h{c}")
        a(f"v_mov_b32 v30, v{EB+2*c-2}\n v_mov_b32 v31, v{EB+2*c-1}")
        if c > 1:
            a("s_branch K2_h0")
    a.label("K2_h0")
    stamp(a, 3)
    cstep(a, 28, 29, L32R, L32I, 30, 31, 24, 25)
    a("""v_cndmask_b32 v30, v30, v28, s[8:9]
    v_cndmask_b32 v31, v31, v29, s[8:9]""")
    g = (30, 31)
    HO = 32
    for r in range(32):
        nr, ni = ACC + r, ACC + 32 + r
        cstep(a, nr, ni, LR, LI, g[0], g[1], nr, ni)
        o = 20 + 2 * (r & 1)
        a(f"""v_mul_f32 v{o}, v{CR}, v{nr}
        v_mul_f32 v{o+1}, v{CR}, v{ni}
        v_fma_f32 v{o}, -v{CI}, v{ni}, v{o}
        v_fma_f32 v{o+1}, -v{CI}, v{nr}, -v{o+1}""")
        if r & 1:
            a(f"v_cvt_pk_bf16_f32 v{HO+(r>>1)}, v20, v22\n v_cvt_pk_bf16_f32 v{HO+16+(r>>1)}, v21, v23")
        if r & 7 == 7:
            pl = r >> 3
            a(f"""s_add_u32 s6, s47, {pl*PLB}
            s_add_u32 s7, s47, {pl*PLB + 576*16}
            buffer_store_dwordx4 {vr(HO+4*pl, 4)}, v4, {W}, s6 offen sc0 sc1
            buffer_store_dwordx4 {vr(HO+16+4*pl, 4)}, v4, {W}, s7 offen sc0 sc1""")
        g = (nr, ni)
    stamp(a, 4)
    XA, WA, FR = 20, 24, 28
    a(f"""s_setprio {OPT.get('prio3', 0)}
    v_lshlrev_b32 v3, 3, v2
    s_lshl_b32 s6, s46, 1
    v_add_u32 v3, s6, v3
    s_lshl_b32 s6, s79, 6
    v_add_u32 v4, s6, v1
    v_mul_u32_u24 v4, 1152, v4
    v_add_u32 v4, v4, v3
    v_add_u32 v5, {32*1152}, v4
    s_lshl_b32 s74, s79, 7
    s_add_u32 s74, s74, {G.FLG_OFF}
    s_waitcnt vmcnt(0)""")
    arrive(a, 74)
    for i in range(4):
        a(f"global_load_dwordx2 v[{96+2*i}:{97+2*i}], v3, s[{G.P_DSK}:{G.P_DSK+1}] offset:{16*i}")
    for tt in range(2):
        for i in range(4):
            a(f"global_load_dwordx2 v[{104+8*tt+2*i}:{105+8*tt+2*i}], v{4+tt}, s[{G.P_BX}:{G.P_BX+1}] offset:{16*i}")
    G.srd(a, G.SRDO, G.P_OUT, 2048 * 4608)
    a(f"""v_bfe_u32 v6, v0, 4, 1
    v_mul_u32_u24 v6, 320, v6
    v_lshl_add_u32 v6, v2, 10, v6
    v_and_b32 v7, 2, v0
    v_lshl_add_u32 v6, v7, 6, v6
    v_and_b32 v7, 12, v0
    v_lshl_add_u32 v6, v7, 2, v6
    v_and_b32 v7, 1, v0
    v_lshl_add_u32 v{WA}, v7, 3, v6
    v_xor_b32 v{WA+1}, 64, v{WA}
    s_lshl_b32 s7, s5, 12
    s_add_u32 s7, s7, 8192""")
    G.row_addr(a, XA, 1, "s7", 8)
    a(G.out_addr(a, 8192, 2 * ST2))
    a(f"""s_mul_i32 s6, s79, {64*4608}
    s_lshl_b32 s7, s46, 2
    s_add_u32 s6, s6, s7
    s_add_u32 s12, s6, 2304
    s_add_u32 s13, s12, {32*4608}
    s_mov_b32 s14, 0xffff0000
    s_waitcnt vmcnt(0)""")
    for k in range(8):
        a(f"v_lshlrev_b32 v{32+2*k}, 16, v{96+k}\n v_and_b32 v{33+2*k}, s14, v{96+k}")
    for tt in range(2):
        for k in range(8):
            A = ACC + 16 * tt + 2 * k
            a(f"""v_lshlrev_b32 v{A}, 16, v{104+8*tt+k}
            v_and_b32 v{A+1}, s14, v{104+8*tt+k}
            v_mul_f32 v{A}, v{A}, v{32+2*k}
            v_mul_f32 v{A+1}, v{A+1}, v{33+2*k}""")
    a("s_cmp_lg_u32 s5, 0\n s_cbranch_scc1 K2_rw")
    poll(a, "K2_rp", 74, 18)
    a.label("K2_rw")
    a("s_barrier")
    stamp(a, 5)

    def reads_r(ks, b):
        f = FR + 12 * b
        r = [f"ds_read_b128 {vr(f, 4)}, v{XA+ks}"]
        for tt in range(2):
            for e in range(2):
                r.append(f"ds_read_b64_tr_b16 {vr(f+4+4*tt+2*e, 2)}, v{WA+e} offset:{2*ks*1024+512*tt}")
        return r

    def mfmas_r(n, b):
        f = FR + 12 * b
        return [f"{MF} {vr(ACC+16*tt, 16)}, {vr(f, 4)}, {vr(f+4+4*tt, 4)}, {vr(ACC+16*tt, 16)}" for tt in range(2)]
    G.consumer2(a, 4, reads_r, mfmas_r, lambda ks: [XA + ks] + ([WA, WA + 1] if ks == 3 else []), depth=2, bar_ks=1, per_gap=3, nst=18, stage=ST2)
    stamp(a, 6)
    a("s_nop 10")
    G.out_tiles(a, [(ACC + 16 * tt, 12 + tt, 0) for tt in range(2)])
    stamp(a, 7)
    G.stamp_store(a, 2, 8)
    a.label("K2_last")
    a("s_endpgm")
```

```python
import math
import struct
import sys
from asmlib import Asm, Ins, check, vr, sr

IMG = 155648
CH = 19456
KV_OFF = 0
Q_OFF = 32 * IMG
XT_OFF = 64 * IMG
PLB = 1152 * 16 + 128
SEGB = 2 * PLB
O_OFF = XT_OFF + 256 * PLB
ECH_OFF = O_OFF + 96 * 32768
FLG_OFF = ECH_OFF + 32 * 4608
QF_OFF = FLG_OFF + 40 * 128
WS_END = QF_OFF + 6144
STAMP_OFF = 32 << 20

VG = 320
STAGE = 40960
OPT = dict(ring=4, pre=2, prebar=3, stamps=0)


def f2u(x):
    return struct.unpack("<I", struct.pack("<f", x))[0]


LOG2E = 1.4426950408889634
QSCALE = LOG2E / math.sqrt(18.0)

P_AX, P_WQKV, P_WO, P_BX, P_LRE, P_LIM, P_BRE, P_BIM = 16, 18, 20, 22, 24, 26, 28, 30
P_CRE, P_CIM, P_LDT, P_DSK = 32, 34, 36, 38
P_OUT, P_DBG, P_WS = 40, 42, 44
SRD1, SRD2A, SRD2B, SRDW, SRDO = 48, 52, 56, 60, 64


def srd(a, d, p, nbytes):
    a(f"""s_mov_b32 s{d}, s{p}
    s_mov_b32 s{d+1}, s{p+1}
    s_mov_b32 s{d+2}, {nbytes}
    s_mov_b32 s{d+3}, 0x00020000""")


def srd_sel(a, d, p1, p0, n1, n0):
    a(f"""s_cselect_b32 s{d}, s{p1}, s{p0}
    s_cselect_b32 s{d+1}, s{p1+1}, s{p0+1}
    s_mov_b32 s{d+2}, {n0}
    s_cselect_b32 s{d+2}, {n1}, s{d+2}""")
    a(f"s_mov_b32 s{d+3}, 0x00020000")


def load_args(a):
    a("""s_load_dwordx16 s[16:31], s[0:1], 0
    s_load_dwordx8 s[32:39], s[0:1], 64
    s_load_dwordx4 s[40:43], s[0:1], 96
    s_load_dwordx2 s[44:45], s[0:1], 112""")


def stamp(a, idx):
    if OPT["stamps"] == 3 and idx:
        return
    if OPT["stamps"]:
        a(f"{'s_memtime' if OPT['stamps'] == 2 else 's_memrealtime'} s[{84+2*idx}:{85+2*idx}]")


def stampc(a, idx):
    if OPT["stamps"] in (1, 2):
        a(f"s_memtime s[{84+2*idx}:{85+2*idx}]")


def stamp_store(a, kidx, n, tmp=8):
    if not OPT["stamps"]:
        return
    if OPT["stamps"] == 3:
        n = 8
    a(f"""s_waitcnt lgkmcnt(0)
    s_mov_b64 exec, 1
    s_lshl_b32 s6, s2, 3
    s_add_u32 s6, s6, s5
    s_lshl_b32 s6, s6, 5
    s_add_u32 s6, s6, {STAMP_OFF + kidx * 65536}
    s_mov_b32 s{SRDW+2}, {STAMP_OFF + 4 * 65536}
    v_mov_b32 v{tmp+8}, 0""")
    for i in range(8):
        a(f"v_mov_b32 v{tmp+i}, s{84+2*i}" if i < n else f"v_mov_b32 v{tmp+i}, 0")
    a(f"""buffer_store_dwordx4 v[{tmp}:{tmp+3}], v{tmp+8}, s[{SRDW}:{SRDW+3}], s6 offen
    buffer_store_dwordx4 v[{tmp+4}:{tmp+7}], v{tmp+8}, s[{SRDW}:{SRDW+3}], s6 offen offset:16""")


def loader(a, alt_last):
    ring, pre = OPT["ring"], OPT["pre"]

    def issue(st):
        if OPT.get("noload") and st > 1:
            return
        base = (st % ring) * STAGE
        for j in range(4):
            a(f"s_add_u32 m0, s76, {base + 4096*j}")
            if st > 0:
                a(f"s_add_u32 s{68+j}, s{68+j}, s74")
            else:
                a("s_nop 0")
            a(f"buffer_load_dwordx4 v1, s[{SRD1}:{SRD1+3}], s{68+j} offen lds")
        alt = alt_last and st == 8
        for g in range(2):
            for u in range(3):
                a(f"s_add_u32 m0, s{77+u}, {base + 12288*g}")
                if u == 0 and st > 0 and not alt:
                    a(f"s_add_u32 s{72+g}, s{72+g}, s75")
                else:
                    a("s_nop 0")
                d = SRD2A if g == 0 else SRD2B
                a(f"buffer_load_dwordx4 v{(5 if alt else 2)+u}, s[{d}:{d+3}], s{(80 if alt else 72)+g} offen lds")

    for st in range(pre):
        issue(st)
    nxt = pre
    for st in range(9):
        a(f"s_waitcnt vmcnt({0 if OPT.get('noload') else 10*(nxt-1-st)})")
        a("s_barrier")
        while nxt < 9 and nxt <= st - 1 + ring and (nxt - st <= pre or nxt <= st + ring - 1 and OPT.get("greedy")):
            issue(nxt)
            nxt += 1


def rows_voff(a, dst, stride, tmp):
    a(f"""v_lshrrev_b32 v{tmp}, 3, v0
    v_lshrrev_b32 v{tmp+1}, 4, v0
    s_and_b32 s7, s6, 1
    s_lshl_b32 s7, s7, 2
    v_add_u32 v{tmp+1}, s7, v{tmp+1}
    v_and_b32 v{tmp+2}, 7, v0
    v_xor_b32 v{tmp+1}, v{tmp+1}, v{tmp+2}
    s_lshl_b32 s7, s6, 3
    v_add_u32 v{tmp}, s7, v{tmp}
    v_mul_u32_u24 v{tmp}, {stride}, v{tmp}
    v_lshl_add_u32 v{dst}, v{tmp+1}, 4, v{tmp}""")


def wrows_parts(a, u, kr, pc, tmp):
    a(f"""v_add_u32 v{tmp}, {64*u}, v0
    v_mul_u32_u24 v{kr}, 2731, v{tmp}
    v_lshrrev_b32 v{kr}, 16, v{kr}
    v_mul_u32_u24 v{pc}, 24, v{kr}
    v_sub_u32 v{pc}, v{tmp}, v{pc}
    v_and_b32 v{tmp}, 2, v{kr}
    v_lshlrev_b32 v{tmp}, 1, v{tmp}
    v_xor_b32 v{pc}, v{pc}, v{tmp}""")


def consumer(a, steps_per_stage, reads, mfmas, addr_regs, prebar, per_gap=2, pf=0, fill=None, fill_from=2, ring=None, stage=STAGE):
    ring = ring or OPT["ring"]
    if OPT.get("nocomp"):
        rd0, mf0 = reads, mfmas
        if OPT["nocomp"] == 1:
            reads = lambda ks, b: []
        mfmas = lambda n, b: mf0(n, b)[:1] if n == 0 else ["s_nop 0", "s_nop 0", "s_nop 0", "s_nop 0"]
    nsteps = 9 * steps_per_stage
    a("s_barrier")
    for x in reads(0, 0):
        a(x)
    for n in range(nsteps):
        ks = n % steps_per_stage
        st = n // steps_per_stage
        m = mfmas(n, n & 1)
        a("s_waitcnt lgkmcnt(0)")
        rd = []
        if n + 1 < nsteps:
            if ks == steps_per_stage - 1:
                pb = min(prebar, len(m) - 1)
                for x in m[:pb]:
                    a(x)
                m = m[pb:]
                a("s_barrier")
                if OPT["stamps"] == 3 and st < 7:
                    a(f"s_memrealtime s[{86+2*st}:{87+2*st}]")
                delta = stage if (st + 1) % ring else -(ring - 1) * stage
                for rg in addr_regs:
                    a(f"v_add_u32 v{rg}, {delta & 0xffffffff}, v{rg}")
                rd = reads((n + 1) % steps_per_stage, (n + 1) & 1)
                k = -(-len(rd) // 2)
                for x in rd[:k]:
                    a(x)
                rd = rd[k:]
            else:
                rd = reads((n + 1) % steps_per_stage, (n + 1) & 1)
        for x in m:
            a(x)
            nf = 0 if len(rd) >= per_gap else (3 if not rd else 1)
            for y in rd[:per_gap]:
                a(y)
            rd = rd[per_gap:]
            while fill and n >= fill_from and nf > 0:
                a(fill.pop(0))
                nf -= 1
        for y in rd:
            a(y)


def consumer2(a, sps, reads, mfmas, upd, depth=1, bar_ks=1, per_gap=2, fill=None, fill_from=2, nst=9, stage=STAGE, ring=None, pre_bar=None, post_bar=None, marks=(), upd2=None, by_step=False):
    ring = ring or OPT["ring"]
    assert OPT["pre"] <= OPT["ring"] - 2 and bar_ks + depth <= sps
    nsteps = nst * sps
    nb = depth + 1
    out = []

    def issue(x):
        a(x)
        if x.startswith("ds_read"):
            out.append(Ins(x).w)
            assert len(out) <= 15

    def rds(n):
        st, ks = divmod(n, sps)
        r = list(reads(n if by_step else ks, n % nb))
        if upd2:
            r += [f"v_add_u32 v{rg}, {d & 0xffffffff}, v{rg}" for rg, d in upd2(n)]
        elif st < nst - 1:
            delta = stage if (st + 1) % ring else -(ring - 1) * stage
            r += [f"v_add_u32 v{rg}, {delta & 0xffffffff}, v{rg}" for rg in upd(ks)]
        return r
    if pre_bar:
        a(pre_bar(0))
    a("s_barrier")
    extra = []
    for x in (post_bar(0) if post_bar else []):
        a(x)
    for n in range(depth):
        for x in rds(n):
            issue(x)
    for n in range(nsteps):
        st, ks = divmod(n, sps)
        rd = rds(n + depth) if n + depth < nsteps else []
        for mi, x in enumerate(mfmas(n, n % nb)):
            need = Ins(x).srcab
            last = max((i for i, w in enumerate(out) if w & need), default=-1)
            if last >= 0:
                a(f"s_waitcnt lgkmcnt({len(out) - 1 - last})")
                del out[:last + 1]
            a(x)
            if mi == 0 and ks == bar_ks and st < nst - 1:
                if pre_bar:
                    a(pre_bar(st + 1))
                a("s_barrier")
                if post_bar:
                    extra += post_bar(st + 1)
                if OPT["stamps"] == 3 and st + 1 in marks:
                    k_ = marks.index(st + 1)
                    a(f"s_memrealtime s[{86+2*k_}:{87+2*k_}]")
            nf = 0 if len(rd) > per_gap else (3 if not rd else 2)
            for y in rd[:per_gap]:
                issue(y)
            rd = rd[per_gap:]
            if extra:
                a(extra.pop(0))
            while fill and n >= fill_from and nf > 0:
                a(fill.pop(0))
                nf -= 1
        for y in rd:
            issue(y)


MF = "v_mfma_f32_32x32x16_bf16"
ACC = 160
FR = 100
XA, WA = 90, 94


def lane_parts(a):
    a("""v_and_b32 v1, 31, v0
    v_lshrrev_b32 v2, 5, v0
    s_mov_b32 s8, 0
    s_mov_b32 s9, -1
    s_mov_b32 s10, 0xffff0000
    s_mov_b32 s11, 0xffff0000""")


def tau(a, dst, tmp):
    a(f"""v_and_b32 v{dst}, 3, v1
    v_lshrrev_b32 v{tmp}, 3, v1
    v_lshl_add_u32 v{dst}, v{tmp}, 2, v{dst}
    v_and_b32 v{tmp}, 4, v1
    v_lshl_add_u32 v{dst}, v{tmp}, 2, v{dst}""")


def row_addr(a, dst, rowreg, sbase, tmp):
    a(f"""v_bfe_u32 v{tmp}, v{rowreg}, 1, 3
    v_xor_b32 v{tmp}, v{tmp}, v2
    v_lshlrev_b32 v{tmp}, 4, v{tmp}
    v_lshl_add_u32 v{tmp}, v{rowreg}, 7, v{tmp}
    v_add_u32 v{dst}, {sbase}, v{tmp}
    v_xor_b32 v{dst+1}, 32, v{dst}
    v_xor_b32 v{dst+2}, 64, v{dst}
    v_xor_b32 v{dst+3}, 96, v{dst}""")


def tr_addr(a, ntile, stride, base, WA=WA):
    a(f"""v_bfe_u32 v3, v0, 2, 2
    v_lshl_add_u32 v3, v2, 3, v3
    v_mul_u32_u24 v3, {stride}, v3
    v_add_u32 v3, {base}, v3
    v_and_b32 v4, 8, v0
    v_lshlrev_b32 v4, 3, v4
    v_and_b32 v5, 3, v0
    v_lshlrev_b32 v5, 3, v5""")
    for ft in range(ntile):
        a(f"""v_mov_b32 v6, s{68+2*ft}
        v_mov_b32 v7, s{69+2*ft}
        v_cndmask_b32 v6, v6, v7, s[10:11]
        v_bfe_u32 v6, v6, v5, 8
        v_lshlrev_b32 v6, 3, v6
        v_xor_b32 v6, v6, v4
        v_add_u32 v{WA+ft}, v3, v6""")


def nat_tables(a, ntile, first):
    for ft in range(ntile):
        a(f"""s_add_u32 s7, s{first}, {ft}
        s_mul_i32 s7, s7, 0x08080808
        s_add_u32 s{68+2*ft}, s7, 0x03020100
        s_add_u32 s{69+2*ft}, s7, 0x07060504""")


def wx_loop(a, w_is_a, pf=0):
    def reads(ks, b):
        f = FR + 20 * b
        r = []
        for e in range(2):
            r.append(f"ds_read_b64_tr_b16 v[{f+8+2*e}:{f+9+2*e}], v{WA} offset:{(16*ks+4*e)*384}")
        r.append(f"ds_read_b128 v[{f}:{f+3}], v{XA+ks}")
        r.append(f"ds_read_b128 v[{f+4}:{f+7}], v{XA+ks} offset:4096")
        for ft in (1, 2):
            for e in range(2):
                r.append(f"ds_read_b64_tr_b16 v[{f+8+4*ft+2*e}:{f+9+4*ft+2*e}], v{WA+ft} offset:{(16*ks+4*e)*384}")
        return r

    def mfmas(n, b):
        f = FR + 20 * b
        m = []
        for ft in range(3):
            for tt in range(2):
                acc = vr(ACC + (ft * 2 + tt) * 16, 16)
                w, x = vr(f + 8 + 4 * ft, 4), vr(f + 4 * tt, 4)
                A, B = (w, x) if w_is_a else (x, w)
                m.append(f"{MF} {acc}, {A}, {B}, {acc if n else 0}")
        return m
    if OPT.get("c2", 1):
        consumer2(a, 4, reads, mfmas, lambda ks: [XA + ks] + ([WA, WA + 1, WA + 2] if ks == 3 else []), bar_ks=OPT.get("bar_ks", 1))
    else:
        consumer(a, 4, reads, mfmas, [XA, XA + 1, XA + 2, XA + 3, WA, WA + 1, WA + 2], OPT["prebar"], pf=pf)


def chunk_info(q):
    j, pos = divmod(q, 9)
    if pos < 4:
        return ("half", 2 * j, pos)
    if pos == 4:
        return ("mid", j, 0)
    return ("half", 2 * j + 1, pos - 5)


def reg_tile(qa, qb):
    return [(qb if c & 1 else qa) + (c >> 1) for c in range(8)]


def spec_tile(slots):
    t = [0] * 8
    for i, (x, y) in enumerate(slots):
        t[2 * i], t[2 * i + 1] = x, y
    return t


QK_TILES = [
    [reg_tile(5, 9), reg_tile(14, 18), reg_tile(0, 41), reg_tile(23, 27), reg_tile(32, 36),
     spec_tile([(45, 46), (47, 4), (13, 22), (31, 40)])],
    [reg_tile(50, 54), reg_tile(59, 63), reg_tile(68, 72), reg_tile(77, 81), reg_tile(86, 90),
     spec_tile([(48, 95), (49, 58), (67, 76), (85, 94)])],
    [reg_tile(104, 108), reg_tile(113, 117), reg_tile(99, 140), reg_tile(122, 126), reg_tile(131, 135),
     spec_tile([(96, 97), (98, 103), (112, 121), (130, 139)])],
]
for _b in range(3):
    assert sorted(sum(QK_TILES[_b], [])) == list(range(48 * _b, 48 * _b + 48))


def is_regular(t):
    for hh in range(2):
        inf = [chunk_info(t[2 * i + hh]) for i in range(4)]
        if not all(x[0] == "half" and x[1] == inf[0][1] and x[2] == i for i, x in enumerate(inf)):
            return False
    return True


def qk_epilogue(a, b, wf):
    W = f"s[{SRDW}:{SRDW+3}]"
    tmp = FR
    for ft in range(3):
        t = QK_TILES[b][3 * wf + ft]
        A = [ACC + (ft * 2 + tt) * 16 for tt in range(2)]
        if is_regular(t):
            h0, h1 = chunk_info(t[0])[1], chunk_info(t[1])[1]
            if h1 - h0 == 1:
                va = 5
            else:
                va = 6
                a(f"s_mov_b32 s7, {(h1-h0)*IMG}\n v_mad_i32_i24 v6, v2, s7, v3")
            a(f"s_mov_b32 s12, {h0*IMG}\n s_mov_b32 s13, {h0*IMG+4096}")
            for tt in range(2):
                for k in range(8):
                    a(f"v_cvt_pk_bf16_f32 v{A[tt]+k}, v{A[tt]+2*k}, v{A[tt]+2*k+1}")
                    if k == 3:
                        a(f"buffer_store_dwordx4 v[{A[tt]}:{A[tt]+3}], v{va}, {W}, s12 offen offset:{512*tt}")
                a(f"buffer_store_dwordx4 v[{A[tt]+4}:{A[tt]+7}], v{va}, {W}, s13 offen offset:{512*tt}")
        else:
            for i in range(4):
                k0, k1 = chunk_info(t[2 * i]), chunk_info(t[2 * i + 1])
                T = tmp
                tmp += 4
                d00 = f"v{A[0]+4*i}, v{A[0]+4*i+1}"
                d01 = f"v{A[0]+4*i+2}, v{A[0]+4*i+3}"
                d10 = f"v{A[1]+4*i}, v{A[1]+4*i+1}"
                d11 = f"v{A[1]+4*i+2}, v{A[1]+4*i+3}"
                a(f"v_cvt_pk_bf16_f32 v{T}, {d00}\n v_cvt_pk_bf16_f32 v{T+3}, {d11}")
                if k0[0] == k1[0] == "half":
                    a(f"v_cvt_pk_bf16_f32 v{T+1}, {d01}\n v_cvt_pk_bf16_f32 v{T+2}, {d10}")
                elif k0[0] == k1[0] == "mid":
                    a(f"v_cvt_pk_bf16_f32 v{T+1}, {d10}\n v_cvt_pk_bf16_f32 v{T+2}, {d01}")
                else:
                    assert k0[0] == "half" and k1[0] == "mid"
                    a(f"""v_cvt_pk_bf16_f32 v8, {d01}
                    v_cvt_pk_bf16_f32 v9, {d10}
                    v_cndmask_b32 v{T+1}, v8, v9, s[8:9]
                    v_cndmask_b32 v{T+2}, v9, v8, s[8:9]""")

                def const(k, s):
                    if k[0] == "half":
                        return k[1] * IMG + (k[2] >> 1) * 4096 + (k[2] & 1) * 8 + 512 * s
                    return (2 * k[1] + s) * IMG
                if k0[0] == k1[0]:
                    vb = 3 if k0[0] == "half" else 4
                else:
                    vb = 7
                    a("v_cndmask_b32 v7, v3, v4, s[8:9]")
                for s in range(2):
                    c0, c1 = const(k0, s), const(k1, s)
                    a(f"""s_mov_b32 s7, {abs(c1-c0)}
                    s_mov_b32 s{12+s}, {min(c0, c1)}
                    v_mad_u32_u24 v{10+s}, v{2 if c1 >= c0 else 12}, s7, v{vb}
                    buffer_store_dwordx2 v[{T+2*s}:{T+2*s+1}], v{10+s}, {W}, s{12+s} offen""")


def cmul(a, dr, di, xr, xi, yr, yi):
    a(f"""v_mul_f32 v{dr}, v{xr}, v{yr}
    v_mul_f32 v{di}, v{xr}, v{yi}
    v_fma_f32 v{dr}, -v{xi}, v{yi}, v{dr}
    v_fma_f32 v{di}, v{xi}, v{yr}, v{di}""")


def k1(a):
    a.label("k1_kernel")
    stamp(a, 0)
    a("s_cmp_ge_u32 s2, 256\n s_cbranch_scc1 K1_done")
    load_args(a)
    a("""v_lshrrev_b32 v1, 6, v0
    v_and_b32 v0, 63, v0
    s_and_b32 s6, s2, 7
    v_readfirstlane_b32 s5, v1
    s_lshr_b32 s7, s2, 3
    s_cmp_lt_u32 s7, 20
    s_cbranch_scc1 K1_gemm""")
    a.label("K1_pf")
    if OPT.get("pfc", 1):
        a(f"""s_getpc_b64 s[12:13]""")
        a.label("K1_pc")
        a(f"""s_sub_u32 s14, s7, 20
        s_lshl_b32 s14, s14, 3
        s_add_u32 s14, s14, s5
        s_lshl_b32 s14, s14, 10
        s_sub_u32 s12, s12, K1_pc-k1_kernel
        s_subb_u32 s13, s13, 0
        v_and_b32 v10, 7, v0
        v_lshl_add_u32 v10, v10, 7, s14
        v_min_u32 v10, K2_last-k1_kernel, v10
        v_mov_b32 v11, s13
        v_add_co_u32 v10, vcc, s12, v10
        s_nop 1
        v_addc_co_u32 v11, vcc, 0, v11, vcc
        global_load_dword v12, v[10:11], off""")
    if OPT.get("pf1", 1):
        a(f"""s_sub_u32 s7, s7, 20
        s_lshl_b32 s7, s7, 3
        s_add_u32 s7, s7, s5
        s_mul_i32 s3, s7, 2731
        s_lshr_b32 s3, s3, 16
        s_mul_i32 s4, s3, 24
        s_sub_u32 s4, s7, s4
        s_lshr_b32 s12, s6, 1
        s_lshl_b32 s12, s12, 3
        s_add_u32 s12, s12, s4
        s_mul_i32 s12, s12, {64*1152}
        s_lshl_b32 s13, s3, 7
        s_add_u32 s12, s12, s13
        s_and_b32 s13, s6, 1
        s_mul_i32 s13, s13, 15
        s_add_u32 s13, s13, s4
        s_sub_u32 s13, s13, 8
        s_lshl_b32 s14, s13, 7
        s_mul_i32 s15, s3, {64*3456}
        s_add_u32 s14, s14, s15
        s_cmp_ge_u32 s13, 27
        s_cselect_b32 s14, {576*3456}, s14
        s_cmp_eq_u32 s4, 23
        s_cselect_b32 s14, {576*3456}, s14
        s_cmp_lt_u32 s4, 8
        s_cselect_b32 s12, s12, s14
        s_movk_i32 s13, 512
        s_cselect_b32 s13, s13, {4*64*3456}
        s_movk_i32 s14, 1152
        s_cselect_b32 s14, s14, 3456
        v_mul_u32_u24 v1, s14, v0
        s_waitcnt lgkmcnt(0)""")
        srd_sel(a, SRD1, P_AX, P_WQKV, 2048 * 1152, 576 * 3456)
        a(f"""buffer_load_dword v2, v1, s[{SRD1}:{SRD1+3}], s12 offen
        s_add_u32 s12, s12, s13
        buffer_load_dword v3, v1, s[{SRD1}:{SRD1+3}], s12 offen
        s_add_u32 s12, s12, s13
        s_cmp_lg_u32 s3, 0
        s_cselect_b32 s12, {2048*3456}, s12
        buffer_load_dword v4, v1, s[{SRD1}:{SRD1+3}], s12 offen""")
        if OPT.get("pf2", 1):
            a(f"""v_lshlrev_b32 v1, 7, v0
            s_mul_i32 s12, s6, {256*1152}
            s_mul_i32 s13, s7, {24*128}
            s_add_u32 s12, s12, s13
            s_mul_i32 s13, s7, {54*128}
            s_waitcnt vmcnt(1)""")
            srd(a, SRD2A, P_BX, 2048 * 1152)
            srd(a, SRD2B, P_BRE, 576 * 1152)
            srd(a, SRD1, P_BIM, 576 * 1152)
            a(f"""s_mov_b32 exec_hi, 0x3fffff
            buffer_load_dword v5, v1, s[{SRD2B}:{SRD2B+3}], s13 offen
            buffer_load_dword v6, v1, s[{SRD1}:{SRD1+3}], s13 offen
            s_mov_b64 exec, 0xffffff
            buffer_load_dword v7, v1, s[{SRD2A}:{SRD2A+3}], s12 offen""")
    a("s_endpgm")
    a.label("K1_gemm")
    a("""s_lshr_b32 s3, s6, 1
    s_lshl_b32 s3, s3, 2
    s_and_b32 s4, s7, 3
    s_add_u32 s3, s3, s4
    s_and_b32 s6, s6, 1
    s_mul_i32 s6, s6, 5
    s_lshr_b32 s7, s7, 2
    s_add_u32 s4, s6, s7
    s_cmp_ge_u32 s4, 9
    s_cbranch_scc1 K1_const
    s_cmp_lt_u32 s5, 4
    s_waitcnt lgkmcnt(0)
    s_cbranch_scc1 K1_cons""")
    a("s_sub_u32 s6, s5, 4")
    rows_voff(a, 1, 1152, 8)
    a(f"""s_mul_i32 s68, s3, {128*1152}
    s_add_u32 s69, s68, {32*1152}
    s_add_u32 s70, s68, {64*1152}
    s_add_u32 s71, s68, {96*1152}
    s_mov_b32 s74, 128
    s_lshl_b32 s76, s6, 10""")
    srd(a, SRD1, P_AX, 2048 * 1152)
    srd(a, SRD2A, P_WQKV, 576 * 3456)
    srd(a, SRD2B, P_WQKV, 576 * 3456)
    for u in range(3):
        wrows_parts(a, u, 8, 9, 10)
        a(f"v_mul_u32_u24 v8, 3456, v8\n v_lshl_add_u32 v{2+u}, v9, 4, v8")
    a(f"""s_mul_i32 s72, s6, {8*3456}
    s_mul_i32 s7, s4, 384
    s_add_u32 s72, s72, s7
    s_add_u32 s73, s72, {32*3456}
    s_mov_b32 s75, {64*3456}
    s_mul_i32 s77, s6, 3072
    s_add_u32 s77, s77, 16384
    s_add_u32 s78, s77, 1024
    s_add_u32 s79, s77, 2048""")
    loader(a, False)
    a("s_endpgm")
    a.label("K1_cons")
    srd(a, SRDW, P_WS, WS_END)
    lane_parts(a)
    a("""s_and_b32 s14, s5, 1
    s_lshr_b32 s15, s5, 1
    s_cmp_ge_u32 s4, 6
    s_cbranch_scc1 K1_v""")
    a("""s_sub_u32 s46, s4, 3
    s_cmp_lt_u32 s4, 3
    s_cselect_b32 s46, s4, s46
    s_lshl_b32 s46, s46, 1
    s_add_u32 s46, s46, s15""")
    for var in range(6):
        b, wf = divmod(var, 2)
        if var:
            a(f"s_cmp_eq_u32 s46, {var}")
        for ft in range(3):
            t = [x - 48 * b for x in QK_TILES[b][3 * wf + ft]]
            for hh in range(2):
                val = sum(t[4 * hh + c] << (8 * c) for c in range(4))
                if var:
                    a(f"s_cselect_b32 s{68+2*ft+hh}, {val}, s{68+2*ft+hh}")
                else:
                    a(f"s_mov_b32 s{68+2*ft+hh}, {val}")
    tr_addr(a, 3, 384, 16384)
    a("s_lshl_b32 s7, s14, 13")
    row_addr(a, XA, 1, "s7", 8)
    stamp(a, 1)
    wx_loop(a, True)
    stamp(a, 2)
    a(f"""s_lshr_b32 s6, s3, 1
    s_mul_i32 s6, s6, {CH}
    s_cmp_lt_u32 s4, 3
    s_cselect_b32 s7, {Q_OFF}, {KV_OFF}
    s_add_u32 s6, s6, s7
    s_and_b32 s7, s3, 1
    s_lshl_b32 s7, s7, 1
    s_add_u32 s7, s7, s14
    s_lshl_b32 s12, s7, 10
    s_add_u32 s12, s12, s6
    s_and_b32 s13, s3, 1
    s_lshl_b32 s13, s13, 9
    s_lshl_b32 s7, s14, 3
    s_add_u32 s13, s13, s7
    s_add_u32 s13, s13, s6
    s_add_u32 s13, s13, 8192
    v_lshl_add_u32 v3, v1, 4, s12
    v_lshl_add_u32 v4, v1, 4, s13
    s_mov_b32 s7, {IMG}
    v_mad_i32_i24 v5, v2, s7, v3
    v_xor_b32 v12, 1, v2""")
    for var in range(6):
        if var < 5:
            a(f"s_cmp_lg_u32 s46, {var}\n s_cbranch_scc1 K1_qe{var+1}")
        qk_epilogue(a, *divmod(var, 2))
        stamp(a, 3)
        stamp_store(a, 0, 4)
        a("s_endpgm")
        if var < 5:
            a.label(f"K1_qe{var+1}")
    a.label("K1_v")
    a("s_mul_i32 s46, s15, 3")
    nat_tables(a, 3, 46)
    tr_addr(a, 3, 384, 16384)
    tau(a, 9, 8)
    a("s_lshl_b32 s7, s14, 13")
    row_addr(a, XA, 9, "s7", 8)
    a("""s_sub_u32 s6, s4, 6
    s_mul_i32 s6, s6, 192
    s_lshl_b32 s7, s46, 5
    s_add_u32 s6, s6, s7
    v_add_u32 v3, s6, v1""")
    a(f"s_mov_b32 s7, {IMG}\n v_mul_u32_u24 v8, {2*VG}, v2")
    for ft in range(3):
        a(f"""v_add_u32 v4, {32*ft}, v3
        v_mul_u32_u24 v5, 3641, v4
        v_lshrrev_b32 v5, 16, v5
        v_mul_u32_u24 v6, 18, v5
        v_sub_u32 v6, v4, v6
        v_mad_u32_u24 v5, v5, s7, v8
        v_lshl_add_u32 v{80+ft}, v6, 4, v5""")
    stamp(a, 1)
    wx_loop(a, False)
    stamp(a, 2)
    a(f"""s_lshr_b32 s6, s3, 1
    s_mul_i32 s6, s6, {CH}
    s_and_b32 s7, s3, 1
    s_lshl_b32 s7, s7, 1
    s_add_u32 s7, s7, s14
    s_mul_i32 s7, s7, {8*VG}
    s_add_u32 s12, s6, s7
    s_add_u32 s12, s12, {KV_OFF + 9216}
    s_nop 3""")
    W = f"s[{SRDW}:{SRDW+3}]"
    for ft in range(3):
        for tt in range(2):
            A = ACC + (ft * 2 + tt) * 16
            for k in range(8):
                a(f"v_cvt_pk_bf16_f32 v{A+k}, v{A+2*k}, v{A+2*k+1}")
                if k == 3:
                    a(f"buffer_store_dwordx4 v[{A}:{A+3}], v{80+ft}, {W}, s12 offen offset:{4*tt*VG}")
            a(f"buffer_store_dwordx4 v[{A+4}:{A+7}], v{80+ft}, {W}, s12 offen offset:{(4*tt+1)*VG}")
    stamp(a, 3)
    stamp_store(a, 0, 4)
    a.label("K1_done")
    a("s_endpgm")
    a.label("K1_const")
    a(f"""s_lshl_b32 s6, s3, 3
    s_add_u32 s6, s6, s5
    s_lshr_b32 s7, s6, 2
    s_mul_i32 s7, s7, {IMG}
    s_and_b32 s6, s6, 3
    s_mul_i32 s6, s6, {2*CH}
    s_add_u32 s6, s6, s7
    s_add_u32 s6, s6, {KV_OFF + 9216 + 288}
    s_add_u32 s7, s6, {CH}
    v_lshrrev_b32 v1, 1, v0
    v_mul_u32_u24 v1, {VG}, v1
    v_and_b32 v2, 1, v0
    v_lshl_add_u32 v1, v2, 4, v1
    v_subrev_u32 v2, 1, v2
    v_and_b32 v4, 0x3f803f80, v2
    v_mov_b32 v5, v4
    v_mov_b32 v6, v4
    v_mov_b32 v7, v4
    s_waitcnt lgkmcnt(0)""")
    srd(a, SRDW, P_WS, WS_END)
    a(f"""buffer_store_dwordx4 v[4:7], v1, {W}, s6 offen
    buffer_store_dwordx4 v[4:7], v1, {W}, s7 offen
    s_lshl_b32 s6, s3, 3
    s_add_u32 s6, s6, s5
    s_mul_i32 s6, s6, 1152
    s_add_u32 s6, s6, {ECH_OFF}
    v_lshlrev_b32 v1, 4, v0
    v_mov_b32 v8, -1
    v_mov_b32 v9, -1
    v_mov_b32 v10, -1
    v_mov_b32 v11, -1
    buffer_store_dwordx4 v[8:11], v1, {W}, s6 offen
    s_mov_b64 exec, 0xff
    buffer_store_dwordx4 v[8:11], v1, {W}, s6 offen offset:1024
    s_or_b32 s6, s3, s5
    s_cmp_lg_u32 s6, 0
    s_cbranch_scc1 K1_done
    s_mov_b32 exec_lo, -1
    s_mov_b32 exec_hi, 0xff
    v_lshlrev_b32 v1, 7, v0
    v_mov_b32 v2, 0
    s_mov_b32 s6, {FLG_OFF}
    buffer_store_dword v2, v1, {W}, s6 offen""")
    a.label("K1_last")
    a("s_endpgm")


def k2(a):
    import k2gen
    k2gen.k2(a)


def out_tiles(a, tiles, srcs=None):
    O = f"s[{SRDO}:{SRDO+3}]"
    for k, (A, so, col) in enumerate(tiles):
        for i in range(4):
            a(f"ds_write_b128 v{6+i}, v[{A+4*i}:{A+4*i+3}] offset:{4096*k}")
        if k:
            a("s_waitcnt lgkmcnt(4)")
        for j in range(4):
            a(f"ds_read_b128 v[{A+4*j}:{A+4*j+3}], v4 offset:{4096*k + 1024*j}")
        if k:
            pA, pso, pcol = tiles[k - 1]
            for j in range(4):
                a(f"buffer_store_dwordx4 v[{pA+4*j}:{pA+4*j+3}], v{10+j}, {O}, s{pso} offen offset:{pcol}")
    pA, pso, pcol = tiles[-1]
    a("s_waitcnt lgkmcnt(0)")
    for j in range(4):
        a(f"buffer_store_dwordx4 v[{pA+4*j}:{pA+4*j+3}], v{10+j}, {O}, s{pso} offen offset:{pcol}")


def out_addr(a, per_wave, base=STAGE):
    return f"""s_mul_i32 s7, s5, {per_wave}
    s_add_u32 s7, s7, {base}
    v_and_b32 v3, 7, v1
    v_xor_b32 v3, v3, v2
    v_lshlrev_b32 v3, 4, v3
    v_lshl_add_u32 v3, v1, 7, v3
    v_add_u32 v6, s7, v3
    v_xor_b32 v7, 32, v6
    v_xor_b32 v8, 64, v6
    v_xor_b32 v9, 96, v6
    v_lshrrev_b32 v3, 3, v0
    v_and_b32 v5, 7, v0
    v_xor_b32 v4, v3, v5
    v_lshlrev_b32 v4, 4, v4
    v_lshl_add_u32 v4, v3, 7, v4
    v_add_u32 v4, s7, v4
    v_mul_u32_u24 v10, 4608, v3
    v_lshl_add_u32 v10, v5, 4, v10
    v_add_u32 v11, {8*4608}, v10
    v_add_u32 v12, {16*4608}, v10
    v_add_u32 v13, {24*4608}, v10"""


def k3(a):
    a.label("k3_kernel")
    stamp(a, 0)
    a("s_cmp_ge_u32 s2, 240\n s_cbranch_scc1 K3_done")
    load_args(a)
    a("""v_lshrrev_b32 v1, 6, v0
    v_and_b32 v0, 63, v0
    s_and_b32 s6, s2, 7
    v_readfirstlane_b32 s5, v1
    s_lshr_b32 s47, s2, 3
    s_lshl_b32 s3, s6, 1
    s_and_b32 s7, s47, 1
    s_add_u32 s3, s3, s7
    s_lshr_b32 s4, s47, 1
    s_sub_u32 s12, s47, 6
    s_lshl_b32 s13, s6, 2
    s_and_b32 s7, s12, 3
    s_add_u32 s13, s13, s7
    s_lshr_b32 s12, s12, 2
    s_cmp_lt_u32 s47, 6
    s_cselect_b32 s3, s3, s13
    s_cselect_b32 s4, s4, s12
    s_cmp_lt_u32 s5, 4
    s_waitcnt lgkmcnt(0)
    s_cbranch_scc1 K3_cons""")
    a("s_sub_u32 s6, s5, 4")
    srd(a, SRD1, P_WS, WS_END)
    a(f"""s_lshl_b32 s76, s6, 10
    s_cmp_ge_u32 s47, 6""")
    srd_sel(a, SRD2A, P_CRE, P_WO, 576 * 1152, 576 * 1152)
    srd_sel(a, SRD2B, P_CIM, P_WO, 576 * 1152, 576 * 1152)
    a("s_cbranch_scc1 K3_ld_r")
    rows_voff(a, 1, 1152, 8)
    a(f"""s_mul_i32 s68, s3, {128*1152}
    s_add_u32 s68, s68, {O_OFF}
    s_add_u32 s69, s68, {32*1152}
    s_add_u32 s70, s68, {64*1152}
    s_add_u32 s71, s68, {96*1152}
    s_mov_b32 s74, 128""")
    for u in range(3):
        wrows_parts(a, u, 8, 9, 10)
        a(f"""v_lshlrev_b32 v9, 4, v9
        v_mul_u32_u24 v10, 1152, v8
        v_add_u32 v{2+u}, v9, v10
        v_lshrrev_b32 v10, 1, v8
        v_mul_u32_u24 v10, 18, v10
        v_and_b32 v8, 1, v8
        v_add3_u32 v8, v8, v10, 16
        v_mul_u32_u24 v10, 1152, v8
        v_add_u32 v{5+u}, v9, v10""")
    a(f"""s_lshl_b32 s72, s6, 3
    s_and_b32 s7, s6, 2
    s_add_u32 s72, s72, s7
    s_mul_i32 s72, s72, 1152
    s_mul_i32 s7, s4, 384
    s_add_u32 s72, s72, s7
    s_add_u32 s73, s72, {36*1152}
    s_mul_i32 s80, s6, {72*1152}
    s_add_u32 s80, s80, s7
    s_add_u32 s81, s80, {4*72*1152}
    s_mov_b32 s75, {72*1152}
    s_mul_i32 s77, s6, 3072
    s_add_u32 s77, s77, 16384
    s_add_u32 s78, s77, 1024
    s_add_u32 s79, s77, 2048
    s_branch K3_ld_go""")
    a.label("K3_ld_r")
    rows_voff(a, 2, 1152, 8)
    a(f"""v_add_u32 v3, {32*1152}, v2
    v_add_u32 v4, {64*1152}, v2
    v_mov_b32 v5, v2
    v_mov_b32 v6, v3
    v_mov_b32 v7, v4
    v_lshrrev_b32 v8, 3, v0
    v_mul_u32_u24 v8, {PLB}, v8
    v_lshrrev_b32 v9, 2, v0
    v_and_b32 v9, 4, v9
    v_and_b32 v10, 7, v0
    v_xor_b32 v9, v9, v10
    s_lshl_b32 s7, s6, 3
    v_add_u32 v9, s7, v9
    v_lshl_add_u32 v1, v9, 4, v8
    s_mul_i32 s68, s3, {4*SEGB}
    s_add_u32 s68, s68, {XT_OFF}
    s_add_u32 s69, s68, {32*16}
    s_add_u32 s70, s68, {576*16}
    s_add_u32 s71, s68, {608*16}
    s_mov_b32 s74, {64*16}
    s_mul_i32 s72, s4, {96*1152}
    s_mov_b32 s73, s72
    s_add_u32 s80, s72, {8*128}
    s_mov_b32 s81, s80
    s_mov_b32 s75, 128
    s_add_u32 s77, s76, 16384
    s_add_u32 s78, s77, 4096
    s_add_u32 s79, s77, 8192""")
    a.label("K3_ld_go")
    loader(a, True)
    a("s_endpgm")
    a.label("K3_cons")
    srd(a, SRDO, P_OUT, 2048 * 4608)
    if OPT["stamps"]:
        srd(a, SRDW, P_WS, WS_END)
    lane_parts(a)
    O = f"s[{SRDO}:{SRDO+3}]"
    a("""s_cmp_ge_u32 s47, 6
    s_cbranch_scc1 K3_r
    s_and_b32 s14, s5, 1
    s_lshr_b32 s15, s5, 1
    s_mul_i32 s46, s15, 3""")
    nat_tables(a, 3, 46)
    tr_addr(a, 3, 384, 16384)
    a("s_lshl_b32 s7, s14, 13")
    row_addr(a, XA, 1, "s7", 8)
    a(out_addr(a, 24576))
    a(f"""s_lshl_b32 s6, s3, 1
    s_add_u32 s6, s6, s14
    s_mul_i32 s6, s6, {64*4608}
    s_mul_i32 s7, s4, 768
    s_add_u32 s6, s6, s7
    s_mul_i32 s7, s15, 384
    s_add_u32 s12, s6, s7
    s_add_u32 s13, s12, {32*4608}""")
    stamp(a, 1)
    wx_loop(a, True)
    stamp(a, 2)
    a("s_nop 7")
    out_tiles(a, [(ACC + (ft * 2 + tt) * 16, 12 + tt, 128 * ft) for ft in range(3) for tt in range(2)])
    stamp(a, 3)
    stamp_store(a, 2, 4)
    a("s_endpgm")
    a.label("K3_r")
    a("""s_cmp_eq_u32 s5, 3
    s_cbranch_scc0 K3_r2""")
    for _ in range(9):
        a("s_barrier")
    a("s_endpgm")
    a.label("K3_r2")
    a(f"""s_mul_i32 s6, s4, 96
    s_lshl_b32 s7, s5, 5
    s_add_u32 s46, s6, s7
    v_lshlrev_b32 v3, 3, v2
    s_lshl_b32 s6, s46, 1
    v_add_u32 v3, s6, v3
    s_lshl_b32 s6, s3, 6
    v_add_u32 v4, s6, v1
    v_mul_u32_u24 v4, 1152, v4
    v_add_u32 v4, v4, v3
    v_add_u32 v5, {32*1152}, v4""")
    for i in range(4):
        a(f"global_load_dwordx2 v[{16+2*i}:{17+2*i}], v3, s[{P_DSK}:{P_DSK+1}] offset:{16*i}")
    for tt in range(2):
        for i in range(4):
            a(f"global_load_dwordx2 v[{24+8*tt+2*i}:{25+8*tt+2*i}], v{4+tt}, s[{P_BX}:{P_BX+1}] offset:{16*i}")
    a(f"""v_bfe_u32 v6, v0, 4, 1
    v_mul_u32_u24 v6, 320, v6
    v_lshl_add_u32 v6, v2, 10, v6
    v_and_b32 v7, 2, v0
    v_lshl_add_u32 v6, v7, 6, v6
    v_and_b32 v7, 12, v0
    v_lshl_add_u32 v6, v7, 2, v6
    v_and_b32 v7, 1, v0
    v_lshl_add_u32 v{WA}, v7, 3, v6
    v_xor_b32 v{WA+1}, 64, v{WA}""")
    a("s_lshl_b32 s7, s5, 12\n s_add_u32 s7, s7, 16384")
    row_addr(a, XA, 1, "s7", 8)
    a(out_addr(a, 8192))
    a(f"""s_mul_i32 s6, s3, {64*4608}
    s_lshl_b32 s7, s46, 2
    s_add_u32 s6, s6, s7
    s_add_u32 s12, s6, 2304
    s_add_u32 s13, s12, {32*4608}
    s_mov_b32 s14, 0xffff0000""")
    fill = ["s_waitcnt vmcnt(0)"]
    SK = 192
    for k in range(8):
        fill += [f"v_lshlrev_b32 v{40+2*k}, 16, v{16+k}", f"v_and_b32 v{41+2*k}, s14, v{16+k}"]
    for tt in range(2):
        for k in range(8):
            A = SK + 16 * tt + 2 * k
            fill += [f"v_lshlrev_b32 v{A}, 16, v{24+8*tt+k}", f"v_and_b32 v{A+1}, s14, v{24+8*tt+k}",
                     f"v_mul_f32 v{A}, v{A}, v{40+2*k}", f"v_mul_f32 v{A+1}, v{A+1}, v{41+2*k}"]

    def reads(ks, b):
        f = FR + 12 * b
        im, k4 = divmod(ks, 4)
        r = [f"ds_read_b128 v[{f}:{f+3}], v{XA+k4} offset:{12288*im}"]
        for tt in range(2):
            for e in range(2):
                r.append(f"ds_read_b64_tr_b16 v[{f+4+4*tt+2*e}:{f+5+4*tt+2*e}], v{WA+e} offset:{(8*im+2*k4)*1024+512*tt}")
        return r

    def mfmas(n, b):
        f = FR + 12 * b
        return [f"{MF} {vr(ACC+16*tt, 16)}, {vr(f, 4)}, {vr(f+4+4*tt, 4)}, {vr(ACC+16*tt, 16) if n else 0}" for tt in range(2)]
    stamp(a, 1)
    consumer2(a, 8, reads, mfmas, lambda ks: ([XA + ks - 4] if ks >= 4 else []) + ([WA, WA + 1] if ks == 7 else []),
              depth=2, bar_ks=OPT.get("bar_ks8", 3), per_gap=3, fill=fill, fill_from=10)
    assert not fill
    stamp(a, 2)
    a("s_nop 10")
    for i in range(32):
        a(f"v_add_f32 v{ACC+i}, v{ACC+i}, v{SK+i}")
    out_tiles(a, [(ACC + 16 * tt, 12 + tt, 0) for tt in range(2)])
    stamp(a, 3)
    stamp_store(a, 2, 4)
    a.label("K3_done")
    a.label("K3_last")
    a("s_endpgm")


HEADER = """; concat_heads / MHA block / S5 SSM: two launches
;       workgroups 256..447: SSM input GEMM + exact chunked scan (chunk end states handed over through d_ws, marked empty by k1)
; @launch kernel=k1_kernel grid=(256,1,1) block=(512,1,1) lds=163840
; @launch kernel=k2_kernel grid=(448,1,1) block=(512,1,1) lds=81920
.amdgcn_target "amdgcn-amd-amdhsa--gfx950"
.text
"""


def desc(name, vg):
    return f""".amdhsa_kernel {name}
  .amdhsa_next_free_vgpr {vg}
  .amdhsa_next_free_sgpr 102
  .amdhsa_accum_offset {vg}
  .amdhsa_group_segment_fixed_size 0
  .amdhsa_kernarg_size 120
  .amdhsa_user_sgpr_count 2
  .amdhsa_user_sgpr_kernarg_segment_ptr 1
  .amdhsa_system_sgpr_workgroup_id_x 1
.end_amdhsa_kernel
"""


def build(**opt):
    OPT.update(opt)
    out = HEADER
    errs = []
    for name, fn in (("k1_kernel", k1), ("k2_kernel", k2)):
        a = Asm()
        fn(a)
        wt = {0: "", 1: " sc0 sc1", 2: " nt", 3: " sc1"}[OPT.get("wt" + name[1], 0)]
        a.lines = [ln + wt if ln.startswith("buffer_store") else ln for ln in a.lines]
        if OPT.get("sc", 1) == 1:
            a.lines = [ln.replace(" sc0 sc1", " sc1") for ln in a.lines]
        errs += check(a.lines, name)
        for body in getattr(a, "loops", []):
            errs += check(body + body, name + " loop")
        out += f".globl {name}\n.p2align 8\n.type {name},@function\n" + a.text()
    out += '.section .rodata,"a"\n'
    for name, vg in (("k1_kernel", 256), ("k2_kernel", 128)):
        out += ".p2align 6\n" + desc(name, vg)
    return out, sorted(set(errs))


if __name__ == "__main__":
    opts = {}
    path = "concat_heads__mha_block__ssm_conv_s5__prompt.s"
    for arg in sys.argv[1:]:
        if "=" in arg:
            k, v = arg.split("=")
            opts[k] = int(v)
        else:
            path = arg
    text, errs = build(**opts)
    for e in errs:
        print("HAZARD", e)
    open(path, "w").write(text)
    print("wrote", path, len(text), "bytes;", len(errs), "hazards")
```

```python
import gen as G
from asmlib import Asm, vr

MF = "v_mfma_f32_32x32x16_bf16"
MF8 = "v_mfma_f32_32x32x8bf16_1k"
OA, PP, KF, KX, VF, QB, AK, AX, AV, NK, NX, NV = 48, 64, 72, 80, 88, 104, 112, 113, 114, 115, 116, 117


def S(q, j):
    return 16 + 16 * (j & 1)


def k2(a):
    a.label("k2_kernel")
    G.stamp(a, 0)
    a("""s_cmp_ge_u32 s2, 448
    s_cbranch_scc1 K2_done""")
    G.load_args(a)
    a("""v_lshrrev_b32 v1, 6, v0
    v_and_b32 v0, 63, v0
    s_cmp_ge_u32 s2, 256
    v_readfirstlane_b32 s5, v1
    s_cbranch_scc1 K2_ssm""")
    attention(a)
    ssm(a)


ST2 = 20480


def tail_loader(a, nst, issue, per=5, pre=2, end=True):
    for st in range(pre):
        issue(st)
    for st in range(nst):
        a(f"s_waitcnt vmcnt({per * min(pre - 1, nst - 1 - st)})\n s_barrier")
        if st + pre < nst:
            issue(st + pre)
    if end:
        a("s_endpgm")


def poll(a, tag, off, target, sleep=2):
    W = f"s[{G.SRDW}:{G.SRDW+3}]"
    a(f"s_mov_b64 exec, 1\n v_mov_b32 v14, 0\n s_mov_b32 s72, 0")
    a.label(tag)
    a(f"""buffer_load_dword v15, v14, {W}, s{off} offen sc0 sc1
    s_waitcnt vmcnt(0)
    v_readfirstlane_b32 s73, v15
    s_add_u32 s72, s72, 1
    s_cmp_ge_u32 s73, {target}
    s_cbranch_scc1 {tag}_ok
    s_sleep {sleep}
    s_cmp_lt_u32 s72, 0x100000
    s_cbranch_scc1 {tag}""")
    a.label(tag + "_ok")
    a("s_mov_b64 exec, -1")


def arrive(a, off):
    W = f"s[{G.SRDW}:{G.SRDW+3}]"
    a(f"""s_mov_b64 exec, 1
    v_mov_b32 v14, 0
    v_mov_b32 v15, 1
    buffer_atomic_add v15, v14, {W}, s{off} offen sc1
    s_mov_b64 exec, -1""")


def pf_item(a, tag, add, dummy):
    SRD1, SRD2A = G.SRD1, G.SRD2A
    a(f"""s_add_u32 s13, s12, {add}
    s_mul_i32 s14, s13, 2850
    s_lshr_b32 s14, s14, 16
    s_mul_i32 s15, s14, 23
    s_sub_u32 s15, s13, s15
    s_cmp_ge_u32 s13, 207
    s_cbranch_scc1 P_n{tag}
    s_cmp_lt_u32 s15, 8
    s_cbranch_scc0 P_w{tag}
    s_lshr_b32 s68, s6, 1
    s_lshl_b32 s68, s68, 3
    s_add_u32 s15, s15, s68
    s_mul_i32 s15, s15, {64*1152}
    s_lshl_b32 s14, s14, 7
    s_add_u32 s15, s15, s14
    buffer_load_dword v{dummy}, v1, s[{SRD1}:{SRD1+3}], s15 offen
    s_branch P_n{tag}""")
    a.label(f"P_w{tag}")
    a(f"""s_and_b32 s69, s6, 1
    s_mul_i32 s69, s69, 15
    s_add_u32 s15, s15, s69
    s_sub_u32 s15, s15, 8
    s_mul_i32 s14, s14, {64*3456}
    s_cmp_lt_u32 s15, 27
    s_cselect_b32 s14, s14, {0x7f000000}
    s_lshl_b32 s15, s15, 7
    s_add_u32 s15, s15, s14
    buffer_load_dword v{dummy}, v2, s[{SRD2A}:{SRD2A+3}], s15 offen""")
    a.label(f"P_n{tag}")


def pf_setup(a, ireg):
    a(f"""s_sub_u32 s12, s{ireg}, 20
    s_lshl_b32 s12, s12, 3
    s_add_u32 s12, s12, s5
    v_mul_u32_u24 v1, 1152, v0
    v_mul_u32_u24 v2, 3456, v0
    s_waitcnt lgkmcnt(0)""")
    G.srd(a, G.SRD1, G.P_AX, 2048 * 1152)
    G.srd(a, G.SRD2A, G.P_WQKV, 576 * 3456)


def prefetch_att(a):
    SRD1 = G.SRD1
    a("""s_bfe_u32 s7, s2, 0x50003
    s_cmp_lt_u32 s7, 20
    s_cbranch_scc1 P_x""")
    pf_setup(a, 7)
    pf_item(a, "a", 96, 118)
    pf_item(a, "b", 192, 118)
    if G.OPT.get("pfc", 1):
        a("s_getpc_b64 s[14:15]")
        a.label("K1_pc")
        a(f"""s_lshl_b32 s13, s12, 10
        s_sub_u32 s14, s14, K1_pc-{mega.NAME}
        s_subb_u32 s15, s15, 0
        v_and_b32 v10, 7, v0
        v_lshl_add_u32 v10, v10, 7, s13
        v_min_u32 v10, K2_last-{mega.NAME}, v10
        v_mov_b32 v11, s15
        v_add_co_u32 v10, vcc, s14, v10
        s_nop 1
        v_addc_co_u32 v11, vcc, 0, v11, vcc
        global_load_dword v118, v[10:11], off""")
    a(f"s_mul_i32 s68, s6, {256*1152}")
    for k in range(3):
        a(f"""s_add_u32 s13, s12, {96*k}
        s_mul_i32 s14, s13, 2979
        s_lshr_b32 s14, s14, 16
        s_mul_i32 s15, s14, 22
        s_sub_u32 s15, s13, s15
        s_lshl_b32 s14, s14, 7
        s_cmp_lt_u32 s13, 198
        s_cselect_b32 s14, s14, {0x7f000000}
        s_cmp_lt_u32 s15, 13
        s_cselect_b32 s{SRD1}, s{G.P_BRE}, s{G.P_BIM}
        s_cselect_b32 s{SRD1+1}, s{G.P_BRE+1}, s{G.P_BIM+1}
        s_cselect_b32 s69, 4, 13
        s_mov_b32 s{SRD1+2}, {576*1152}
        s_mov_b32 s70, 0
        s_cmp_lt_u32 s15, 4
        s_cselect_b32 s{SRD1}, s{G.P_BX}, s{SRD1}
        s_cselect_b32 s{SRD1+1}, s{G.P_BX+1}, s{SRD1+1}
        s_cselect_b32 s{SRD1+2}, {2048*1152}, s{SRD1+2}
        s_cselect_b32 s69, 0, s69
        s_cselect_b32 s70, s68, s70
        s_sub_u32 s15, s15, s69
        s_mul_i32 s15, s15, {64*1152}
        s_add_u32 s15, s15, s14
        s_add_u32 s15, s15, s70
        buffer_load_dword v118, v1, s[{SRD1}:{SRD1+3}], s15 offen""")
    a.label("P_x")


def attention(a):
    OPT, IMG, CH, VG = G.OPT, G.IMG, G.CH, G.VG
    stamp, stampc = G.stamp, G.stampc
    W = f"s[{G.SRDW}:{G.SRDW+3}]"
    a.label("A_go")
    if OPT.get("pf1", 1):
        prefetch_att(a)
    a(f"""s_and_b32 s3, s2, 7
    s_lshl_b32 s3, s3, 2
    s_bfe_u32 s6, s2, 0x20003
    s_add_u32 s3, s3, s6
    s_bfe_u32 s4, s2, 0x30005
    s_mul_i32 s75, s3, {IMG}
    s_lshl_b32 s13, s5, 10
    s_add_u32 s78, s5, 16
    s_min_u32 s78, s78, 18
    s_lshl_b32 s78, s78, 10
    s_mov_b32 s12, s75
    s_mov_b32 s76, 0
    v_lshlrev_b32 v3, 4, v0""")
    G.lane_parts(a)
    a(f"""s_mul_i32 s14, s4, {CH}
    s_add_u32 s14, s14, s75
    s_add_u32 s14, s14, {G.Q_OFF}
    v_lshlrev_b32 v4, 4, v1
    v_lshl_add_u32 v5, v2, 12, v4
    s_lshl_b32 s6, s5, 9
    v_add_u32 v5, s6, v5
    s_lshr_b32 s6, s5, 2
    s_lshl_b32 s6, s6, 9
    s_and_b32 s7, s5, 3
    s_lshl_b32 s7, s7, 2
    s_add_u32 s6, s6, s7
    s_add_u32 s6, s6, 8192
    v_add_u32 v4, s6, v4
    v_add_u32 v6, s13, v3
    v_add_u32 v7, s78, v3
    s_waitcnt lgkmcnt(0)""")
    G.srd(a, G.SRDW, G.P_WS, G.WS_END)

    def dma(c, k):
        sl, g = (c & 3) * CH, c * CH
        if k < 2:
            return f"""s_add_u32 m0, s13, {sl + 8192*k}
            s_add_u32 s7, s75, {g + 8192*k}
            buffer_load_dwordx4 v6, {W}, s7 offen sc1 lds"""
        return f"""s_add_u32 m0, s78, {sl}
        s_add_u32 s7, s75, {g}
        buffer_load_dwordx4 v7, {W}, s7 offen sc1 lds"""

    a(f"""v_and_b32 v11, 19, v1
    v_and_b32 v12, 4, v1
    v_lshl_add_u32 v11, v12, 1, v11
    v_and_b32 v12, 8, v1
    v_lshrrev_b32 v12, 1, v12
    v_add_u32 v11, v11, v12
    v_lshlrev_b32 v{AX}, 4, v11
    v_lshl_add_u32 v{AK}, v2, 12, v{AX}
    v_add_u32 v{AX}, 8192, v{AX}""")
    a(f"""v_min_u32 v12, 19, v1
    v_cmp_gt_u32 vcc, 16, v1
    v_cmp_eq_u32 s[70:71], 28, v1
    v_mul_u32_u24 v{AV}, {VG}, v2
    v_cndmask_b32 v12, v12, v11, vcc
    s_nop 0
    v_cndmask_b32 v12, v12, 18, s[70:71]
    v_lshl_add_u32 v{AV}, v12, 4, v{AV}
    v_add_u32 v{AV}, 9216, v{AV}
    v_add_u32 v{NK}, {3*CH}, v{AK}
    v_add_u32 v{NX}, {3*CH}, v{AX}
    v_add_u32 v{NV}, {3*CH}, v{AV}
    s_mov_b32 s70, {G.f2u(G.QSCALE)}""")
    for i in range(16):
        a(f"v_mov_b32 v{OA+i}, 0")
    a(f"""s_mov_b32 s73, 0xffff0000
    s_cmp_lg_u32 s5, 0
    s_cbranch_scc1 A_w""")
    a(f"s_sleep {OPT.get('asleep0', 127)}")
    mega.wait_init(a, "A_wi")
    a(f"""s_and_b32 s74, s2, 7
    s_mul_i32 s74, s74, 768
    s_add_u32 s74, s74, {G.QF_OFF}
    s_cmp_gt_u32 s3, 10
    s_addc_u32 s6, 0, 0
    s_cmp_gt_u32 s3, 21
    s_addc_u32 s6, s6, 0
    s_lshl_b32 s6, s6, 8
    s_cmp_ge_u32 s3, 10
    s_addc_u32 s7, 0, 0
    s_cmp_ge_u32 s3, 21
    s_addc_u32 s7, s7, 0
    s_lshl_b32 s7, s7, 8
    s_add_u32 s71, s74, s7
    s_add_u32 s74, s74, s6
    v_lshlrev_b32 v14, 2, v0""")
    mega.spin(a, "A_wq", f"buffer_load_dword v15, v14, {W}, s74 offen sc1", 1, lanes=48, sleep=OPT.get("asleep", 4))
    a("s_cmp_eq_u32 s71, s74\n s_cbranch_scc1 A_w")
    mega.spin(a, "A_wr", f"buffer_load_dword v15, v14, {W}, s71 offen sc1", 1, lanes=48, sleep=1)
    a.label("A_w")
    a(f"""s_waitcnt vmcnt(0)
    s_barrier
    s_setprio {OPT.get("prioa", 1)}""")
    stamp(a, 5 if OPT["stamps"] == 4 else 1)
    a(f"""buffer_load_dwordx4 v[{QB}:{QB+3}], v5, {W}, s14 offen sc1
    buffer_load_dword v{QB+4}, v4, {W}, s14 offen sc1""")
    for c in range(4):
        for k in range(3):
            a(dma(c, k))
    a("s_waitcnt vmcnt(12)")
    for q in (QB, QB + 1, QB + 2, QB + 3, QB + 4):
        a(f"""v_lshlrev_b32 v12, 16, v{q}
        v_and_b32 v13, s73, v{q}
        v_mul_f32 v12, s70, v12
        v_mul_f32 v13, s70, v13
        v_cvt_pk_bf16_f32 v{q}, v12, v13""")
    for q in range(1):
        x = QB + 8 * q + 4
        a(f"""v_cndmask_b32 v{x}, v{x}, 0, s[8:9]
        v_mov_b32 v{x+1}, 0
        v_mov_b32 v{x+2}, 0
        v_mov_b32 v{x+3}, v{x}""")
    a("s_waitcnt vmcnt(6)\n s_barrier")
    stamp(a, 2)
    stampc(a, 5)

    def ad(lo, hi, c, off):
        sl = c & 3
        return (f"v{hi} offset:{off}" if sl == 3 else f"v{lo} offset:{sl * CH + off}")

    def rdK(j):
        return f"ds_read_b128 {vr(KF + 4*(j & 1), 4)}, {ad(AK, NK, j >> 3, (j & 7) * 512)}"

    def rdX(u):
        return f"ds_read_b128 {vr(KX + 4*(u & 1), 4)}, {ad(AX, NX, u >> 1, (u & 1) * 512)}"

    def rdV(j, u):
        return f"ds_read_b128 {vr(VF + 8*(j & 1) + 4*u, 4)}, {ad(AV, NV, j >> 3, (4 * (j & 7) + 2 * u) * VG)}"

    def mA(q, j):
        return f"{MF} {vr(S(q, j), 16)}, {vr(KF + 4*(j & 1), 4)}, {vr(QB + 8*q, 4)}, 0"

    def mB(q, j):
        kx = KX + 4 * ((j >> 2) & 1) + 2 * ((j >> 1) & 1)
        return f"{MF8} {vr(S(q, j), 16)}, {vr(kx, 2)}, {vr(QB + 8*q + 4 + 2*(j & 1), 2)}, {vr(S(q, j), 16)}"

    def mP(q, j, u):
        o = vr(OA + 16 * q, 16)
        return f"{MF} {o}, {vr(VF + 8*(j & 1) + 4*u, 4)}, {vr(PP + 8*q + 4*u, 4)}, {o}"

    a(f"""{rdK(0)}
    {rdX(0)}
    {rdK(1)}
    {rdV(0, 0)}
    {rdV(0, 1)}
    s_waitcnt lgkmcnt(3)
    {mA(0, 0)}
    {mB(0, 0)}
    s_waitcnt lgkmcnt(0)
    s_nop 8""")
    a(".p2align 3")
    pat = "A k v0 e e e e P1 v1 x e e e e B d e e c c c c e e P0 e e e e w n c c c c"
    for jj in range(64):
        c8, j8 = divmod(jj, 8)
        last = jj == 63
        s, P = S(0, jj), PP
        ne = nc = 0
        for tok in pat.split():
            if tok == "e":
                a(f"v_exp_f32 v{s+ne}, v{s+ne}")
                ne += 1
            elif tok == "c":
                a(f"v_cvt_pk_bf16_f32 v{P+nc}, v{s+2*nc}, v{s+2*nc+1}")
                nc += 1
            elif tok == "A" and not last:
                a(mA(0, jj + 1))
            elif tok == "B" and not last:
                a(mB(0, jj + 1))
            elif tok == "P1" and jj:
                a(mP(0, jj - 1, 1))
            elif tok == "P0":
                a(mP(0, jj, 0))
            elif tok == "k" and jj + 2 < 64:
                a(rdK(jj + 2))
            elif tok == "v0" and not last:
                a(rdV(jj + 1, 0))
            elif tok == "v1" and not last:
                a(rdV(jj + 1, 1))
            elif tok == "x" and jj % 4 == 0 and jj < 60:
                a(rdX(jj // 4 + 1))
            elif tok == "d" and j8 < 3 and 1 <= c8 <= 4:
                a(dma(c8 + 3, j8))
            elif tok == "w" and not last:
                if j8 == 7 and c8 <= 5:
                    a(f"s_waitcnt vmcnt({3 if c8 <= 4 else 0}) lgkmcnt(0)")
                else:
                    a("s_waitcnt lgkmcnt(0)")
            elif tok == "n" and not last:
                a("s_barrier" if j8 == 7 and c8 <= 5 else "s_nop 0")
    a(f"s_nop 1\n{mP(0, 63, 1)}")
    a.loops = getattr(a, "loops", [])
    stamp(a, 3)
    stampc(a, 6)
    a(f"""s_lshl_b32 s6, s4, 8
    s_lshl_b32 s7, s5, 5
    s_add_u32 s6, s6, s7
    v_add_u32 v4, s6, v1
    v_lshlrev_b32 v4, 4, v4
    v_lshl_add_u32 v5, v2, 15, v4
    s_mul_i32 s12, s3, {3*32768}
    s_add_u32 s12, s12, {G.O_OFF}
    s_add_u32 s13, s12, {2*32768}
    v_mov_b32 v9, 0
    v_mov_b32 v10, 0
    v_mov_b32 v11, 0
    s_mov_b32 s14, {G.f2u(2.0**-60)}
    s_mov_b32 s15, {G.f2u(2.0**60)}
    s_movk_i32 s46, 0x207""")
    a(f"""v_cndmask_b32 v6, v{OA+10}, v{OA+12}, s[8:9]
    v_add_f32 v7, |v{OA}|, |v{OA+1}|""")
    for i in range(2, 10):
        a(f"v_add_f32 v7, v7, |v{OA+i}|")
    a(f"""v_cmp_nle_f32 vcc, s14, v6
    v_cmp_lt_f32 s[68:69], s15, v6
    v_cmp_class_f32 s[70:71], v7, s46
    s_or_b64 vcc, vcc, s[68:69]
    s_or_b64 vcc, vcc, s[70:71]
    {"s_branch K2_slow" if OPT.get("slow") else "s_cbranch_vccnz K2_slow"}""")
    a.label("K2_fin")
    a("v_rcp_f32 v6, v6\n s_nop 0")
    for i in range(10):
        a(f"v_mul_f32 v{OA+i}, v6, v{OA+i}")
    for k in range(5):
        a(f"v_cvt_pk_bf16_f32 v{16+k if k < 4 else 8}, v{OA+2*k}, v{OA+2*k+1}")
    a(f"""buffer_store_dwordx4 v[16:19], v5, {W}, s12 offen sc0 sc1
    s_mov_b64 exec, 0xffffffff
    buffer_store_dwordx4 v[8:11], v4, {W}, s13 offen sc0 sc1
    s_mov_b64 exec, -1
    s_lshl_b32 s74, s4, 7
    s_add_u32 s74, s74, {G.FLG_OFF + 32*128}
    s_mul_i32 s14, s3, 43
    s_lshr_b32 s14, s14, 8
    s_mul_i32 s15, s14, 6
    s_sub_u32 s15, s3, s15
    s_lshl_b32 s6, s4, 2
    s_add_u32 s14, s14, s6""")
    stamp(a, 4)
    ACC, FR, XA, WA = 64, 28, 20, 24
    a("""s_cmp_lt_u32 s5, 4
    s_cbranch_scc1 K2_pc
    s_sub_u32 s6, s5, 4""")
    SP, RP = 13312, 6
    G.srd(a, G.SRD2A, G.P_WO, 576 * 1152)
    a(f"""s_nop 0
    v_lshlrev_b32 v1, 4, v0
    s_lshl_b32 s7, s6, 6""")
    for u in range(2):
        a(f"""v_add_u32 v12, s7, v0
        v_add_u32 v12, {256*u}, v12
        v_min_u32 v12, 431, v12
        v_mul_u32_u24 v13, 5462, v12
        v_lshrrev_b32 v13, 16, v13
        v_mul_u32_u24 v13, {1152 - 192}, v13
        v_lshl_add_u32 v{2+u}, v12, 4, v13""")
    a(f"""s_lshl_b32 s68, s14, 10
    s_lshl_b32 s7, s6, 15
    s_add_u32 s68, s68, s7
    s_add_u32 s68, s68, {G.O_OFF}
    s_mul_i32 s69, s15, 192
    s_lshl_b32 s76, s6, 10
    s_cmp_lt_u32 s6, 2
    s_mov_b32 s70, {0x7f000000}
    s_cselect_b32 s70, {4*32768}, s70
    s_cselect_b32 s71, 1, 0
    s_cmp_lt_u32 s6, 3
    s_cselect_b32 s77, 1, 0
    s_waitcnt vmcnt(0)
    {"s_memrealtime s[86:87]" if OPT["stamps"] == 4 else ""}
    s_barrier
    {"s_memrealtime s[88:89]" if OPT["stamps"] == 4 else ""}
    s_cmp_ge_u32 s3, 24
    s_cbranch_scc1 K2_done""")
    a(f"""s_add_u32 s70, s70, s68
    s_cmp_eq_u32 s77, 0
    s_cselect_b32 s78, {0x7f000000}, 0
    v_add_u32 v3, s78, v3""")

    def slot(mask, here):
        return f"""s_add_u32 s7, s76, {here}
        s_cmp_eq_u32 s{mask}, 0
        s_cselect_b32 m0, {RP*SP}, s7"""

    def issue_w(st):
        base = (st % RP) * SP
        a(f"""s_add_u32 m0, s76, {base + 6144}
        s_add_u32 s72, s69, {36*1152*st}
        buffer_load_dwordx4 v2, s[{G.SRD2A}:{G.SRD2A+3}], s72 offen lds
        {slot(77, base + 6144 + 4096)}
        s_nop 0
        buffer_load_dwordx4 v3, s[{G.SRD2A}:{G.SRD2A+3}], s72 offen lds""")

    def issue_o(st):
        base = (st % RP) * SP
        a(f"""s_add_u32 m0, s76, {base}
        s_add_u32 s72, s68, {6*32768*st}
        buffer_load_dwordx4 v1, {W}, s72 offen sc0 sc1 lds
        {slot(71, base + 4096)}
        s_add_u32 s72, s70, {6*32768*st}
        buffer_load_dwordx4 v1, {W}, s72 offen sc0 sc1 lds""")
    for st in range(4):
        issue_w(st)
    a("s_barrier")
    if OPT["stamps"] == 4:
        a("s_memrealtime s[90:91]")

    def issue_p(st):
        if st >= 4:
            issue_w(st)
        issue_o(st)
    for st in range(4):
        issue_o(st)
    for st in range(16):
        n = (2 * (3 - st) + 4 * st) if st < 4 else 4 * min(3, 15 - st)
        a(f"s_waitcnt vmcnt({n})\n s_barrier")
        if OPT["stamps"] == 4 and st in (0, 5, 15):
            a(f"s_memrealtime s[{94 + 2*(0, 5, 15).index(st)}:{95 + 2*(0, 5, 15).index(st)}]")
        if st + 4 < 16:
            issue_p(st + 4)
    if OPT["stamps"] == 4:
        G.stamp_store(a, 0, 8)
    a("s_endpgm")
    a.label("K2_pc")
    G.srd(a, G.SRDO, G.P_OUT, 2048 * 4608)
    a(f"""v_lshlrev_b32 v{XA}, 4, v1
    v_lshl_add_u32 v{XA}, v2, 10, v{XA}
    v_bfe_u32 v12, v0, 2, 2
    v_and_b32 v13, 3, v0
    v_lshlrev_b32 v13, 3, v13
    v_and_b32 v14, 16, v0
    v_lshl_add_u32 v13, v14, 1, v13
    s_lshl_b32 s7, s5, 6
    s_add_u32 s7, s7, 6144
    v_add_u32 v13, s7, v13
    s_movk_i32 s7, 192""")
    for i, (r0, r1) in enumerate(((0, 8), (16, 18), (26, 34), (30, 38))):
        a(f"""v_mad_u32_u24 v14, v2, {r1 - r0}, v12
        v_add_u32 v14, {r0}, v14
        v_min_u32 v14, 35, v14
        v_mad_u32_u24 v{WA+i}, v14, s7, v13""")
    a(G.out_addr(a, 8192, 0))
    a(f"""s_mul_i32 s6, s14, {64*4608}
    s_mul_i32 s7, s15, 384
    s_add_u32 s6, s6, s7
    s_lshl_b32 s7, s5, 7
    s_add_u32 s12, s6, s7
    s_add_u32 s13, s12, {32*4608}
    s_waitcnt vmcnt(0)
    s_barrier
    s_cmp_lg_u32 s5, 3
    s_cbranch_scc1 K2_pw""")
    arrive(a, 74)
    a("s_cmp_ge_u32 s3, 24\n s_cbranch_scc1 K2_done")
    poll(a, "K2_pp", 74, 32)
    a("s_barrier\n s_endpgm")
    a.label("K2_pw")
    a("s_cmp_ge_u32 s3, 24\n s_cbranch_scc1 K2_end\n s_barrier")
    stamp(a, 7)

    def reads_p(ks, b):
        f = FR + 12 * b
        return [f"ds_read_b64_tr_b16 {vr(f, 2)}, v{WA+ks}", f"ds_read_b64_tr_b16 {vr(f+2, 2)}, " + (f"v{WA+ks} offset:768" if ks < 2 else f"v{WA+3}"),
                f"ds_read_b128 {vr(f+4, 4)}, v{XA} offset:{2048*ks}", f"ds_read_b128 {vr(f+8, 4)}, v{XA} offset:{2048*ks+512}"]

    def mfmas_t(n, b, init=True):
        f = FR + 12 * b
        return [f"{MF} {vr(ACC+16*tt, 16)}, {vr(f, 4)}, {vr(f+4+4*tt, 4)}, {vr(ACC+16*tt, 16) if n or not init else 0}" for tt in range(2)]
    G.consumer2(a, 3, reads_p, mfmas_t, lambda ks: [WA + ks] + ([XA, WA + 3] if ks == 2 else []), depth=2, bar_ks=0, per_gap=3, nst=16, stage=SP, ring=RP)
    a("s_nop 10")
    G.out_tiles(a, [(ACC + 16 * tt, 12 + tt, 0) for tt in range(2)])
    a.label("K2_end")
    if OPT["stamps"]:
        a("s_memrealtime s[86:87]")
    G.stamp_store(a, 0, 8)
    a.label("K2_done")
    a("s_endpgm")
    a.label("K2_slow")
    for ps in range(2):
        a("s_mov_b32 s6, 0")
        if ps == 0:
            a("v_mov_b32 v7, 0xff800000")
        else:
            for i in range(16):
                a(f"v_mov_b32 v{OA+i}, 0")
        a.label(f"K2_sl{ps}")
        st = len(a.lines)
        a(f"""s_lshr_b32 s7, s6, 2
        s_mul_i32 s7, s7, {CH}
        s_add_u32 s7, s7, s75
        s_and_b32 s68, s6, 3
        s_mul_i32 s70, s68, {8*VG}
        s_add_u32 s70, s70, s7
        s_lshr_b32 s69, s68, 1
        s_lshl_b32 s69, s69, 9
        s_add_u32 s69, s69, s7
        s_bitcmp1_b32 s6, 0
        s_cselect_b32 s71, 8, 0
        s_add_u32 s69, s69, s71
        s_lshl_b32 s68, s68, 10
        s_add_u32 s68, s68, s7
        buffer_load_dwordx4 {vr(KF, 4)}, v{AK}, {W}, s68 offen sc1
        buffer_load_dwordx4 {vr(KF + 4, 4)}, v{AK}, {W}, s68 offen offset:512 sc1
        buffer_load_dwordx2 {vr(KX, 2)}, v{AX}, {W}, s69 offen sc1""")
        if ps:
            for i in range(4):
                a(f"buffer_load_dwordx4 {vr(VF + 4*i, 4)}, v{AV}, {W}, s70 offen offset:{2*i*VG} sc1")
        a(f"s_waitcnt vmcnt(0)\n{mA(0, 0)}\n{mA(0, 1)}\n{mB(0, 0)}\n{mB(0, 1)}\n s_nop 15")
        for j in range(2):
            s = S(0, j)
            if ps == 0:
                for i in range(0, 16, 2):
                    a(f"v_max3_f32 v7, v7, v{s+i}, v{s+i+1}")
            else:
                for i in range(16):
                    a(f"v_sub_f32 v{s+i}, v{s+i}, v7")
                for i in range(16):
                    a(f"v_exp_f32 v{s+i}, v{s+i}")
                a("s_nop 0")
                for k in range(8):
                    a(f"v_cvt_pk_bf16_f32 v{PP+k}, v{s+2*k}, v{s+2*k+1}")
                a(f"s_nop 1\n{mP(0, j, 0)}\n{mP(0, j, 1)}")
        a(f"""s_add_u32 s6, s6, 1
        s_cmp_lt_u32 s6, 32
        s_cbranch_scc1 K2_sl{ps}""")
        a.loops.append(a.lines[st:])
        if ps == 0:
            a("""v_mov_b32 v8, v7
            s_nop 1
            v_permlane32_swap_b32 v7, v8
            s_nop 1
            v_max_f32 v7, v7, v8""")
    a(f"""s_nop 15
    v_cndmask_b32 v6, v{OA+10}, v{OA+12}, s[8:9]
    s_branch K2_fin""")


def cstep(a, nr, ni, lr, li, er, ei, xr, xi):
    a(f"""v_fma_f32 v{nr}, v{lr}, v{er}, v{xr}
    v_fma_f32 v{ni}, v{lr}, v{ei}, v{xi}
    v_fma_f32 v{nr}, -v{li}, v{ei}, v{nr}
    v_fma_f32 v{ni}, v{li}, v{er}, v{ni}""")


def ssm(a):
    OPT, PLB = G.OPT, G.PLB
    stamp = G.stamp
    W = f"s[{G.SRDW}:{G.SRDW+3}]"
    ACC, FR, XA, WA = 64, 32, 24, 28
    a.label("K2_ssm")
    WB, WS_ = 32768, 12288
    a(f"""s_sub_u32 s7, s47, 20
    s_lshr_b32 s4, s7, 1
    s_and_b32 s7, s7, 1
    s_lshl_b32 s3, s6, 1
    s_add_u32 s3, s3, s7
    s_setprio {OPT.get('prio', 2)}
    s_nop 0""")
    pf_setup(a, 47)
    if OPT.get("pf1", 1):
        pf_item(a, "s", 0, 7)
    G.srd(a, G.SRD1, G.P_BX, 2048 * 1152)
    G.srd(a, G.SRD2A, G.P_BRE, 576 * 1152)
    G.srd(a, G.SRD2B, G.P_BIM, 576 * 1152)
    a("s_mov_b32 s6, s5")
    G.rows_voff(a, 6, 1152, 8)
    a(f"""s_mul_i32 s68, s3, {128*1152}
    s_mul_i32 s69, s4, {96*1152}
    s_lshl_b32 s76, s5, 10
    s_and_b32 s77, s5, 3
    s_lshl_b32 s77, s77, 10
    s_lshr_b32 s71, s5, 2
    s_lshl_b32 s70, s71, 5
    s_sub_u32 s70, 64, s70
    s_mul_i32 s70, s70, 1152
    s_add_u32 s70, s70, s69""")
    uid = [0]

    def issue(h):
        if h >= 18:
            return []
        xs, d, base = h >> 1, G.SRD2B if h & 1 else G.SRD2A, WB + (h & 3) * WS_
        uid[0] += 1
        r = [f"""s_add_u32 m0, s76, {(xs & 1) * 16384 + 8192*j}
            s_add_u32 s7, s68, {128*xs + 64*1152*j}
            buffer_load_dwordx4 v6, s[{G.SRD1}:{G.SRD1+3}], s7 offen lds""" for j in range(2)] if h % 2 == 0 else []
        return r + [f"""s_add_u32 m0, s76, {base}
            s_add_u32 s7, s69, {128*xs}
            buffer_load_dwordx4 v6, s[{d}:{d+3}], s7 offen lds""",
                    f"""s_cmp_eq_u32 s71, {h & 1}
            s_cbranch_scc0 S_sk{uid[0]}
            s_add_u32 m0, s77, {base + 8192}
            s_add_u32 s7, s70, {128*xs}
            buffer_load_dwordx4 v6, s[{d}:{d+3}], s7 offen lds
            S_sk{uid[0]}:"""]

    def vm(h):
        return 0 if h == 17 else (3 if h & 1 else 1)
    a(f"""s_cmp_lt_u32 s5, 6
    s_cbranch_scc1 K2_sc
    s_waitcnt vmcnt(0)
    s_barrier""")
    for x in issue(0) + issue(1):
        a(x)
    for h in range(18):
        a(f"s_waitcnt vmcnt({vm(h)})\n s_barrier")
        for x in issue(h + 2):
            a(x)
    a("s_sub_u32 s6, s5, 6")
    a(f"""v_lshlrev_b32 v2, 7, v0
    s_sub_u32 s7, s47, 20
    s_lshl_b32 s7, s7, 1
    s_add_u32 s7, s7, s6
    s_mul_i32 s6, s7, {216*128}""")
    for p in (G.P_CRE, G.P_CIM, G.P_WO):
        G.srd(a, G.SRD1, p, 576 * 1152)
        for i in range(4):
            if i == 3:
                a("s_mov_b64 exec, 0xffffff")
            a(f"s_add_u32 s7, s6, {8192*i}\n buffer_load_dword v3, v2, s[{G.SRD1}:{G.SRD1+3}], s7 offen")
        a("s_mov_b64 exec, -1")
    a("s_barrier\n s_branch G2")
    a.label("K2_sc")
    G.srd(a, G.SRDW, G.P_WS, G.WS_END)
    G.lane_parts(a)
    PR = 8
    a(f"""s_cmp_ge_u32 s5, 3
    s_cselect_b32 s14, 1, 0
    s_mul_i32 s15, s14, 3
    s_sub_u32 s15, s5, s15
    s_mul_i32 s46, s4, 96
    s_lshl_b32 s6, s15, 5
    s_add_u32 s46, s46, s6
    v_add_u32 v3, s46, v1
    v_lshlrev_b32 v3, 1, v3
    global_load_ushort v{PR}, v3, s[{G.P_LRE}:{G.P_LRE+1}]
    global_load_ushort v{PR+1}, v3, s[{G.P_LIM}:{G.P_LIM+1}]
    global_load_ushort v{PR+2}, v3, s[{G.P_LDT}:{G.P_LDT+1}]
    v_bfe_u32 v5, v1, 1, 1
    v_lshrrev_b32 v4, 3, v1
    v_lshl_add_u32 v5, v4, 1, v5
    v_and_b32 v4, 1, v1
    v_lshl_add_u32 v5, v4, 4, v5
    v_and_b32 v4, 4, v1
    v_lshl_add_u32 v5, v4, 3, v5
    s_lshl_b32 s7, s14, 13""")
    XA, WA = 24, 28
    G.row_addr(a, XA, 5, "s7", 4)
    a(f"s_lshl_b32 s7, s15, 12\n s_add_u32 s7, s7, {WB}")
    G.row_addr(a, WA, 1, "s7", 4)
    a("s_waitcnt vmcnt(3)\n s_barrier")
    for x in issue(0) + issue(1):
        a(x)
    a("s_waitcnt vmcnt(5)")
    p = PR
    a(f"""s_mov_b32 s12, {G.f2u(G.LOG2E)}
    v_lshlrev_b32 v{p}, 16, v{p}
    v_lshlrev_b32 v{p+1}, 16, v{p+1}
    v_lshlrev_b32 v{p+2}, 16, v{p+2}
    v_mul_f32 v{p+2}, s12, v{p+2}
    v_exp_f32 v{p+2}, v{p+2}
    s_nop 0
    v_cvt_pk_bf16_f32 v{p+2}, v{p+2}, v{p+2}
    v_lshlrev_b32 v{p+2}, 16, v{p+2}
    v_mul_f32 v{p+3}, v{p+2}, v{p}
    v_mul_f32 v{p+2}, v{p+2}, v{p+1}
    v_mul_f32 v{p+3}, s12, v{p+3}
    v_mul_f32 v{p+2}, 0.15915494309189532, v{p+2}
    v_exp_f32 v{p+3}, v{p+3}
    v_fract_f32 v{p+2}, v{p+2}
    v_cos_f32 v{p+4}, v{p+2}
    v_sin_f32 v{p+5}, v{p+2}
    v_mul_f32 v{p+12}, v{p}, v{p}
    v_mul_f32 v{p+4}, v{p+4}, v{p+3}
    v_mul_f32 v{p+5}, v{p+5}, v{p+3}
    v_fma_f32 v{p+12}, v{p+1}, v{p+1}, v{p+12}
    v_rcp_f32 v{p+12}, v{p+12}
    v_add_f32 v{p+13}, -1.0, v{p+4}
    v_mul_f32 v{p+10}, v{p+13}, v{p}
    v_mul_f32 v{p+11}, v{p+5}, v{p}
    v_add_f32 v{p+12}, v{p+12}, v{p+12}
    v_fma_f32 v{p+10}, v{p+5}, v{p+1}, v{p+10}
    v_fma_f32 v{p+11}, -v{p+13}, v{p+1}, v{p+11}
    v_mul_f32 v{p+10}, v{p+10}, v{p+12}
    v_mul_f32 v{p+11}, v{p+11}, v{p+12}""")
    G.cmul(a, p + 12, p + 13, p + 4, p + 5, p + 4, p + 5)
    G.cmul(a, p + 14, p + 15, p + 12, p + 13, p + 12, p + 13)
    G.cmul(a, p + 12, p + 13, p + 14, p + 15, p + 14, p + 15)
    G.cmul(a, p - 4, p - 3, p + 12, p + 13, p + 12, p + 13)
    G.cmul(a, p + 6, p + 7, p - 4, p - 3, p - 4, p - 3)
    G.cmul(a, p + 8, p + 9, p + 6, p + 7, p + 6, p + 7)
    G.cmul(a, p, p + 1, p + 8, p + 9, p + 8, p + 9)
    LR, LI, L16R, L16I, L32R, L32I, L64R, L64I, L128R, L128I, CR, CI = p + 4, p + 5, p - 4, p - 3, p + 6, p + 7, p + 8, p + 9, p, p + 1, p + 10, p + 11
    FX, FW = (32, 44, 56), (40, 52, 20)

    def reads(n, b):
        ks = n & 3
        return [f"ds_read_b128 {vr(FW[b], 4)}, v{WA+ks}", f"ds_read_b128 {vr(FX[b], 4)}, v{XA+ks}",
                f"ds_read_b128 {vr(FX[b]+4, 4)}, v{XA+(ks^2)} offset:1024"]

    def upd2(n):
        h, ks = divmod(n, 4)
        u = [(WA + ks, WS_ if (h + 1) & 3 else -3 * WS_)] if h < 17 else []
        if h & 1 and h < 17 and ks >= 2:
            u += [(XA + k, 16384 if (h >> 1) % 2 == 0 else -16384) for k in (ks - 2, ks)]
        return u

    def mfmas(n, b):
        im = (n >> 2) & 1
        return [f"{MF} {vr(ACC + 32*im + 16*tt, 16)}, {vr(FX[b]+4*tt, 4)}, {vr(FW[b], 4)}, {vr(ACC + 32*im + 16*tt, 16) if n & ~4 else 0}"
                for tt in range(2)]
    stamp(a, 1)
    G.consumer2(a, 4, reads, mfmas, None, depth=2, bar_ks=2, per_gap=3, nst=18, upd2=upd2, by_step=True,
                pre_bar=lambda h: f"s_waitcnt vmcnt({vm(h)}) lgkmcnt(0)", post_bar=lambda h: issue(h + 2))
    stamp(a, 2)

    def pk(d, l, hi, e, x, neg=False):
        return (f"v_pk_fma_f32 {vr(d, 2)}, {vr(l, 2)}, {vr(e, 2)}, {vr(x, 2)} op_sel:[{hi},0,0] op_sel_hi:[{hi},1,1]"
                + (" neg_lo:[1,0,0] neg_hi:[1,0,0]" if neg else ""))

    def pstep(nr, ni, er, ei, xr, xi):
        a("\n".join([pk(nr, LR, 0, er, xr), pk(ni, LR, 0, ei, xi), pk(nr, LR, 1, ei, nr, True), pk(ni, LR, 1, er, ni)]))
    a(f"""s_lshl_b32 s79, s3, 1
    s_add_u32 s79, s79, s14
    v_lshlrev_b32 v3, 3, v1
    s_mul_i32 s13, s3, 4608
    s_lshl_b32 s6, s46, 3
    s_add_u32 s78, s6, {G.ECH_OFF}
    s_add_u32 s13, s13, s78
    s_mul_i32 s75, s79, {8*PLB}
    s_lshl_b32 s6, s46, 4
    s_add_u32 s75, s75, s6
    s_add_u32 s75, s75, {G.XT_OFF}
    s_lshl_b32 s6, s15, 8
    s_add_u32 s6, s6, {WB + 2*WS_}
    v_add_u32 v6, s6, v3""")
    G.srd(a, mega.SRDD, G.P_DBG, 256)
    a(f"v_mov_b32 v62, 0\n buffer_load_dword v63, v62, s[{mega.SRDD}:{mega.SRDD+3}], 0 offen offset:132 sc1")
    e = (ACC, ACC + 32)
    for s_ in range(1, 16):
        n_ = (24, 26) if s_ & 1 else (28, 30)
        pstep(n_[0], n_[1], e[0], e[1], ACC + 2 * s_, ACC + 32 + 2 * s_)
        e = n_
    cstep(a, 20, 21, L16R, L16I, 24, 26, 25, 27)
    a("""v_mov_b32 v28, v20
    v_mov_b32 v29, v21
    v_mov_b32 v30, v20
    v_mov_b32 v31, v21
    s_nop 1
    v_permlane32_swap_b32 v28, v30
    v_permlane32_swap_b32 v29, v31
    s_nop 1""")
    cstep(a, 22, 23, L32R, L32I, 28, 29, 30, 31)
    a(f"""s_cmp_lg_u32 s14, 0
    s_cbranch_scc1 S_x1
    ds_write_b64 v6, v[22:23]""")
    a.label("S_x1")
    a(f"""s_waitcnt vmcnt(0) lgkmcnt(0)
    v_readfirstlane_b32 s6, v63
    s_barrier
    ds_read_b64 v[20:21], v6
    s_cmp_ge_u32 s6, 16
    s_cbranch_scc1 S_ci
    v_mov_b32 v60, v14
    v_mov_b32 v61, v15""")
    mega.wait_init(a, "S_wi")
    a("v_mov_b32 v14, v60\n v_mov_b32 v15, v61")
    a.label("S_ci")
    a(f"""v_mov_b32 v30, 0
    v_mov_b32 v31, 0
    s_mov_b32 s12, 0
    s_waitcnt lgkmcnt(0)
    s_cmp_eq_u32 s14, 0
    s_cbranch_scc1 K2_poll""")
    cstep(a, 62, 63, L64R, L64I, 20, 21, 22, 23)
    a(f"""v_min_u32 v62, -2, v62
    v_min_u32 v63, -2, v63
    s_mov_b64 exec, 0xffffffff
    buffer_store_dwordx2 v[62:63], v3, {W}, s13 offen sc0 sc1
    s_mov_b64 exec, -1""")
    EB = 32
    a.label("K2_poll")
    a("s_mov_b32 s15, s78")
    for c in range(15):
        a(f"""s_cmp_le_u32 s3, {c}
        s_cbranch_scc1 K2_ld
        buffer_load_dwordx2 v[{EB+2*c}:{EB+2*c+1}], v3, {W}, s15 offen sc0 sc1
        s_add_u32 s15, s15, 4608""")
    a.label("K2_ld")
    a("v_mov_b32 v6, 0\n s_waitcnt vmcnt(0)")
    for c in range(15):
        a(f"""s_cmp_le_u32 s3, {c}
        s_cbranch_scc1 K2_ck
        v_max3_u32 v6, v6, v{EB+2*c}, v{EB+2*c+1}""")
    a.label("K2_ck")
    a(f"""v_cmp_eq_u32 vcc, -1, v6
    s_add_u32 s12, s12, 1
    s_cbranch_vccz K2_got
    s_sleep {OPT.get("psleep", 4)}
    s_cmp_lt_u32 s12, 0x40000
    s_cbranch_scc1 K2_poll""")
    a.label("K2_got")
    for c in range(15):
        a(f"s_cmp_le_u32 s3, {c}\n s_cbranch_scc1 K2_h{c}")
        cstep(a, EB + 2 * c, EB + 2 * c + 1, L128R, L128I, EB + 2 * c - 2, EB + 2 * c - 1, EB + 2 * c, EB + 2 * c + 1)
    for c in range(15, 0, -1):
        if c < 15:
            a.label(f"K2_h{c}")
        a(f"v_mov_b32 v30, v{EB+2*c-2}\n v_mov_b32 v31, v{EB+2*c-1}")
        if c > 1:
            a("s_branch K2_h0")
    a.label("K2_h0")
    stamp(a, 3)
    a("s_cmp_eq_u32 s14, 0\n s_cbranch_scc1 S_c0")
    cstep(a, 22, 23, L64R, L64I, 30, 31, 20, 21)
    a("v_mov_b32 v30, v22\n v_mov_b32 v31, v23")
    a.label("S_c0")
    cstep(a, 22, 23, L32R, L32I, 30, 31, 28, 29)
    a(f"""v_cndmask_b32 v28, v30, v22, s[8:9]
    v_cndmask_b32 v30, v31, v23, s[8:9]
    v_mul_u32_u24 v6, {4*PLB}, v2
    v_lshl_add_u32 v6, v1, 4, v6""")
    cstep(a, 29, 31, L16R, L16I, 28, 30, 24, 26)
    g = (28, 30)
    HO = 32
    for s_ in range(16):
        nr, ni = ACC + 2 * s_, ACC + 32 + 2 * s_
        pstep(nr, ni, g[0], g[1], nr, ni)
        o = 20 + 4 * (s_ & 1)
        a(f"""v_pk_mul_f32 {vr(o, 2)}, {vr(CR, 2)}, {vr(nr, 2)} op_sel:[0,0] op_sel_hi:[0,1]
        v_pk_mul_f32 {vr(o+2, 2)}, {vr(CR, 2)}, {vr(ni, 2)} op_sel:[0,0] op_sel_hi:[0,1] neg_lo:[1,0] neg_hi:[1,0]
        {pk(o, CR, 1, ni, o, True)}
        {pk(o+2, CR, 1, nr, o+2, True)}""")
        if s_ & 1:
            k = s_ >> 1
            a(f"""v_cvt_pk_bf16_f32 v{HO+k}, v20, v24
            v_cvt_pk_bf16_f32 v{HO+8+k}, v21, v25
            v_cvt_pk_bf16_f32 v{HO+16+k}, v22, v26
            v_cvt_pk_bf16_f32 v{HO+24+k}, v23, v27""")
        if s_ & 7 == 7:
            for ch in range(2):
                pl = 2 * ch + (s_ >> 3)
                a(f"""s_add_u32 s6, s75, {pl*PLB}
                s_add_u32 s7, s75, {pl*PLB + 576*16}
                buffer_store_dwordx4 {vr(HO+4*pl, 4)}, v6, {W}, s6 offen sc0 sc1
                buffer_store_dwordx4 {vr(HO+16+4*pl, 4)}, v6, {W}, s7 offen sc0 sc1""")
        g = (nr, ni)
    stamp(a, 4)
    a(f"""s_lshl_b32 s74, s79, 7
    s_add_u32 s74, s74, {G.FLG_OFF}
    s_waitcnt vmcnt(0)""")
    arrive(a, 74)
    a.label("G2x")
    a("s_mov_b64 exec, -1")
    a.label("G2")
    XA, WA, FR = 20, 24, 28
    G.srd(a, G.SRDW, G.P_WS, G.WS_END)
    a(f"""s_cmp_ge_u32 s47, 24
    s_cbranch_scc1 G2_end
    s_setprio {OPT.get('prio3', 0)}
    s_and_b32 s6, s2, 7
    s_lshl_b32 s79, s6, 2
    s_and_b32 s7, s47, 3
    s_add_u32 s79, s79, s7
    s_lshr_b32 s4, s47, 2
    s_lshl_b32 s74, s79, 7
    s_add_u32 s74, s74, {G.FLG_OFF}
    s_cmp_lt_u32 s5, 3
    s_cbranch_scc1 G2_c
    s_cmp_lg_u32 s5, 3
    s_cbranch_scc1 G2_l""")
    mega.wait_init(a, "G2_wi")
    poll(a, "G2_p", 74, 18, 32)
    a("s_barrier\n s_endpgm")
    a.label("G2_l")
    G.srd(a, G.SRD2A, G.P_CRE, 576 * 1152)
    G.srd(a, G.SRD2B, G.P_CIM, 576 * 1152)
    a("s_sub_u32 s6, s5, 4")
    G.rows_voff(a, 1, 1152, 8)
    a(f"""s_mul_i32 s69, s4, {96*1152}
    s_lshl_b32 s76, s6, 10
    s_mov_b32 s3, s79""")
    G.srd(a, G.SRDW, G.P_WS, G.WS_END)
    a(f"""s_mov_b64 exec, -1
    v_lshrrev_b32 v8, 3, v0
    v_mul_u32_u24 v8, {PLB}, v8
    v_lshrrev_b32 v9, 2, v0
    v_and_b32 v9, 4, v9
    v_and_b32 v10, 7, v0
    v_xor_b32 v9, v9, v10
    s_lshl_b32 s7, s6, 3
    v_add_u32 v9, s7, v9
    v_lshl_add_u32 v4, v9, 4, v8
    s_mul_i32 s68, s3, {8*PLB}
    s_add_u32 s68, s68, {G.XT_OFF}
    s_waitcnt vmcnt(0)
    s_barrier""")

    def issue_r(st):
        base = (st & 3) * ST2
        kb, im = st >> 1, st & 1
        d = G.SRD2B if im else G.SRD2A
        for j in range(3):
            a(f"""s_add_u32 m0, s76, {base + 8192 + 4096*j}
            s_add_u32 s7, s69, {32*1152*j + 128*kb}
            buffer_load_dwordx4 v1, s[{d}:{d+3}], s7 offen lds""")
        for j in range(2):
            a(f"""s_add_u32 m0, s76, {base + 4096*j}
            s_add_u32 s7, s68, {(576*im + 64*kb + 32*j) * 16}
            buffer_load_dwordx4 v4, {W}, s7 offen sc0 sc1 lds""")
    tail_loader(a, 18, issue_r, end=False)
    G.stamp_store(a, 0, 8)
    a("s_endpgm")
    a.label("G2_c")
    G.lane_parts(a)
    a(f"""s_mul_i32 s46, s4, 96
    s_lshl_b32 s6, s5, 5
    s_add_u32 s46, s46, s6
    v_lshlrev_b32 v3, 3, v2
    s_lshl_b32 s6, s46, 1
    v_add_u32 v3, s6, v3
    s_lshl_b32 s6, s79, 6
    v_add_u32 v4, s6, v1
    v_mul_u32_u24 v4, 1152, v4
    v_add_u32 v4, v4, v3
    v_add_u32 v5, {32*1152}, v4""")
    for i in range(4):
        a(f"global_load_dwordx2 v[{96+2*i}:{97+2*i}], v3, s[{G.P_DSK}:{G.P_DSK+1}] offset:{16*i}")
    for tt in range(2):
        for i in range(4):
            a(f"global_load_dwordx2 v[{104+8*tt+2*i}:{105+8*tt+2*i}], v{4+tt}, s[{G.P_BX}:{G.P_BX+1}] offset:{16*i}")
    G.srd(a, G.SRDO, G.P_OUT, 2048 * 4608)
    a(f"""v_bfe_u32 v6, v0, 4, 1
    v_mul_u32_u24 v6, 320, v6
    v_lshl_add_u32 v6, v2, 10, v6
    v_and_b32 v7, 2, v0
    v_lshl_add_u32 v6, v7, 6, v6
    v_and_b32 v7, 12, v0
    v_lshl_add_u32 v6, v7, 2, v6
    v_and_b32 v7, 1, v0
    v_lshl_add_u32 v{WA}, v7, 3, v6
    v_xor_b32 v{WA+1}, 64, v{WA}
    s_lshl_b32 s7, s5, 12
    s_add_u32 s7, s7, 8192""")
    G.row_addr(a, XA, 1, "s7", 8)
    a(G.out_addr(a, 8192, 2 * ST2))
    a(f"""s_mul_i32 s6, s79, {64*4608}
    s_lshl_b32 s7, s46, 2
    s_add_u32 s6, s6, s7
    s_add_u32 s12, s6, 2304
    s_add_u32 s13, s12, {32*4608}
    s_mov_b32 s14, 0xffff0000
    s_waitcnt vmcnt(0)""")
    for k in range(8):
        a(f"v_lshlrev_b32 v{32+2*k}, 16, v{96+k}\n v_and_b32 v{33+2*k}, s14, v{96+k}")
    for tt in range(2):
        for k in range(8):
            A = ACC + 16 * tt + 2 * k
            a(f"""v_lshlrev_b32 v{A}, 16, v{104+8*tt+k}
            v_and_b32 v{A+1}, s14, v{104+8*tt+k}
            v_mul_f32 v{A}, v{A}, v{32+2*k}
            v_mul_f32 v{A+1}, v{A+1}, v{33+2*k}""")
    a("s_barrier")
    stamp(a, 5)

    def reads_r(ks, b):
        f = FR + 12 * b
        r = [f"ds_read_b128 {vr(f, 4)}, v{XA+ks}"]
        for tt in range(2):
            for e in range(2):
                r.append(f"ds_read_b64_tr_b16 {vr(f+4+4*tt+2*e, 2)}, v{WA+e} offset:{2*ks*1024+512*tt}")
        return r

    def mfmas_r(n, b):
        f = FR + 12 * b
        return [f"{MF} {vr(ACC+16*tt, 16)}, {vr(f, 4)}, {vr(f+4+4*tt, 4)}, {vr(ACC+16*tt, 16)}" for tt in range(2)]
    G.consumer2(a, 4, reads_r, mfmas_r, lambda ks: [XA + ks] + ([WA, WA + 1] if ks == 3 else []), depth=2, bar_ks=1, per_gap=3, nst=18, stage=ST2)
    stamp(a, 6)
    a("s_nop 10")
    G.out_tiles(a, [(ACC + 16 * tt, 12 + tt, 0) for tt in range(2)])
    a.label("G2_end")
    stamp(a, 7)
    G.stamp_store(a, 0, 8)
    a.label("K2_last")
    a("s_endpgm")
```

```python
import sys
import gen as G
import k2gen as K
from gen import OPT, IMG, CH, VG, PLB, SRD1, SRD2A, SRD2B, SRDW, SRDO, srd, stamp
from asmlib import Asm, check, vr

MF = G.MF
W = f"s[{SRDW}:{SRDW+3}]"
SRDD = 80
NAME = "concat_heads__mha_block__ssm_conv_s5__prompt_kernel"
ST2 = K.ST2


def spin(a, tag, load, ok, lanes=1, sleep=2):
    m = (1 << lanes) - 1
    a(f"s_mov_b32 exec_lo, {m & 0xffffffff}\n s_mov_b32 exec_hi, {m >> 32}\n s_mov_b32 s72, 0")
    a.label(tag)
    a(f"""{load}
    s_waitcnt vmcnt(0)
    v_cmp_gt_u32 vcc, {ok}, v15
    s_add_u32 s72, s72, 1
    s_cbranch_vccz {tag}_ok
    s_sleep {sleep}
    s_cmp_lt_u32 s72, 0x100000
    s_cbranch_scc1 {tag}""")
    a.label(tag + "_ok")
    a("s_mov_b64 exec, -1")


def wait_init(a, tag):
    srd(a, SRDD, G.P_DBG, 256)
    a("v_mov_b32 v14, 0")
    spin(a, tag, f"buffer_load_dword v15, v14, s[{SRDD}:{SRDD+3}], 0 offen offset:132 sc1", 16, sleep=8)


def qk_epilogue(a, b, wf, ACC, T0):
    for ft in range(3):
        t = G.QK_TILES[b][3 * wf + ft]
        A = ACC + 16 * ft
        if G.is_regular(t):
            h0, h1 = G.chunk_info(t[0])[1], G.chunk_info(t[1])[1]
            va = 5
            if h1 - h0 != 1:
                va = 6
                a(f"s_mov_b32 s7, {(h1-h0)*IMG}\n v_mad_u32_u24 v6, v2, s7, v3")
            a(f"s_mov_b32 s12, {h0*IMG}\n s_mov_b32 s13, {h0*IMG+4096}")
            for k in range(8):
                a(f"v_cvt_pk_bf16_f32 v{A+k}, v{A+2*k}, v{A+2*k+1}")
                if k == 3:
                    a(f"buffer_store_dwordx4 v[{A}:{A+3}], v{va}, {W}, s12 offen sc1")
            a(f"buffer_store_dwordx4 v[{A+4}:{A+7}], v{va}, {W}, s13 offen sc1")
            continue
        for i in range(4):
            k0, k1 = G.chunk_info(t[2 * i]), G.chunk_info(t[2 * i + 1])
            T = T0 + 2 * i
            a(f"v_cvt_pk_bf16_f32 v{T}, v{A+4*i}, v{A+4*i+1}\n v_cvt_pk_bf16_f32 v{T+1}, v{A+4*i+2}, v{A+4*i+3}")

            def const(k, e):
                if k[0] == "half":
                    return k[1] * IMG + (k[2] >> 1) * 4096 + (k[2] & 1) * 8 + 4 * e
                return (2 * k[1] + e) * IMG
            if k0[0] == k1[0]:
                vb = 3 if k0[0] == "half" else 4
            else:
                vb = 7
                a("v_cndmask_b32 v7, v3, v4, s[8:9]")
            both = k0[0] == k1[0] == "half"
            for e in range(1 if both else 2):
                c0, c1 = const(k0, e), const(k1, e)
                a(f"""s_mov_b32 s7, {abs(c1-c0)}
                s_mov_b32 s{12+e}, {min(c0, c1)}
                v_mad_u32_u24 v{8+e}, v{2 if c1 >= c0 else 13}, s7, v{vb}""")
                if both:
                    a(f"buffer_store_dwordx2 v[{T}:{T+1}], v8, {W}, s12 offen sc1")
                else:
                    a(f"buffer_store_dword v{T+e}, v{8+e}, {W}, s{12+e} offen sc1")


def qkv(a):
    ACC, FR, XA, WA = 32, 96, 84, 88
    WB, WS_ = 32768, 12288
    srd(a, SRD1, G.P_AX, 2048 * 1152)
    srd(a, SRD2A, G.P_WQKV, 576 * 3456)
    a(f"""s_setprio 2
    s_mov_b32 s6, s5
    s_and_b32 s14, s5, 3
    s_lshr_b32 s15, s5, 2""")
    G.rows_voff(a, 10, 1152, 3)
    a(f"""s_mul_i32 s68, s3, {128*1152}
    s_mul_i32 s69, s4, 384
    s_lshl_b32 s76, s5, 10
    s_lshl_b32 s77, s14, 10""")
    uid = [0]

    def ix(xs):
        return [f"""s_add_u32 m0, s76, {(xs & 1) * 16384 + 8192*j}
            s_add_u32 s7, s68, {128*xs + 64*1152*j}
            buffer_load_dwordx4 v10, s[{SRD1}:{SRD1+3}], s7 offen lds""" for j in range(2)]

    def iw(h):
        base = WB + (h & 3) * WS_
        uid[0] += 1
        return [f"""s_add_u32 m0, s76, {base}
            s_add_u32 s70, s69, {32*3456*h}
            buffer_load_dwordx4 v11, s[{SRD2A}:{SRD2A+3}], s70 offen lds""",
                f"""s_cmp_eq_u32 s15, {h & 1}
            s_cbranch_scc0 Q_sk{uid[0]}
            s_add_u32 m0, s77, {base + 8192}
            s_nop 0
            buffer_load_dwordx4 v12, s[{SRD2A}:{SRD2A+3}], s70 offen lds
            Q_sk{uid[0]}:"""]

    def issue(h):
        if h >= 18 or (OPT.get("qx") == 2 and h > 3):
            return []
        chk = [f"buffer_load_dword v15, v14, s[{SRDD}:{SRDD+3}], 0 offen offset:132 sc1"] if h == 13 else []
        return (ix(h >> 1) if h % 2 == 0 else []) + iw(h) + chk
    for x in ix(0):
        a(x)
    for d, sh in ((11, "s76"), (12, "s77")):
        a(f"""s_lshr_b32 s7, {sh}, 4
        v_add_u32 v3, s7, v0
        {"v_add_u32 v3, 512, v3" if d == 12 else ""}
        v_mul_u32_u24 v4, 2731, v3
        v_lshrrev_b32 v4, 16, v4
        v_mul_u32_u24 v5, 24, v4
        v_sub_u32 v5, v3, v5
        v_and_b32 v3, 2, v4
        v_lshlrev_b32 v3, 1, v3
        v_xor_b32 v5, v5, v3
        v_mul_u32_u24 v4, 3456, v4
        v_lshl_add_u32 v{d}, v5, 4, v4""")
    for x in iw(0) + iw(1):
        a(x)
    srd(a, SRDW, G.P_WS, G.WS_END)
    srd(a, SRDD, G.P_DBG, 256)
    a("v_mov_b32 v14, 0")
    G.lane_parts(a)

    def loop(w_is_a):
        def reads(n, b):
            f = FR + 16 * b
            r = [f"ds_read_b128 {vr(f, 4)}, v{XA + (n & 3)}"]
            for ft in range(3):
                for e in range(2):
                    r.append(f"ds_read_b64_tr_b16 {vr(f+4+4*ft+2*e, 2)}, v{WA+ft} offset:{(16*(n & 1)+4*e)*384}")
            return r

        def upd2(n):
            u = [(XA + (n & 3), 16384 if (n >> 2) % 2 == 0 else -16384)] if n < 32 else []
            if n & 1 and n < 35:
                u += [(WA + ft, WS_ if ((n >> 1) + 1) & 3 else -3 * WS_) for ft in range(3)]
            return u

        def mfmas(n, b):
            f = FR + 16 * b
            m = []
            for ft in range(3):
                acc, w, x = vr(ACC + 16 * ft, 16), vr(f + 4 + 4 * ft, 4), vr(f, 4)
                A, B = (w, x) if w_is_a else (x, w)
                m.append(f"{MF} {acc}, {A}, {B}, {acc if n else 0}")
            return m
        G.consumer2(a, 2, reads, mfmas, None, depth=1, bar_ks=1, per_gap=3, nst=18, upd2=upd2, by_step=True,
                    pre_bar=lambda h: f"s_waitcnt vmcnt({0 if h == 17 else (3 if h & 1 else 1)})", post_bar=lambda h: issue(h + 2),
                    marks=(1, 3, 5, 8, 11, 14, 17))

    def xaddr(row):
        a("s_lshl_b32 s7, s14, 12")
        G.row_addr(a, XA, row, "s7", 8)
    a("""s_cmp_ge_u32 s4, 6
    s_cbranch_scc1 Q_v
    s_sub_u32 s46, s4, 3
    s_cmp_lt_u32 s4, 3
    s_cselect_b32 s46, s4, s46
    s_lshl_b32 s46, s46, 1
    s_add_u32 s46, s46, s15""")
    for var in range(6):
        b, wf = divmod(var, 2)
        if var:
            a(f"s_cmp_eq_u32 s46, {var}")
        for ft in range(3):
            t = [x - 48 * b for x in G.QK_TILES[b][3 * wf + ft]]
            for hh in range(2):
                val = sum(t[4 * hh + c] << (8 * c) for c in range(4))
                r = 60 + 2 * ft + hh if False else 92 + 2 * ft + hh
                a(f"s_cselect_b32 s{r}, {val}, s{r}" if var else f"s_mov_b32 s{r}, {val}")
    tr_addr(a, WA)
    xaddr(1)
    stamp(a, 1)
    loop(True)
    stamp(a, 2)
    a(f"""s_lshr_b32 s6, s3, 1
    s_mul_i32 s6, s6, {CH}
    s_cmp_lt_u32 s4, 3
    s_cselect_b32 s7, {G.Q_OFF}, {G.KV_OFF}
    s_add_u32 s6, s6, s7
    s_and_b32 s7, s3, 1
    s_lshl_b32 s13, s7, 9
    s_lshl_b32 s7, s7, 2
    s_add_u32 s7, s7, s14
    s_lshl_b32 s12, s7, 9
    s_add_u32 s12, s12, s6
    s_lshl_b32 s7, s14, 2
    s_add_u32 s13, s13, s7
    s_add_u32 s13, s13, s6
    s_add_u32 s13, s13, 8192
    v_lshl_add_u32 v3, v1, 4, s12
    v_lshl_add_u32 v4, v1, 4, s13
    s_mov_b32 s7, {IMG}
    v_mad_u32_u24 v5, v2, s7, v3
    v_xor_b32 v13, 1, v2""")
    for var in range(6):
        if var < 5:
            a(f"s_cmp_lg_u32 s46, {var}\n s_cbranch_scc1 Q_e{var+1}")
        qk_epilogue(a, *divmod(var, 2), ACC, FR)
        a("s_branch Q_fin")
        if var < 5:
            a.label(f"Q_e{var+1}")
    a.label("Q_v")
    a("s_mul_i32 s46, s15, 3")
    for ft in range(3):
        a(f"""s_add_u32 s7, s46, {ft}
        s_mul_i32 s7, s7, 0x08080808
        s_add_u32 s{92+2*ft}, s7, 0x03020100
        s_add_u32 s{93+2*ft}, s7, 0x07060504""")
    tr_addr(a, WA)
    G.tau(a, 9, 8)
    xaddr(9)
    a(f"""s_sub_u32 s6, s4, 6
    s_mul_i32 s6, s6, 192
    s_lshl_b32 s7, s46, 5
    s_add_u32 s6, s6, s7
    v_add_u32 v3, s6, v1
    s_mov_b32 s7, {IMG}
    v_mul_u32_u24 v8, {2*VG}, v2""")
    for ft in range(3):
        a(f"""v_add_u32 v4, {32*ft}, v3
        v_mul_u32_u24 v5, 3641, v4
        v_lshrrev_b32 v5, 16, v5
        v_mul_u32_u24 v6, 18, v5
        v_sub_u32 v6, v4, v6
        v_mad_u32_u24 v5, v5, s7, v8
        v_lshl_add_u32 v{80+ft}, v6, 4, v5""")
    stamp(a, 1)
    loop(False)
    stamp(a, 2)
    a(f"""s_lshr_b32 s6, s3, 1
    s_mul_i32 s6, s6, {CH}
    s_and_b32 s7, s3, 1
    s_lshl_b32 s7, s7, 2
    s_add_u32 s7, s7, s14
    s_mul_i32 s7, s7, {4*VG}
    s_add_u32 s12, s6, s7
    s_add_u32 s12, s12, {G.KV_OFF + 9216}
    s_nop 3""")
    for ft in range(3):
        A = ACC + 16 * ft
        for k in range(8):
            a(f"v_cvt_pk_bf16_f32 v{A+k}, v{A+2*k}, v{A+2*k+1}")
            if k == 3:
                a(f"buffer_store_dwordx4 v[{A}:{A+3}], v{80+ft}, {W}, s12 offen sc1")
        a(f"buffer_store_dwordx4 v[{A+4}:{A+7}], v{80+ft}, {W}, s12 offen offset:{VG} sc1")
    a.label("Q_fin")
    stamp(a, 3)
    a(f"""s_cmp_lg_u32 s5, 3
    s_cbranch_scc1 Q_w
    v_readfirstlane_b32 s6, v15
    s_nop 0
    s_cmp_ge_u32 s6, 16
    s_cbranch_scc1 Q_ci""")
    wait_init(a, "Q_wi")
    a.label("Q_ci")
    a(f"""s_mul_i32 s6, s4, 43
    s_lshr_b32 s6, s6, 7
    s_mul_i32 s6, s6, 3
    s_sub_u32 s6, s4, s6
    s_lshl_b32 s74, s6, 8
    s_sub_u32 s6, s4, s6
    s_mul_i32 s6, s6, 43
    s_lshr_b32 s6, s6, 7
    s_lshl_b32 s6, s6, 4
    s_add_u32 s6, s6, s3
    s_lshl_b32 s6, s6, 2
    s_add_u32 s74, s74, s6
    s_add_u32 s74, s74, {G.QF_OFF}
    v_mul_u32_u24 v14, 768, v0
    v_mov_b32 v15, 1
    s_waitcnt vmcnt(0)
    s_barrier
    s_mov_b64 exec, 0xff
    buffer_store_dword v15, v14, {W}, s74 offen sc1
    s_branch G2x""")
    a.label("Q_w")
    a("s_waitcnt vmcnt(0)")
    stamp(a, 4)
    a("s_barrier\n s_branch G2")


def tr_addr(a, WA):
    a(f"""v_bfe_u32 v3, v0, 2, 2
    v_lshl_add_u32 v3, v2, 3, v3
    v_mul_u32_u24 v3, 384, v3
    v_add_u32 v3, 32768, v3
    v_and_b32 v4, 8, v0
    v_lshlrev_b32 v4, 3, v4
    v_and_b32 v5, 3, v0
    v_lshlrev_b32 v5, 3, v5""")
    for ft in range(3):
        a(f"""v_mov_b32 v6, s{92+2*ft}
        v_mov_b32 v7, s{93+2*ft}
        v_cndmask_b32 v6, v6, v7, s[10:11]
        v_bfe_u32 v6, v6, v5, 8
        v_lshlrev_b32 v6, 3, v6
        v_xor_b32 v6, v6, v4
        v_add_u32 v{WA+ft}, v3, v6""")


def init(a):
    a.label("I_go")
    a(f"""s_lshl_b32 s6, s3, 3
    s_add_u32 s6, s6, s5
    s_mul_i32 s12, s6, 1152
    s_add_u32 s12, s12, {G.ECH_OFF}
    s_lshr_b32 s7, s6, 2
    s_mul_i32 s7, s7, {IMG}
    s_and_b32 s6, s6, 3
    s_mul_i32 s6, s6, {2*CH}
    s_add_u32 s6, s6, s7
    s_add_u32 s6, s6, {G.KV_OFF + 9216 + 288}
    s_add_u32 s7, s6, {CH}
    v_lshrrev_b32 v1, 1, v0
    v_mul_u32_u24 v1, {VG}, v1
    v_and_b32 v2, 1, v0
    v_lshl_add_u32 v1, v2, 4, v1
    v_subrev_u32 v2, 1, v2
    v_and_b32 v4, 0x3f803f80, v2
    v_mov_b32 v5, v4
    v_mov_b32 v6, v4
    v_mov_b32 v7, v4
    v_lshlrev_b32 v3, 4, v0
    v_mov_b32 v8, -1
    v_mov_b32 v9, -1
    v_mov_b32 v10, -1
    v_mov_b32 v11, -1""")
    srd(a, SRDW, G.P_WS, G.WS_END)
    srd(a, SRDD, G.P_DBG, 256)
    a(f"""buffer_store_dwordx4 v[4:7], v1, {W}, s6 offen sc1
    buffer_store_dwordx4 v[4:7], v1, {W}, s7 offen sc1
    buffer_store_dwordx4 v[8:11], v3, {W}, s12 offen sc1
    s_mov_b64 exec, 0xff
    buffer_store_dwordx4 v[8:11], v3, {W}, s12 offen offset:1024 sc1
    s_cmp_ge_u32 s3, 2
    s_cbranch_scc1 I_nz
    s_mov_b64 exec, -1
    v_mov_b32 v16, 0
    v_mov_b32 v17, 0
    v_mov_b32 v18, 0
    v_mov_b32 v19, 0
    s_lshl_b32 s6, s3, 3
    s_add_u32 s6, s6, s5
    s_lshl_b32 s6, s6, 10
    s_add_u32 s6, s6, {G.FLG_OFF}
    buffer_store_dwordx4 v[16:19], v3, {W}, s6 offen sc1""")
    a.label("I_nz")
    a(f"""s_mov_b64 exec, -1
    s_waitcnt vmcnt(0)
    s_barrier
    s_cmp_lg_u32 s5, 3
    s_cbranch_scc1 G2
    s_mov_b64 exec, 1
    v_mov_b32 v14, 0
    v_mov_b32 v15, 1
    buffer_atomic_add v15, v14, s[{SRDD}:{SRDD+3}], 0 offen offset:132 sc1
    s_branch G2x""")


def build(**opt):
    OPT.update(opt)
    a = Asm()
    a.label(NAME)
    stamp(a, 0)
    a("s_cmp_ge_u32 s2, 512\n s_cbranch_scc1 K2_done")
    G.load_args(a)
    a("""v_lshrrev_b32 v1, 6, v0
    v_and_b32 v0, 63, v0
    s_and_b32 s6, s2, 7
    v_readfirstlane_b32 s5, v1
    s_cmp_ge_u32 s2, 256
    s_cbranch_scc1 A_go
    s_lshr_b32 s47, s2, 3
    s_cmp_ge_u32 s47, 20
    s_cbranch_scc1 K2_ssm
    s_lshr_b32 s3, s6, 1
    s_lshl_b32 s3, s3, 2
    s_and_b32 s4, s47, 3
    s_add_u32 s3, s3, s4
    s_and_b32 s6, s6, 1
    s_mul_i32 s6, s6, 5
    s_lshr_b32 s7, s47, 2
    s_add_u32 s4, s6, s7
    s_mov_b32 s101, s4
    s_cmp_ge_u32 s4, 9
    s_waitcnt lgkmcnt(0)
    s_cbranch_scc1 I_go""")
    qkv(a)
    init(a)
    K.mega = sys.modules[__name__]
    K.attention(a)
    K.ssm(a)
    a.lines = [ln if "atomic" in ln else ln.replace(" sc0 sc1", " sc1") for ln in a.lines]
    errs = check(a.lines, "mega")
    for body in getattr(a, "loops", []):
        errs += check(body + body, "loop")
    ref = open("concat_heads__mha_block__ssm_conv_s5__prompt.s.ref").read()
    head = ref[:ref.index("; Override launch geometry")]
    out = head + """; One launch, 512 co-resident workgroups (two per CU), roles by id (generated by gen/mega.py, a hand-written generator):
;   0..159   Q,K,V projection tiles (16 of them initialise constants / hand-off words instead)
;   160..255 SSM input GEMM + exact chunked scan ; ids with id>>3 < 24 then compute one tile of the SSM read-out GEMM
;   256..511 attention per (head, 256 queries), then one tile of the output projection
; hand-offs: write-through stores -> vmcnt(0) -> arrival counter ; consumers spin, then read with sc1
; @launch grid=(512,1,1) block=(512,1,1) lds=81920
.amdgcn_target "amdgcn-amd-amdhsa--gfx950"
.text
""" + f".globl {NAME}\n.p2align 8\n.type {NAME},@function\n" + a.text() + '.section .rodata,"a"\n.p2align 6\n' + G.desc(NAME, 128)
    return out, sorted(set(errs))


if __name__ == "__main__":
    opts = {}
    path = "concat_heads__mha_block__ssm_conv_s5__prompt.s"
    for arg in sys.argv[1:]:
        if "=" in arg:
            k, v = arg.split("=")
            opts[k] = int(v)
        else:
            path = arg
    text, errs = build(**opts)
    for e in errs:
        print("HAZARD", e)
    open(path, "w").write(text)
    print("wrote", path, len(text), "bytes;", len(errs), "hazards")
```

```python
import math
import struct
import sys
from asmlib import Asm, Ins, check, vr, sr

IMG = 155648
CH = 19456
KV_OFF = 0
Q_OFF = 32 * IMG
XT_OFF = 64 * IMG
PLB = 1152 * 16 + 128
SEGB = 2 * PLB
O_OFF = XT_OFF + 256 * PLB
ECH_OFF = O_OFF + 96 * 32768
FLG_OFF = ECH_OFF + 32 * 4608
QF_OFF = FLG_OFF + 40 * 128
OF_OFF = QF_OFF + 6144
WS_END = OF_OFF + 4096
STAMP_OFF = 32 << 20

VT = 1280
VG = 320
STAGE = 40960
OPT = dict(ring=4, pre=2, prebar=3, stamps=0)


def f2u(x):
    return struct.unpack("<I", struct.pack("<f", x))[0]


LOG2E = 1.4426950408889634
QSCALE = LOG2E / math.sqrt(18.0)

P_AX, P_WQKV, P_WO, P_BX, P_LRE, P_LIM, P_BRE, P_BIM = 16, 18, 20, 22, 24, 26, 28, 30
P_CRE, P_CIM, P_LDT, P_DSK = 32, 34, 36, 38
P_OUT, P_DBG, P_WS = 40, 42, 44
SRD1, SRD2A, SRD2B, SRDW, SRDO = 48, 52, 56, 60, 64


def srd(a, d, p, nbytes):
    a(f"""s_mov_b32 s{d}, s{p}
    s_mov_b32 s{d+1}, s{p+1}
    s_mov_b32 s{d+2}, {nbytes}
    s_mov_b32 s{d+3}, 0x00020000""")


def srd_sel(a, d, p1, p0, n1, n0):
    a(f"""s_cselect_b32 s{d}, s{p1}, s{p0}
    s_cselect_b32 s{d+1}, s{p1+1}, s{p0+1}
    s_mov_b32 s{d+2}, {n0}
    s_cselect_b32 s{d+2}, {n1}, s{d+2}""")
    a(f"s_mov_b32 s{d+3}, 0x00020000")


def load_args(a):
    a("""s_load_dwordx16 s[16:31], s[0:1], 0
    s_load_dwordx8 s[32:39], s[0:1], 64
    s_load_dwordx4 s[40:43], s[0:1], 96
    s_load_dwordx2 s[44:45], s[0:1], 112""")


def stamp(a, idx):
    if OPT["stamps"] == 3 and idx:
        return
    if OPT["stamps"]:
        a(f"{'s_memtime' if OPT['stamps'] == 2 else 's_memrealtime'} s[{84+2*idx}:{85+2*idx}]")


def stampc(a, idx):
    if OPT["stamps"] in (1, 2):
        a(f"s_memtime s[{84+2*idx}:{85+2*idx}]")


def stamp_store(a, kidx, n, tmp=8):
    if not OPT["stamps"]:
        return
    if OPT["stamps"] == 3:
        n = 8
    if OPT.get("dbgmax"):
        stamp_store.uid = getattr(stamp_store, "uid", 0) + 1
        u = stamp_store.uid
        srd(a, 80, P_DBG, 256)
        a(f"""s_waitcnt lgkmcnt(0)
        s_mov_b64 exec, 1
        v_mov_b32 v8, 0
        s_not_b32 s6, s84
        v_mov_b32 v9, s6
        buffer_atomic_umax v9, v8, s[80:83], 0 offen sc1
        v_mov_b32 v10, s84
        buffer_atomic_umax v10, v8, s[80:83], 0 offen offset:4 sc1
        s_cmp_ge_u32 s2, 256
        s_cbranch_scc1 DB_a{u}
        s_cmp_ge_u32 s2, 160
        s_cbranch_scc1 DB_s{u}
        s_cmp_ge_u32 s101, 9
        s_cbranch_scc1 DB_e{u}""")
        def put(pairs):
            for k, (idx, w) in enumerate(pairs):
                a(f"v_mov_b32 v{11+k}, s{84+2*idx}\n buffer_atomic_umax v{11+k}, v8, s[80:83], 0 offen offset:{4*w} sc1")
        put([(1, 2), (2, 3), (3, 4)])
        a(f"s_cmp_eq_u32 s5, 3\n s_cbranch_scc1 DB_e{u}")
        put([(4, 5)])
        a(f"s_cmp_ge_u32 s5, 3\n s_cbranch_scc1 DB_e{u}")
        put([(7, 9)])
        a(f"s_branch DB_e{u}")
        a.label(f"DB_s{u}")
        a(f"s_cmp_ge_u32 s5, 3\n s_cbranch_scc1 DB_e{u}")
        put([(1, 6), (2, 7), (4, 8), (7, 9)])
        a(f"s_branch DB_e{u}")
        a.label(f"DB_a{u}")
        a(f"s_cmp_ge_u32 s5, 3\n s_cbranch_scc1 DB_l{u}")
        put([(5, 10), (2, 11), (3, 12), (1, 15)])
        a(f"s_cmp_ge_u32 s3, 24\n s_cbranch_scc1 DB_e{u}")
        put([(7, 14)])
        a(f"s_branch DB_e{u}")
        a.label(f"DB_l{u}")
        put([(4, 13)])
        a.label(f"DB_e{u}")
        return
    a(f"""s_waitcnt lgkmcnt(0)
    s_mov_b64 exec, 1
    s_lshl_b32 s6, s2, 3
    s_add_u32 s6, s6, s5
    s_lshl_b32 s6, s6, 5
    s_add_u32 s6, s6, {STAMP_OFF + kidx * 65536}
    s_mov_b32 s{SRDW+2}, {STAMP_OFF + 4 * 65536}
    v_mov_b32 v{tmp+8}, 0""")
    for i in range(8):
        a(f"v_mov_b32 v{tmp+i}, s{84+2*i}" if i < n else f"v_mov_b32 v{tmp+i}, 0")
    a(f"""buffer_store_dwordx4 v[{tmp}:{tmp+3}], v{tmp+8}, s[{SRDW}:{SRDW+3}], s6 offen
    buffer_store_dwordx4 v[{tmp+4}:{tmp+7}], v{tmp+8}, s[{SRDW}:{SRDW+3}], s6 offen offset:16""")


def loader(a, alt_last):
    ring, pre = OPT["ring"], OPT["pre"]

    def issue(st):
        if OPT.get("noload") and st > 1:
            return
        base = (st % ring) * STAGE
        for j in range(4):
            a(f"s_add_u32 m0, s76, {base + 4096*j}")
            if st > 0:
                a(f"s_add_u32 s{68+j}, s{68+j}, s74")
            else:
                a("s_nop 0")
            a(f"buffer_load_dwordx4 v1, s[{SRD1}:{SRD1+3}], s{68+j} offen lds")
        alt = alt_last and st == 8
        for g in range(2):
            for u in range(3):
                a(f"s_add_u32 m0, s{77+u}, {base + 12288*g}")
                if u == 0 and st > 0 and not alt:
                    a(f"s_add_u32 s{72+g}, s{72+g}, s75")
                else:
                    a("s_nop 0")
                d = SRD2A if g == 0 else SRD2B
                a(f"buffer_load_dwordx4 v{(5 if alt else 2)+u}, s[{d}:{d+3}], s{(80 if alt else 72)+g} offen lds")

    for st in range(pre):
        issue(st)
    nxt = pre
    for st in range(9):
        a(f"s_waitcnt vmcnt({0 if OPT.get('noload') else 10*(nxt-1-st)})")
        a("s_barrier")
        while nxt < 9 and nxt <= st - 1 + ring and (nxt - st <= pre or nxt <= st + ring - 1 and OPT.get("greedy")):
            issue(nxt)
            nxt += 1


def rows_voff(a, dst, stride, tmp):
    a(f"""v_lshrrev_b32 v{tmp}, 3, v0
    v_lshrrev_b32 v{tmp+1}, 4, v0
    s_and_b32 s7, s6, 1
    s_lshl_b32 s7, s7, 2
    v_add_u32 v{tmp+1}, s7, v{tmp+1}
    v_and_b32 v{tmp+2}, 7, v0
    v_xor_b32 v{tmp+1}, v{tmp+1}, v{tmp+2}
    s_lshl_b32 s7, s6, 3
    v_add_u32 v{tmp}, s7, v{tmp}
    v_mul_u32_u24 v{tmp}, {stride}, v{tmp}
    v_lshl_add_u32 v{dst}, v{tmp+1}, 4, v{tmp}""")


def wrows_parts(a, u, kr, pc, tmp):
    a(f"""v_add_u32 v{tmp}, {64*u}, v0
    v_mul_u32_u24 v{kr}, 2731, v{tmp}
    v_lshrrev_b32 v{kr}, 16, v{kr}
    v_mul_u32_u24 v{pc}, 24, v{kr}
    v_sub_u32 v{pc}, v{tmp}, v{pc}
    v_and_b32 v{tmp}, 2, v{kr}
    v_lshlrev_b32 v{tmp}, 1, v{tmp}
    v_xor_b32 v{pc}, v{pc}, v{tmp}""")


def consumer(a, steps_per_stage, reads, mfmas, addr_regs, prebar, per_gap=2, pf=0, fill=None, fill_from=2, ring=None, stage=STAGE):
    ring = ring or OPT["ring"]
    if OPT.get("nocomp"):
        rd0, mf0 = reads, mfmas
        if OPT["nocomp"] == 1:
            reads = lambda ks, b: []
        mfmas = lambda n, b: mf0(n, b)[:1] if n == 0 else ["s_nop 0", "s_nop 0", "s_nop 0", "s_nop 0"]
    nsteps = 9 * steps_per_stage
    a("s_barrier")
    for x in reads(0, 0):
        a(x)
    for n in range(nsteps):
        ks = n % steps_per_stage
        st = n // steps_per_stage
        m = mfmas(n, n & 1)
        a("s_waitcnt lgkmcnt(0)")
        rd = []
        if n + 1 < nsteps:
            if ks == steps_per_stage - 1:
                pb = min(prebar, len(m) - 1)
                for x in m[:pb]:
                    a(x)
                m = m[pb:]
                a("s_barrier")
                if OPT["stamps"] == 3 and st < 7:
                    a(f"s_memrealtime s[{86+2*st}:{87+2*st}]")
                delta = stage if (st + 1) % ring else -(ring - 1) * stage
                for rg in addr_regs:
                    a(f"v_add_u32 v{rg}, {delta & 0xffffffff}, v{rg}")
                rd = reads((n + 1) % steps_per_stage, (n + 1) & 1)
                k = -(-len(rd) // 2)
                for x in rd[:k]:
                    a(x)
                rd = rd[k:]
            else:
                rd = reads((n + 1) % steps_per_stage, (n + 1) & 1)
        for x in m:
            a(x)
            nf = 0 if len(rd) >= per_gap else (3 if not rd else 1)
            for y in rd[:per_gap]:
                a(y)
            rd = rd[per_gap:]
            while fill and n >= fill_from and nf > 0:
                a(fill.pop(0))
                nf -= 1
        for y in rd:
            a(y)


def consumer2(a, sps, reads, mfmas, upd, depth=1, bar_ks=1, per_gap=2, fill=None, fill_from=2, nst=9, stage=STAGE, ring=None, pre_bar=None, post_bar=None, marks=(), upd2=None, by_step=False):
    ring = ring or OPT["ring"]
    assert OPT["pre"] <= OPT["ring"] - 2 and bar_ks + depth <= sps
    nsteps = nst * sps
    nb = depth + 1
    out = []

    def issue(x):
        a(x)
        if x.startswith("ds_read"):
            out.append(Ins(x).w)
            assert len(out) <= 15

    def rds(n):
        st, ks = divmod(n, sps)
        r = list(reads(n if by_step else ks, n % nb))
        if upd2:
            r += [f"v_add_u32 v{rg}, {d & 0xffffffff}, v{rg}" for rg, d in upd2(n)]
        elif st < nst - 1:
            delta = stage if (st + 1) % ring else -(ring - 1) * stage
            r += [f"v_add_u32 v{rg}, {delta & 0xffffffff}, v{rg}" for rg in upd(ks)]
        return r
    if pre_bar:
        a(pre_bar(0))
    a("s_barrier")
    extra = []
    for x in (post_bar(0) if post_bar else []):
        a(x)
    for n in range(depth):
        for x in rds(n):
            issue(x)
    for n in range(nsteps):
        st, ks = divmod(n, sps)
        rd = rds(n + depth) if n + depth < nsteps else []
        for mi, x in enumerate(mfmas(n, n % nb)):
            need = Ins(x).srcab
            last = max((i for i, w in enumerate(out) if w & need), default=-1)
            if last >= 0:
                a(f"s_waitcnt lgkmcnt({len(out) - 1 - last})")
                del out[:last + 1]
            a(x)
            if mi == 0 and ks == bar_ks and st < nst - 1:
                if pre_bar:
                    a(pre_bar(st + 1))
                a("s_barrier")
                if post_bar:
                    extra += post_bar(st + 1)
                if OPT["stamps"] == 3 and st + 1 in marks:
                    k_ = marks.index(st + 1)
                    a(f"s_memrealtime s[{86+2*k_}:{87+2*k_}]")
            nf = 0 if len(rd) > per_gap else (3 if not rd else 2)
            for y in rd[:per_gap]:
                issue(y)
            rd = rd[per_gap:]
            if extra:
                a(extra.pop(0))
            while fill and n >= fill_from and nf > 0:
                a(fill.pop(0))
                nf -= 1
        for y in rd:
            issue(y)


MF = "v_mfma_f32_32x32x16_bf16"
ACC = 160
FR = 100
XA, WA = 90, 94


def lane_parts(a):
    a("""v_and_b32 v1, 31, v0
    v_lshrrev_b32 v2, 5, v0
    s_mov_b32 s8, 0
    s_mov_b32 s9, -1
    s_mov_b32 s10, 0xffff0000
    s_mov_b32 s11, 0xffff0000""")


def tau(a, dst, tmp):
    a(f"""v_and_b32 v{dst}, 3, v1
    v_lshrrev_b32 v{tmp}, 3, v1
    v_lshl_add_u32 v{dst}, v{tmp}, 2, v{dst}
    v_and_b32 v{tmp}, 4, v1
    v_lshl_add_u32 v{dst}, v{tmp}, 2, v{dst}""")


def row_addr(a, dst, rowreg, sbase, tmp):
    a(f"""v_bfe_u32 v{tmp}, v{rowreg}, 1, 3
    v_xor_b32 v{tmp}, v{tmp}, v2
    v_lshlrev_b32 v{tmp}, 4, v{tmp}
    v_lshl_add_u32 v{tmp}, v{rowreg}, 7, v{tmp}
    v_add_u32 v{dst}, {sbase}, v{tmp}
    v_xor_b32 v{dst+1}, 32, v{dst}
    v_xor_b32 v{dst+2}, 64, v{dst}
    v_xor_b32 v{dst+3}, 96, v{dst}""")


def tr_addr(a, ntile, stride, base, WA=WA):
    a(f"""v_bfe_u32 v3, v0, 2, 2
    v_lshl_add_u32 v3, v2, 3, v3
    v_mul_u32_u24 v3, {stride}, v3
    v_add_u32 v3, {base}, v3
    v_and_b32 v4, 8, v0
    v_lshlrev_b32 v4, 3, v4
    v_and_b32 v5, 3, v0
    v_lshlrev_b32 v5, 3, v5""")
    for ft in range(ntile):
        a(f"""v_mov_b32 v6, s{68+2*ft}
        v_mov_b32 v7, s{69+2*ft}
        v_cndmask_b32 v6, v6, v7, s[10:11]
        v_bfe_u32 v6, v6, v5, 8
        v_lshlrev_b32 v6, 3, v6
        v_xor_b32 v6, v6, v4
        v_add_u32 v{WA+ft}, v3, v6""")


def nat_tables(a, ntile, first):
    for ft in range(ntile):
        a(f"""s_add_u32 s7, s{first}, {ft}
        s_mul_i32 s7, s7, 0x08080808
        s_add_u32 s{68+2*ft}, s7, 0x03020100
        s_add_u32 s{69+2*ft}, s7, 0x07060504""")


def wx_loop(a, w_is_a, pf=0):
    def reads(ks, b):
        f = FR + 20 * b
        r = []
        for e in range(2):
            r.append(f"ds_read_b64_tr_b16 v[{f+8+2*e}:{f+9+2*e}], v{WA} offset:{(16*ks+4*e)*384}")
        r.append(f"ds_read_b128 v[{f}:{f+3}], v{XA+ks}")
        r.append(f"ds_read_b128 v[{f+4}:{f+7}], v{XA+ks} offset:4096")
        for ft in (1, 2):
            for e in range(2):
                r.append(f"ds_read_b64_tr_b16 v[{f+8+4*ft+2*e}:{f+9+4*ft+2*e}], v{WA+ft} offset:{(16*ks+4*e)*384}")
        return r

    def mfmas(n, b):
        f = FR + 20 * b
        m = []
        for ft in range(3):
            for tt in range(2):
                acc = vr(ACC + (ft * 2 + tt) * 16, 16)
                w, x = vr(f + 8 + 4 * ft, 4), vr(f + 4 * tt, 4)
                A, B = (w, x) if w_is_a else (x, w)
                m.append(f"{MF} {acc}, {A}, {B}, {acc if n else 0}")
        return m
    if OPT.get("c2", 1):
        consumer2(a, 4, reads, mfmas, lambda ks: [XA + ks] + ([WA, WA + 1, WA + 2] if ks == 3 else []), bar_ks=OPT.get("bar_ks", 1))
    else:
        consumer(a, 4, reads, mfmas, [XA, XA + 1, XA + 2, XA + 3, WA, WA + 1, WA + 2], OPT["prebar"], pf=pf)


def chunk_info(q):
    j, pos = divmod(q, 9)
    if pos < 4:
        return ("half", 2 * j, pos)
    if pos == 4:
        return ("mid", j, 0)
    return ("half", 2 * j + 1, pos - 5)


def reg_tile(qa, qb):
    return [(qb if c & 1 else qa) + (c >> 1) for c in range(8)]


def spec_tile(slots):
    t = [0] * 8
    for i, (x, y) in enumerate(slots):
        t[2 * i], t[2 * i + 1] = x, y
    return t


QK_TILES = [
    [reg_tile(5, 9), reg_tile(14, 18), reg_tile(0, 41), reg_tile(23, 27), reg_tile(32, 36),
     spec_tile([(45, 46), (47, 4), (13, 22), (31, 40)])],
    [reg_tile(50, 54), reg_tile(59, 63), reg_tile(68, 72), reg_tile(77, 81), reg_tile(86, 90),
     spec_tile([(48, 95), (49, 58), (67, 76), (85, 94)])],
    [reg_tile(104, 108), reg_tile(113, 117), reg_tile(99, 140), reg_tile(122, 126), reg_tile(131, 135),
     spec_tile([(97, 98), (96, 103), (112, 121), (130, 139)])],
]
for _b in range(3):
    assert sorted(sum(QK_TILES[_b], [])) == list(range(48 * _b, 48 * _b + 48))


def is_regular(t):
    for hh in range(2):
        inf = [chunk_info(t[2 * i + hh]) for i in range(4)]
        if not all(x[0] == "half" and x[1] == inf[0][1] and x[2] == i for i, x in enumerate(inf)):
            return False
    return True


def qk_epilogue(a, b, wf):
    W = f"s[{SRDW}:{SRDW+3}]"
    tmp = FR
    for ft in range(3):
        t = QK_TILES[b][3 * wf + ft]
        A = [ACC + (ft * 2 + tt) * 16 for tt in range(2)]
        if is_regular(t):
            h0, h1 = chunk_info(t[0])[1], chunk_info(t[1])[1]
            if h1 - h0 == 1:
                va = 5
            else:
                va = 6
                a(f"s_mov_b32 s7, {(h1-h0)*IMG}\n v_mad_i32_i24 v6, v2, s7, v3")
            a(f"s_mov_b32 s12, {h0*IMG}\n s_mov_b32 s13, {h0*IMG+4096}")
            for tt in range(2):
                for k in range(8):
                    a(f"v_cvt_pk_bf16_f32 v{A[tt]+k}, v{A[tt]+2*k}, v{A[tt]+2*k+1}")
                    if k == 3:
                        a(f"buffer_store_dwordx4 v[{A[tt]}:{A[tt]+3}], v{va}, {W}, s12 offen offset:{512*tt}")
                a(f"buffer_store_dwordx4 v[{A[tt]+4}:{A[tt]+7}], v{va}, {W}, s13 offen offset:{512*tt}")
        else:
            for i in range(4):
                k0, k1 = chunk_info(t[2 * i]), chunk_info(t[2 * i + 1])
                T = tmp
                tmp += 4
                d00 = f"v{A[0]+4*i}, v{A[0]+4*i+1}"
                d01 = f"v{A[0]+4*i+2}, v{A[0]+4*i+3}"
                d10 = f"v{A[1]+4*i}, v{A[1]+4*i+1}"
                d11 = f"v{A[1]+4*i+2}, v{A[1]+4*i+3}"
                a(f"v_cvt_pk_bf16_f32 v{T}, {d00}\n v_cvt_pk_bf16_f32 v{T+3}, {d11}")
                if k0[0] == k1[0] == "half":
                    a(f"v_cvt_pk_bf16_f32 v{T+1}, {d01}\n v_cvt_pk_bf16_f32 v{T+2}, {d10}")
                elif k0[0] == k1[0] == "mid":
                    a(f"v_cvt_pk_bf16_f32 v{T+1}, {d10}\n v_cvt_pk_bf16_f32 v{T+2}, {d01}")
                else:
                    assert k0[0] == "half" and k1[0] == "mid"
                    a(f"""v_cvt_pk_bf16_f32 v8, {d01}
                    v_cvt_pk_bf16_f32 v9, {d10}
                    v_cndmask_b32 v{T+1}, v8, v9, s[8:9]
                    v_cndmask_b32 v{T+2}, v9, v8, s[8:9]""")

                def const(k, s):
                    if k[0] == "half":
                        return k[1] * IMG + (k[2] >> 1) * 4096 + (k[2] & 1) * 8 + 512 * s
                    return (2 * k[1] + s) * IMG
                if k0[0] == k1[0]:
                    vb = 3 if k0[0] == "half" else 4
                else:
                    vb = 7
                    a("v_cndmask_b32 v7, v3, v4, s[8:9]")
                for s in range(2):
                    c0, c1 = const(k0, s), const(k1, s)
                    a(f"""s_mov_b32 s7, {abs(c1-c0)}
                    s_mov_b32 s{12+s}, {min(c0, c1)}
                    v_mad_u32_u24 v{10+s}, v{2 if c1 >= c0 else 12}, s7, v{vb}
                    buffer_store_dwordx2 v[{T+2*s}:{T+2*s+1}], v{10+s}, {W}, s{12+s} offen""")


def cmul(a, dr, di, xr, xi, yr, yi):
    a(f"""v_mul_f32 v{dr}, v{xr}, v{yr}
    v_mul_f32 v{di}, v{xr}, v{yi}
    v_fma_f32 v{dr}, -v{xi}, v{yi}, v{dr}
    v_fma_f32 v{di}, v{xi}, v{yr}, v{di}""")


def k1(a):
    a.label("k1_kernel")
    stamp(a, 0)
    a("s_cmp_ge_u32 s2, 256\n s_cbranch_scc1 K1_done")
    load_args(a)
    a("""v_lshrrev_b32 v1, 6, v0
    v_and_b32 v0, 63, v0
    s_and_b32 s6, s2, 7
    v_readfirstlane_b32 s5, v1
    s_lshr_b32 s7, s2, 3
    s_cmp_lt_u32 s7, 20
    s_cbranch_scc1 K1_gemm""")
    a.label("K1_pf")
    if OPT.get("pfc", 1):
        a(f"""s_getpc_b64 s[12:13]""")
        a.label("K1_pc")
        a(f"""s_sub_u32 s14, s7, 20
        s_lshl_b32 s14, s14, 3
        s_add_u32 s14, s14, s5
        s_lshl_b32 s14, s14, 10
        s_sub_u32 s12, s12, K1_pc-k1_kernel
        s_subb_u32 s13, s13, 0
        v_and_b32 v10, 7, v0
        v_lshl_add_u32 v10, v10, 7, s14
        v_min_u32 v10, K2_last-k1_kernel, v10
        v_mov_b32 v11, s13
        v_add_co_u32 v10, vcc, s12, v10
        s_nop 1
        v_addc_co_u32 v11, vcc, 0, v11, vcc
        global_load_dword v12, v[10:11], off""")
    if OPT.get("pf1", 1):
        a(f"""s_sub_u32 s7, s7, 20
        s_lshl_b32 s7, s7, 3
        s_add_u32 s7, s7, s5
        s_mul_i32 s3, s7, 2731
        s_lshr_b32 s3, s3, 16
        s_mul_i32 s4, s3, 24
        s_sub_u32 s4, s7, s4
        s_lshr_b32 s12, s6, 1
        s_lshl_b32 s12, s12, 3
        s_add_u32 s12, s12, s4
        s_mul_i32 s12, s12, {64*1152}
        s_lshl_b32 s13, s3, 7
        s_add_u32 s12, s12, s13
        s_and_b32 s13, s6, 1
        s_mul_i32 s13, s13, 15
        s_add_u32 s13, s13, s4
        s_sub_u32 s13, s13, 8
        s_lshl_b32 s14, s13, 7
        s_mul_i32 s15, s3, {64*3456}
        s_add_u32 s14, s14, s15
        s_cmp_ge_u32 s13, 27
        s_cselect_b32 s14, {576*3456}, s14
        s_cmp_eq_u32 s4, 23
        s_cselect_b32 s14, {576*3456}, s14
        s_cmp_lt_u32 s4, 8
        s_cselect_b32 s12, s12, s14
        s_movk_i32 s13, 512
        s_cselect_b32 s13, s13, {4*64*3456}
        s_movk_i32 s14, 1152
        s_cselect_b32 s14, s14, 3456
        v_mul_u32_u24 v1, s14, v0
        s_waitcnt lgkmcnt(0)""")
        srd_sel(a, SRD1, P_AX, P_WQKV, 2048 * 1152, 576 * 3456)
        a(f"""buffer_load_dword v2, v1, s[{SRD1}:{SRD1+3}], s12 offen
        s_add_u32 s12, s12, s13
        buffer_load_dword v3, v1, s[{SRD1}:{SRD1+3}], s12 offen
        s_add_u32 s12, s12, s13
        s_cmp_lg_u32 s3, 0
        s_cselect_b32 s12, {2048*3456}, s12
        buffer_load_dword v4, v1, s[{SRD1}:{SRD1+3}], s12 offen""")
        if OPT.get("pf2", 1):
            a(f"""v_lshlrev_b32 v1, 7, v0
            s_mul_i32 s12, s6, {256*1152}
            s_mul_i32 s13, s7, {24*128}
            s_add_u32 s12, s12, s13
            s_mul_i32 s13, s7, {54*128}
            s_waitcnt vmcnt(1)""")
            srd(a, SRD2A, P_BX, 2048 * 1152)
            srd(a, SRD2B, P_BRE, 576 * 1152)
            srd(a, SRD1, P_BIM, 576 * 1152)
            a(f"""s_mov_b32 exec_hi, 0x3fffff
            buffer_load_dword v5, v1, s[{SRD2B}:{SRD2B+3}], s13 offen
            buffer_load_dword v6, v1, s[{SRD1}:{SRD1+3}], s13 offen
            s_mov_b64 exec, 0xffffff
            buffer_load_dword v7, v1, s[{SRD2A}:{SRD2A+3}], s12 offen""")
    a("s_endpgm")
    a.label("K1_gemm")
    a("""s_lshr_b32 s3, s6, 1
    s_lshl_b32 s3, s3, 2
    s_and_b32 s4, s7, 3
    s_add_u32 s3, s3, s4
    s_and_b32 s6, s6, 1
    s_mul_i32 s6, s6, 5
    s_lshr_b32 s7, s7, 2
    s_add_u32 s4, s6, s7
    s_cmp_ge_u32 s4, 9
    s_cbranch_scc1 K1_const
    s_cmp_lt_u32 s5, 4
    s_waitcnt lgkmcnt(0)
    s_cbranch_scc1 K1_cons""")
    a("s_sub_u32 s6, s5, 4")
    rows_voff(a, 1, 1152, 8)
    a(f"""s_mul_i32 s68, s3, {128*1152}
    s_add_u32 s69, s68, {32*1152}
    s_add_u32 s70, s68, {64*1152}
    s_add_u32 s71, s68, {96*1152}
    s_mov_b32 s74, 128
    s_lshl_b32 s76, s6, 10""")
    srd(a, SRD1, P_AX, 2048 * 1152)
    srd(a, SRD2A, P_WQKV, 576 * 3456)
    srd(a, SRD2B, P_WQKV, 576 * 3456)
    for u in range(3):
        wrows_parts(a, u, 8, 9, 10)
        a(f"v_mul_u32_u24 v8, 3456, v8\n v_lshl_add_u32 v{2+u}, v9, 4, v8")
    a(f"""s_mul_i32 s72, s6, {8*3456}
    s_mul_i32 s7, s4, 384
    s_add_u32 s72, s72, s7
    s_add_u32 s73, s72, {32*3456}
    s_mov_b32 s75, {64*3456}
    s_mul_i32 s77, s6, 3072
    s_add_u32 s77, s77, 16384
    s_add_u32 s78, s77, 1024
    s_add_u32 s79, s77, 2048""")
    loader(a, False)
    a("s_endpgm")
    a.label("K1_cons")
    srd(a, SRDW, P_WS, WS_END)
    lane_parts(a)
    a("""s_and_b32 s14, s5, 1
    s_lshr_b32 s15, s5, 1
    s_cmp_ge_u32 s4, 6
    s_cbranch_scc1 K1_v""")
    a("""s_sub_u32 s46, s4, 3
    s_cmp_lt_u32 s4, 3
    s_cselect_b32 s46, s4, s46
    s_lshl_b32 s46, s46, 1
    s_add_u32 s46, s46, s15""")
    for var in range(6):
        b, wf = divmod(var, 2)
        if var:
            a(f"s_cmp_eq_u32 s46, {var}")
        for ft in range(3):
            t = [x - 48 * b for x in QK_TILES[b][3 * wf + ft]]
            for hh in range(2):
                val = sum(t[4 * hh + c] << (8 * c) for c in range(4))
                if var:
                    a(f"s_cselect_b32 s{68+2*ft+hh}, {val}, s{68+2*ft+hh}")
                else:
                    a(f"s_mov_b32 s{68+2*ft+hh}, {val}")
    tr_addr(a, 3, 384, 16384)
    a("s_lshl_b32 s7, s14, 13")
    row_addr(a, XA, 1, "s7", 8)
    stamp(a, 1)
    wx_loop(a, True)
    stamp(a, 2)
    a(f"""s_lshr_b32 s6, s3, 1
    s_mul_i32 s6, s6, {CH}
    s_cmp_lt_u32 s4, 3
    s_cselect_b32 s7, {Q_OFF}, {KV_OFF}
    s_add_u32 s6, s6, s7
    s_and_b32 s7, s3, 1
    s_lshl_b32 s7, s7, 1
    s_add_u32 s7, s7, s14
    s_lshl_b32 s12, s7, 10
    s_add_u32 s12, s12, s6
    s_and_b32 s13, s3, 1
    s_lshl_b32 s13, s13, 9
    s_lshl_b32 s7, s14, 3
    s_add_u32 s13, s13, s7
    s_add_u32 s13, s13, s6
    s_add_u32 s13, s13, 8192
    v_lshl_add_u32 v3, v1, 4, s12
    v_lshl_add_u32 v4, v1, 4, s13
    s_mov_b32 s7, {IMG}
    v_mad_i32_i24 v5, v2, s7, v3
    v_xor_b32 v12, 1, v2""")
    for var in range(6):
        if var < 5:
            a(f"s_cmp_lg_u32 s46, {var}\n s_cbranch_scc1 K1_qe{var+1}")
        qk_epilogue(a, *divmod(var, 2))
        stamp(a, 3)
        stamp_store(a, 0, 4)
        a("s_endpgm")
        if var < 5:
            a.label(f"K1_qe{var+1}")
    a.label("K1_v")
    a("s_mul_i32 s46, s15, 3")
    nat_tables(a, 3, 46)
    tr_addr(a, 3, 384, 16384)
    tau(a, 9, 8)
    a("s_lshl_b32 s7, s14, 13")
    row_addr(a, XA, 9, "s7", 8)
    a("""s_sub_u32 s6, s4, 6
    s_mul_i32 s6, s6, 192
    s_lshl_b32 s7, s46, 5
    s_add_u32 s6, s6, s7
    v_add_u32 v3, s6, v1""")
    a(f"s_mov_b32 s7, {IMG}\n v_mul_u32_u24 v8, {2*VG}, v2")
    for ft in range(3):
        a(f"""v_add_u32 v4, {32*ft}, v3
        v_mul_u32_u24 v5, 3641, v4
        v_lshrrev_b32 v5, 16, v5
        v_mul_u32_u24 v6, 18, v5
        v_sub_u32 v6, v4, v6
        v_mad_u32_u24 v5, v5, s7, v8
        v_lshl_add_u32 v{80+ft}, v6, 4, v5""")
    stamp(a, 1)
    wx_loop(a, False)
    stamp(a, 2)
    a(f"""s_lshr_b32 s6, s3, 1
    s_mul_i32 s6, s6, {CH}
    s_and_b32 s7, s3, 1
    s_lshl_b32 s7, s7, 1
    s_add_u32 s7, s7, s14
    s_mul_i32 s7, s7, {8*VG}
    s_add_u32 s12, s6, s7
    s_add_u32 s12, s12, {KV_OFF + 9216}
    s_nop 3""")
    W = f"s[{SRDW}:{SRDW+3}]"
    for ft in range(3):
        for tt in range(2):
            A = ACC + (ft * 2 + tt) * 16
            for k in range(8):
                a(f"v_cvt_pk_bf16_f32 v{A+k}, v{A+2*k}, v{A+2*k+1}")
                if k == 3:
                    a(f"buffer_store_dwordx4 v[{A}:{A+3}], v{80+ft}, {W}, s12 offen offset:{4*tt*VG}")
            a(f"buffer_store_dwordx4 v[{A+4}:{A+7}], v{80+ft}, {W}, s12 offen offset:{(4*tt+1)*VG}")
    stamp(a, 3)
    stamp_store(a, 0, 4)
    a.label("K1_done")
    a("s_endpgm")
    a.label("K1_const")
    a(f"""s_lshl_b32 s6, s3, 3
    s_add_u32 s6, s6, s5
    s_lshr_b32 s7, s6, 2
    s_mul_i32 s7, s7, {IMG}
    s_and_b32 s6, s6, 3
    s_mul_i32 s6, s6, {2*CH}
    s_add_u32 s6, s6, s7
    s_add_u32 s6, s6, {KV_OFF + 9216 + 288}
    s_add_u32 s7, s6, {CH}
    v_lshrrev_b32 v1, 1, v0
    v_mul_u32_u24 v1, {VG}, v1
    v_and_b32 v2, 1, v0
    v_lshl_add_u32 v1, v2, 4, v1
    v_subrev_u32 v2, 1, v2
    v_and_b32 v4, 0x3f803f80, v2
    v_mov_b32 v5, v4
    v_mov_b32 v6, v4
    v_mov_b32 v7, v4
    s_waitcnt lgkmcnt(0)""")
    srd(a, SRDW, P_WS, WS_END)
    a(f"""buffer_store_dwordx4 v[4:7], v1, {W}, s6 offen
    buffer_store_dwordx4 v[4:7], v1, {W}, s7 offen
    s_lshl_b32 s6, s3, 3
    s_add_u32 s6, s6, s5
    s_mul_i32 s6, s6, 1152
    s_add_u32 s6, s6, {ECH_OFF}
    v_lshlrev_b32 v1, 4, v0
    v_mov_b32 v8, -1
    v_mov_b32 v9, -1
    v_mov_b32 v10, -1
    v_mov_b32 v11, -1
    buffer_store_dwordx4 v[8:11], v1, {W}, s6 offen
    s_mov_b64 exec, 0xff
    buffer_store_dwordx4 v[8:11], v1, {W}, s6 offen offset:1024
    s_or_b32 s6, s3, s5
    s_cmp_lg_u32 s6, 0
    s_cbranch_scc1 K1_done
    s_mov_b32 exec_lo, -1
    s_mov_b32 exec_hi, 0xff
    v_lshlrev_b32 v1, 7, v0
    v_mov_b32 v2, 0
    s_mov_b32 s6, {FLG_OFF}
    buffer_store_dword v2, v1, {W}, s6 offen""")
    a.label("K1_last")
    a("s_endpgm")


def k2(a):
    import k2gen
    k2gen.k2(a)


def out_tiles(a, tiles, key='ow'):
    O = f"s[{SRDO}:{SRDO+3}]"
    for k, (A, so, col) in enumerate(tiles):
        for i in range(4):
            a(f"ds_write_b128 v{6+i}, v[{A+4*i}:{A+4*i+3}] offset:{4096*k}")
        if k:
            a("s_waitcnt lgkmcnt(4)")
        for j in range(4):
            a(f"ds_read_b128 v[{A+4*j}:{A+4*j+3}], v4 offset:{4096*k + 1024*j}")
        if k:
            pA, pso, pcol = tiles[k - 1]
            for j in range(4):
                a(f"buffer_store_dwordx4 v[{pA+4*j}:{pA+4*j+3}], v{10+j}, {O}, s{pso} offen offset:{pcol}{('', ' sc1', ' nt', ' sc0 sc1 nt')[OPT.get(key, 1)]}")
    pA, pso, pcol = tiles[-1]
    a("s_waitcnt lgkmcnt(0)")
    for j in range(4):
        a(f"buffer_store_dwordx4 v[{pA+4*j}:{pA+4*j+3}], v{10+j}, {O}, s{pso} offen offset:{pcol}{('', ' sc1', ' nt', ' sc0 sc1 nt')[OPT.get(key, 1)]}")


def out_addr(a, per_wave, base=STAGE):
    return f"""s_mul_i32 s7, s5, {per_wave}
    s_add_u32 s7, s7, {base}
    v_and_b32 v3, 7, v1
    v_xor_b32 v3, v3, v2
    v_lshlrev_b32 v3, 4, v3
    v_lshl_add_u32 v3, v1, 7, v3
    v_add_u32 v6, s7, v3
    v_xor_b32 v7, 32, v6
    v_xor_b32 v8, 64, v6
    v_xor_b32 v9, 96, v6
    v_lshrrev_b32 v3, 3, v0
    v_and_b32 v5, 7, v0
    v_xor_b32 v4, v3, v5
    v_lshlrev_b32 v4, 4, v4
    v_lshl_add_u32 v4, v3, 7, v4
    v_add_u32 v4, s7, v4
    v_mul_u32_u24 v10, 4608, v3
    v_lshl_add_u32 v10, v5, 4, v10
    v_add_u32 v11, {8*4608}, v10
    v_add_u32 v12, {16*4608}, v10
    v_add_u32 v13, {24*4608}, v10"""


def k3(a):
    a.label("k3_kernel")
    stamp(a, 0)
    a("s_cmp_ge_u32 s2, 240\n s_cbranch_scc1 K3_done")
    load_args(a)
    a("""v_lshrrev_b32 v1, 6, v0
    v_and_b32 v0, 63, v0
    s_and_b32 s6, s2, 7
    v_readfirstlane_b32 s5, v1
    s_lshr_b32 s47, s2, 3
    s_lshl_b32 s3, s6, 1
    s_and_b32 s7, s47, 1
    s_add_u32 s3, s3, s7
    s_lshr_b32 s4, s47, 1
    s_sub_u32 s12, s47, 6
    s_lshl_b32 s13, s6, 2
    s_and_b32 s7, s12, 3
    s_add_u32 s13, s13, s7
    s_lshr_b32 s12, s12, 2
    s_cmp_lt_u32 s47, 6
    s_cselect_b32 s3, s3, s13
    s_cselect_b32 s4, s4, s12
    s_cmp_lt_u32 s5, 4
    s_waitcnt lgkmcnt(0)
    s_cbranch_scc1 K3_cons""")
    a("s_sub_u32 s6, s5, 4")
    srd(a, SRD1, P_WS, WS_END)
    a(f"""s_lshl_b32 s76, s6, 10
    s_cmp_ge_u32 s47, 6""")
    srd_sel(a, SRD2A, P_CRE, P_WO, 576 * 1152, 576 * 1152)
    srd_sel(a, SRD2B, P_CIM, P_WO, 576 * 1152, 576 * 1152)
    a("s_cbranch_scc1 K3_ld_r")
    rows_voff(a, 1, 1152, 8)
    a(f"""s_mul_i32 s68, s3, {128*1152}
    s_add_u32 s68, s68, {O_OFF}
    s_add_u32 s69, s68, {32*1152}
    s_add_u32 s70, s68, {64*1152}
    s_add_u32 s71, s68, {96*1152}
    s_mov_b32 s74, 128""")
    for u in range(3):
        wrows_parts(a, u, 8, 9, 10)
        a(f"""v_lshlrev_b32 v9, 4, v9
        v_mul_u32_u24 v10, 1152, v8
        v_add_u32 v{2+u}, v9, v10
        v_lshrrev_b32 v10, 1, v8
        v_mul_u32_u24 v10, 18, v10
        v_and_b32 v8, 1, v8
        v_add3_u32 v8, v8, v10, 16
        v_mul_u32_u24 v10, 1152, v8
        v_add_u32 v{5+u}, v9, v10""")
    a(f"""s_lshl_b32 s72, s6, 3
    s_and_b32 s7, s6, 2
    s_add_u32 s72, s72, s7
    s_mul_i32 s72, s72, 1152
    s_mul_i32 s7, s4, 384
    s_add_u32 s72, s72, s7
    s_add_u32 s73, s72, {36*1152}
    s_mul_i32 s80, s6, {72*1152}
    s_add_u32 s80, s80, s7
    s_add_u32 s81, s80, {4*72*1152}
    s_mov_b32 s75, {72*1152}
    s_mul_i32 s77, s6, 3072
    s_add_u32 s77, s77, 16384
    s_add_u32 s78, s77, 1024
    s_add_u32 s79, s77, 2048
    s_branch K3_ld_go""")
    a.label("K3_ld_r")
    rows_voff(a, 2, 1152, 8)
    a(f"""v_add_u32 v3, {32*1152}, v2
    v_add_u32 v4, {64*1152}, v2
    v_mov_b32 v5, v2
    v_mov_b32 v6, v3
    v_mov_b32 v7, v4
    v_lshrrev_b32 v8, 3, v0
    v_mul_u32_u24 v8, {PLB}, v8
    v_lshrrev_b32 v9, 2, v0
    v_and_b32 v9, 4, v9
    v_and_b32 v10, 7, v0
    v_xor_b32 v9, v9, v10
    s_lshl_b32 s7, s6, 3
    v_add_u32 v9, s7, v9
    v_lshl_add_u32 v1, v9, 4, v8
    s_mul_i32 s68, s3, {4*SEGB}
    s_add_u32 s68, s68, {XT_OFF}
    s_add_u32 s69, s68, {32*16}
    s_add_u32 s70, s68, {576*16}
    s_add_u32 s71, s68, {608*16}
    s_mov_b32 s74, {64*16}
    s_mul_i32 s72, s4, {96*1152}
    s_mov_b32 s73, s72
    s_add_u32 s80, s72, {8*128}
    s_mov_b32 s81, s80
    s_mov_b32 s75, 128
    s_add_u32 s77, s76, 16384
    s_add_u32 s78, s77, 4096
    s_add_u32 s79, s77, 8192""")
    a.label("K3_ld_go")
    loader(a, True)
    a("s_endpgm")
    a.label("K3_cons")
    srd(a, SRDO, P_OUT, 2048 * 4608)
    if OPT["stamps"]:
        srd(a, SRDW, P_WS, WS_END)
    lane_parts(a)
    O = f"s[{SRDO}:{SRDO+3}]"
    a("""s_cmp_ge_u32 s47, 6
    s_cbranch_scc1 K3_r
    s_and_b32 s14, s5, 1
    s_lshr_b32 s15, s5, 1
    s_mul_i32 s46, s15, 3""")
    nat_tables(a, 3, 46)
    tr_addr(a, 3, 384, 16384)
    a("s_lshl_b32 s7, s14, 13")
    row_addr(a, XA, 1, "s7", 8)
    a(out_addr(a, 24576))
    a(f"""s_lshl_b32 s6, s3, 1
    s_add_u32 s6, s6, s14
    s_mul_i32 s6, s6, {64*4608}
    s_mul_i32 s7, s4, 768
    s_add_u32 s6, s6, s7
    s_mul_i32 s7, s15, 384
    s_add_u32 s12, s6, s7
    s_add_u32 s13, s12, {32*4608}""")
    stamp(a, 1)
    wx_loop(a, True)
    stamp(a, 2)
    a("s_nop 7")
    out_tiles(a, [(ACC + (ft * 2 + tt) * 16, 12 + tt, 128 * ft) for ft in range(3) for tt in range(2)])
    stamp(a, 3)
    stamp_store(a, 2, 4)
    a("s_endpgm")
    a.label("K3_r")
    a("""s_cmp_eq_u32 s5, 3
    s_cbranch_scc0 K3_r2""")
    for _ in range(9):
        a("s_barrier")
    a("s_endpgm")
    a.label("K3_r2")
    a(f"""s_mul_i32 s6, s4, 96
    s_lshl_b32 s7, s5, 5
    s_add_u32 s46, s6, s7
    v_lshlrev_b32 v3, 3, v2
    s_lshl_b32 s6, s46, 1
    v_add_u32 v3, s6, v3
    s_lshl_b32 s6, s3, 6
    v_add_u32 v4, s6, v1
    v_mul_u32_u24 v4, 1152, v4
    v_add_u32 v4, v4, v3
    v_add_u32 v5, {32*1152}, v4""")
    for i in range(4):
        a(f"global_load_dwordx2 v[{16+2*i}:{17+2*i}], v3, s[{P_DSK}:{P_DSK+1}] offset:{16*i}")
    for tt in range(2):
        for i in range(4):
            a(f"global_load_dwordx2 v[{24+8*tt+2*i}:{25+8*tt+2*i}], v{4+tt}, s[{P_BX}:{P_BX+1}] offset:{16*i}")
    a(f"""v_bfe_u32 v6, v0, 4, 1
    v_mul_u32_u24 v6, 320, v6
    v_lshl_add_u32 v6, v2, 10, v6
    v_and_b32 v7, 2, v0
    v_lshl_add_u32 v6, v7, 6, v6
    v_and_b32 v7, 12, v0
    v_lshl_add_u32 v6, v7, 2, v6
    v_and_b32 v7, 1, v0
    v_lshl_add_u32 v{WA}, v7, 3, v6
    v_xor_b32 v{WA+1}, 64, v{WA}""")
    a("s_lshl_b32 s7, s5, 12\n s_add_u32 s7, s7, 16384")
    row_addr(a, XA, 1, "s7", 8)
    a(out_addr(a, 8192))
    a(f"""s_mul_i32 s6, s3, {64*4608}
    s_lshl_b32 s7, s46, 2
    s_add_u32 s6, s6, s7
    s_add_u32 s12, s6, 2304
    s_add_u32 s13, s12, {32*4608}
    s_mov_b32 s14, 0xffff0000""")
    fill = ["s_waitcnt vmcnt(0)"]
    SK = 192
    for k in range(8):
        fill += [f"v_lshlrev_b32 v{40+2*k}, 16, v{16+k}", f"v_and_b32 v{41+2*k}, s14, v{16+k}"]
    for tt in range(2):
        for k in range(8):
            A = SK + 16 * tt + 2 * k
            fill += [f"v_lshlrev_b32 v{A}, 16, v{24+8*tt+k}", f"v_and_b32 v{A+1}, s14, v{24+8*tt+k}",
                     f"v_mul_f32 v{A}, v{A}, v{40+2*k}", f"v_mul_f32 v{A+1}, v{A+1}, v{41+2*k}"]

    def reads(ks, b):
        f = FR + 12 * b
        im, k4 = divmod(ks, 4)
        r = [f"ds_read_b128 v[{f}:{f+3}], v{XA+k4} offset:{12288*im}"]
        for tt in range(2):
            for e in range(2):
                r.append(f"ds_read_b64_tr_b16 v[{f+4+4*tt+2*e}:{f+5+4*tt+2*e}], v{WA+e} offset:{(8*im+2*k4)*1024+512*tt}")
        return r

    def mfmas(n, b):
        f = FR + 12 * b
        return [f"{MF} {vr(ACC+16*tt, 16)}, {vr(f, 4)}, {vr(f+4+4*tt, 4)}, {vr(ACC+16*tt, 16) if n else 0}" for tt in range(2)]
    stamp(a, 1)
    consumer2(a, 8, reads, mfmas, lambda ks: ([XA + ks - 4] if ks >= 4 else []) + ([WA, WA + 1] if ks == 7 else []),
              depth=2, bar_ks=OPT.get("bar_ks8", 3), per_gap=3, fill=fill, fill_from=10)
    assert not fill
    stamp(a, 2)
    a("s_nop 10")
    for i in range(32):
        a(f"v_add_f32 v{ACC+i}, v{ACC+i}, v{SK+i}")
    out_tiles(a, [(ACC + 16 * tt, 12 + tt, 0) for tt in range(2)])
    stamp(a, 3)
    stamp_store(a, 2, 4)
    a.label("K3_done")
    a.label("K3_last")
    a("s_endpgm")


HEADER = """; concat_heads / MHA block / S5 SSM: two launches
;       workgroups 256..447: SSM input GEMM + exact chunked scan (chunk end states handed over through d_ws, marked empty by k1)
; @launch kernel=k1_kernel grid=(256,1,1) block=(512,1,1) lds=163840
; @launch kernel=k2_kernel grid=(448,1,1) block=(512,1,1) lds=81920
.amdgcn_target "amdgcn-amd-amdhsa--gfx950"
.text
"""


def desc(name, vg):
    return f""".amdhsa_kernel {name}
  .amdhsa_next_free_vgpr {vg}
  .amdhsa_next_free_sgpr 102
  .amdhsa_accum_offset {vg}
  .amdhsa_group_segment_fixed_size 0
  .amdhsa_kernarg_size 120
  .amdhsa_user_sgpr_count 2
  .amdhsa_user_sgpr_kernarg_segment_ptr 1
  .amdhsa_system_sgpr_workgroup_id_x 1
.end_amdhsa_kernel
"""


def build(**opt):
    OPT.update(opt)
    out = HEADER
    errs = []
    for name, fn in (("k1_kernel", k1), ("k2_kernel", k2)):
        a = Asm()
        fn(a)
        wt = {0: "", 1: " sc0 sc1", 2: " nt", 3: " sc1"}[OPT.get("wt" + name[1], 0)]
        a.lines = [ln + wt if ln.startswith("buffer_store") else ln for ln in a.lines]
        if OPT.get("sc", 1) == 1:
            a.lines = [ln.replace(" sc0 sc1", " sc1") for ln in a.lines]
        errs += check(a.lines, name)
        for body in getattr(a, "loops", []):
            errs += check(body + body, name + " loop")
        out += f".globl {name}\n.p2align 8\n.type {name},@function\n" + a.text()
    out += '.section .rodata,"a"\n'
    for name, vg in (("k1_kernel", 256), ("k2_kernel", 128)):
        out += ".p2align 6\n" + desc(name, vg)
    return out, sorted(set(errs))


if __name__ == "__main__":
    opts = {}
    path = "concat_heads__mha_block__ssm_conv_s5__prompt.s"
    for arg in sys.argv[1:]:
        if "=" in arg:
            k, v = arg.split("=")
            opts[k] = int(v)
        else:
            path = arg
    text, errs = build(**opts)
    for e in errs:
        print("HAZARD", e)
    open(path, "w").write(text)
    print("wrote", path, len(text), "bytes;", len(errs), "hazards")
```

```python
import gen as G
from asmlib import Asm, vr

MF = "v_mfma_f32_32x32x16_bf16"
MF8 = "v_mfma_f32_32x32x8bf16_1k"
OA, PP, KF, KX, VF, QB, AK, AX, AV, NK, NX, NV = 48, 64, 72, 80, 88, 104, 112, 113, 114, 115, 116, 117


def S(q, j):
    return 16 + 16 * (j & 1)


def k2(a):
    a.label("k2_kernel")
    G.stamp(a, 0)
    a("""s_cmp_ge_u32 s2, 448
    s_cbranch_scc1 K2_done""")
    G.load_args(a)
    a("""v_lshrrev_b32 v1, 6, v0
    v_and_b32 v0, 63, v0
    s_cmp_ge_u32 s2, 256
    v_readfirstlane_b32 s5, v1
    s_cbranch_scc1 K2_ssm""")
    attention(a)
    ssm(a)


ST2 = 20480


def tail_loader(a, nst, issue, per=5, pre=2, end=True):
    for st in range(pre):
        issue(st)
    for st in range(nst):
        a(f"s_waitcnt vmcnt({per * min(pre - 1, nst - 1 - st)})\n s_barrier")
        if st + pre < nst:
            issue(st + pre)
    if end:
        a("s_endpgm")


def poll(a, tag, off, target, sleep=2):
    W = f"s[{G.SRDW}:{G.SRDW+3}]"
    a(f"s_mov_b64 exec, 1\n v_mov_b32 v14, 0\n s_mov_b32 s72, 0")
    a.label(tag)
    a(f"""buffer_load_dword v15, v14, {W}, s{off} offen sc0 sc1
    s_waitcnt vmcnt(0)
    v_readfirstlane_b32 s73, v15
    s_add_u32 s72, s72, 1
    s_cmp_ge_u32 s73, {target}
    s_cbranch_scc1 {tag}_ok
    s_sleep {sleep}
    s_cmp_lt_u32 s72, 0x100000
    s_cbranch_scc1 {tag}""")
    a.label(tag + "_ok")
    a("s_mov_b64 exec, -1")


def arrive(a, off):
    W = f"s[{G.SRDW}:{G.SRDW+3}]"
    a(f"""s_mov_b64 exec, 1
    v_mov_b32 v14, 0
    v_mov_b32 v15, 1
    buffer_atomic_add v15, v14, {W}, s{off} offen sc1
    s_mov_b64 exec, -1""")


def pf_item(a, tag, add, dummy):
    SRD1, SRD2A = G.SRD1, G.SRD2A
    a(f"""s_add_u32 s13, s12, {add}
    s_mul_i32 s14, s13, 2850
    s_lshr_b32 s14, s14, 16
    s_mul_i32 s15, s14, 23
    s_sub_u32 s15, s13, s15
    s_cmp_ge_u32 s13, 207
    s_cbranch_scc1 P_n{tag}
    s_cmp_lt_u32 s15, 8
    s_cbranch_scc0 P_w{tag}
    s_lshr_b32 s68, s6, 1
    s_lshl_b32 s68, s68, 3
    s_add_u32 s15, s15, s68
    s_mul_i32 s15, s15, {64*1152}
    s_lshl_b32 s14, s14, 7
    s_add_u32 s15, s15, s14
    buffer_load_dword v{dummy}, v1, s[{SRD1}:{SRD1+3}], s15 offen
    s_branch P_n{tag}""")
    a.label(f"P_w{tag}")
    a(f"""s_and_b32 s69, s6, 1
    s_mul_i32 s69, s69, 15
    s_add_u32 s15, s15, s69
    s_sub_u32 s15, s15, 8
    s_mul_i32 s14, s14, {64*3456}
    s_cmp_lt_u32 s15, 27
    s_cselect_b32 s14, s14, {0x7f000000}
    s_lshl_b32 s15, s15, 7
    s_add_u32 s15, s15, s14
    buffer_load_dword v{dummy}, v2, s[{SRD2A}:{SRD2A+3}], s15 offen""")
    a.label(f"P_n{tag}")


def pf_setup(a, ireg, first=20):
    a(f"""s_sub_u32 s12, s{ireg}, {first}
    s_lshl_b32 s12, s12, 3
    s_add_u32 s12, s12, s5
    v_mul_u32_u24 v1, 1152, v0
    v_mul_u32_u24 v2, 3456, v0
    s_waitcnt lgkmcnt(0)""")
    G.srd(a, G.SRD1, G.P_AX, 2048 * 1152)
    G.srd(a, G.SRD2A, G.P_WQKV, 576 * 3456)


def warm_mall(a):
    D = G.SRD2B
    a(f"""s_lshl_b32 s12, s5, 8
    s_add_u32 s12, s12, s2
    s_sub_u32 s12, s12, 256
    v_lshlrev_b32 v3, 7, v0
    s_mov_b32 s{D+3}, 0x00020000
    s_waitcnt lgkmcnt(0)
    s_mov_b64 s[{D}:{D+1}], s[{G.P_AX}:{G.P_AX+1}]
    s_mov_b32 s{D+2}, {2048*1152}
    s_mov_b32 s13, 0""")
    for first, p, n in ((576, G.P_WQKV, 576 * 3456), (1062, G.P_BX, 2048 * 1152), (1638, G.P_BRE, 576 * 1152), (1800, G.P_BIM, 576 * 1152)):
        a(f"""s_cmp_ge_u32 s12, {first}
        s_cselect_b32 s{D}, s{p}, s{D}
        s_cselect_b32 s{D+1}, s{p+1}, s{D+1}
        s_cselect_b32 s{D+2}, {n}, s{D+2}
        s_cselect_b32 s13, {first}, s13""")
    a(f"""s_sub_u32 s12, s12, s13
    s_lshl_b32 s12, s12, 12
    s_mov_b64 exec, 0xffffffff
    buffer_load_dword v118, v3, s[{D}:{D+3}], s12 offen
    s_mov_b64 exec, -1""")


def prefetch_att(a):
    SRD1 = G.SRD1
    a("""s_bfe_u32 s7, s2, 0x50003
    s_cmp_lt_u32 s7, 20
    s_cbranch_scc1 P_x""")
    pf_setup(a, 7)
    if G.OPT.get("pf1", 1):
        pf_item(a, "a", 96 + G.OPT.get("pfs", 0), 118)
        if G.OPT.get("pfs", 0) < 15:
            pf_item(a, "b", 192 + G.OPT.get("pfs", 0), 118)
    if G.OPT.get("pfc", 1):
        a("s_getpc_b64 s[14:15]")
        a.label("K1_pc")
        a(f"""s_lshl_b32 s13, s12, 10
        s_sub_u32 s14, s14, K1_pc-{mega.NAME}
        s_subb_u32 s15, s15, 0
        v_and_b32 v10, 7, v0
        v_lshl_add_u32 v10, v10, 7, s13
        v_min_u32 v10, K2_last-{mega.NAME}, v10
        v_mov_b32 v11, s15
        v_add_co_u32 v10, vcc, s14, v10
        s_nop 1
        v_addc_co_u32 v11, vcc, 0, v11, vcc
        global_load_dword v118, v[10:11], off""")
    a(f"""s_lshr_b32 s68, s6, 1
    s_mul_i32 s68, s68, {512*1152}
    s_and_b32 s71, s6, 1
    s_mul_i32 s71, s71, {288*1152}
    v_min_u32 v2, 31, v0
    v_mul_u32_u24 v2, 1152, v2""")
    for k in range(2 if G.OPT.get("pf2", 1) else 0):
        a(f"""s_add_u32 s13, s12, {96*k}
        s_mul_i32 s14, s13, 3641
        s_lshr_b32 s14, s14, 16
        s_mul_i32 s15, s14, 18
        s_sub_u32 s15, s13, s15
        s_lshl_b32 s14, s14, 7
        s_cmp_ge_u32 s13, 162
        s_cbranch_scc1 P_x
        s_cmp_lt_u32 s15, 13
        s_cselect_b32 s{SRD1}, s{G.P_BRE}, s{G.P_BIM}
        s_cselect_b32 s{SRD1+1}, s{G.P_BRE+1}, s{G.P_BIM+1}
        s_cselect_b32 s69, 8, 13
        s_mov_b32 s{SRD1+2}, {576*1152}
        s_mov_b32 s70, s71
        s_cmp_lt_u32 s15, 8
        s_cselect_b32 s{SRD1}, s{G.P_BX}, s{SRD1}
        s_cselect_b32 s{SRD1+1}, s{G.P_BX+1}, s{SRD1+1}
        s_cselect_b32 s{SRD1+2}, {2048*1152}, s{SRD1+2}
        s_cselect_b32 s69, 0, s69
        s_cselect_b32 s70, s68, s70
        s_cmp_eq_u32 s15, 12
        s_cselect_b64 vcc, -1, 0
        s_cmp_eq_u32 s15, 17
        s_cselect_b64 vcc, -1, vcc
        s_sub_u32 s15, s15, s69
        s_mul_i32 s15, s15, {64*1152}
        s_add_u32 s15, s15, s14
        s_add_u32 s15, s15, s70
        v_cndmask_b32 v3, v1, v2, vcc
        buffer_load_dword v118, v3, s[{SRD1}:{SRD1+3}], s15 offen""")
    a.label("P_x")


def attention(a):
    OPT, IMG, CH, VG = G.OPT, G.IMG, G.CH, G.VG
    stamp, stampc = G.stamp, G.stampc
    W = f"s[{G.SRDW}:{G.SRDW+3}]"
    a.label("A_go")
    if OPT.get("wm", 0):
        warm_mall(a)
    prefetch_att(a)
    a(f"""s_and_b32 s3, s2, 7
    s_lshl_b32 s3, s3, 2
    s_bfe_u32 s6, s2, 0x20003
    s_add_u32 s3, s3, s6
    s_bfe_u32 s4, s2, 0x30005
    s_mul_i32 s75, s3, {IMG}
    s_lshl_b32 s13, s5, 10
    s_add_u32 s78, s5, 16
    s_min_u32 s78, s78, 18
    s_lshl_b32 s78, s78, 10
    s_mov_b32 s12, s75
    s_mov_b32 s76, 0
    v_lshlrev_b32 v3, 4, v0""")
    G.lane_parts(a)
    a(f"""s_mul_i32 s14, s4, {CH}
    s_add_u32 s14, s14, s75
    s_add_u32 s14, s14, {G.Q_OFF}
    v_lshlrev_b32 v4, 4, v1
    v_lshl_add_u32 v5, v2, 12, v4
    s_lshl_b32 s6, s5, 9
    v_add_u32 v5, s6, v5
    s_lshr_b32 s6, s5, 2
    s_lshl_b32 s6, s6, 9
    s_and_b32 s7, s5, 3
    s_lshl_b32 s7, s7, 2
    s_add_u32 s6, s6, s7
    s_add_u32 s6, s6, 8192
    v_add_u32 v4, s6, v4
    v_add_u32 v6, s13, v3
    v_add_u32 v7, s78, v3
    s_waitcnt lgkmcnt(0)""")
    G.srd(a, G.SRDW, G.P_WS, G.WS_END)

    def dma(c, k):
        sl, g = (c & 3) * CH, c * CH
        if k < 2:
            return f"""s_add_u32 m0, s13, {sl + 8192*k}
            s_add_u32 s7, s75, {g + 8192*k}
            buffer_load_dwordx4 v6, {W}, s7 offen sc1 lds"""
        return f"""s_add_u32 m0, s78, {sl}
        s_add_u32 s7, s75, {g}
        buffer_load_dwordx4 v7, {W}, s7 offen sc1 lds"""

    a(f"""v_and_b32 v11, 19, v1
    v_and_b32 v12, 4, v1
    v_lshl_add_u32 v11, v12, 1, v11
    v_and_b32 v12, 8, v1
    v_lshrrev_b32 v12, 1, v12
    v_add_u32 v11, v11, v12
    v_lshlrev_b32 v{AX}, 4, v11
    v_lshl_add_u32 v{AK}, v2, 12, v{AX}
    v_add_u32 v{AX}, 8192, v{AX}""")
    a(f"""v_min_u32 v12, 19, v1
    v_cmp_gt_u32 vcc, 16, v1
    v_cmp_eq_u32 s[70:71], 28, v1
    v_mul_u32_u24 v{AV}, {VG}, v2
    v_cndmask_b32 v12, v12, v11, vcc
    s_nop 0
    v_cndmask_b32 v12, v12, 18, s[70:71]
    v_lshl_add_u32 v{AV}, v12, 4, v{AV}
    v_add_u32 v{AV}, 9216, v{AV}
    v_add_u32 v{NK}, {3*CH}, v{AK}
    v_add_u32 v{NX}, {3*CH}, v{AX}
    v_add_u32 v{NV}, {3*CH}, v{AV}
    s_mov_b32 s70, {G.f2u(G.QSCALE)}""")
    for i in range(16):
        a(f"v_mov_b32 v{OA+i}, 0")
    a(f"""s_bfe_u32 s7, s2, 0x50003
    s_lshl_b32 s7, s7, 3
    s_add_u32 s7, s7, s5
    s_cmp_ge_u32 s7, 81
    s_cselect_b32 s48, s{G.P_CIM}, s{G.P_CRE}
    s_cselect_b32 s49, s{G.P_CIM+1}, s{G.P_CRE+1}
    s_cselect_b32 s69, 81, 0
    s_cmp_ge_u32 s7, 162
    s_cselect_b32 s48, s{G.P_WO}, s48
    s_cselect_b32 s49, s{G.P_WO+1}, s49
    s_cselect_b32 s69, 162, s69
    s_sub_u32 s7, s7, s69
    s_lshl_b32 s79, s7, 13
    s_mov_b32 s50, {576*1152}
    s_mov_b32 s51, 0x00020000
    v_lshlrev_b32 v119, 7, v0""")
    a(f"""s_mov_b32 s73, 0xffff0000
    s_cmp_lg_u32 s5, 0
    s_cbranch_scc1 A_w""")
    a(f"s_sleep {OPT.get('asleep0', 127)}")
    mega.wait_init(a, "A_wi")
    a(f"""s_and_b32 s74, s2, 7
    s_mul_i32 s74, s74, 768
    s_add_u32 s74, s74, {G.QF_OFF}
    s_cmp_gt_u32 s3, 10
    s_addc_u32 s6, 0, 0
    s_cmp_gt_u32 s3, 21
    s_addc_u32 s6, s6, 0
    s_lshl_b32 s6, s6, 8
    s_cmp_ge_u32 s3, 10
    s_addc_u32 s7, 0, 0
    s_cmp_ge_u32 s3, 21
    s_addc_u32 s7, s7, 0
    s_lshl_b32 s7, s7, 8
    s_add_u32 s71, s74, s7
    s_add_u32 s74, s74, s6
    v_lshlrev_b32 v14, 2, v0""")
    mega.spin(a, "A_wq", f"buffer_load_dword v15, v14, {W}, s74 offen sc1", 1, lanes=48, sleep=OPT.get("asleep", 4))
    a("s_cmp_eq_u32 s71, s74\n s_cbranch_scc1 A_w")
    mega.spin(a, "A_wr", f"buffer_load_dword v15, v14, {W}, s71 offen sc1", 1, lanes=48, sleep=1)
    a.label("A_w")
    a(f"""s_waitcnt vmcnt(0)
    s_barrier
    s_setprio {OPT.get("prioa", 1)}""")
    stamp(a, 5 if OPT["stamps"] == 4 else 1)
    a(f"""buffer_load_dwordx4 v[{QB}:{QB+3}], v5, {W}, s14 offen sc1
    buffer_load_dword v{QB+4}, v4, {W}, s14 offen sc1""")
    for c in range(4):
        for k in range(3):
            a(dma(c, k))
    a("s_waitcnt vmcnt(12)")
    for q in (QB, QB + 1, QB + 2, QB + 3, QB + 4):
        a(f"""v_lshlrev_b32 v12, 16, v{q}
        v_and_b32 v13, s73, v{q}
        v_mul_f32 v12, s70, v12
        v_mul_f32 v13, s70, v13
        v_cvt_pk_bf16_f32 v{q}, v12, v13""")
    for q in range(1):
        x = QB + 8 * q + 4
        a(f"""v_cndmask_b32 v{x}, v{x}, 0, s[8:9]
        v_mov_b32 v{x+1}, 0
        v_mov_b32 v{x+2}, 0
        v_mov_b32 v{x+3}, v{x}""")
    a("s_waitcnt vmcnt(6)\n s_barrier")
    stamp(a, 2)
    stampc(a, 5)

    def ad(lo, hi, c, off):
        sl = c & 3
        return (f"v{hi} offset:{off}" if sl == 3 else f"v{lo} offset:{sl * CH + off}")

    def rdK(j):
        return f"ds_read_b128 {vr(KF + 4*(j & 1), 4)}, {ad(AK, NK, j >> 3, (j & 7) * 512)}"

    def rdX(u):
        return f"ds_read_b128 {vr(KX + 4*(u & 1), 4)}, {ad(AX, NX, u >> 1, (u & 1) * 512)}"

    def rdV(j, u):
        return f"ds_read_b128 {vr(VF + 8*(j & 1) + 4*u, 4)}, {ad(AV, NV, j >> 3, (4 * (j & 7) + 2 * u) * VG)}"

    def mA(q, j):
        return f"{MF} {vr(S(q, j), 16)}, {vr(KF + 4*(j & 1), 4)}, {vr(QB + 8*q, 4)}, 0"

    def mB(q, j):
        kx = KX + 4 * ((j >> 2) & 1) + 2 * ((j >> 1) & 1)
        return f"{MF8} {vr(S(q, j), 16)}, {vr(kx, 2)}, {vr(QB + 8*q + 4 + 2*(j & 1), 2)}, {vr(S(q, j), 16)}"

    def mP(q, j, u):
        o = vr(OA + 16 * q, 16)
        return f"{MF} {o}, {vr(VF + 8*(j & 1) + 4*u, 4)}, {vr(PP + 8*q + 4*u, 4)}, {o}"

    a(f"""{rdK(0)}
    {rdX(0)}
    {rdK(1)}
    {rdV(0, 0)}
    {rdV(0, 1)}
    s_waitcnt lgkmcnt(3)
    {mA(0, 0)}
    {mB(0, 0)}
    s_waitcnt lgkmcnt(0)
    s_nop 8""")
    a(".p2align 3")
    pat = "A k v0 e e e e P1 v1 x e e e e B d e e c c c c e e P0 e e e e w n c c c c"
    for jj in range(64):
        c8, j8 = divmod(jj, 8)
        last = jj == 63
        s, P = S(0, jj), PP
        ne = nc = 0
        for tok in pat.split():
            if tok == "e":
                a(f"v_exp_f32 v{s+ne}, v{s+ne}")
                ne += 1
            elif tok == "c":
                a(f"v_cvt_pk_bf16_f32 v{P+nc}, v{s+2*nc}, v{s+2*nc+1}")
                nc += 1
            elif tok == "A" and not last:
                a(mA(0, jj + 1))
            elif tok == "B" and not last:
                a(mB(0, jj + 1))
            elif tok == "P1" and jj:
                a(mP(0, jj - 1, 1))
            elif tok == "P0":
                a(mP(0, jj, 0))
            elif tok == "k" and jj + 2 < 64:
                a(rdK(jj + 2))
            elif tok == "v0" and not last:
                a(rdV(jj + 1, 0))
            elif tok == "v1" and not last:
                a(rdV(jj + 1, 1))
            elif tok == "x" and jj % 4 == 0 and jj < 60:
                a(rdX(jj // 4 + 1))
            elif tok == "d" and jj == OPT.get("wpf", 3):
                a("buffer_load_dword v118, v119, s[48:51], s79 offen")
            elif tok == "d" and j8 < 3 and 1 <= c8 <= 4:
                a(dma(c8 + 3, j8))
            elif tok == "w" and not last:
                if j8 == 7 and c8 <= 5:
                    a(f"s_waitcnt vmcnt({3 if c8 <= 4 else 0}) lgkmcnt(0)")
                else:
                    a("s_waitcnt lgkmcnt(0)")
            elif tok == "n" and not last:
                a("s_barrier" if j8 == 7 and c8 <= 5 else "s_nop 0")
    a(f"s_nop 1\n{mP(0, 63, 1)}")
    a.loops = getattr(a, "loops", [])
    stamp(a, 3)
    stampc(a, 6)
    a(f"""s_lshl_b32 s6, s4, 8
    s_lshl_b32 s7, s5, 5
    s_add_u32 s6, s6, s7
    v_add_u32 v4, s6, v1
    v_lshlrev_b32 v4, 4, v4
    v_lshl_add_u32 v5, v2, 15, v4
    s_mul_i32 s12, s3, {3*32768}
    s_add_u32 s12, s12, {G.O_OFF}
    s_add_u32 s13, s12, {2*32768}
    v_mov_b32 v9, 0
    v_mov_b32 v10, 0
    v_mov_b32 v11, 0
    s_mov_b32 s14, {G.f2u(2.0**-60)}
    s_mov_b32 s15, {G.f2u(2.0**60)}
    s_movk_i32 s46, 0x207""")
    a(f"""v_cndmask_b32 v6, v{OA+10}, v{OA+12}, s[8:9]
    v_add_f32 v7, |v{OA}|, |v{OA+1}|""")
    for i in range(2, 10):
        a(f"v_add_f32 v7, v7, |v{OA+i}|")
    a(f"""v_cmp_nle_f32 vcc, s14, v6
    v_cmp_lt_f32 s[68:69], s15, v6
    v_cmp_class_f32 s[70:71], v7, s46
    s_or_b64 vcc, vcc, s[68:69]
    s_or_b64 vcc, vcc, s[70:71]
    {"s_branch K2_slow" if OPT.get("slow") else "s_cbranch_vccnz K2_slow"}""")
    a.label("K2_fin")
    a("v_rcp_f32 v6, v6\n s_nop 0")
    for i in range(10):
        a(f"v_mul_f32 v{OA+i}, v6, v{OA+i}")
    for k in range(5):
        a(f"v_cvt_pk_bf16_f32 v{16+k if k < 4 else 8}, v{OA+2*k}, v{OA+2*k+1}")
    a(f"""buffer_store_dwordx4 v[16:19], v5, {W}, s12 offen sc0 sc1
    s_mov_b64 exec, 0xffffffff
    buffer_store_dwordx4 v[8:11], v4, {W}, s13 offen sc0 sc1
    s_mov_b64 exec, -1
    s_lshl_b32 s74, s4, 7
    s_add_u32 s74, s74, {G.FLG_OFF + 32*128}
    s_mul_i32 s14, s3, 43
    s_lshr_b32 s14, s14, 8
    s_mul_i32 s15, s14, 6
    s_sub_u32 s15, s3, s15
    s_lshl_b32 s6, s4, 2
    s_add_u32 s14, s14, s6""")
    stamp(a, 4)
    ACC, FR, XA, WA = 64, 28, 20, 24
    a("""s_cmp_lt_u32 s5, 4
    s_cbranch_scc1 K2_pc
    s_sub_u32 s6, s5, 4""")
    SP, RP = 13312, 6
    G.srd(a, G.SRD2A, G.P_WO, 576 * 1152)
    a(f"""s_nop 0
    v_lshlrev_b32 v1, 4, v0
    s_lshl_b32 s7, s6, 6""")
    for u in range(2):
        a(f"""v_add_u32 v12, s7, v0
        v_add_u32 v12, {256*u}, v12
        v_min_u32 v12, 431, v12
        v_mul_u32_u24 v13, 5462, v12
        v_lshrrev_b32 v13, 16, v13
        v_mul_u32_u24 v13, {1152 - 192}, v13
        v_lshl_add_u32 v{2+u}, v12, 4, v13""")
    a(f"""s_lshl_b32 s68, s14, 10
    s_lshl_b32 s7, s6, 15
    s_add_u32 s68, s68, s7
    s_add_u32 s68, s68, {G.O_OFF}
    s_mul_i32 s69, s15, 192
    s_lshl_b32 s76, s6, 10
    s_cmp_lt_u32 s6, 2
    s_mov_b32 s70, {0x7f000000}
    s_cselect_b32 s70, {4*32768}, s70
    s_cselect_b32 s71, 1, 0
    s_cmp_lt_u32 s6, 3
    s_cselect_b32 s77, 1, 0
    s_waitcnt vmcnt(0)
    {"s_memrealtime s[86:87]" if OPT["stamps"] == 4 else ""}
    s_barrier
    {"s_memrealtime s[88:89]" if OPT["stamps"] == 4 else ""}
    s_cmp_ge_u32 s3, 24
    s_cbranch_scc1 K2_done""")
    a(f"""s_add_u32 s70, s70, s68
    s_cmp_eq_u32 s77, 0
    s_cselect_b32 s78, {0x7f000000}, 0
    v_add_u32 v3, s78, v3""")

    def slot(mask, here):
        return f"""s_add_u32 s7, s76, {here}
        s_cmp_eq_u32 s{mask}, 0
        s_cselect_b32 m0, {RP*SP}, s7"""

    def issue_w(st):
        base = (st % RP) * SP
        a(f"""s_add_u32 m0, s76, {base + 6144}
        s_add_u32 s72, s69, {36*1152*st}
        buffer_load_dwordx4 v2, s[{G.SRD2A}:{G.SRD2A+3}], s72 offen lds
        {slot(77, base + 6144 + 4096)}
        s_nop 0
        buffer_load_dwordx4 v3, s[{G.SRD2A}:{G.SRD2A+3}], s72 offen lds""")

    def issue_o(st):
        base = (st % RP) * SP
        a(f"""s_add_u32 m0, s76, {base}
        s_add_u32 s72, s68, {6*32768*st}
        buffer_load_dwordx4 v1, {W}, s72 offen sc0 sc1 lds
        {slot(71, base + 4096)}
        s_add_u32 s72, s70, {6*32768*st}
        buffer_load_dwordx4 v1, {W}, s72 offen sc0 sc1 lds""")
    for st in range(4):
        issue_w(st)
    a("s_barrier")
    if OPT["stamps"] == 4:
        a("s_memrealtime s[90:91]")

    def issue_p(st):
        if st >= 4:
            issue_w(st)
        issue_o(st)
    for st in range(4):
        issue_o(st)
    for st in range(16):
        n = (2 * (3 - st) + 4 * st) if st < 4 else 4 * min(3, 15 - st)
        a(f"s_waitcnt vmcnt({n})\n s_barrier")
        if OPT["stamps"] == 4 and st in (0, 5, 15):
            a(f"s_memrealtime s[{94 + 2*(0, 5, 15).index(st)}:{95 + 2*(0, 5, 15).index(st)}]")
        if st + 4 < 16:
            issue_p(st + 4)
    if OPT["stamps"] == 4:
        G.stamp_store(a, 0, 8)
    a("s_endpgm")
    a.label("K2_pc")
    G.srd(a, G.SRDO, G.P_OUT, 2048 * 4608)
    a(f"""v_lshlrev_b32 v{XA}, 4, v1
    v_lshl_add_u32 v{XA}, v2, 10, v{XA}
    v_bfe_u32 v12, v0, 2, 2
    v_and_b32 v13, 3, v0
    v_lshlrev_b32 v13, 3, v13
    v_and_b32 v14, 16, v0
    v_lshl_add_u32 v13, v14, 1, v13
    s_lshl_b32 s7, s5, 6
    s_add_u32 s7, s7, 6144
    v_add_u32 v13, s7, v13
    s_movk_i32 s7, 192""")
    for i, (r0, r1) in enumerate(((0, 8), (16, 18), (26, 34), (30, 38))):
        a(f"""v_mad_u32_u24 v14, v2, {r1 - r0}, v12
        v_add_u32 v14, {r0}, v14
        v_min_u32 v14, 35, v14
        v_mad_u32_u24 v{WA+i}, v14, s7, v13""")
    a(G.out_addr(a, 8192, 0))
    a(f"""s_mul_i32 s6, s14, {64*4608}
    s_mul_i32 s7, s15, 384
    s_add_u32 s6, s6, s7
    s_lshl_b32 s7, s5, 7
    s_add_u32 s12, s6, s7
    s_add_u32 s13, s12, {32*4608}
    s_waitcnt vmcnt(0)
    s_barrier
    s_cmp_lg_u32 s5, 3
    s_cbranch_scc1 K2_pw""")
    a(f"""s_lshl_b32 s6, s3, 2
    v_mov_b32 v14, s6
    v_mov_b32 v15, 1
    s_mov_b64 exec, 1
    buffer_store_dword v15, v14, {W}, s74 offen sc1
    s_mov_b64 exec, -1
    s_cmp_ge_u32 s3, 24
    s_cbranch_scc1 K2_done
    v_lshlrev_b32 v14, 2, v0""")
    mega.spin(a, "K2_pp", f"buffer_load_dword v15, v14, {W}, s74 offen sc1", 1, lanes=32, sleep=1)
    a("s_barrier\n s_endpgm")
    a.label("K2_pw")
    a("s_cmp_ge_u32 s3, 24\n s_cbranch_scc1 K2_end\n s_barrier")
    stamp(a, 7)

    def reads_p(ks, b):
        f = FR + 12 * b
        return [f"ds_read_b64_tr_b16 {vr(f, 2)}, v{WA+ks}", f"ds_read_b64_tr_b16 {vr(f+2, 2)}, " + (f"v{WA+ks} offset:768" if ks < 2 else f"v{WA+3}"),
                f"ds_read_b128 {vr(f+4, 4)}, v{XA} offset:{2048*ks}", f"ds_read_b128 {vr(f+8, 4)}, v{XA} offset:{2048*ks+512}"]

    def mfmas_t(n, b, init=True):
        f = FR + 12 * b
        return [f"{MF} {vr(ACC+16*tt, 16)}, {vr(f, 4)}, {vr(f+4+4*tt, 4)}, {vr(ACC+16*tt, 16) if n or not init else 0}" for tt in range(2)]
    G.consumer2(a, 3, reads_p, mfmas_t, lambda ks: [WA + ks] + ([XA, WA + 3] if ks == 2 else []), depth=2, bar_ks=0, per_gap=3, nst=16, stage=SP, ring=RP)
    a("s_nop 10")
    G.out_tiles(a, [(ACC + 16 * tt, 12 + tt, 0) for tt in range(2)])
    a.label("K2_end")
    if OPT["stamps"]:
        a("s_memrealtime s[86:87]")
    G.stamp_store(a, 0, 8)
    a.label("K2_done")
    a("s_endpgm")
    a.label("K2_slow")
    for ps in range(2):
        a("s_mov_b32 s6, 0")
        if ps == 0:
            a("v_mov_b32 v7, 0xff800000")
        else:
            for i in range(16):
                a(f"v_mov_b32 v{OA+i}, 0")
        a.label(f"K2_sl{ps}")
        st = len(a.lines)
        a(f"""s_lshr_b32 s7, s6, 2
        s_mul_i32 s7, s7, {CH}
        s_add_u32 s7, s7, s75
        s_and_b32 s68, s6, 3
        s_mul_i32 s70, s68, {8*VG}
        s_add_u32 s70, s70, s7
        s_lshr_b32 s69, s68, 1
        s_lshl_b32 s69, s69, 9
        s_add_u32 s69, s69, s7
        s_bitcmp1_b32 s6, 0
        s_cselect_b32 s71, 8, 0
        s_add_u32 s69, s69, s71
        s_lshl_b32 s68, s68, 10
        s_add_u32 s68, s68, s7
        buffer_load_dwordx4 {vr(KF, 4)}, v{AK}, {W}, s68 offen sc1
        buffer_load_dwordx4 {vr(KF + 4, 4)}, v{AK}, {W}, s68 offen offset:512 sc1
        buffer_load_dwordx2 {vr(KX, 2)}, v{AX}, {W}, s69 offen sc1""")
        if ps:
            for i in range(4):
                a(f"buffer_load_dwordx4 {vr(VF + 4*i, 4)}, v{AV}, {W}, s70 offen offset:{2*i*VG} sc1")
        a(f"s_waitcnt vmcnt(0)\n{mA(0, 0)}\n{mA(0, 1)}\n{mB(0, 0)}\n{mB(0, 1)}\n s_nop 15")
        for j in range(2):
            s = S(0, j)
            if ps == 0:
                for i in range(0, 16, 2):
                    a(f"v_max3_f32 v7, v7, v{s+i}, v{s+i+1}")
            else:
                for i in range(16):
                    a(f"v_sub_f32 v{s+i}, v{s+i}, v7")
                for i in range(16):
                    a(f"v_exp_f32 v{s+i}, v{s+i}")
                a("s_nop 0")
                for k in range(8):
                    a(f"v_cvt_pk_bf16_f32 v{PP+k}, v{s+2*k}, v{s+2*k+1}")
                a(f"s_nop 1\n{mP(0, j, 0)}\n{mP(0, j, 1)}")
        a(f"""s_add_u32 s6, s6, 1
        s_cmp_lt_u32 s6, 32
        s_cbranch_scc1 K2_sl{ps}""")
        a.loops.append(a.lines[st:])
        if ps == 0:
            a("""v_mov_b32 v8, v7
            s_nop 1
            v_permlane32_swap_b32 v7, v8
            s_nop 1
            v_max_f32 v7, v7, v8""")
    a(f"""s_nop 15
    v_cndmask_b32 v6, v{OA+10}, v{OA+12}, s[8:9]
    s_branch K2_fin""")


def cstep(a, nr, ni, lr, li, er, ei, xr, xi):
    a(f"""v_fma_f32 v{nr}, v{lr}, v{er}, v{xr}
    v_fma_f32 v{ni}, v{lr}, v{ei}, v{xi}
    v_fma_f32 v{nr}, -v{li}, v{ei}, v{nr}
    v_fma_f32 v{ni}, v{li}, v{er}, v{ni}""")


def ssm(a):
    OPT, PLB = G.OPT, G.PLB
    stamp = G.stamp
    W = f"s[{G.SRDW}:{G.SRDW+3}]"
    ACC, FR, XA, WA = 64, 32, 24, 28
    a.label("K2_ssm")
    WB, WS_ = 32768, 12288
    a(f"""s_sub_u32 s7, s47, 20
    s_and_b32 s4, s6, 1
    s_mul_i32 s4, s4, 3
    s_lshr_b32 s3, s7, 2
    s_add_u32 s4, s4, s3
    s_and_b32 s7, s7, 3
    s_lshr_b32 s3, s6, 1
    s_lshl_b32 s3, s3, 2
    s_add_u32 s3, s3, s7
    s_setprio {OPT.get("prio", 1)}
    s_nop 0""")
    pf_setup(a, 47)
    if OPT.get("pf1", 1):
        pf_item(a, "s", OPT.get("pfs", 0), 7)
    G.srd(a, G.SRD1, G.P_BX, 2048 * 1152)
    G.srd(a, G.SRD2A, G.P_BRE, 576 * 1152)
    G.srd(a, G.SRD2B, G.P_BIM, 576 * 1152)
    a("s_mov_b32 s6, s5")
    G.rows_voff(a, 6, 1152, 8)
    a(f"""s_mul_i32 s68, s3, {128*1152}
    s_mul_i32 s69, s4, {96*1152}
    s_lshl_b32 s76, s5, 10
    s_and_b32 s77, s5, 3
    s_lshl_b32 s77, s77, 10
    s_lshr_b32 s71, s5, 2
    s_lshl_b32 s70, s71, 5
    s_sub_u32 s70, 64, s70
    s_mul_i32 s70, s70, 1152
    s_add_u32 s70, s70, s69
    s_mul_i32 s6, s4, 3
    s_lshr_b32 s6, s6, 1
    s_and_b32 s7, s3, 1
    s_lshl_b32 s7, s7, 2
    s_add_u32 s6, s6, s7
    s_sub_u32 s7, s6, 9
    s_cmp_ge_u32 s6, 9
    s_cselect_b32 s6, s7, s6
    s_mul_i32 s78, s6, {128 if OPT.get("rots", 0) else 0}""")
    uid = [0]

    def issue(h):
        if h >= 18:
            return []
        xs, d, base = h >> 1, G.SRD2B if h & 1 else G.SRD2A, WB + (h & 3) * WS_
        uid[0] += 1
        r = [f"""s_add_u32 m0, s76, {(xs & 1) * 16384 + 8192*j}
            s_add_u32 s7, s68, s78
            {f"s_add_u32 s7, s7, {64*1152}" if j else ""}
            buffer_load_dwordx4 v6, s[{G.SRD1}:{G.SRD1+3}], s7 offen lds""" for j in range(2)] if h % 2 == 0 else []
        return r + [f"""s_add_u32 m0, s76, {base}
            s_add_u32 s7, s69, s78
            buffer_load_dwordx4 v6, s[{d}:{d+3}], s7 offen lds""",
                    f"""s_cmp_eq_u32 s71, {h & 1}
            s_cbranch_scc0 S_sk{uid[0]}
            s_add_u32 m0, s77, {base + 8192}
            s_add_u32 s7, s70, s78
            buffer_load_dwordx4 v6, s[{d}:{d+3}], s7 offen lds
            S_sk{uid[0]}:""" + ("""
            s_add_u32 s78, s78, 128
            s_cmp_eq_u32 s78, 1152
            s_cselect_b32 s78, 0, s78""" if h & 1 else "")]

    def vm(h):
        return 0 if h == 17 else (3 if h & 1 else 1)
    a(f"""s_cmp_lt_u32 s5, 6
    s_cbranch_scc1 K2_sc
    s_waitcnt vmcnt(0)
    s_barrier""")
    for x in issue(0) + issue(1):
        a(x)
    for h in range(18):
        a(f"s_waitcnt vmcnt({vm(h)})\n s_barrier")
        for x in issue(h + 2):
            a(x)
    a("s_barrier\n s_branch G2")
    a.label("K2_sc")
    G.srd(a, G.SRDW, G.P_WS, G.WS_END)
    G.lane_parts(a)
    PR = 8
    a(f"""s_cmp_ge_u32 s5, 3
    s_cselect_b32 s14, 1, 0
    s_mul_i32 s15, s14, 3
    s_sub_u32 s15, s5, s15
    s_mul_i32 s46, s4, 96
    s_lshl_b32 s6, s15, 5
    s_add_u32 s46, s46, s6
    v_add_u32 v3, s46, v1
    v_lshlrev_b32 v3, 1, v3
    global_load_ushort v{PR}, v3, s[{G.P_LRE}:{G.P_LRE+1}]
    global_load_ushort v{PR+1}, v3, s[{G.P_LIM}:{G.P_LIM+1}]
    global_load_ushort v{PR+2}, v3, s[{G.P_LDT}:{G.P_LDT+1}]
    v_bfe_u32 v5, v1, 1, 1
    v_lshrrev_b32 v4, 3, v1
    v_lshl_add_u32 v5, v4, 1, v5
    v_and_b32 v4, 1, v1
    v_lshl_add_u32 v5, v4, 4, v5
    v_and_b32 v4, 4, v1
    v_lshl_add_u32 v5, v4, 3, v5
    s_lshl_b32 s7, s14, 13""")
    XA, WA = 24, 28
    G.row_addr(a, XA, 5, "s7", 4)
    a(f"s_lshl_b32 s7, s15, 12\n s_add_u32 s7, s7, {WB}")
    G.row_addr(a, WA, 1, "s7", 4)
    a("s_waitcnt vmcnt(3)\n s_barrier")
    for x in issue(0) + issue(1):
        a(x)
    a("s_waitcnt vmcnt(5)")
    p = PR
    a(f"""s_mov_b32 s12, {G.f2u(G.LOG2E)}
    v_lshlrev_b32 v{p}, 16, v{p}
    v_lshlrev_b32 v{p+1}, 16, v{p+1}
    v_lshlrev_b32 v{p+2}, 16, v{p+2}
    v_mul_f32 v{p+2}, s12, v{p+2}
    v_exp_f32 v{p+2}, v{p+2}
    s_nop 0
    v_cvt_pk_bf16_f32 v{p+2}, v{p+2}, v{p+2}
    v_lshlrev_b32 v{p+2}, 16, v{p+2}
    v_mul_f32 v{p+3}, v{p+2}, v{p}
    v_mul_f32 v{p+2}, v{p+2}, v{p+1}
    v_mul_f32 v{p+3}, s12, v{p+3}
    v_mul_f32 v{p+2}, 0.15915494309189532, v{p+2}
    v_exp_f32 v{p+3}, v{p+3}
    v_fract_f32 v{p+2}, v{p+2}
    v_cos_f32 v{p+4}, v{p+2}
    v_sin_f32 v{p+5}, v{p+2}
    v_mul_f32 v{p+12}, v{p}, v{p}
    v_mul_f32 v{p+4}, v{p+4}, v{p+3}
    v_mul_f32 v{p+5}, v{p+5}, v{p+3}
    v_fma_f32 v{p+12}, v{p+1}, v{p+1}, v{p+12}
    v_rcp_f32 v{p+12}, v{p+12}
    v_add_f32 v{p+13}, -1.0, v{p+4}
    v_mul_f32 v{p+10}, v{p+13}, v{p}
    v_mul_f32 v{p+11}, v{p+5}, v{p}
    v_add_f32 v{p+12}, v{p+12}, v{p+12}
    v_fma_f32 v{p+10}, v{p+5}, v{p+1}, v{p+10}
    v_fma_f32 v{p+11}, -v{p+13}, v{p+1}, v{p+11}
    v_mul_f32 v{p+10}, v{p+10}, v{p+12}
    v_mul_f32 v{p+11}, v{p+11}, v{p+12}""")
    G.cmul(a, p + 12, p + 13, p + 4, p + 5, p + 4, p + 5)
    G.cmul(a, p + 14, p + 15, p + 12, p + 13, p + 12, p + 13)
    G.cmul(a, p + 12, p + 13, p + 14, p + 15, p + 14, p + 15)
    G.cmul(a, p - 4, p - 3, p + 12, p + 13, p + 12, p + 13)
    G.cmul(a, p + 6, p + 7, p - 4, p - 3, p - 4, p - 3)
    G.cmul(a, p + 8, p + 9, p + 6, p + 7, p + 6, p + 7)
    G.cmul(a, p, p + 1, p + 8, p + 9, p + 8, p + 9)
    LR, LI, L16R, L16I, L32R, L32I, L64R, L64I, L128R, L128I, CR, CI = p + 4, p + 5, p - 4, p - 3, p + 6, p + 7, p + 8, p + 9, p, p + 1, p + 10, p + 11
    FX, FW = (32, 44, 56), (40, 52, 20)

    def reads(n, b):
        ks = n & 3
        return [f"ds_read_b128 {vr(FW[b], 4)}, v{WA+ks}", f"ds_read_b128 {vr(FX[b], 4)}, v{XA+ks}",
                f"ds_read_b128 {vr(FX[b]+4, 4)}, v{XA+(ks^2)} offset:1024"]

    def upd2(n):
        h, ks = divmod(n, 4)
        u = [(WA + ks, WS_ if (h + 1) & 3 else -3 * WS_)] if h < 17 else []
        if h & 1 and h < 17 and ks >= 2:
            u += [(XA + k, 16384 if (h >> 1) % 2 == 0 else -16384) for k in (ks - 2, ks)]
        return u

    def mfmas(n, b):
        im = (n >> 2) & 1
        return [f"{MF} {vr(ACC + 32*im + 16*tt, 16)}, {vr(FX[b]+4*tt, 4)}, {vr(FW[b], 4)}, {vr(ACC + 32*im + 16*tt, 16) if n & ~4 else 0}"
                for tt in range(2)]
    stamp(a, 1)
    G.consumer2(a, 4, reads, mfmas, None, depth=2, bar_ks=2, per_gap=3, nst=18, upd2=upd2, by_step=True,
                pre_bar=lambda h: f"s_waitcnt vmcnt({vm(h)}) lgkmcnt(0)", post_bar=lambda h: issue(h + 2), marks=(1, 3, 5, 8, 11, 14, 17))
    stamp(a, 2)
    a("s_setprio 2")

    def pk(d, l, hi, e, x, neg=False):
        return (f"v_pk_fma_f32 {vr(d, 2)}, {vr(l, 2)}, {vr(e, 2)}, {vr(x, 2)} op_sel:[{hi},0,0] op_sel_hi:[{hi},1,1]"
                + (" neg_lo:[1,0,0] neg_hi:[1,0,0]" if neg else ""))

    def pstep(nr, ni, er, ei, xr, xi):
        a("\n".join([pk(nr, LR, 0, er, xr), pk(ni, LR, 0, ei, xi), pk(nr, LR, 1, ei, nr, True), pk(ni, LR, 1, er, ni)]))
    a(f"""s_lshl_b32 s79, s3, 1
    s_add_u32 s79, s79, s14
    v_lshlrev_b32 v3, 3, v1
    s_mul_i32 s13, s3, 4608
    s_lshl_b32 s6, s46, 3
    s_add_u32 s78, s6, {G.ECH_OFF}
    s_add_u32 s13, s13, s78
    s_mul_i32 s75, s79, {8*PLB}
    s_lshl_b32 s6, s46, 4
    s_add_u32 s75, s75, s6
    s_add_u32 s75, s75, {G.XT_OFF}
    s_lshl_b32 s6, s15, 8
    s_add_u32 s6, s6, {WB + 2*WS_}
    v_add_u32 v6, s6, v3""")
    G.srd(a, mega.SRDD, G.P_DBG, 256)
    a(f"v_mov_b32 v62, 0\n buffer_load_dword v63, v62, s[{mega.SRDD}:{mega.SRDD+3}], 0 offen offset:132 sc1")
    e = (ACC, ACC + 32)
    for s_ in range(1, 16):
        n_ = (24, 26) if s_ & 1 else (28, 30)
        pstep(n_[0], n_[1], e[0], e[1], ACC + 2 * s_, ACC + 32 + 2 * s_)
        e = n_
    cstep(a, 20, 21, L16R, L16I, 24, 26, 25, 27)
    a("""v_mov_b32 v28, v20
    v_mov_b32 v29, v21
    v_mov_b32 v30, v20
    v_mov_b32 v31, v21
    s_nop 1
    v_permlane32_swap_b32 v28, v30
    v_permlane32_swap_b32 v29, v31
    s_nop 1""")
    cstep(a, 22, 23, L32R, L32I, 28, 29, 30, 31)
    a(f"""s_cmp_lg_u32 s14, 0
    s_cbranch_scc1 S_x1
    ds_write_b64 v6, v[22:23]""")
    a.label("S_x1")
    a(f"""s_waitcnt vmcnt(0) lgkmcnt(0)
    v_readfirstlane_b32 s6, v63
    s_barrier
    ds_read_b64 v[20:21], v6
    s_cmp_ge_u32 s6, 16
    s_cbranch_scc1 S_ci
    v_mov_b32 v60, v14
    v_mov_b32 v61, v15""")
    mega.wait_init(a, "S_wi")
    a("v_mov_b32 v14, v60\n v_mov_b32 v15, v61")
    a.label("S_ci")
    a(f"""v_mov_b32 v30, 0
    v_mov_b32 v31, 0
    s_mov_b32 s12, 0
    s_waitcnt lgkmcnt(0)
    s_cmp_eq_u32 s14, 0
    s_cbranch_scc1 K2_poll""")
    cstep(a, 62, 63, L64R, L64I, 20, 21, 22, 23)
    a(f"""v_min_u32 v62, -2, v62
    v_min_u32 v63, -2, v63
    s_mov_b64 exec, 0xffffffff
    buffer_store_dwordx2 v[62:63], v3, {W}, s13 offen sc0 sc1
    s_mov_b64 exec, -1""")
    EB = 32
    a.label("K2_poll")
    a("s_mov_b32 s15, s78")
    for c in range(15):
        a(f"""s_cmp_le_u32 s3, {c}
        s_cbranch_scc1 K2_ld
        buffer_load_dwordx2 v[{EB+2*c}:{EB+2*c+1}], v3, {W}, s15 offen sc0 sc1
        s_add_u32 s15, s15, 4608""")
    a.label("K2_ld")
    a("v_mov_b32 v6, 0\n s_waitcnt vmcnt(0)")
    for c in range(15):
        a(f"""s_cmp_le_u32 s3, {c}
        s_cbranch_scc1 K2_ck
        v_max3_u32 v6, v6, v{EB+2*c}, v{EB+2*c+1}""")
    a.label("K2_ck")
    a(f"""v_cmp_eq_u32 vcc, -1, v6
    s_add_u32 s12, s12, 1
    s_cbranch_vccz K2_got
    s_sleep {OPT.get("psleep", 4)}
    s_cmp_lt_u32 s12, 0x40000
    s_cbranch_scc1 K2_poll""")
    a.label("K2_got")
    for c in range(15):
        a(f"s_cmp_le_u32 s3, {c}\n s_cbranch_scc1 K2_h{c}")
        cstep(a, EB + 2 * c, EB + 2 * c + 1, L128R, L128I, EB + 2 * c - 2, EB + 2 * c - 1, EB + 2 * c, EB + 2 * c + 1)
    for c in range(15, 0, -1):
        if c < 15:
            a.label(f"K2_h{c}")
        a(f"v_mov_b32 v30, v{EB+2*c-2}\n v_mov_b32 v31, v{EB+2*c-1}")
        if c > 1:
            a("s_branch K2_h0")
    a.label("K2_h0")
    stamp(a, 3)
    a("s_cmp_eq_u32 s14, 0\n s_cbranch_scc1 S_c0")
    cstep(a, 22, 23, L64R, L64I, 30, 31, 20, 21)
    a("v_mov_b32 v30, v22\n v_mov_b32 v31, v23")
    a.label("S_c0")
    cstep(a, 22, 23, L32R, L32I, 30, 31, 28, 29)
    a(f"""v_cndmask_b32 v28, v30, v22, s[8:9]
    v_cndmask_b32 v30, v31, v23, s[8:9]
    v_mul_u32_u24 v6, {4*PLB}, v2
    v_lshl_add_u32 v6, v1, 4, v6""")
    cstep(a, 29, 31, L16R, L16I, 28, 30, 24, 26)
    g = (28, 30)
    HO = 32
    for s_ in range(16):
        nr, ni = ACC + 2 * s_, ACC + 32 + 2 * s_
        pstep(nr, ni, g[0], g[1], nr, ni)
        o = 20 + 4 * (s_ & 1)
        a(f"""v_pk_mul_f32 {vr(o, 2)}, {vr(CR, 2)}, {vr(nr, 2)} op_sel:[0,0] op_sel_hi:[0,1]
        v_pk_mul_f32 {vr(o+2, 2)}, {vr(CR, 2)}, {vr(ni, 2)} op_sel:[0,0] op_sel_hi:[0,1] neg_lo:[1,0] neg_hi:[1,0]
        {pk(o, CR, 1, ni, o, True)}
        {pk(o+2, CR, 1, nr, o+2, True)}""")
        if s_ & 1:
            k = s_ >> 1
            a(f"""v_cvt_pk_bf16_f32 v{HO+k}, v20, v24
            v_cvt_pk_bf16_f32 v{HO+8+k}, v21, v25
            v_cvt_pk_bf16_f32 v{HO+16+k}, v22, v26
            v_cvt_pk_bf16_f32 v{HO+24+k}, v23, v27""")
        if s_ & 7 == 7:
            for ch in range(2):
                pl = 2 * ch + (s_ >> 3)
                a(f"""s_add_u32 s6, s75, {pl*PLB}
                s_add_u32 s7, s75, {pl*PLB + 576*16}
                buffer_store_dwordx4 {vr(HO+4*pl, 4)}, v6, {W}, s6 offen sc0 sc1
                buffer_store_dwordx4 {vr(HO+16+4*pl, 4)}, v6, {W}, s7 offen sc0 sc1""")
        g = (nr, ni)
    stamp(a, 4)
    a(f"""s_lshl_b32 s74, s79, 7
    s_lshr_b32 s6, s46, 3
    s_add_u32 s74, s74, s6
    s_add_u32 s74, s74, {G.FLG_OFF}
    v_mov_b32 v14, 0
    v_mov_b32 v15, 1
    s_mov_b64 exec, 1
    s_waitcnt vmcnt(0)
    buffer_store_dword v15, v14, {W}, s74 offen sc1""")
    if OPT["stamps"] == 4:
        a("s_memrealtime s[94:95]")
    a.label("G2x")
    a("s_mov_b64 exec, -1")
    a.label("G2")
    XA, WA, FR = 20, 24, 28
    G.srd(a, G.SRDW, G.P_WS, G.WS_END)
    a(f"""s_cmp_ge_u32 s47, 24
    s_cbranch_scc1 G2_end
    s_setprio 2
    s_and_b32 s6, s2, 7
    s_lshl_b32 s79, s6, 2
    s_and_b32 s7, s47, 3
    s_add_u32 s79, s79, s7
    s_lshr_b32 s4, s47, 2
    s_lshl_b32 s74, s79, 7
    s_add_u32 s74, s74, {G.FLG_OFF}
    s_cmp_lt_u32 s5, 3
    s_cbranch_scc1 G2_c
    s_cmp_lg_u32 s5, 3
    s_cbranch_scc1 G2_l""")
    mega.wait_init(a, "G2_wi")
    a("v_lshlrev_b32 v14, 2, v0")
    mega.spin(a, "G2_p", f"buffer_load_dword v15, v14, {W}, s74 offen sc1", 1, lanes=18, sleep=OPT.get("gsleep", 8))
    a("s_barrier\n s_endpgm")
    a.label("G2_l")
    G.srd(a, G.SRD2A, G.P_CRE, 576 * 1152)
    G.srd(a, G.SRD2B, G.P_CIM, 576 * 1152)
    a("s_sub_u32 s6, s5, 4")
    G.rows_voff(a, 1, 1152, 8)
    a(f"""s_mul_i32 s69, s4, {96*1152}
    s_lshl_b32 s76, s6, 10
    s_mov_b32 s3, s79""")
    G.srd(a, G.SRDW, G.P_WS, G.WS_END)
    a(f"""s_mov_b64 exec, -1
    v_lshrrev_b32 v8, 3, v0
    v_mul_u32_u24 v8, {PLB}, v8
    v_lshrrev_b32 v9, 2, v0
    v_and_b32 v9, 4, v9
    v_and_b32 v10, 7, v0
    v_xor_b32 v9, v9, v10
    s_lshl_b32 s7, s6, 3
    v_add_u32 v9, s7, v9
    v_lshl_add_u32 v4, v9, 4, v8
    s_mul_i32 s68, s3, {8*PLB}
    s_add_u32 s68, s68, {G.XT_OFF}
    s_waitcnt vmcnt(0)
    s_barrier""")

    def issue_r(st):
        base = (st & 3) * ST2
        kb, im = st >> 1, st & 1
        d = G.SRD2B if im else G.SRD2A
        for j in range(3):
            a(f"""s_add_u32 m0, s76, {base + 8192 + 4096*j}
            s_add_u32 s7, s69, {32*1152*j + 128*kb}
            buffer_load_dwordx4 v1, s[{d}:{d+3}], s7 offen lds""")
        for j in range(2):
            a(f"""s_add_u32 m0, s76, {base + 4096*j}
            s_add_u32 s7, s68, {(576*im + 64*kb + 32*j) * 16}
            buffer_load_dwordx4 v4, {W}, s7 offen sc0 sc1 lds""")
    tail_loader(a, 18, issue_r, end=False)
    G.stamp_store(a, 0, 8)
    a("s_endpgm")
    a.label("G2_c")
    G.lane_parts(a)
    a(f"""s_mul_i32 s46, s4, 96
    s_lshl_b32 s6, s5, 5
    s_add_u32 s46, s46, s6
    v_lshlrev_b32 v3, 3, v2
    s_lshl_b32 s6, s46, 1
    v_add_u32 v3, s6, v3
    s_lshl_b32 s6, s79, 6
    v_add_u32 v4, s6, v1
    v_mul_u32_u24 v4, 1152, v4
    v_add_u32 v4, v4, v3
    v_add_u32 v5, {32*1152}, v4""")
    for i in range(4):
        a(f"global_load_dwordx2 v[{96+2*i}:{97+2*i}], v3, s[{G.P_DSK}:{G.P_DSK+1}] offset:{16*i}")
    for tt in range(2):
        for i in range(4):
            a(f"global_load_dwordx2 v[{104+8*tt+2*i}:{105+8*tt+2*i}], v{4+tt}, s[{G.P_BX}:{G.P_BX+1}] offset:{16*i}")
    G.srd(a, G.SRDO, G.P_OUT, 2048 * 4608)
    a(f"""v_bfe_u32 v6, v0, 4, 1
    v_mul_u32_u24 v6, 320, v6
    v_lshl_add_u32 v6, v2, 10, v6
    v_and_b32 v7, 2, v0
    v_lshl_add_u32 v6, v7, 6, v6
    v_and_b32 v7, 12, v0
    v_lshl_add_u32 v6, v7, 2, v6
    v_and_b32 v7, 1, v0
    v_lshl_add_u32 v{WA}, v7, 3, v6
    v_xor_b32 v{WA+1}, 64, v{WA}
    s_lshl_b32 s7, s5, 12
    s_add_u32 s7, s7, 8192""")
    G.row_addr(a, XA, 1, "s7", 8)
    a(G.out_addr(a, 8192, 2 * ST2))
    a(f"""s_mul_i32 s6, s79, {64*4608}
    s_lshl_b32 s7, s46, 2
    s_add_u32 s6, s6, s7
    s_add_u32 s12, s6, 2304
    s_add_u32 s13, s12, {32*4608}
    s_mov_b32 s14, 0xffff0000
    s_waitcnt vmcnt(0)""")
    for k in range(8):
        a(f"v_lshlrev_b32 v{32+2*k}, 16, v{96+k}\n v_and_b32 v{33+2*k}, s14, v{96+k}")
    for tt in range(2):
        for k in range(8):
            A = ACC + 16 * tt + 2 * k
            a(f"""v_lshlrev_b32 v{A}, 16, v{104+8*tt+k}
            v_and_b32 v{A+1}, s14, v{104+8*tt+k}
            v_mul_f32 v{A}, v{A}, v{32+2*k}
            v_mul_f32 v{A+1}, v{A+1}, v{33+2*k}""")
    a(f"s_setprio {OPT.get('prio3', 0)}\n s_barrier")
    stamp(a, 5)

    def reads_r(ks, b):
        f = FR + 12 * b
        r = [f"ds_read_b128 {vr(f, 4)}, v{XA+ks}"]
        for tt in range(2):
            for e in range(2):
                r.append(f"ds_read_b64_tr_b16 {vr(f+4+4*tt+2*e, 2)}, v{WA+e} offset:{2*ks*1024+512*tt}")
        return r

    def mfmas_r(n, b):
        f = FR + 12 * b
        return [f"{MF} {vr(ACC+16*tt, 16)}, {vr(f, 4)}, {vr(f+4+4*tt, 4)}, {vr(ACC+16*tt, 16)}" for tt in range(2)]
    G.consumer2(a, 4, reads_r, mfmas_r, lambda ks: [XA + ks] + ([WA, WA + 1] if ks == 3 else []), depth=2, bar_ks=1, per_gap=3, nst=18, stage=ST2)
    stamp(a, 6)
    a("s_setprio 2\n s_nop 9")
    G.out_tiles(a, [(ACC + 16 * tt, 12 + tt, 0) for tt in range(2)])
    a.label("G2_end")
    stamp(a, 7)
    G.stamp_store(a, 0, 8)
    a.label("K2_last")
    a("s_endpgm")
```

```python
import sys
import gen as G
import k2gen as K
from gen import OPT, IMG, CH, VG, PLB, SRD1, SRD2A, SRD2B, SRDW, SRDO, srd, stamp
from asmlib import Asm, check, vr

MF = G.MF
W = f"s[{SRDW}:{SRDW+3}]"
SRDD = 80
NAME = "concat_heads__mha_block__ssm_conv_s5__prompt_kernel"
ST2 = K.ST2


def spin(a, tag, load, ok, lanes=1, sleep=2):
    m = (1 << lanes) - 1
    a(f"s_mov_b32 exec_lo, {m & 0xffffffff}\n s_mov_b32 exec_hi, {m >> 32}\n s_mov_b32 s72, 0")
    a.label(tag)
    a(f"""{load}
    s_waitcnt vmcnt(0)
    v_cmp_gt_u32 vcc, {ok}, v15
    s_add_u32 s72, s72, 1
    s_cbranch_vccz {tag}_ok
    s_sleep {sleep}
    s_cmp_lt_u32 s72, 0x100000
    s_cbranch_scc1 {tag}""")
    a.label(tag + "_ok")
    a("s_mov_b64 exec, -1")


def wait_init(a, tag):
    srd(a, SRDD, G.P_DBG, 256)
    a("v_mov_b32 v14, 0")
    spin(a, tag, f"buffer_load_dword v15, v14, s[{SRDD}:{SRDD+3}], 0 offen offset:132 sc1", 16, sleep=8)


def qk_epilogue(a, b, wf, ACC, T0):
    for ft in range(3):
        t = G.QK_TILES[b][3 * wf + ft]
        A = ACC + 16 * ft
        if G.is_regular(t):
            h0, h1 = G.chunk_info(t[0])[1], G.chunk_info(t[1])[1]
            va = 5
            if h1 - h0 != 1:
                va = 6
                a(f"s_mov_b32 s7, {(h1-h0)*IMG}\n v_mad_u32_u24 v6, v2, s7, v3")
            a(f"s_mov_b32 s12, {h0*IMG}\n s_mov_b32 s13, {h0*IMG+4096}")
            for k in range(8):
                a(f"v_cvt_pk_bf16_f32 v{A+k}, v{A+2*k}, v{A+2*k+1}")
                if k == 3:
                    a(f"buffer_store_dwordx4 v[{A}:{A+3}], v{va}, {W}, s12 offen sc1")
            a(f"buffer_store_dwordx4 v[{A+4}:{A+7}], v{va}, {W}, s13 offen sc1")
            continue
        for i in range(4):
            kk = [G.chunk_info(t[2 * i]), G.chunk_info(t[2 * i + 1])]
            T = T0 + 2 * i
            a(f"v_cvt_pk_bf16_f32 v{T}, v{A+4*i}, v{A+4*i+1}\n v_cvt_pk_bf16_f32 v{T+1}, v{A+4*i+2}, v{A+4*i+3}")
            for kind in ("half", "mid"):
                sel = [k[0] == kind for k in kk]
                if not any(sel):
                    continue
                if kind == "half":
                    c = [k[1] * IMG + (k[2] >> 1) * 4096 + (k[2] & 1) * 8 if k[0] == kind else None for k in kk]
                else:
                    c = [(k[1] - (0, 5, 11)[b]) * 1024 if k[0] == kind else None for k in kk]
                c = [x if x is not None else y for x, y in zip(c, c[::-1])]
                vb = 3 if kind == "half" else 4
                if c[0] != c[1]:
                    a(f"s_mov_b32 s7, {abs(c[1]-c[0])}\n v_mad_u32_u24 v8, v{2 if c[1] >= c[0] else 13}, s7, v{vb}")
                    vb = 8
                if not all(sel):
                    a(f"s_mov_b64 exec, {'0xffffffff' if sel[0] else 's[8:9]'}")
                if kind == "half":
                    a(f"s_mov_b32 s12, {min(c)}\n buffer_store_dwordx2 v[{T}:{T+1}], v{vb}, {W}, s12 offen sc1")
                else:
                    a(f"ds_write_b32 v{vb}, v{T} offset:{min(c)}\n ds_write_b32 v{vb}, v{T+1} offset:{min(c)+512}")
                if not all(sel):
                    a("s_mov_b64 exec, -1")


def qkv(a):
    ACC, FR, XA, WA = 32, 96, 84, 88
    WB, WS_ = 32768, 12288
    srd(a, SRD1, G.P_AX, 2048 * 1152)
    srd(a, SRD2A, G.P_WQKV, 576 * 3456)
    a(f"""s_setprio 2
    s_mov_b32 s6, s5
    s_and_b32 s14, s5, 3
    s_lshr_b32 s15, s5, 2""")
    G.rows_voff(a, 10, 1152, 3)
    a(f"""s_mul_i32 s68, s3, {128*1152}
    s_mul_i32 s69, s4, 384
    s_lshl_b32 s76, s5, 10
    s_lshl_b32 s77, s14, 10
    s_lshr_b32 s6, s47, 2
    s_and_b32 s7, s47, 3
    s_add_u32 s6, s6, s7
    s_mul_i32 s6, s6, {OPT.get("rot", 0)}
    s_mul_i32 s7, s6, 57
    s_lshr_b32 s7, s7, 9
    s_mul_i32 s7, s7, 9
    s_sub_u32 s6, s6, s7
    s_lshl_b32 s78, s6, 7
    s_mul_i32 s79, s6, {64*3456}""")
    uid = [0]

    def ix(xs):
        return [f"""s_add_u32 m0, s76, {(xs & 1) * 16384}
            s_add_u32 s7, s68, s78
            buffer_load_dwordx4 v10, s[{SRD1}:{SRD1+3}], s7 offen lds""",
                f"""s_add_u32 m0, s76, {(xs & 1) * 16384 + 8192}
            s_add_u32 s7, s7, {64*1152}
            buffer_load_dwordx4 v10, s[{SRD1}:{SRD1+3}], s7 offen lds
            s_add_u32 s78, s78, 128
            s_cmp_eq_u32 s78, 1152
            s_cselect_b32 s78, 0, s78"""]

    def iw(h):
        base = WB + (h & 3) * WS_
        uid[0] += 1
        return [f"""s_add_u32 m0, s76, {base}
            s_add_u32 s70, s69, s79
            buffer_load_dwordx4 v11, s[{SRD2A}:{SRD2A+3}], s70 offen lds
            s_add_u32 s79, s79, {32*3456}
            s_cmp_eq_u32 s79, {576*3456}
            s_cselect_b32 s79, 0, s79""",
                f"""s_cmp_eq_u32 s15, {h & 1}
            s_cbranch_scc0 Q_sk{uid[0]}
            s_add_u32 m0, s77, {base + 8192}
            s_nop 0
            buffer_load_dwordx4 v12, s[{SRD2A}:{SRD2A+3}], s70 offen lds
            Q_sk{uid[0]}:"""]

    def issue(h):
        if h >= 18 or (OPT.get("qx") == 2 and h > 3):
            return []
        chk = [f"buffer_load_dword v15, v14, s[{SRDD}:{SRDD+3}], 0 offen offset:132 sc1"] if h == 13 else []
        return (ix(h >> 1) if h % 2 == 0 else []) + iw(h) + chk
    for x in ix(0):
        a(x)
    for d, sh in ((11, "s76"), (12, "s77")):
        a(f"""s_lshr_b32 s7, {sh}, 4
        v_add_u32 v3, s7, v0
        {"v_add_u32 v3, 512, v3" if d == 12 else ""}
        v_mul_u32_u24 v4, 2731, v3
        v_lshrrev_b32 v4, 16, v4
        v_mul_u32_u24 v5, 24, v4
        v_sub_u32 v5, v3, v5
        v_and_b32 v3, 2, v4
        v_lshlrev_b32 v3, 1, v3
        v_xor_b32 v5, v5, v3
        v_mul_u32_u24 v4, 3456, v4
        v_lshl_add_u32 v{d}, v5, 4, v4""")
    for x in iw(0) + iw(1):
        a(x)
    srd(a, SRDW, G.P_WS, G.WS_END)
    srd(a, SRDD, G.P_DBG, 256)
    a("v_mov_b32 v14, 0")
    G.lane_parts(a)

    def loop(w_is_a):
        def reads(n, b):
            f = FR + 16 * b
            r = [f"ds_read_b128 {vr(f, 4)}, v{XA + (n & 3)}"]
            for ft in range(3):
                for e in range(2):
                    r.append(f"ds_read_b64_tr_b16 {vr(f+4+4*ft+2*e, 2)}, v{WA+ft} offset:{(16*(n & 1)+4*e)*384}")
            return r

        def upd2(n):
            u = [(XA + (n & 3), 16384 if (n >> 2) % 2 == 0 else -16384)] if n < 32 else []
            if n & 1 and n < 35:
                u += [(WA + ft, WS_ if ((n >> 1) + 1) & 3 else -3 * WS_) for ft in range(3)]
            return u

        def mfmas(n, b):
            f = FR + 16 * b
            m = []
            for ft in range(3):
                acc, w, x = vr(ACC + 16 * ft, 16), vr(f + 4 + 4 * ft, 4), vr(f, 4)
                A, B = (w, x) if w_is_a else (x, w)
                m.append(f"{MF} {acc}, {A}, {B}, {acc if n else 0}")
            return m
        G.consumer2(a, 2, reads, mfmas, None, depth=1, bar_ks=1, per_gap=3, nst=18, upd2=upd2, by_step=True,
                    pre_bar=lambda h: f"s_waitcnt vmcnt({0 if h == 17 else (3 if h & 1 else 1)})", post_bar=lambda h: issue(h + 2),
                    marks=(1, 3, 5, 8, 11, 14, 17))

    def xaddr(row):
        a("s_lshl_b32 s7, s14, 12")
        G.row_addr(a, XA, row, "s7", 8)
    a("""s_cmp_ge_u32 s4, 6
    s_cbranch_scc1 Q_v
    s_sub_u32 s46, s4, 3
    s_cmp_lt_u32 s4, 3
    s_cselect_b32 s46, s4, s46
    s_lshl_b32 s46, s46, 1
    s_add_u32 s46, s46, s15""")
    for var in range(6):
        b, wf = divmod(var, 2)
        if var:
            a(f"s_cmp_eq_u32 s46, {var}")
        for ft in range(3):
            t = [x - 48 * b for x in G.QK_TILES[b][3 * wf + ft]]
            for hh in range(2):
                val = sum(t[4 * hh + c] << (8 * c) for c in range(4))
                r = 60 + 2 * ft + hh if False else 92 + 2 * ft + hh
                a(f"s_cselect_b32 s{r}, {val}, s{r}" if var else f"s_mov_b32 s{r}, {val}")
    tr_addr(a, WA)
    xaddr(1)
    stamp(a, 1)
    loop(True)
    stamp(a, 2)
    a(f"""s_lshr_b32 s6, s3, 1
    s_mul_i32 s6, s6, {CH}
    s_cmp_lt_u32 s4, 3
    s_cselect_b32 s7, {G.Q_OFF}, {G.KV_OFF}
    s_add_u32 s6, s6, s7
    s_and_b32 s7, s3, 1
    s_lshl_b32 s13, s7, 9
    s_lshl_b32 s7, s7, 2
    s_add_u32 s7, s7, s14
    s_lshl_b32 s12, s7, 9
    s_add_u32 s12, s12, s6
    s_add_u32 s75, s13, s6
    s_add_u32 s75, s75, 8192
    s_lshl_b32 s13, s14, 2
    s_add_u32 s13, s13, 16384
    v_lshl_add_u32 v3, v1, 4, s12
    v_lshl_add_u32 v4, v1, 4, s13
    s_mov_b32 s7, {IMG}
    v_mad_u32_u24 v5, v2, s7, v3
    v_xor_b32 v13, 1, v2""")
    for var in range(6):
        if var < 5:
            a(f"s_cmp_lg_u32 s46, {var}\n s_cbranch_scc1 Q_e{var+1}")
        qk_epilogue(a, *divmod(var, 2), ACC, FR)
        if var < 5:
            a("s_branch Q_x")
            a.label(f"Q_e{var+1}")
    a.label("Q_x")
    a(f"""s_lshr_b32 s6, s46, 1
    s_mul_i32 s7, s6, 11
    s_lshr_b32 s7, s7, 1
    s_add_u32 s7, s7, s5
    s_mul_i32 s7, s7, {2*IMG}
    s_add_u32 s75, s75, s7
    s_lshl_b32 s7, s5, 10
    s_add_u32 s7, s7, 16384
    v_lshl_add_u32 v4, v0, 4, s7
    s_and_b32 s6, s6, 1
    s_add_u32 s6, s6, 5
    s_mov_b32 s7, {IMG}
    v_lshlrev_b32 v5, 4, v1
    v_mad_u32_u24 v5, v2, s7, v5
    s_cmp_lt_u32 s5, s6
    s_waitcnt lgkmcnt(0)
    s_barrier
    s_cbranch_scc0 Q_fin
    ds_read_b128 v[{FR}:{FR+3}], v4
    s_waitcnt lgkmcnt(0)
    buffer_store_dwordx4 v[{FR}:{FR+3}], v5, {W}, s75 offen sc1
    s_branch Q_fin""")
    a.label("Q_v")
    a("s_mul_i32 s46, s15, 3")
    for ft in range(3):
        a(f"""s_add_u32 s7, s46, {ft}
        s_mul_i32 s7, s7, 0x08080808
        s_add_u32 s{92+2*ft}, s7, 0x03020100
        s_add_u32 s{93+2*ft}, s7, 0x07060504""")
    tr_addr(a, WA)
    G.tau(a, 9, 8)
    xaddr(9)
    a(f"""s_sub_u32 s6, s4, 6
    s_mul_i32 s6, s6, 192
    s_lshl_b32 s7, s46, 5
    s_add_u32 s6, s6, s7
    v_add_u32 v3, s6, v1
    s_mov_b32 s7, {IMG}
    v_mul_u32_u24 v8, {2*VG}, v2""")
    for ft in range(3):
        a(f"""v_add_u32 v4, {32*ft}, v3
        v_mul_u32_u24 v5, 3641, v4
        v_lshrrev_b32 v5, 16, v5
        v_mul_u32_u24 v6, 18, v5
        v_sub_u32 v6, v4, v6
        v_mad_u32_u24 v5, v5, s7, v8
        v_lshl_add_u32 v{80+ft}, v6, 4, v5""")
    stamp(a, 1)
    loop(False)
    stamp(a, 2)
    a(f"""s_lshr_b32 s6, s3, 1
    s_mul_i32 s6, s6, {CH}
    s_and_b32 s7, s3, 1
    s_lshl_b32 s7, s7, 2
    s_add_u32 s7, s7, s14
    s_mul_i32 s7, s7, {4*VG}
    s_add_u32 s12, s6, s7
    s_add_u32 s12, s12, {G.KV_OFF + 9216}
    s_nop 3""")
    for ft in range(3):
        A = ACC + 16 * ft
        for k in range(8):
            a(f"v_cvt_pk_bf16_f32 v{A+k}, v{A+2*k}, v{A+2*k+1}")
            if k == 3:
                a(f"buffer_store_dwordx4 v[{A}:{A+3}], v{80+ft}, {W}, s12 offen sc1")
        a(f"buffer_store_dwordx4 v[{A+4}:{A+7}], v{80+ft}, {W}, s12 offen offset:{VG} sc1")
    a.label("Q_fin")
    stamp(a, 3)
    a(f"""s_cmp_lg_u32 s5, 3
    s_cbranch_scc1 Q_w
    v_readfirstlane_b32 s6, v15
    s_nop 0
    s_cmp_ge_u32 s6, 16
    s_cbranch_scc1 Q_ci""")
    wait_init(a, "Q_wi")
    a.label("Q_ci")
    a(f"""s_mul_i32 s6, s4, 43
    s_lshr_b32 s6, s6, 7
    s_mul_i32 s6, s6, 3
    s_sub_u32 s6, s4, s6
    s_lshl_b32 s74, s6, 8
    s_sub_u32 s6, s4, s6
    s_mul_i32 s6, s6, 43
    s_lshr_b32 s6, s6, 7
    s_lshl_b32 s6, s6, 4
    s_add_u32 s6, s6, s3
    s_lshl_b32 s6, s6, 2
    s_add_u32 s74, s74, s6
    s_add_u32 s74, s74, {G.QF_OFF}
    v_mul_u32_u24 v14, 768, v0
    v_mov_b32 v15, 1
    s_waitcnt vmcnt(0)
    s_barrier
    s_mov_b64 exec, 0xff
    buffer_store_dword v15, v14, {W}, s74 offen sc1
    s_branch G2x""")
    a.label("Q_w")
    a("s_waitcnt vmcnt(0)")
    stamp(a, 4)
    a("s_barrier\n s_branch G2")


def tr_addr(a, WA):
    a(f"""v_bfe_u32 v3, v0, 2, 2
    v_lshl_add_u32 v3, v2, 3, v3
    v_mul_u32_u24 v3, 384, v3
    v_add_u32 v3, 32768, v3
    v_and_b32 v4, 8, v0
    v_lshlrev_b32 v4, 3, v4
    v_and_b32 v5, 3, v0
    v_lshlrev_b32 v5, 3, v5""")
    for ft in range(3):
        a(f"""v_mov_b32 v6, s{92+2*ft}
        v_mov_b32 v7, s{93+2*ft}
        v_cndmask_b32 v6, v6, v7, s[10:11]
        v_bfe_u32 v6, v6, v5, 8
        v_lshlrev_b32 v6, 3, v6
        v_xor_b32 v6, v6, v4
        v_add_u32 v{WA+ft}, v3, v6""")


def init(a):
    a.label("I_go")
    a(f"""s_lshl_b32 s6, s3, 3
    s_add_u32 s6, s6, s5
    s_mul_i32 s12, s6, 1152
    s_add_u32 s12, s12, {G.ECH_OFF}
    s_lshr_b32 s7, s6, 2
    s_mul_i32 s7, s7, {IMG}
    s_and_b32 s6, s6, 3
    s_mul_i32 s6, s6, {2*CH}
    s_add_u32 s6, s6, s7
    s_add_u32 s6, s6, {G.KV_OFF + 9216 + 288}
    s_add_u32 s7, s6, {CH}
    v_lshrrev_b32 v1, 1, v0
    v_mul_u32_u24 v1, {VG}, v1
    v_and_b32 v2, 1, v0
    v_lshl_add_u32 v1, v2, 4, v1
    v_subrev_u32 v2, 1, v2
    v_and_b32 v4, 0x3f803f80, v2
    v_mov_b32 v5, v4
    v_mov_b32 v6, v4
    v_mov_b32 v7, v4
    v_lshlrev_b32 v3, 4, v0
    v_mov_b32 v8, -1
    v_mov_b32 v9, -1
    v_mov_b32 v10, -1
    v_mov_b32 v11, -1""")
    srd(a, SRDW, G.P_WS, G.WS_END)
    srd(a, SRDD, G.P_DBG, 256)
    a(f"""buffer_store_dwordx4 v[4:7], v1, {W}, s6 offen sc1
    buffer_store_dwordx4 v[4:7], v1, {W}, s7 offen sc1
    buffer_store_dwordx4 v[8:11], v3, {W}, s12 offen sc1
    s_mov_b64 exec, 0xff
    buffer_store_dwordx4 v[8:11], v3, {W}, s12 offen offset:1024 sc1
    s_cmp_ge_u32 s3, 2
    s_cbranch_scc1 I_nz
    s_mov_b64 exec, -1
    v_mov_b32 v16, 0
    v_mov_b32 v17, 0
    v_mov_b32 v18, 0
    v_mov_b32 v19, 0
    s_lshl_b32 s6, s3, 3
    s_add_u32 s6, s6, s5
    s_lshl_b32 s6, s6, 10
    s_add_u32 s6, s6, {G.FLG_OFF}
    buffer_store_dwordx4 v[16:19], v3, {W}, s6 offen sc1""")
    a.label("I_nz")
    a("""s_mov_b64 exec, -1
    s_waitcnt vmcnt(0)
    s_barrier
    s_cmp_lg_u32 s5, 3
    s_cbranch_scc1 I_na
    s_mov_b64 exec, 1
    v_mov_b32 v14, 0
    v_mov_b32 v15, 1
    buffer_atomic_add v15, v14, s[80:83], 0 offen offset:132 sc1""")
    a.label("I_na")
    if OPT.get("touch", 0):
        a(f"""s_mov_b64 exec, -1
        s_lshl_b32 s6, s3, 3
        s_add_u32 s6, s6, s5
        s_lshr_b32 s7, s6, 2
        s_mul_i32 s7, s7, {IMG}
        s_and_b32 s12, s6, 3
        s_mul_i32 s12, s12, {2*CH}
        s_add_u32 s12, s12, s7
        s_add_u32 s12, s12, {G.KV_OFF + 9216}
        s_add_u32 s13, s12, {CH}
        v_lshlrev_b32 v12, 7, v0
        v_min_u32 v13, {15*128}, v12
        buffer_load_dword v20, v12, {W}, s12 offen
        buffer_load_dword v20, v12, {W}, s13 offen
        s_add_u32 s12, s12, 8192
        s_add_u32 s13, s13, 8192
        buffer_load_dword v20, v13, {W}, s12 offen
        buffer_load_dword v20, v13, {W}, s13 offen
        s_and_b32 s7, s6, 7
        s_mul_i32 s12, s7, {CH}
        s_bfe_u32 s7, s6, 0x10003
        s_mul_i32 s7, s7, {11*IMG - 4096}
        s_add_u32 s12, s12, s7
        s_bfe_u32 s7, s6, 0x10004
        s_mul_i32 s7, s7, {G.Q_OFF - G.KV_OFF}
        s_add_u32 s12, s12, s7
        s_add_u32 s12, s12, {G.KV_OFF + 10*IMG + 4096}
        v_min_u32 v13, {31*128}, v12
        s_cmp_lt_u32 s6, 32
        s_cbranch_scc0 I_nt
        buffer_load_dword v20, v13, {W}, s12 offen""")
        a.label("I_nt")
    a("s_waitcnt vmcnt(0)\n s_branch G2x")


def build(**opt):
    OPT.update(opt)
    K.mega = sys.modules[__name__]
    a = Asm()
    a.label(NAME)
    stamp(a, 0)
    a("s_cmp_ge_u32 s2, 512\n s_cbranch_scc1 K2_done")
    G.load_args(a)
    a("""v_lshrrev_b32 v1, 6, v0
    v_and_b32 v0, 63, v0
    s_and_b32 s6, s2, 7
    v_readfirstlane_b32 s5, v1
    s_cmp_ge_u32 s2, 256
    s_cbranch_scc1 A_go
    s_lshr_b32 s47, s2, 3
    s_cmp_ge_u32 s47, 20
    s_cbranch_scc1 K2_ssm
    s_lshr_b32 s3, s6, 1
    s_lshl_b32 s3, s3, 2
    s_and_b32 s4, s47, 3
    s_add_u32 s3, s3, s4
    s_and_b32 s6, s6, 1
    s_mul_i32 s6, s6, 5
    s_lshr_b32 s7, s47, 2
    s_add_u32 s4, s6, s7
    s_mov_b32 s101, s4
    s_and_b32 s6, s2, 7""")
    if OPT.get("pfm", 0) == 1:
        K.pf_setup(a, 47, 0)
        K.pf_item(a, "q", 0, 16)
        K.pf_item(a, "r", 160, 16)
    a("""s_cmp_ge_u32 s4, 9
    s_waitcnt lgkmcnt(0)
    s_cbranch_scc1 I_go""")
    qkv(a)
    init(a)
    K.attention(a)
    K.ssm(a)
    a.lines = [ln if "atomic" in ln else ln.replace(" sc0 sc1", " sc1") for ln in a.lines]
    errs = check(a.lines, "mega")
    for body in getattr(a, "loops", []):
        errs += check(body + body, "loop")
    ref = open("concat_heads__mha_block__ssm_conv_s5__prompt.s.ref").read()
    head = ref[:ref.index("; Override launch geometry")]
    out = head + """; One launch, 512 co-resident workgroups (two per CU), roles by id (generated by gen/mega.py, a hand-written generator):
;   0..159   Q,K,V projection tiles (16 of them initialise constants / hand-off words instead)
;   160..255 SSM input GEMM + exact chunked scan ; afterwards ids 0..143 compute one tile each of the SSM read-out GEMM
;   256..511 attention per (head, 256 queries), then one tile of the output projection
; hand-offs: write-through stores -> vmcnt(0) -> arrival counter ; consumers spin, then read with sc1
; @launch grid=(512,1,1) block=(512,1,1) lds=81920
.amdgcn_target "amdgcn-amd-amdhsa--gfx950"
.text
""" + f".globl {NAME}\n.p2align 8\n.type {NAME},@function\n" + a.text() + '.section .rodata,"a"\n.p2align 6\n' + G.desc(NAME, 128)
    return out, sorted(set(errs))


if __name__ == "__main__":
    opts = {}
    path = "concat_heads__mha_block__ssm_conv_s5__prompt.s"
    for arg in sys.argv[1:]:
        if "=" in arg:
            k, v = arg.split("=")
            opts[k] = int(v)
        else:
            path = arg
    text, errs = build(**opts)
    for e in errs:
        print("HAZARD", e)
    open(path, "w").write(text)
    print("wrote", path, len(text), "bytes;", len(errs), "hazards")
```

```python
import gen as G
from asmlib import Asm, vr

MF = "v_mfma_f32_32x32x16_bf16"
MF8 = "v_mfma_f32_32x32x8bf16_1k"
OA, PP, KF, KX, VF, QB, AK, AX, AV, NK, NX, NV = 48, 64, 72, 80, 88, 104, 112, 113, 114, 115, 116, 117


def S(q, j):
    return 16 + 16 * (j & 1)


def k2(a):
    a.label("k2_kernel")
    G.stamp(a, 0)
    a("""s_cmp_ge_u32 s2, 448
    s_cbranch_scc1 K2_done""")
    G.load_args(a)
    a("""v_lshrrev_b32 v1, 6, v0
    v_and_b32 v0, 63, v0
    s_cmp_ge_u32 s2, 256
    v_readfirstlane_b32 s5, v1
    s_cbranch_scc1 K2_ssm""")
    attention(a)
    ssm(a)


ST2 = 20480


def tail_loader(a, nst, issue, per=5, pre=2, end=True):
    for st in range(pre):
        issue(st)
    for st in range(nst):
        a(f"s_waitcnt vmcnt({per * min(pre - 1, nst - 1 - st)})\n s_barrier")
        if st + pre < nst:
            issue(st + pre)
    if end:
        a("s_endpgm")


def poll(a, tag, off, target, sleep=2):
    W = f"s[{G.SRDW}:{G.SRDW+3}]"
    a(f"s_mov_b64 exec, 1\n v_mov_b32 v14, 0\n s_mov_b32 s72, 0")
    a.label(tag)
    a(f"""buffer_load_dword v15, v14, {W}, s{off} offen sc0 sc1
    s_waitcnt vmcnt(0)
    v_readfirstlane_b32 s73, v15
    s_add_u32 s72, s72, 1
    s_cmp_ge_u32 s73, {target}
    s_cbranch_scc1 {tag}_ok
    s_sleep {sleep}
    s_cmp_lt_u32 s72, 0x100000
    s_cbranch_scc1 {tag}""")
    a.label(tag + "_ok")
    a("s_mov_b64 exec, -1")


def arrive(a, off):
    W = f"s[{G.SRDW}:{G.SRDW+3}]"
    a(f"""s_mov_b64 exec, 1
    v_mov_b32 v14, 0
    v_mov_b32 v15, 1
    buffer_atomic_add v15, v14, {W}, s{off} offen sc1
    s_mov_b64 exec, -1""")


def pf_item(a, tag, add, dummy):
    SRD1, SRD2A = G.SRD1, G.SRD2A
    a(f"""s_add_u32 s13, s12, {add}
    s_mul_i32 s14, s13, 2850
    s_lshr_b32 s14, s14, 16
    s_mul_i32 s15, s14, 23
    s_sub_u32 s15, s13, s15
    s_cmp_ge_u32 s13, 207
    s_cbranch_scc1 P_n{tag}
    s_cmp_lt_u32 s15, 8
    s_cbranch_scc0 P_w{tag}
    s_lshr_b32 s68, s6, 1
    s_lshl_b32 s68, s68, 3
    s_add_u32 s15, s15, s68
    s_mul_i32 s15, s15, {64*1152}
    s_lshl_b32 s14, s14, 7
    s_add_u32 s15, s15, s14
    buffer_load_dword v{dummy}, v1, s[{SRD1}:{SRD1+3}], s15 offen
    s_branch P_n{tag}""")
    a.label(f"P_w{tag}")
    a(f"""s_and_b32 s69, s6, 1
    s_mul_i32 s69, s69, 15
    s_add_u32 s15, s15, s69
    s_sub_u32 s15, s15, 8
    s_mul_i32 s14, s14, {64*3456}
    s_cmp_lt_u32 s15, 27
    s_cselect_b32 s14, s14, {0x7f000000}
    s_lshl_b32 s15, s15, 7
    s_add_u32 s15, s15, s14
    buffer_load_dword v{dummy}, v2, s[{SRD2A}:{SRD2A+3}], s15 offen""")
    a.label(f"P_n{tag}")


def pf_setup(a, ireg, first=20):
    a(f"""s_sub_u32 s12, s{ireg}, {first}
    s_lshl_b32 s12, s12, 3
    s_add_u32 s12, s12, s5
    v_mul_u32_u24 v1, 1152, v0
    v_mul_u32_u24 v2, 3456, v0
    s_waitcnt lgkmcnt(0)""")
    G.srd(a, G.SRD1, G.P_AX, 2048 * 1152)
    G.srd(a, G.SRD2A, G.P_WQKV, 576 * 3456)


def warm_mall(a):
    D = G.SRD2B
    a(f"""s_lshl_b32 s12, s5, 8
    s_add_u32 s12, s12, s2
    s_sub_u32 s12, s12, 256
    v_lshlrev_b32 v3, 7, v0
    s_mov_b32 s{D+3}, 0x00020000
    s_waitcnt lgkmcnt(0)
    s_mov_b64 s[{D}:{D+1}], s[{G.P_AX}:{G.P_AX+1}]
    s_mov_b32 s{D+2}, {2048*1152}
    s_mov_b32 s13, 0""")
    for first, p, n in ((576, G.P_WQKV, 576 * 3456), (1062, G.P_BX, 2048 * 1152), (1638, G.P_BRE, 576 * 1152), (1800, G.P_BIM, 576 * 1152)):
        a(f"""s_cmp_ge_u32 s12, {first}
        s_cselect_b32 s{D}, s{p}, s{D}
        s_cselect_b32 s{D+1}, s{p+1}, s{D+1}
        s_cselect_b32 s{D+2}, {n}, s{D+2}
        s_cselect_b32 s13, {first}, s13""")
    a(f"""s_sub_u32 s12, s12, s13
    s_lshl_b32 s12, s12, 12
    s_mov_b64 exec, 0xffffffff
    buffer_load_dword v118, v3, s[{D}:{D+3}], s12 offen
    s_mov_b64 exec, -1""")


def prefetch_att(a):
    SRD1 = G.SRD1
    a("""s_bfe_u32 s7, s2, 0x50003
    s_cmp_lt_u32 s7, 20
    s_cbranch_scc1 P_x""")
    pf_setup(a, 7)
    if G.OPT.get("pf1", 1):
        pf_item(a, "a", 96 + G.OPT.get("pfs", 0), 118)
        if G.OPT.get("pfs", 0) < 15:
            pf_item(a, "b", 192 + G.OPT.get("pfs", 0), 118)
    if G.OPT.get("pfc", 1):
        a("s_getpc_b64 s[14:15]")
        a.label("K1_pc")
        a(f"""s_lshl_b32 s13, s12, 10
        s_sub_u32 s14, s14, K1_pc-{mega.NAME}
        s_subb_u32 s15, s15, 0
        v_and_b32 v10, 7, v0
        v_lshl_add_u32 v10, v10, 7, s13
        v_min_u32 v10, K2_last-{mega.NAME}, v10
        v_mov_b32 v11, s15
        v_add_co_u32 v10, vcc, s14, v10
        s_nop 1
        v_addc_co_u32 v11, vcc, 0, v11, vcc
        global_load_dword v118, v[10:11], off""")
    a(f"""s_lshr_b32 s68, s6, 1
    s_mul_i32 s68, s68, {512*1152}
    s_and_b32 s71, s6, 1
    s_mul_i32 s71, s71, {288*1152}
    v_min_u32 v2, 31, v0
    v_mul_u32_u24 v2, 1152, v2""")
    for k in range(2 if G.OPT.get("pf2", 1) else 0):
        a(f"""s_add_u32 s13, s12, {96*k}
        s_mul_i32 s14, s13, 3641
        s_lshr_b32 s14, s14, 16
        s_mul_i32 s15, s14, 18
        s_sub_u32 s15, s13, s15
        s_lshl_b32 s14, s14, 7
        s_cmp_ge_u32 s13, 162
        s_cbranch_scc1 P_x
        s_cmp_lt_u32 s15, 13
        s_cselect_b32 s{SRD1}, s{G.P_BRE}, s{G.P_BIM}
        s_cselect_b32 s{SRD1+1}, s{G.P_BRE+1}, s{G.P_BIM+1}
        s_cselect_b32 s69, 8, 13
        s_mov_b32 s{SRD1+2}, {576*1152}
        s_mov_b32 s70, s71
        s_cmp_lt_u32 s15, 8
        s_cselect_b32 s{SRD1}, s{G.P_BX}, s{SRD1}
        s_cselect_b32 s{SRD1+1}, s{G.P_BX+1}, s{SRD1+1}
        s_cselect_b32 s{SRD1+2}, {2048*1152}, s{SRD1+2}
        s_cselect_b32 s69, 0, s69
        s_cselect_b32 s70, s68, s70
        s_cmp_eq_u32 s15, 12
        s_cselect_b64 vcc, -1, 0
        s_cmp_eq_u32 s15, 17
        s_cselect_b64 vcc, -1, vcc
        s_sub_u32 s15, s15, s69
        s_mul_i32 s15, s15, {64*1152}
        s_add_u32 s15, s15, s14
        s_add_u32 s15, s15, s70
        v_cndmask_b32 v3, v1, v2, vcc
        buffer_load_dword v118, v3, s[{SRD1}:{SRD1+3}], s15 offen""")
    a.label("P_x")


def attention(a):
    OPT, IMG, CH, VG = G.OPT, G.IMG, G.CH, G.VG
    stamp, stampc = G.stamp, G.stampc
    W = f"s[{G.SRDW}:{G.SRDW+3}]"
    a.label("A_go")
    if OPT.get("wm", 0):
        warm_mall(a)
    prefetch_att(a)
    a(f"""s_and_b32 s3, s2, 7
    s_lshl_b32 s3, s3, 2
    s_bfe_u32 s6, s2, 0x20003
    s_add_u32 s3, s3, s6
    s_bfe_u32 s4, s2, 0x30005
    s_mul_i32 s75, s3, {IMG}
    s_lshl_b32 s13, s5, 10
    s_add_u32 s78, s5, 16
    s_min_u32 s78, s78, 18
    s_lshl_b32 s78, s78, 10
    s_mov_b32 s12, s75
    s_mov_b32 s76, 0
    v_lshlrev_b32 v3, 4, v0""")
    G.lane_parts(a)
    a(f"""s_mul_i32 s14, s4, {CH}
    s_add_u32 s14, s14, s75
    s_add_u32 s14, s14, {G.Q_OFF}
    v_lshlrev_b32 v4, 4, v1
    v_lshl_add_u32 v5, v2, 12, v4
    s_lshl_b32 s6, s5, 9
    v_add_u32 v5, s6, v5
    s_lshr_b32 s6, s5, 2
    s_lshl_b32 s6, s6, 9
    s_and_b32 s7, s5, 3
    s_lshl_b32 s7, s7, 2
    s_add_u32 s6, s6, s7
    s_add_u32 s6, s6, 8192
    v_add_u32 v4, s6, v4
    v_add_u32 v6, s13, v3
    v_add_u32 v7, s78, v3
    s_waitcnt lgkmcnt(0)""")
    G.srd(a, G.SRDW, G.P_WS, G.WS_END)

    def dma(c, k):
        sl, g = (c & 3) * CH, c * CH
        if k < 2:
            return f"""s_add_u32 m0, s13, {sl + 8192*k}
            s_add_u32 s7, s75, {g + 8192*k}
            buffer_load_dwordx4 v6, {W}, s7 offen sc1 lds"""
        return f"""s_add_u32 m0, s78, {sl}
        s_add_u32 s7, s75, {g}
        buffer_load_dwordx4 v7, {W}, s7 offen sc1 lds"""

    a(f"""v_and_b32 v11, 19, v1
    v_and_b32 v12, 4, v1
    v_lshl_add_u32 v11, v12, 1, v11
    v_and_b32 v12, 8, v1
    v_lshrrev_b32 v12, 1, v12
    v_add_u32 v11, v11, v12
    v_lshlrev_b32 v{AX}, 4, v11
    v_lshl_add_u32 v{AK}, v2, 12, v{AX}
    v_add_u32 v{AX}, 8192, v{AX}""")
    a(f"""v_min_u32 v12, 19, v1
    v_cmp_gt_u32 vcc, 16, v1
    v_cmp_eq_u32 s[70:71], 28, v1
    v_mul_u32_u24 v{AV}, {VG}, v2
    v_cndmask_b32 v12, v12, v11, vcc
    s_nop 0
    v_cndmask_b32 v12, v12, 18, s[70:71]
    v_lshl_add_u32 v{AV}, v12, 4, v{AV}
    v_add_u32 v{AV}, 9216, v{AV}
    v_add_u32 v{NK}, {3*CH}, v{AK}
    v_add_u32 v{NX}, {3*CH}, v{AX}
    v_add_u32 v{NV}, {3*CH}, v{AV}
    s_mov_b32 s70, {G.f2u(G.QSCALE)}""")
    for i in range(16):
        a(f"v_mov_b32 v{OA+i}, 0")
    a(f"""s_bfe_u32 s7, s2, 0x50003
    s_lshl_b32 s7, s7, 3
    s_add_u32 s7, s7, s5
    s_cmp_ge_u32 s7, 81
    s_cselect_b32 s48, s{G.P_CIM}, s{G.P_CRE}
    s_cselect_b32 s49, s{G.P_CIM+1}, s{G.P_CRE+1}
    s_cselect_b32 s69, 81, 0
    s_cmp_ge_u32 s7, 162
    s_cselect_b32 s48, s{G.P_WO}, s48
    s_cselect_b32 s49, s{G.P_WO+1}, s49
    s_cselect_b32 s69, 162, s69
    s_sub_u32 s7, s7, s69
    s_lshl_b32 s79, s7, 13
    s_mov_b32 s50, {576*1152}
    s_mov_b32 s51, 0x00020000
    v_lshlrev_b32 v119, 7, v0""")
    a(f"""s_mov_b32 s73, 0xffff0000
    s_cmp_lg_u32 s5, 0
    s_cbranch_scc1 A_w""")
    a(f"s_sleep {OPT.get('asleep0', 127)}")
    mega.wait_init(a, "A_wi")
    a(f"""s_and_b32 s74, s2, 7
    s_mul_i32 s74, s74, 768
    s_add_u32 s74, s74, {G.QF_OFF}
    s_cmp_gt_u32 s3, 10
    s_addc_u32 s6, 0, 0
    s_cmp_gt_u32 s3, 21
    s_addc_u32 s6, s6, 0
    s_lshl_b32 s6, s6, 8
    s_cmp_ge_u32 s3, 10
    s_addc_u32 s7, 0, 0
    s_cmp_ge_u32 s3, 21
    s_addc_u32 s7, s7, 0
    s_lshl_b32 s7, s7, 8
    s_add_u32 s71, s74, s7
    s_add_u32 s74, s74, s6
    v_lshlrev_b32 v14, 2, v0""")
    mega.spin(a, "A_wq", f"buffer_load_dword v15, v14, {W}, s74 offen sc1", 1, lanes=48, sleep=OPT.get("asleep", 4))
    a("s_cmp_eq_u32 s71, s74\n s_cbranch_scc1 A_w")
    mega.spin(a, "A_wr", f"buffer_load_dword v15, v14, {W}, s71 offen sc1", 1, lanes=48, sleep=1)
    a.label("A_w")
    a(f"""s_waitcnt vmcnt(0)
    s_barrier
    s_setprio {OPT.get("prioa", 1)}""")
    stamp(a, 5 if OPT["stamps"] == 4 else 1)
    a(f"""buffer_load_dwordx4 v[{QB}:{QB+3}], v5, {W}, s14 offen sc1
    buffer_load_dword v{QB+4}, v4, {W}, s14 offen sc1""")
    for c in range(4):
        for k in range(3):
            a(dma(c, k))
    a("s_waitcnt vmcnt(12)")
    for q in (QB, QB + 1, QB + 2, QB + 3, QB + 4):
        a(f"""v_lshlrev_b32 v12, 16, v{q}
        v_and_b32 v13, s73, v{q}
        v_mul_f32 v12, s70, v12
        v_mul_f32 v13, s70, v13
        v_cvt_pk_bf16_f32 v{q}, v12, v13""")
    for q in range(1):
        x = QB + 8 * q + 4
        a(f"""v_cndmask_b32 v{x}, v{x}, 0, s[8:9]
        v_mov_b32 v{x+1}, 0
        v_mov_b32 v{x+2}, 0
        v_mov_b32 v{x+3}, v{x}""")
    a(f"s_waitcnt vmcnt({9 if OPT.get('b0', 1) else 6})\n s_barrier")
    stamp(a, 2)
    stampc(a, 5)

    def ad(lo, hi, c, off):
        sl = c & 3
        return (f"v{hi} offset:{off}" if sl == 3 else f"v{lo} offset:{sl * CH + off}")

    def rdK(j):
        return f"ds_read_b128 {vr(KF + 4*(j & 1), 4)}, {ad(AK, NK, j >> 3, (j & 7) * 512)}"

    def rdX(u):
        return f"ds_read_b128 {vr(KX + 4*(u & 1), 4)}, {ad(AX, NX, u >> 1, (u & 1) * 512)}"

    def rdV(j, u):
        return f"ds_read_b128 {vr(VF + 8*(j & 1) + 4*u, 4)}, {ad(AV, NV, j >> 3, (4 * (j & 7) + 2 * u) * VG)}"

    def mA(q, j):
        return f"{MF} {vr(S(q, j), 16)}, {vr(KF + 4*(j & 1), 4)}, {vr(QB + 8*q, 4)}, 0"

    def mB(q, j):
        kx = KX + 4 * ((j >> 2) & 1) + 2 * ((j >> 1) & 1)
        return f"{MF8} {vr(S(q, j), 16)}, {vr(kx, 2)}, {vr(QB + 8*q + 4 + 2*(j & 1), 2)}, {vr(S(q, j), 16)}"

    def mP(q, j, u):
        o = vr(OA + 16 * q, 16)
        return f"{MF} {o}, {vr(VF + 8*(j & 1) + 4*u, 4)}, {vr(PP + 8*q + 4*u, 4)}, {o}"

    a(f"""{rdK(0)}
    {rdX(0)}
    {rdK(1)}
    {rdV(0, 0)}
    {rdV(0, 1)}
    s_waitcnt lgkmcnt(3)
    {mA(0, 0)}
    {mB(0, 0)}
    s_waitcnt lgkmcnt(0)
    s_nop 8""")
    a(".p2align 3")
    pat = "A k v0 e e e e P1 v1 x e e e e B d e e c c c c e e P0 e e e e w n c c c c"
    for jj in range(64):
        c8, j8 = divmod(jj, 8)
        last = jj == 63
        s, P = S(0, jj), PP
        ne = nc = 0
        for tok in pat.split():
            if tok == "e":
                a(f"v_exp_f32 v{s+ne}, v{s+ne}")
                ne += 1
            elif tok == "c":
                a(f"v_cvt_pk_bf16_f32 v{P+nc}, v{s+2*nc}, v{s+2*nc+1}")
                nc += 1
            elif tok == "A" and not last:
                a(mA(0, jj + 1))
            elif tok == "B" and not last:
                a(mB(0, jj + 1))
            elif tok == "P1" and jj:
                a(mP(0, jj - 1, 1))
            elif tok == "P0":
                a(mP(0, jj, 0))
            elif tok == "k" and jj + 2 < 64:
                a(rdK(jj + 2))
            elif tok == "v0" and not last:
                a(rdV(jj + 1, 0))
            elif tok == "v1" and not last:
                a(rdV(jj + 1, 1))
            elif tok == "x" and jj % 4 == 0 and jj < 60:
                a(rdX(jj // 4 + 1))
            elif tok == "d" and jj == OPT.get("wpf", 3):
                a("buffer_load_dword v118, v119, s[48:51], s79 offen")
            elif tok == "d" and j8 < 3 and 1 <= c8 <= 4:
                a(dma(c8 + 3, j8))
            elif tok == "w" and not last:
                if j8 == 7 and c8 <= 5:
                    a(f"s_waitcnt vmcnt({3 if c8 <= 4 else 0}) lgkmcnt(0)")
                elif jj == 2 and OPT.get('b0', 1):
                    a("s_waitcnt vmcnt(6) lgkmcnt(0)")
                else:
                    a("s_waitcnt lgkmcnt(0)")
            elif tok == "n" and not last:
                a("s_barrier" if (j8 == 7 and c8 <= 5) or (jj == 2 and OPT.get('b0', 1)) else "s_nop 0")
    a(f"s_nop 1\n{mP(0, 63, 1)}")
    a.loops = getattr(a, "loops", [])
    stamp(a, 3)
    stampc(a, 6)
    a(f"""s_lshl_b32 s6, s4, 8
    s_lshl_b32 s7, s5, 5
    s_add_u32 s6, s6, s7
    v_add_u32 v4, s6, v1
    v_lshlrev_b32 v4, 4, v4
    v_lshl_add_u32 v5, v2, 15, v4
    s_mul_i32 s12, s3, {3*32768}
    s_add_u32 s12, s12, {G.O_OFF}
    s_add_u32 s13, s12, {2*32768}
    v_mov_b32 v9, 0
    v_mov_b32 v10, 0
    v_mov_b32 v11, 0
    s_mov_b32 s14, {G.f2u(2.0**-60)}
    s_mov_b32 s15, {G.f2u(2.0**60)}
    s_movk_i32 s46, 0x207""")
    a(f"""v_cndmask_b32 v6, v{OA+10}, v{OA+12}, s[8:9]
    v_add_f32 v7, |v{OA}|, |v{OA+1}|""")
    for i in range(2, 10):
        a(f"v_add_f32 v7, v7, |v{OA+i}|")
    a(f"""v_cmp_nle_f32 vcc, s14, v6
    v_cmp_lt_f32 s[68:69], s15, v6
    v_cmp_class_f32 s[70:71], v7, s46
    s_or_b64 vcc, vcc, s[68:69]
    s_or_b64 vcc, vcc, s[70:71]
    {"s_branch K2_slow" if OPT.get("slow") else "s_cbranch_vccnz K2_slow"}""")
    a.label("K2_fin")
    a("v_rcp_f32 v6, v6\n s_nop 0")
    for i in range(10):
        a(f"v_mul_f32 v{OA+i}, v6, v{OA+i}")
    for k in range(5):
        a(f"v_cvt_pk_bf16_f32 v{16+k if k < 4 else 8}, v{OA+2*k}, v{OA+2*k+1}")
    a(f"""buffer_store_dwordx4 v[16:19], v5, {W}, s12 offen sc0 sc1
    s_mov_b64 exec, 0xffffffff
    buffer_store_dwordx4 v[8:11], v4, {W}, s13 offen sc0 sc1
    s_mov_b64 exec, -1
    s_lshl_b32 s74, s4, 7
    s_add_u32 s74, s74, {G.FLG_OFF + 32*128}
    s_mul_i32 s14, s3, 43
    s_lshr_b32 s14, s14, 8
    s_mul_i32 s15, s14, 6
    s_sub_u32 s15, s3, s15
    s_lshl_b32 s6, s4, 2
    s_add_u32 s14, s14, s6""")
    stamp(a, 4)
    ACC, FR, XA, WA = 64, 28, 20, 24
    a("""s_cmp_lt_u32 s5, 4
    s_cbranch_scc1 K2_pc
    s_sub_u32 s6, s5, 4""")
    SP, RP = 13312, 6
    G.srd(a, G.SRD2A, G.P_WO, 576 * 1152)
    a(f"""s_nop 0
    v_lshlrev_b32 v1, 4, v0
    s_lshl_b32 s7, s6, 6""")
    for u in range(2):
        a(f"""v_add_u32 v12, s7, v0
        v_add_u32 v12, {256*u}, v12
        v_min_u32 v12, 431, v12
        v_mul_u32_u24 v13, 5462, v12
        v_lshrrev_b32 v13, 16, v13
        v_mul_u32_u24 v13, {1152 - 192}, v13
        v_lshl_add_u32 v{2+u}, v12, 4, v13""")
    a(f"""s_lshl_b32 s68, s14, 10
    s_lshl_b32 s7, s6, 15
    s_add_u32 s68, s68, s7
    s_add_u32 s68, s68, {G.O_OFF}
    s_mul_i32 s69, s15, 192
    s_lshl_b32 s76, s6, 10
    s_cmp_lt_u32 s6, 2
    s_mov_b32 s70, {0x7f000000}
    s_cselect_b32 s70, {4*32768}, s70
    s_cselect_b32 s71, 1, 0
    s_cmp_lt_u32 s6, 3
    s_cselect_b32 s77, 1, 0
    s_waitcnt vmcnt(0)
    {"s_memrealtime s[86:87]" if OPT["stamps"] == 4 else ""}
    s_barrier
    {"s_memrealtime s[88:89]" if OPT["stamps"] == 4 else ""}
    s_cmp_ge_u32 s3, 24
    s_cbranch_scc1 K2_done""")
    a(f"""s_add_u32 s70, s70, s68
    s_cmp_eq_u32 s77, 0
    s_cselect_b32 s78, {0x7f000000}, 0
    v_add_u32 v3, s78, v3""")

    def slot(mask, here):
        return f"""s_add_u32 s7, s76, {here}
        s_cmp_eq_u32 s{mask}, 0
        s_cselect_b32 m0, {RP*SP}, s7"""

    def issue_w(st):
        base = (st % RP) * SP
        a(f"""s_add_u32 m0, s76, {base + 6144}
        s_add_u32 s72, s69, {36*1152*st}
        buffer_load_dwordx4 v2, s[{G.SRD2A}:{G.SRD2A+3}], s72 offen lds
        {slot(77, base + 6144 + 4096)}
        s_nop 0
        buffer_load_dwordx4 v3, s[{G.SRD2A}:{G.SRD2A+3}], s72 offen lds""")

    def issue_o(st):
        base = (st % RP) * SP
        a(f"""s_add_u32 m0, s76, {base}
        s_add_u32 s72, s68, {6*32768*st}
        buffer_load_dwordx4 v1, {W}, s72 offen sc0 sc1 lds
        {slot(71, base + 4096)}
        s_add_u32 s72, s70, {6*32768*st}
        buffer_load_dwordx4 v1, {W}, s72 offen sc0 sc1 lds""")
    for st in range(4):
        issue_w(st)
    a("s_barrier")
    if OPT["stamps"] == 4:
        a("s_memrealtime s[90:91]")

    def issue_p(st):
        if st >= 4:
            issue_w(st)
        issue_o(st)
    for st in range(4):
        issue_o(st)
    for st in range(16):
        n = (2 * (3 - st) + 4 * st) if st < 4 else 4 * min(3, 15 - st)
        a(f"s_waitcnt vmcnt({n})\n s_barrier")
        if OPT["stamps"] == 4 and st in (0, 5, 15):
            a(f"s_memrealtime s[{94 + 2*(0, 5, 15).index(st)}:{95 + 2*(0, 5, 15).index(st)}]")
        if st + 4 < 16:
            issue_p(st + 4)
    if OPT["stamps"] == 4:
        G.stamp_store(a, 0, 8)
    a("s_endpgm")
    a.label("K2_pc")
    G.srd(a, G.SRDO, G.P_OUT, 2048 * 4608)
    a(f"""v_lshlrev_b32 v{XA}, 4, v1
    v_lshl_add_u32 v{XA}, v2, 10, v{XA}
    v_bfe_u32 v12, v0, 2, 2
    v_and_b32 v13, 3, v0
    v_lshlrev_b32 v13, 3, v13
    v_and_b32 v14, 16, v0
    v_lshl_add_u32 v13, v14, 1, v13
    s_lshl_b32 s7, s5, 6
    s_add_u32 s7, s7, 6144
    v_add_u32 v13, s7, v13
    s_movk_i32 s7, 192""")
    for i, (r0, r1) in enumerate(((0, 8), (16, 18), (26, 34), (30, 38))):
        a(f"""v_mad_u32_u24 v14, v2, {r1 - r0}, v12
        v_add_u32 v14, {r0}, v14
        v_min_u32 v14, 35, v14
        v_mad_u32_u24 v{WA+i}, v14, s7, v13""")
    a(G.out_addr(a, 8192, 0))
    a(f"""s_mul_i32 s6, s14, {64*4608}
    s_mul_i32 s7, s15, 384
    s_add_u32 s6, s6, s7
    s_lshl_b32 s7, s5, 7
    s_add_u32 s12, s6, s7
    s_add_u32 s13, s12, {32*4608}
    s_waitcnt vmcnt(0)
    s_barrier
    s_cmp_lg_u32 s5, 3
    s_cbranch_scc1 K2_pw""")
    a(f"""s_lshl_b32 s6, s3, 2
    v_mov_b32 v14, s6
    v_mov_b32 v15, 1
    s_mov_b64 exec, 1
    buffer_store_dword v15, v14, {W}, s74 offen sc1
    s_mov_b64 exec, -1
    s_cmp_ge_u32 s3, 24
    s_cbranch_scc1 K2_done
    v_lshlrev_b32 v14, 2, v0""")
    mega.spin(a, "K2_pp", f"buffer_load_dword v15, v14, {W}, s74 offen sc1", 1, lanes=32, sleep=1)
    a("s_barrier\n s_endpgm")
    a.label("K2_pw")
    a("s_cmp_ge_u32 s3, 24\n s_cbranch_scc1 K2_end\n s_barrier")
    stamp(a, 7)

    def reads_p(ks, b):
        f = FR + 12 * b
        return [f"ds_read_b64_tr_b16 {vr(f, 2)}, v{WA+ks}", f"ds_read_b64_tr_b16 {vr(f+2, 2)}, " + (f"v{WA+ks} offset:768" if ks < 2 else f"v{WA+3}"),
                f"ds_read_b128 {vr(f+4, 4)}, v{XA} offset:{2048*ks}", f"ds_read_b128 {vr(f+8, 4)}, v{XA} offset:{2048*ks+512}"]

    def mfmas_t(n, b, init=True):
        f = FR + 12 * b
        return [f"{MF} {vr(ACC+16*tt, 16)}, {vr(f, 4)}, {vr(f+4+4*tt, 4)}, {vr(ACC+16*tt, 16) if n or not init else 0}" for tt in range(2)]
    G.consumer2(a, 3, reads_p, mfmas_t, lambda ks: [WA + ks] + ([XA, WA + 3] if ks == 2 else []), depth=2, bar_ks=0, per_gap=3, nst=16, stage=SP, ring=RP)
    a("s_nop 10")
    G.out_tiles(a, [(ACC + 16 * tt, 12 + tt, 0) for tt in range(2)])
    a.label("K2_end")
    if OPT["stamps"]:
        a("s_memrealtime s[86:87]")
    G.stamp_store(a, 0, 8)
    a.label("K2_done")
    a("s_endpgm")
    a.label("K2_slow")
    for ps in range(2):
        a("s_mov_b32 s6, 0")
        if ps == 0:
            a("v_mov_b32 v7, 0xff800000")
        else:
            for i in range(16):
                a(f"v_mov_b32 v{OA+i}, 0")
        a.label(f"K2_sl{ps}")
        st = len(a.lines)
        a(f"""s_lshr_b32 s7, s6, 2
        s_mul_i32 s7, s7, {CH}
        s_add_u32 s7, s7, s75
        s_and_b32 s68, s6, 3
        s_mul_i32 s70, s68, {8*VG}
        s_add_u32 s70, s70, s7
        s_lshr_b32 s69, s68, 1
        s_lshl_b32 s69, s69, 9
        s_add_u32 s69, s69, s7
        s_bitcmp1_b32 s6, 0
        s_cselect_b32 s71, 8, 0
        s_add_u32 s69, s69, s71
        s_lshl_b32 s68, s68, 10
        s_add_u32 s68, s68, s7
        buffer_load_dwordx4 {vr(KF, 4)}, v{AK}, {W}, s68 offen sc1
        buffer_load_dwordx4 {vr(KF + 4, 4)}, v{AK}, {W}, s68 offen offset:512 sc1
        buffer_load_dwordx2 {vr(KX, 2)}, v{AX}, {W}, s69 offen sc1""")
        if ps:
            for i in range(4):
                a(f"buffer_load_dwordx4 {vr(VF + 4*i, 4)}, v{AV}, {W}, s70 offen offset:{2*i*VG} sc1")
        a(f"s_waitcnt vmcnt(0)\n{mA(0, 0)}\n{mA(0, 1)}\n{mB(0, 0)}\n{mB(0, 1)}\n s_nop 15")
        for j in range(2):
            s = S(0, j)
            if ps == 0:
                for i in range(0, 16, 2):
                    a(f"v_max3_f32 v7, v7, v{s+i}, v{s+i+1}")
            else:
                for i in range(16):
                    a(f"v_sub_f32 v{s+i}, v{s+i}, v7")
                for i in range(16):
                    a(f"v_exp_f32 v{s+i}, v{s+i}")
                a("s_nop 0")
                for k in range(8):
                    a(f"v_cvt_pk_bf16_f32 v{PP+k}, v{s+2*k}, v{s+2*k+1}")
                a(f"s_nop 1\n{mP(0, j, 0)}\n{mP(0, j, 1)}")
        a(f"""s_add_u32 s6, s6, 1
        s_cmp_lt_u32 s6, 32
        s_cbranch_scc1 K2_sl{ps}""")
        a.loops.append(a.lines[st:])
        if ps == 0:
            a("""v_mov_b32 v8, v7
            s_nop 1
            v_permlane32_swap_b32 v7, v8
            s_nop 1
            v_max_f32 v7, v7, v8""")
    a(f"""s_nop 15
    v_cndmask_b32 v6, v{OA+10}, v{OA+12}, s[8:9]
    s_branch K2_fin""")


def cstep(a, nr, ni, lr, li, er, ei, xr, xi):
    a(f"""v_fma_f32 v{nr}, v{lr}, v{er}, v{xr}
    v_fma_f32 v{ni}, v{lr}, v{ei}, v{xi}
    v_fma_f32 v{nr}, -v{li}, v{ei}, v{nr}
    v_fma_f32 v{ni}, v{li}, v{er}, v{ni}""")


def ssm(a):
    OPT, PLB = G.OPT, G.PLB
    stamp = G.stamp
    W = f"s[{G.SRDW}:{G.SRDW+3}]"
    ACC, FR, XA, WA = 64, 32, 24, 28
    a.label("K2_ssm")
    WB, WS_ = 32768, 12288
    a(f"""s_sub_u32 s7, s47, 20
    s_and_b32 s4, s6, 1
    s_mul_i32 s4, s4, 3
    s_lshr_b32 s3, s7, 2
    s_add_u32 s4, s4, s3
    s_and_b32 s7, s7, 3
    s_lshr_b32 s3, s6, 1
    s_lshl_b32 s3, s3, 2
    s_add_u32 s3, s3, s7
    s_setprio {OPT.get("prio", 1)}
    s_nop 0""")
    pf_setup(a, 47)
    if OPT.get("pf1", 1):
        pf_item(a, "s", OPT.get("pfs", 0), 7)
    G.srd(a, G.SRD1, G.P_BX, 2048 * 1152)
    G.srd(a, G.SRD2A, G.P_BRE, 576 * 1152)
    G.srd(a, G.SRD2B, G.P_BIM, 576 * 1152)
    a("s_mov_b32 s6, s5")
    G.rows_voff(a, 6, 1152, 8)
    a(f"""s_mul_i32 s68, s3, {128*1152}
    s_mul_i32 s69, s4, {96*1152}
    s_lshl_b32 s76, s5, 10
    s_and_b32 s77, s5, 3
    s_lshl_b32 s77, s77, 10
    s_lshr_b32 s71, s5, 2
    s_lshl_b32 s70, s71, 5
    s_sub_u32 s70, 64, s70
    s_mul_i32 s70, s70, 1152
    s_add_u32 s70, s70, s69
    s_mul_i32 s6, s4, 3
    s_lshr_b32 s6, s6, 1
    s_and_b32 s7, s3, 1
    s_lshl_b32 s7, s7, 2
    s_add_u32 s6, s6, s7
    s_sub_u32 s7, s6, 9
    s_cmp_ge_u32 s6, 9
    s_cselect_b32 s6, s7, s6
    s_mul_i32 s78, s6, {128 if OPT.get("rots", 0) else 0}""")
    uid = [0]

    def issue(h):
        if h >= 18:
            return []
        xs, d, base = h >> 1, G.SRD2B if h & 1 else G.SRD2A, WB + (h & 3) * WS_
        uid[0] += 1
        r = [f"""s_add_u32 m0, s76, {(xs & 1) * 16384 + 8192*j}
            s_add_u32 s7, s68, s78
            {f"s_add_u32 s7, s7, {64*1152}" if j else ""}
            buffer_load_dwordx4 v6, s[{G.SRD1}:{G.SRD1+3}], s7 offen lds""" for j in range(2)] if h % 2 == 0 else []
        return r + [f"""s_add_u32 m0, s76, {base}
            s_add_u32 s7, s69, s78
            buffer_load_dwordx4 v6, s[{d}:{d+3}], s7 offen lds""",
                    f"""s_cmp_eq_u32 s71, {h & 1}
            s_cbranch_scc0 S_sk{uid[0]}
            s_add_u32 m0, s77, {base + 8192}
            s_add_u32 s7, s70, s78
            buffer_load_dwordx4 v6, s[{d}:{d+3}], s7 offen lds
            S_sk{uid[0]}:""" + ("""
            s_add_u32 s78, s78, 128
            s_cmp_eq_u32 s78, 1152
            s_cselect_b32 s78, 0, s78""" if h & 1 else "")]

    def vm(h):
        return 0 if h == 17 else (3 if h & 1 else 1)
    a(f"""s_cmp_lt_u32 s5, 6
    s_cbranch_scc1 K2_sc
    s_waitcnt vmcnt(0)
    s_barrier""")
    for x in issue(0) + issue(1):
        a(x)
    for h in range(18):
        a(f"s_waitcnt vmcnt({vm(h)})\n s_barrier")
        for x in issue(h + 2):
            a(x)
    a("s_barrier\n s_endpgm")
    a.label("K2_sc")
    G.srd(a, G.SRDW, G.P_WS, G.WS_END)
    G.lane_parts(a)
    PR = 8
    a(f"""s_cmp_ge_u32 s5, 3
    s_cselect_b32 s14, 1, 0
    s_mul_i32 s15, s14, 3
    s_sub_u32 s15, s5, s15
    s_mul_i32 s46, s4, 96
    s_lshl_b32 s6, s15, 5
    s_add_u32 s46, s46, s6
    v_add_u32 v3, s46, v1
    v_lshlrev_b32 v3, 1, v3
    global_load_ushort v{PR}, v3, s[{G.P_LRE}:{G.P_LRE+1}]
    global_load_ushort v{PR+1}, v3, s[{G.P_LIM}:{G.P_LIM+1}]
    global_load_ushort v{PR+2}, v3, s[{G.P_LDT}:{G.P_LDT+1}]
    v_bfe_u32 v5, v1, 1, 1
    v_lshrrev_b32 v4, 3, v1
    v_lshl_add_u32 v5, v4, 1, v5
    v_and_b32 v4, 1, v1
    v_lshl_add_u32 v5, v4, 4, v5
    v_and_b32 v4, 4, v1
    v_lshl_add_u32 v5, v4, 3, v5
    s_lshl_b32 s7, s14, 13""")
    XA, WA = 24, 28
    G.row_addr(a, XA, 5, "s7", 4)
    a(f"s_lshl_b32 s7, s15, 12\n s_add_u32 s7, s7, {WB}")
    G.row_addr(a, WA, 1, "s7", 4)
    a("s_waitcnt vmcnt(3)\n s_barrier")
    for x in issue(0) + issue(1):
        a(x)
    a("s_waitcnt vmcnt(5)")
    p = PR
    a(f"""s_mov_b32 s12, {G.f2u(G.LOG2E)}
    v_lshlrev_b32 v{p}, 16, v{p}
    v_lshlrev_b32 v{p+1}, 16, v{p+1}
    v_lshlrev_b32 v{p+2}, 16, v{p+2}
    v_mul_f32 v{p+2}, s12, v{p+2}
    v_exp_f32 v{p+2}, v{p+2}
    s_nop 0
    v_cvt_pk_bf16_f32 v{p+2}, v{p+2}, v{p+2}
    v_lshlrev_b32 v{p+2}, 16, v{p+2}
    v_mul_f32 v{p+3}, v{p+2}, v{p}
    v_mul_f32 v{p+2}, v{p+2}, v{p+1}
    v_mul_f32 v{p+3}, s12, v{p+3}
    v_mul_f32 v{p+2}, 0.15915494309189532, v{p+2}
    v_exp_f32 v{p+3}, v{p+3}
    v_fract_f32 v{p+2}, v{p+2}
    v_cos_f32 v{p+4}, v{p+2}
    v_sin_f32 v{p+5}, v{p+2}
    v_mul_f32 v{p+12}, v{p}, v{p}
    v_mul_f32 v{p+4}, v{p+4}, v{p+3}
    v_mul_f32 v{p+5}, v{p+5}, v{p+3}
    v_fma_f32 v{p+12}, v{p+1}, v{p+1}, v{p+12}
    v_rcp_f32 v{p+12}, v{p+12}
    v_add_f32 v{p+13}, -1.0, v{p+4}
    v_mul_f32 v{p+10}, v{p+13}, v{p}
    v_mul_f32 v{p+11}, v{p+5}, v{p}
    v_add_f32 v{p+12}, v{p+12}, v{p+12}
    v_fma_f32 v{p+10}, v{p+5}, v{p+1}, v{p+10}
    v_fma_f32 v{p+11}, -v{p+13}, v{p+1}, v{p+11}
    v_mul_f32 v{p+10}, v{p+10}, v{p+12}
    v_mul_f32 v{p+11}, v{p+11}, v{p+12}""")
    G.cmul(a, p + 12, p + 13, p + 4, p + 5, p + 4, p + 5)
    G.cmul(a, p + 14, p + 15, p + 12, p + 13, p + 12, p + 13)
    G.cmul(a, p + 12, p + 13, p + 14, p + 15, p + 14, p + 15)
    G.cmul(a, p - 4, p - 3, p + 12, p + 13, p + 12, p + 13)
    G.cmul(a, p + 6, p + 7, p - 4, p - 3, p - 4, p - 3)
    G.cmul(a, p + 8, p + 9, p + 6, p + 7, p + 6, p + 7)
    G.cmul(a, p, p + 1, p + 8, p + 9, p + 8, p + 9)
    LR, LI, L16R, L16I, L32R, L32I, L64R, L64I, L128R, L128I, CR, CI = p + 4, p + 5, p - 4, p - 3, p + 6, p + 7, p + 8, p + 9, p, p + 1, p + 10, p + 11
    FX, FW = (32, 44, 56), (40, 52, 20)

    def reads(n, b):
        ks = n & 3
        return [f"ds_read_b128 {vr(FW[b], 4)}, v{WA+ks}", f"ds_read_b128 {vr(FX[b], 4)}, v{XA+ks}",
                f"ds_read_b128 {vr(FX[b]+4, 4)}, v{XA+(ks^2)} offset:1024"]

    def upd2(n):
        h, ks = divmod(n, 4)
        u = [(WA + ks, WS_ if (h + 1) & 3 else -3 * WS_)] if h < 17 else []
        if h & 1 and h < 17 and ks >= 2:
            u += [(XA + k, 16384 if (h >> 1) % 2 == 0 else -16384) for k in (ks - 2, ks)]
        return u

    def mfmas(n, b):
        im = (n >> 2) & 1
        return [f"{MF} {vr(ACC + 32*im + 16*tt, 16)}, {vr(FX[b]+4*tt, 4)}, {vr(FW[b], 4)}, {vr(ACC + 32*im + 16*tt, 16) if n & ~4 else 0}"
                for tt in range(2)]
    stamp(a, 1)
    G.consumer2(a, 4, reads, mfmas, None, depth=2, bar_ks=2, per_gap=3, nst=18, upd2=upd2, by_step=True,
                pre_bar=lambda h: f"s_waitcnt vmcnt({vm(h)}) lgkmcnt(0)", post_bar=lambda h: issue(h + 2), marks=(1, 3, 5, 8, 11, 14, 17))
    stamp(a, 2)
    a("s_setprio 2")

    def pk(d, l, hi, e, x, neg=False):
        return (f"v_pk_fma_f32 {vr(d, 2)}, {vr(l, 2)}, {vr(e, 2)}, {vr(x, 2)} op_sel:[{hi},0,0] op_sel_hi:[{hi},1,1]"
                + (" neg_lo:[1,0,0] neg_hi:[1,0,0]" if neg else ""))

    def pstep(nr, ni, er, ei, xr, xi):
        a("\n".join([pk(nr, LR, 0, er, xr), pk(ni, LR, 0, ei, xi), pk(nr, LR, 1, ei, nr, True), pk(ni, LR, 1, er, ni)]))
    a(f"""s_lshl_b32 s79, s3, 1
    s_add_u32 s79, s79, s14
    v_lshlrev_b32 v3, 3, v1
    s_mul_i32 s13, s3, 4608
    s_lshl_b32 s6, s46, 3
    s_add_u32 s78, s6, {G.ECH_OFF}
    s_add_u32 s13, s13, s78
    s_mul_i32 s75, s79, {8*PLB}
    s_lshl_b32 s6, s46, 4
    s_add_u32 s75, s75, s6
    s_add_u32 s75, s75, {G.XT_OFF}
    s_lshl_b32 s6, s15, 8
    s_add_u32 s6, s6, {WB + 2*WS_}
    v_add_u32 v6, s6, v3""")
    G.srd(a, mega.SRDD, G.P_DBG, 256)
    a(f"v_mov_b32 v62, 0\n buffer_load_dword v63, v62, s[{mega.SRDD}:{mega.SRDD+3}], 0 offen offset:132 sc1")
    e = (ACC, ACC + 32)
    for s_ in range(1, 16):
        n_ = (24, 26) if s_ & 1 else (28, 30)
        pstep(n_[0], n_[1], e[0], e[1], ACC + 2 * s_, ACC + 32 + 2 * s_)
        e = n_
    cstep(a, 20, 21, L16R, L16I, 24, 26, 25, 27)
    a("""v_mov_b32 v28, v20
    v_mov_b32 v29, v21
    v_mov_b32 v30, v20
    v_mov_b32 v31, v21
    s_nop 1
    v_permlane32_swap_b32 v28, v30
    v_permlane32_swap_b32 v29, v31
    s_nop 1""")
    cstep(a, 22, 23, L32R, L32I, 28, 29, 30, 31)
    a(f"""s_cmp_lg_u32 s14, 0
    s_cbranch_scc1 S_x1
    ds_write_b64 v6, v[22:23]""")
    a.label("S_x1")
    a(f"""s_waitcnt vmcnt(0) lgkmcnt(0)
    v_readfirstlane_b32 s6, v63
    s_barrier
    ds_read_b64 v[20:21], v6
    s_cmp_ge_u32 s6, 16
    s_cbranch_scc1 S_ci
    v_mov_b32 v60, v14
    v_mov_b32 v61, v15""")
    mega.wait_init(a, "S_wi")
    a("v_mov_b32 v14, v60\n v_mov_b32 v15, v61")
    a.label("S_ci")
    a(f"""v_mov_b32 v30, 0
    v_mov_b32 v31, 0
    s_mov_b32 s12, 0
    s_waitcnt lgkmcnt(0)
    s_cmp_eq_u32 s14, 0
    s_cbranch_scc1 K2_poll""")
    cstep(a, 62, 63, L64R, L64I, 20, 21, 22, 23)
    a(f"""v_min_u32 v62, -2, v62
    v_min_u32 v63, -2, v63
    s_mov_b64 exec, 0xffffffff
    buffer_store_dwordx2 v[62:63], v3, {W}, s13 offen sc0 sc1
    s_mov_b64 exec, -1""")
    EB = 32
    a.label("K2_poll")
    a("s_mov_b32 s15, s78")
    for c in range(15):
        a(f"""s_cmp_le_u32 s3, {c}
        s_cbranch_scc1 K2_ld
        buffer_load_dwordx2 v[{EB+2*c}:{EB+2*c+1}], v3, {W}, s15 offen sc0 sc1
        s_add_u32 s15, s15, 4608""")
    a.label("K2_ld")
    a("v_mov_b32 v6, 0\n s_waitcnt vmcnt(0)")
    for c in range(15):
        a(f"""s_cmp_le_u32 s3, {c}
        s_cbranch_scc1 K2_ck
        v_max3_u32 v6, v6, v{EB+2*c}, v{EB+2*c+1}""")
    a.label("K2_ck")
    a(f"""v_cmp_eq_u32 vcc, -1, v6
    s_add_u32 s12, s12, 1
    s_cbranch_vccz K2_got
    s_sleep {OPT.get("psleep", 4)}
    s_cmp_lt_u32 s12, 0x40000
    s_cbranch_scc1 K2_poll""")
    a.label("K2_got")
    for c in range(15):
        a(f"s_cmp_le_u32 s3, {c}\n s_cbranch_scc1 K2_h{c}")
        cstep(a, EB + 2 * c, EB + 2 * c + 1, L128R, L128I, EB + 2 * c - 2, EB + 2 * c - 1, EB + 2 * c, EB + 2 * c + 1)
    for c in range(15, 0, -1):
        if c < 15:
            a.label(f"K2_h{c}")
        a(f"v_mov_b32 v30, v{EB+2*c-2}\n v_mov_b32 v31, v{EB+2*c-1}")
        if c > 1:
            a("s_branch K2_h0")
    a.label("K2_h0")
    stamp(a, 3)
    a("s_cmp_eq_u32 s14, 0\n s_cbranch_scc1 S_c0")
    cstep(a, 22, 23, L64R, L64I, 30, 31, 20, 21)
    a("v_mov_b32 v30, v22\n v_mov_b32 v31, v23")
    a.label("S_c0")
    cstep(a, 22, 23, L32R, L32I, 30, 31, 28, 29)
    a(f"""v_cndmask_b32 v28, v30, v22, s[8:9]
    v_cndmask_b32 v30, v31, v23, s[8:9]
    v_mul_u32_u24 v6, {4*PLB}, v2
    v_lshl_add_u32 v6, v1, 4, v6""")
    cstep(a, 29, 31, L16R, L16I, 28, 30, 24, 26)
    g = (28, 30)
    HO = 32
    for s_ in range(16):
        nr, ni = ACC + 2 * s_, ACC + 32 + 2 * s_
        pstep(nr, ni, g[0], g[1], nr, ni)
        o = 20 + 4 * (s_ & 1)
        a(f"""v_pk_mul_f32 {vr(o, 2)}, {vr(CR, 2)}, {vr(nr, 2)} op_sel:[0,0] op_sel_hi:[0,1]
        v_pk_mul_f32 {vr(o+2, 2)}, {vr(CR, 2)}, {vr(ni, 2)} op_sel:[0,0] op_sel_hi:[0,1] neg_lo:[1,0] neg_hi:[1,0]
        {pk(o, CR, 1, ni, o, True)}
        {pk(o+2, CR, 1, nr, o+2, True)}""")
        if s_ & 1:
            k = s_ >> 1
            a(f"""v_cvt_pk_bf16_f32 v{HO+k}, v20, v24
            v_cvt_pk_bf16_f32 v{HO+8+k}, v21, v25
            v_cvt_pk_bf16_f32 v{HO+16+k}, v22, v26
            v_cvt_pk_bf16_f32 v{HO+24+k}, v23, v27""")
        if s_ & 7 == 7:
            for ch in range(2):
                pl = 2 * ch + (s_ >> 3)
                a(f"""s_add_u32 s6, s75, {pl*PLB}
                s_add_u32 s7, s75, {pl*PLB + 576*16}
                buffer_store_dwordx4 {vr(HO+4*pl, 4)}, v6, {W}, s6 offen sc0 sc1
                buffer_store_dwordx4 {vr(HO+16+4*pl, 4)}, v6, {W}, s7 offen sc0 sc1""")
        g = (nr, ni)
    stamp(a, 4)
    a(f"""s_lshl_b32 s74, s79, 7
    s_lshr_b32 s6, s46, 3
    s_add_u32 s74, s74, s6
    s_add_u32 s74, s74, {G.FLG_OFF}
    v_mov_b32 v14, 0
    v_mov_b32 v15, 1
    s_mov_b64 exec, 1
    s_waitcnt vmcnt(0)
    buffer_store_dword v15, v14, {W}, s74 offen sc1""")
    if OPT["stamps"] == 4:
        a("s_memrealtime s[94:95]")
    a("s_branch G2_end")
    a.label("G2x")
    a("s_mov_b64 exec, -1")
    a.label("G2")
    XA, WA, FR = 20, 24, 28
    S3 = 24576
    G.srd(a, G.SRDW, G.P_WS, G.WS_END)
    a(f"""s_cmp_ge_u32 s47, 18
    s_cbranch_scc1 G2_end
    s_setprio 2
    s_and_b32 s6, s2, 7
    s_lshl_b32 s3, s6, 1
    s_and_b32 s7, s47, 1
    s_add_u32 s3, s3, s7
    s_lshr_b32 s4, s47, 1
    s_cmp_lt_u32 s5, 4
    s_cbranch_scc1 G2_c""")
    G.srd(a, G.SRD2A, G.P_CRE, 576 * 1152)
    G.srd(a, G.SRD2B, G.P_CIM, 576 * 1152)
    a("s_sub_u32 s6, s5, 4")
    G.rows_voff(a, 1, 1152, 8)
    a(f"""s_mul_i32 s69, s4, {64*1152}
    s_lshl_b32 s76, s6, 10
    s_lshl_b32 s77, s6, 11
    v_lshrrev_b32 v8, 3, v0
    v_mul_u32_u24 v8, {PLB}, v8
    v_lshrrev_b32 v9, 2, v0
    v_and_b32 v9, 4, v9
    v_and_b32 v10, 7, v0
    v_xor_b32 v9, v9, v10
    s_lshl_b32 s7, s6, 3
    v_add_u32 v9, s7, v9
    v_lshl_add_u32 v4, v9, 4, v8
    s_mul_i32 s68, s3, {16*PLB}
    s_add_u32 s68, s68, {G.XT_OFF}
    s_cmp_lg_u32 s5, 4
    s_cbranch_scc1 G2_l""")
    mega.wait_init(a, "G2_wi")
    a(f"""s_lshl_b32 s74, s3, 8
    s_add_u32 s74, s74, {G.FLG_OFF}
    v_lshlrev_b32 v14, 2, v0
    v_add_u32 v15, 56, v14
    v_cmp_lt_u32 vcc, 17, v0
    s_nop 1
    v_cndmask_b32 v14, v14, v15, vcc""")
    mega.spin(a, "G2_p", f"buffer_load_dword v15, v14, {W}, s74 offen sc1", 1, lanes=36, sleep=OPT.get("gsleep", 8))
    a.label("G2_l")
    a("s_waitcnt vmcnt(0)\n s_barrier")

    def issue_r(st):
        base = (st % 3) * S3
        kb, im = st >> 1, st & 1
        d = G.SRD2B if im else G.SRD2A
        for j in range(2):
            a(f"""s_add_u32 m0, s76, {base + 16384 + 4096*j}
            s_add_u32 s7, s69, {32*1152*j + 128*kb}
            buffer_load_dwordx4 v1, s[{d}:{d+3}], s7 offen lds""")
        for j in range(2):
            for hf in range(2):
                a(f"""s_add_u32 m0, s77, {base + 8192*j + 1024*hf}
                s_add_u32 s7, s68, {(576*im + 64*kb + 32*j) * 16 + 8*PLB*hf}
                buffer_load_dwordx4 v4, {W}, s7 offen sc0 sc1 lds""")
    tail_loader(a, 18, issue_r, per=6, end=False)
    G.stamp_store(a, 0, 8)
    a("s_endpgm")
    a.label("G2_c")
    G.lane_parts(a)
    a(f"""s_and_b32 s14, s5, 1
    s_lshr_b32 s15, s5, 1
    s_lshl_b32 s79, s3, 1
    s_add_u32 s79, s79, s14
    s_lshl_b32 s46, s4, 1
    s_add_u32 s46, s46, s15
    s_lshl_b32 s46, s46, 5
    v_lshlrev_b32 v3, 3, v2
    s_lshl_b32 s6, s46, 1
    v_add_u32 v3, s6, v3
    s_lshl_b32 s6, s79, 6
    v_add_u32 v4, s6, v1
    v_mul_u32_u24 v4, 1152, v4
    v_add_u32 v4, v4, v3
    v_add_u32 v5, {32*1152}, v4""")
    for i in range(4):
        a(f"global_load_dwordx2 v[{96+2*i}:{97+2*i}], v3, s[{G.P_DSK}:{G.P_DSK+1}] offset:{16*i}")
    for tt in range(2):
        for i in range(4):
            a(f"global_load_dwordx2 v[{104+8*tt+2*i}:{105+8*tt+2*i}], v{4+tt}, s[{G.P_BX}:{G.P_BX+1}] offset:{16*i}")
    G.srd(a, G.SRDO, G.P_OUT, 2048 * 4608)
    a(f"""v_bfe_u32 v6, v0, 4, 1
    v_mul_u32_u24 v6, 320, v6
    v_lshl_add_u32 v6, v2, 11, v6
    s_lshl_b32 s7, s14, 10
    v_add_u32 v6, s7, v6
    v_and_b32 v7, 2, v0
    v_lshl_add_u32 v6, v7, 6, v6
    v_and_b32 v7, 12, v0
    v_lshl_add_u32 v6, v7, 2, v6
    v_and_b32 v7, 1, v0
    v_lshl_add_u32 v{WA}, v7, 3, v6
    v_xor_b32 v{WA+1}, 64, v{WA}
    s_lshl_b32 s7, s15, 12
    s_add_u32 s7, s7, 16384""")
    G.row_addr(a, XA, 1, "s7", 8)
    a(G.out_addr(a, 8192, 0).replace("s_add_u32 s7, s7, 0", f"s_cmp_eq_u32 s5, 3\n s_cselect_b32 s7, {3*S3}, s7"))
    a(f"""s_mul_i32 s6, s79, {64*4608}
    s_lshl_b32 s7, s46, 2
    s_add_u32 s6, s6, s7
    s_add_u32 s12, s6, 2304
    s_add_u32 s13, s12, {32*4608}
    s_mov_b32 s14, 0xffff0000
    s_waitcnt vmcnt(0)""")
    for k in range(8):
        a(f"v_lshlrev_b32 v{32+2*k}, 16, v{96+k}\n v_and_b32 v{33+2*k}, s14, v{96+k}")
    for tt in range(2):
        for k in range(8):
            A = ACC + 16 * tt + 2 * k
            a(f"""v_lshlrev_b32 v{A}, 16, v{104+8*tt+k}
            v_and_b32 v{A+1}, s14, v{104+8*tt+k}
            v_mul_f32 v{A}, v{A}, v{32+2*k}
            v_mul_f32 v{A+1}, v{A+1}, v{33+2*k}""")
    a(f"s_setprio {OPT.get('prio3', 0)}\n s_barrier")
    stamp(a, 5)

    def reads_r(ks, b):
        f = FR + 12 * b
        r = [f"ds_read_b128 {vr(f, 4)}, v{XA+ks}"]
        for tt in range(2):
            for e in range(2):
                r.append(f"ds_read_b64_tr_b16 {vr(f+4+4*tt+2*e, 2)}, v{WA+e} offset:{4096*ks+512*tt}")
        return r

    def mfmas_r(n, b):
        f = FR + 12 * b
        return [f"{MF} {vr(ACC+16*tt, 16)}, {vr(f, 4)}, {vr(f+4+4*tt, 4)}, {vr(ACC+16*tt, 16)}" for tt in range(2)]
    G.consumer2(a, 4, reads_r, mfmas_r, lambda ks: [XA + ks] + ([WA, WA + 1] if ks == 3 else []), depth=2, bar_ks=2, per_gap=3, nst=18, stage=S3, ring=3,
                pre_bar=lambda st: "s_waitcnt lgkmcnt(0)")
    stamp(a, 6)
    a("s_setprio 2\n s_nop 9")
    G.out_tiles(a, [(ACC + 16 * tt, 12 + tt, 0) for tt in range(2)])
    a.label("G2_end")
    stamp(a, 7)
    G.stamp_store(a, 0, 8)
    a.label("K2_last")
    a("s_endpgm")
```

```python
import gen as G
from asmlib import Asm, vr

MF = "v_mfma_f32_32x32x16_bf16"
MF8 = "v_mfma_f32_32x32x8bf16_1k"
OA, PP, KF, KX, VF, QB, AK, AX, AV, NK, NX, NV = 48, 64, 72, 80, 88, 104, 112, 113, 114, 115, 116, 117


def S(q, j):
    return 16 + 16 * (j & 1)


def k2(a):
    a.label("k2_kernel")
    G.stamp(a, 0)
    a("""s_cmp_ge_u32 s2, 448
    s_cbranch_scc1 K2_done""")
    G.load_args(a)
    a("""v_lshrrev_b32 v1, 6, v0
    v_and_b32 v0, 63, v0
    s_cmp_ge_u32 s2, 256
    v_readfirstlane_b32 s5, v1
    s_cbranch_scc1 K2_ssm""")
    attention(a)
    ssm(a)


ST2 = 20480


def tail_loader(a, nst, issue, per=5, pre=2, end=True):
    for st in range(pre):
        issue(st)
    for st in range(nst):
        a(f"s_waitcnt vmcnt({per * min(pre - 1, nst - 1 - st)})\n s_barrier")
        if st + pre < nst:
            issue(st + pre)
    if end:
        a("s_endpgm")


def poll(a, tag, off, target, sleep=2):
    W = f"s[{G.SRDW}:{G.SRDW+3}]"
    a(f"s_mov_b64 exec, 1\n v_mov_b32 v14, 0\n s_mov_b32 s72, 0")
    a.label(tag)
    a(f"""buffer_load_dword v15, v14, {W}, s{off} offen sc0 sc1
    s_waitcnt vmcnt(0)
    v_readfirstlane_b32 s73, v15
    s_add_u32 s72, s72, 1
    s_cmp_ge_u32 s73, {target}
    s_cbranch_scc1 {tag}_ok
    s_sleep {sleep}
    s_cmp_lt_u32 s72, 0x100000
    s_cbranch_scc1 {tag}""")
    a.label(tag + "_ok")
    a("s_mov_b64 exec, -1")


def arrive(a, off):
    W = f"s[{G.SRDW}:{G.SRDW+3}]"
    a(f"""s_mov_b64 exec, 1
    v_mov_b32 v14, 0
    v_mov_b32 v15, 1
    buffer_atomic_add v15, v14, {W}, s{off} offen sc1
    s_mov_b64 exec, -1""")


def pf_item(a, tag, add, dummy):
    SRD1, SRD2A = G.SRD1, G.SRD2A
    a(f"""s_add_u32 s13, s12, {add}
    s_mul_i32 s14, s13, 2850
    s_lshr_b32 s14, s14, 16
    s_mul_i32 s15, s14, 23
    s_sub_u32 s15, s13, s15
    s_cmp_ge_u32 s13, 207
    s_cbranch_scc1 P_n{tag}
    s_cmp_lt_u32 s15, 8
    s_cbranch_scc0 P_w{tag}
    s_lshr_b32 s68, s6, 1
    s_lshl_b32 s68, s68, 3
    s_add_u32 s15, s15, s68
    s_mul_i32 s15, s15, {64*1152}
    s_lshl_b32 s14, s14, 7
    s_add_u32 s15, s15, s14
    buffer_load_dword v{dummy}, v1, s[{SRD1}:{SRD1+3}], s15 offen
    s_branch P_n{tag}""")
    a.label(f"P_w{tag}")
    a(f"""s_and_b32 s69, s6, 1
    s_mul_i32 s69, s69, 15
    s_add_u32 s15, s15, s69
    s_sub_u32 s15, s15, 8
    s_mul_i32 s14, s14, {64*3456}
    s_cmp_lt_u32 s15, 27
    s_cselect_b32 s14, s14, {0x7f000000}
    s_lshl_b32 s15, s15, 7
    s_add_u32 s15, s15, s14
    buffer_load_dword v{dummy}, v2, s[{SRD2A}:{SRD2A+3}], s15 offen""")
    a.label(f"P_n{tag}")


def pf_setup(a, ireg, first=20):
    a(f"""s_sub_u32 s12, s{ireg}, {first}
    s_lshl_b32 s12, s12, 3
    s_add_u32 s12, s12, s5
    v_mul_u32_u24 v1, 1152, v0
    v_mul_u32_u24 v2, 3456, v0
    s_waitcnt lgkmcnt(0)""")
    G.srd(a, G.SRD1, G.P_AX, 2048 * 1152)
    G.srd(a, G.SRD2A, G.P_WQKV, 576 * 3456)


def warm_mall(a):
    D = G.SRD2B
    a(f"""s_lshl_b32 s12, s5, 8
    s_add_u32 s12, s12, s2
    s_sub_u32 s12, s12, 256
    v_lshlrev_b32 v3, 7, v0
    s_mov_b32 s{D+3}, 0x00020000
    s_waitcnt lgkmcnt(0)
    s_mov_b64 s[{D}:{D+1}], s[{G.P_AX}:{G.P_AX+1}]
    s_mov_b32 s{D+2}, {2048*1152}
    s_mov_b32 s13, 0""")
    for first, p, n in ((576, G.P_WQKV, 576 * 3456), (1062, G.P_BX, 2048 * 1152), (1638, G.P_BRE, 576 * 1152), (1800, G.P_BIM, 576 * 1152)):
        a(f"""s_cmp_ge_u32 s12, {first}
        s_cselect_b32 s{D}, s{p}, s{D}
        s_cselect_b32 s{D+1}, s{p+1}, s{D+1}
        s_cselect_b32 s{D+2}, {n}, s{D+2}
        s_cselect_b32 s13, {first}, s13""")
    a(f"""s_sub_u32 s12, s12, s13
    s_lshl_b32 s12, s12, 12
    s_mov_b64 exec, 0xffffffff
    buffer_load_dword v118, v3, s[{D}:{D+3}], s12 offen
    s_mov_b64 exec, -1""")


def prefetch_att(a):
    SRD1 = G.SRD1
    a("""s_bfe_u32 s7, s2, 0x50003
    s_cmp_lt_u32 s7, 20
    s_cbranch_scc1 P_x""")
    pf_setup(a, 7)
    if G.OPT.get("pf1", 1):
        if not G.OPT.get("pfe", 1):
            pf_item(a, "a", 96 + G.OPT.get("pfs", 0), 118)
        if G.OPT.get("pfs", 0) < 15:
            pf_item(a, "b", 192 + G.OPT.get("pfs", 0), 118)
    if G.OPT.get("pfc", 2) == 1:
        a("s_getpc_b64 s[14:15]")
        a.label("K1_pc")
        a(f"""s_lshl_b32 s13, s12, 10
        s_sub_u32 s14, s14, K1_pc-{mega.NAME}
        s_subb_u32 s15, s15, 0
        v_and_b32 v10, 7, v0
        v_lshl_add_u32 v10, v10, 7, s13
        v_min_u32 v10, K2_last-{mega.NAME}, v10
        v_mov_b32 v11, s15
        v_add_co_u32 v10, vcc, s14, v10
        s_nop 1
        v_addc_co_u32 v11, vcc, 0, v11, vcc
        global_load_dword v118, v[10:11], off""")
    a(f"""s_lshr_b32 s68, s6, 1
    s_mul_i32 s68, s68, {512*1152}
    s_and_b32 s71, s6, 1
    s_mul_i32 s71, s71, {288*1152}
    v_min_u32 v2, 31, v0
    v_mul_u32_u24 v2, 1152, v2""")
    for k in range(2 if G.OPT.get("pf2", 1) else 0):
        a(f"""s_add_u32 s13, s12, {96*k}
        s_mul_i32 s14, s13, 3641
        s_lshr_b32 s14, s14, 16
        s_mul_i32 s15, s14, 18
        s_sub_u32 s15, s13, s15
        s_lshl_b32 s14, s14, 7
        s_cmp_ge_u32 s13, 162
        s_cbranch_scc1 P_x
        s_cmp_lt_u32 s15, 13
        s_cselect_b32 s{SRD1}, s{G.P_BRE}, s{G.P_BIM}
        s_cselect_b32 s{SRD1+1}, s{G.P_BRE+1}, s{G.P_BIM+1}
        s_cselect_b32 s69, 8, 13
        s_mov_b32 s{SRD1+2}, {576*1152}
        s_mov_b32 s70, s71
        s_cmp_lt_u32 s15, 8
        s_cselect_b32 s{SRD1}, s{G.P_BX}, s{SRD1}
        s_cselect_b32 s{SRD1+1}, s{G.P_BX+1}, s{SRD1+1}
        s_cselect_b32 s{SRD1+2}, {2048*1152}, s{SRD1+2}
        s_cselect_b32 s69, 0, s69
        s_cselect_b32 s70, s68, s70
        s_cmp_eq_u32 s15, 12
        s_cselect_b64 vcc, -1, 0
        s_cmp_eq_u32 s15, 17
        s_cselect_b64 vcc, -1, vcc
        s_sub_u32 s15, s15, s69
        s_mul_i32 s15, s15, {64*1152}
        s_add_u32 s15, s15, s14
        s_add_u32 s15, s15, s70
        v_cndmask_b32 v3, v1, v2, vcc
        buffer_load_dword v118, v3, s[{SRD1}:{SRD1+3}], s15 offen""")
    a.label("P_x")


def attention(a):
    OPT, IMG, CH, VG = G.OPT, G.IMG, G.CH, G.VG
    stamp, stampc = G.stamp, G.stampc
    W = f"s[{G.SRDW}:{G.SRDW+3}]"
    a.label("A_go")
    if OPT.get("wm", 0):
        warm_mall(a)
    prefetch_att(a)
    a(f"""s_and_b32 s3, s2, 7
    s_lshl_b32 s3, s3, 2
    s_bfe_u32 s6, s2, 0x20003
    s_add_u32 s3, s3, s6
    s_bfe_u32 s4, s2, 0x30005
    s_mul_i32 s75, s3, {IMG}
    s_lshl_b32 s13, s5, 10
    s_add_u32 s78, s5, 16
    s_min_u32 s78, s78, 18
    s_lshl_b32 s78, s78, 10
    s_mov_b32 s12, s75
    s_mov_b32 s76, 0
    v_lshlrev_b32 v3, 4, v0""")
    G.lane_parts(a)
    a(f"""s_mul_i32 s14, s4, {CH}
    s_add_u32 s14, s14, s75
    s_add_u32 s14, s14, {G.Q_OFF}
    v_lshlrev_b32 v4, 4, v1
    v_lshl_add_u32 v5, v2, 12, v4
    s_lshl_b32 s6, s5, 9
    v_add_u32 v5, s6, v5
    s_lshr_b32 s6, s5, 2
    s_lshl_b32 s6, s6, 9
    s_and_b32 s7, s5, 3
    s_lshl_b32 s7, s7, 2
    s_add_u32 s6, s6, s7
    s_add_u32 s6, s6, 8192
    v_add_u32 v4, s6, v4
    v_add_u32 v6, s13, v3
    v_add_u32 v7, s78, v3
    s_waitcnt lgkmcnt(0)""")
    G.srd(a, G.SRDW, G.P_WS, G.WS_END)

    def dma(c, k):
        sl, g = (c & 3) * CH, c * CH
        if k < 2:
            return f"""s_add_u32 m0, s13, {sl + 8192*k}
            s_add_u32 s7, s75, {g + 8192*k}
            buffer_load_dwordx4 v6, {W}, s7 offen sc1 lds"""
        return f"""s_add_u32 m0, s78, {sl}
        s_add_u32 s7, s75, {g}
        buffer_load_dwordx4 v7, {W}, s7 offen sc1 lds"""

    a(f"""v_and_b32 v11, 19, v1
    v_and_b32 v12, 4, v1
    v_lshl_add_u32 v11, v12, 1, v11
    v_and_b32 v12, 8, v1
    v_lshrrev_b32 v12, 1, v12
    v_add_u32 v11, v11, v12
    v_lshlrev_b32 v{AX}, 4, v11
    v_lshl_add_u32 v{AK}, v2, 12, v{AX}
    v_add_u32 v{AX}, 8192, v{AX}""")
    a(f"""v_min_u32 v12, 19, v1
    v_cmp_gt_u32 vcc, 16, v1
    v_cmp_eq_u32 s[70:71], 28, v1
    v_mul_u32_u24 v{AV}, {VG}, v2
    v_cndmask_b32 v12, v12, v11, vcc
    s_nop 0
    v_cndmask_b32 v12, v12, 18, s[70:71]
    v_lshl_add_u32 v{AV}, v12, 4, v{AV}
    v_add_u32 v{AV}, 9216, v{AV}
    v_add_u32 v{NK}, {3*CH}, v{AK}
    v_add_u32 v{NX}, {3*CH}, v{AX}
    v_add_u32 v{NV}, {3*CH}, v{AV}
    s_mov_b32 s70, {G.f2u(G.QSCALE)}""")
    for i in range(16):
        a(f"v_mov_b32 v{OA+i}, 0")
    a(f"""s_bfe_u32 s7, s2, 0x50003
    s_lshl_b32 s7, s7, 3
    s_add_u32 s7, s7, s5
    s_cmp_ge_u32 s7, 81
    s_cselect_b32 s48, s{G.P_CIM}, s{G.P_CRE}
    s_cselect_b32 s49, s{G.P_CIM+1}, s{G.P_CRE+1}
    s_cselect_b32 s69, 81, 0
    s_cmp_ge_u32 s7, 162
    s_cselect_b32 s48, s{G.P_WO}, s48
    s_cselect_b32 s49, s{G.P_WO+1}, s49
    s_cselect_b32 s69, 162, s69
    s_sub_u32 s7, s7, s69
    s_lshl_b32 s79, s7, 13
    s_mov_b32 s50, {576*1152}
    s_mov_b32 s51, 0x00020000
    v_lshlrev_b32 v119, 7, v0""")
    a(f"""s_mov_b32 s73, 0xffff0000
    s_cmp_lg_u32 s5, 0
    s_cbranch_scc1 A_w""")
    a(f"s_sleep {OPT.get('asleep0', 127)}")
    mega.wait_init(a, "A_wi")
    a(f"""s_and_b32 s74, s2, 7
    s_mul_i32 s74, s74, 768
    s_add_u32 s74, s74, {G.QF_OFF}
    s_cmp_gt_u32 s3, 10
    s_addc_u32 s6, 0, 0
    s_cmp_gt_u32 s3, 21
    s_addc_u32 s6, s6, 0
    s_lshl_b32 s6, s6, 8
    s_cmp_ge_u32 s3, 10
    s_addc_u32 s7, 0, 0
    s_cmp_ge_u32 s3, 21
    s_addc_u32 s7, s7, 0
    s_lshl_b32 s7, s7, 8
    s_add_u32 s71, s74, s7
    s_add_u32 s74, s74, s6
    v_lshlrev_b32 v14, 2, v0""")
    mega.spin(a, "A_wq", f"buffer_load_dword v15, v14, {W}, s74 offen sc1", 1, lanes=48, sleep=OPT.get("asleep", 4))
    a("s_cmp_eq_u32 s71, s74\n s_cbranch_scc1 A_w")
    mega.spin(a, "A_wr", f"buffer_load_dword v15, v14, {W}, s71 offen sc1", 1, lanes=48, sleep=1)
    a.label("A_w")
    a(f"""s_waitcnt vmcnt(0)
    s_barrier
    s_setprio {OPT.get("prioa", 1)}""")
    stamp(a, 5 if OPT["stamps"] == 4 else 1)
    a(f"""buffer_load_dwordx4 v[{QB}:{QB+3}], v5, {W}, s14 offen sc1
    buffer_load_dword v{QB+4}, v4, {W}, s14 offen sc1""")
    for c in range(4):
        for k in range(3):
            a(dma(c, k))
    a("s_waitcnt vmcnt(12)")
    for q in (QB, QB + 1, QB + 2, QB + 3, QB + 4):
        a(f"""v_lshlrev_b32 v12, 16, v{q}
        v_and_b32 v13, s73, v{q}
        v_mul_f32 v12, s70, v12
        v_mul_f32 v13, s70, v13
        v_cvt_pk_bf16_f32 v{q}, v12, v13""")
    for q in range(1):
        x = QB + 8 * q + 4
        a(f"""v_cndmask_b32 v{x}, v{x}, 0, s[8:9]
        v_mov_b32 v{x+1}, 0
        v_mov_b32 v{x+2}, 0
        v_mov_b32 v{x+3}, v{x}""")
    a(f"s_waitcnt vmcnt({9 if OPT.get('b0', 1) else 6})\n s_barrier")
    stamp(a, 2)
    stampc(a, 5)

    def ad(lo, hi, c, off):
        sl = c & 3
        return (f"v{hi} offset:{off}" if sl == 3 else f"v{lo} offset:{sl * CH + off}")

    def rdK(j):
        return f"ds_read_b128 {vr(KF + 4*(j & 1), 4)}, {ad(AK, NK, j >> 3, (j & 7) * 512)}"

    def rdX(u):
        return f"ds_read_b128 {vr(KX + 4*(u & 1), 4)}, {ad(AX, NX, u >> 1, (u & 1) * 512)}"

    def rdV(j, u):
        return f"ds_read_b128 {vr(VF + 8*(j & 1) + 4*u, 4)}, {ad(AV, NV, j >> 3, (4 * (j & 7) + 2 * u) * VG)}"

    def mA(q, j):
        return f"{MF} {vr(S(q, j), 16)}, {vr(KF + 4*(j & 1), 4)}, {vr(QB + 8*q, 4)}, 0"

    def mB(q, j):
        kx = KX + 4 * ((j >> 2) & 1) + 2 * ((j >> 1) & 1)
        return f"{MF8} {vr(S(q, j), 16)}, {vr(kx, 2)}, {vr(QB + 8*q + 4 + 2*(j & 1), 2)}, {vr(S(q, j), 16)}"

    def mP(q, j, u):
        o = vr(OA + 16 * q, 16)
        return f"{MF} {o}, {vr(VF + 8*(j & 1) + 4*u, 4)}, {vr(PP + 8*q + 4*u, 4)}, {o}"

    a(f"""{rdK(0)}
    {rdX(0)}
    {rdK(1)}
    {rdV(0, 0)}
    {rdV(0, 1)}
    s_waitcnt lgkmcnt(3)
    {mA(0, 0)}
    {mB(0, 0)}
    s_waitcnt lgkmcnt(0)
    s_nop 8""")
    a(".p2align 3")
    pat = "A k v0 e e e e P1 v1 x e e e e B d e e c c c c e e P0 e e e e w n c c c c"
    for jj in range(64):
        c8, j8 = divmod(jj, 8)
        last = jj == 63
        s, P = S(0, jj), PP
        ne = nc = 0
        for tok in pat.split():
            if tok == "e":
                a(f"v_exp_f32 v{s+ne}, v{s+ne}")
                ne += 1
            elif tok == "c":
                a(f"v_cvt_pk_bf16_f32 v{P+nc}, v{s+2*nc}, v{s+2*nc+1}")
                nc += 1
            elif tok == "A" and not last:
                a(mA(0, jj + 1))
            elif tok == "B" and not last:
                a(mB(0, jj + 1))
            elif tok == "P1" and jj:
                a(mP(0, jj - 1, 1))
            elif tok == "P0":
                a(mP(0, jj, 0))
            elif tok == "k" and jj + 2 < 64:
                a(rdK(jj + 2))
            elif tok == "v0" and not last:
                a(rdV(jj + 1, 0))
            elif tok == "v1" and not last:
                a(rdV(jj + 1, 1))
            elif tok == "x" and jj % 4 == 0 and jj < 60:
                a(rdX(jj // 4 + 1))
            elif tok == "d" and jj == OPT.get("wpf", 3):
                a("buffer_load_dword v118, v119, s[48:51], s79 offen")
            elif tok == "d" and j8 < 3 and 1 <= c8 <= 4:
                a(dma(c8 + 3, j8))
            elif tok == "w" and not last:
                if j8 == 7 and c8 <= 5:
                    a(f"s_waitcnt vmcnt({3 if c8 <= 4 else 0}) lgkmcnt(0)")
                elif jj == 2 and OPT.get('b0', 1):
                    a("s_waitcnt vmcnt(6) lgkmcnt(0)")
                else:
                    a("s_waitcnt lgkmcnt(0)")
            elif tok == "n" and not last:
                a("s_barrier" if (j8 == 7 and c8 <= 5) or (jj == 2 and OPT.get('b0', 1)) else "s_nop 0")
    a(f"s_nop 1\n{mP(0, 63, 1)}")
    a.loops = getattr(a, "loops", [])
    stamp(a, 3)
    stampc(a, 6)
    a(f"""s_lshl_b32 s6, s4, 8
    s_lshl_b32 s7, s5, 5
    s_add_u32 s6, s6, s7
    v_add_u32 v4, s6, v1
    v_lshlrev_b32 v4, 4, v4
    v_lshl_add_u32 v5, v2, 15, v4
    s_mul_i32 s12, s3, {3*32768}
    s_add_u32 s12, s12, {G.O_OFF}
    s_add_u32 s13, s12, {2*32768}
    v_mov_b32 v9, 0
    v_mov_b32 v10, 0
    v_mov_b32 v11, 0
    s_mov_b32 s14, {G.f2u(2.0**-60)}
    s_mov_b32 s15, {G.f2u(2.0**60)}
    s_movk_i32 s46, 0x207""")
    a(f"""v_cndmask_b32 v6, v{OA+10}, v{OA+12}, s[8:9]
    v_add_f32 v7, |v{OA}|, |v{OA+1}|""")
    for i in range(2, 10):
        a(f"v_add_f32 v7, v7, |v{OA+i}|")
    a(f"""v_cmp_nle_f32 vcc, s14, v6
    v_cmp_lt_f32 s[68:69], s15, v6
    v_cmp_class_f32 s[70:71], v7, s46
    s_or_b64 vcc, vcc, s[68:69]
    s_or_b64 vcc, vcc, s[70:71]
    {"s_branch K2_slow" if OPT.get("slow") else "s_cbranch_vccnz K2_slow"}""")
    a.label("K2_fin")
    a("v_rcp_f32 v6, v6\n s_nop 0")
    for i in range(10):
        a(f"v_mul_f32 v{OA+i}, v6, v{OA+i}")
    for k in range(5):
        a(f"v_cvt_pk_bf16_f32 v{16+k if k < 4 else 8}, v{OA+2*k}, v{OA+2*k+1}")
    a(f"""buffer_store_dwordx4 v[16:19], v5, {W}, s12 offen sc0 sc1
    s_mov_b64 exec, 0xffffffff
    buffer_store_dwordx4 v[8:11], v4, {W}, s13 offen sc0 sc1
    s_mov_b64 exec, -1
    s_lshl_b32 s74, s4, 7
    s_add_u32 s74, s74, {G.FLG_OFF + 32*128}
    s_mul_i32 s14, s3, 43
    s_lshr_b32 s14, s14, 8
    s_mul_i32 s15, s14, 6
    s_sub_u32 s15, s3, s15
    s_lshl_b32 s6, s4, 2
    s_add_u32 s14, s14, s6""")
    stamp(a, 4)
    ACC, FR, XA, WA = 64, 28, 20, 24
    a("""s_cmp_lt_u32 s5, 4
    s_cbranch_scc1 K2_pc
    s_sub_u32 s6, s5, 4""")
    SP, RP = 13312, 6
    G.srd(a, G.SRD2A, G.P_WO, 576 * 1152)
    a(f"""s_nop 0
    v_lshlrev_b32 v1, 4, v0
    s_lshl_b32 s7, s6, 6""")
    for u in range(2):
        a(f"""v_add_u32 v12, s7, v0
        v_add_u32 v12, {256*u}, v12
        v_min_u32 v12, 431, v12
        v_mul_u32_u24 v13, 5462, v12
        v_lshrrev_b32 v13, 16, v13
        v_mul_u32_u24 v13, {1152 - 192}, v13
        v_lshl_add_u32 v{2+u}, v12, 4, v13""")
    a(f"""s_lshl_b32 s68, s14, 10
    s_lshl_b32 s7, s6, 15
    s_add_u32 s68, s68, s7
    s_add_u32 s68, s68, {G.O_OFF}
    s_mul_i32 s69, s15, 192
    s_lshl_b32 s76, s6, 10
    s_cmp_lt_u32 s6, 2
    s_mov_b32 s70, {0x7f000000}
    s_cselect_b32 s70, {4*32768}, s70
    s_cselect_b32 s71, 1, 0
    s_cmp_lt_u32 s6, 3
    s_cselect_b32 s77, 1, 0
    s_waitcnt vmcnt(0)
    {"s_memrealtime s[86:87]" if OPT["stamps"] == 4 else ""}
    s_barrier
    {"s_memrealtime s[88:89]" if OPT["stamps"] == 4 else ""}
    s_cmp_ge_u32 s3, 24
    s_cbranch_scc1 K2_done""")
    a(f"""s_add_u32 s70, s70, s68
    s_cmp_eq_u32 s77, 0
    s_cselect_b32 s78, {0x7f000000}, 0
    v_add_u32 v3, s78, v3""")

    def slot(mask, here):
        return f"""s_add_u32 s7, s76, {here}
        s_cmp_eq_u32 s{mask}, 0
        s_cselect_b32 m0, {RP*SP}, s7"""

    def issue_w(st):
        base = (st % RP) * SP
        a(f"""s_add_u32 m0, s76, {base + 6144}
        s_add_u32 s72, s69, {36*1152*st}
        buffer_load_dwordx4 v2, s[{G.SRD2A}:{G.SRD2A+3}], s72 offen lds
        {slot(77, base + 6144 + 4096)}
        s_nop 0
        buffer_load_dwordx4 v3, s[{G.SRD2A}:{G.SRD2A+3}], s72 offen lds""")

    def issue_o(st):
        base = (st % RP) * SP
        a(f"""s_add_u32 m0, s76, {base}
        s_add_u32 s72, s68, {6*32768*st}
        buffer_load_dwordx4 v1, {W}, s72 offen sc0 sc1 lds
        {slot(71, base + 4096)}
        s_add_u32 s72, s70, {6*32768*st}
        buffer_load_dwordx4 v1, {W}, s72 offen sc0 sc1 lds""")
    for st in range(4):
        issue_w(st)
    a("s_barrier")
    if OPT["stamps"] == 4:
        a("s_memrealtime s[90:91]")

    def issue_p(st):
        if st >= 4:
            issue_w(st)
        issue_o(st)
    for st in range(4):
        issue_o(st)
    for st in range(16):
        n = (2 * (3 - st) + 4 * st) if st < 4 else 4 * min(3, 15 - st)
        a(f"s_waitcnt vmcnt({n})\n s_barrier")
        if OPT["stamps"] == 4 and st in (0, 5, 15):
            a(f"s_memrealtime s[{94 + 2*(0, 5, 15).index(st)}:{95 + 2*(0, 5, 15).index(st)}]")
        if st + 4 < 16:
            issue_p(st + 4)
    if OPT["stamps"] == 4:
        G.stamp_store(a, 0, 8)
    a("s_endpgm")
    a.label("K2_pc")
    G.srd(a, G.SRDO, G.P_OUT, 2048 * 4608)
    a(f"""v_lshlrev_b32 v{XA}, 4, v1
    v_lshl_add_u32 v{XA}, v2, 10, v{XA}
    v_bfe_u32 v12, v0, 2, 2
    v_and_b32 v13, 3, v0
    v_lshlrev_b32 v13, 3, v13
    v_and_b32 v14, 16, v0
    v_lshl_add_u32 v13, v14, 1, v13
    s_lshl_b32 s7, s5, 6
    s_add_u32 s7, s7, 6144
    v_add_u32 v13, s7, v13
    s_movk_i32 s7, 192""")
    for i, (r0, r1) in enumerate(((0, 8), (16, 18), (26, 34), (30, 38))):
        a(f"""v_mad_u32_u24 v14, v2, {r1 - r0}, v12
        v_add_u32 v14, {r0}, v14
        v_min_u32 v14, 35, v14
        v_mad_u32_u24 v{WA+i}, v14, s7, v13""")
    a(G.out_addr(a, 8192, 0))
    a(f"""s_mul_i32 s6, s14, {64*4608}
    s_mul_i32 s7, s15, 384
    s_add_u32 s6, s6, s7
    s_lshl_b32 s7, s5, 7
    s_add_u32 s12, s6, s7
    s_add_u32 s13, s12, {32*4608}
    s_waitcnt vmcnt(0)
    s_barrier
    s_cmp_lg_u32 s5, 3
    s_cbranch_scc1 K2_pw""")
    a(f"""s_lshl_b32 s6, s3, 2
    v_mov_b32 v14, s6
    v_mov_b32 v15, 1
    s_mov_b64 exec, 1
    buffer_store_dword v15, v14, {W}, s74 offen sc1
    s_mov_b64 exec, -1
    s_cmp_ge_u32 s3, 24
    s_cbranch_scc1 K2_done
    v_lshlrev_b32 v14, 2, v0""")
    mega.spin(a, "K2_pp", f"buffer_load_dword v15, v14, {W}, s74 offen sc1", 1, lanes=32, sleep=1)
    a("s_barrier\n s_endpgm")
    a.label("K2_pw")
    a("s_cmp_ge_u32 s3, 24\n s_cbranch_scc1 K2_end\n s_barrier")
    stamp(a, 7)

    def reads_p(ks, b):
        f = FR + 12 * b
        return [f"ds_read_b64_tr_b16 {vr(f, 2)}, v{WA+ks}", f"ds_read_b64_tr_b16 {vr(f+2, 2)}, " + (f"v{WA+ks} offset:768" if ks < 2 else f"v{WA+3}"),
                f"ds_read_b128 {vr(f+4, 4)}, v{XA} offset:{2048*ks}", f"ds_read_b128 {vr(f+8, 4)}, v{XA} offset:{2048*ks+512}"]

    def mfmas_t(n, b, init=True):
        f = FR + 12 * b
        return [f"{MF} {vr(ACC+16*tt, 16)}, {vr(f, 4)}, {vr(f+4+4*tt, 4)}, {vr(ACC+16*tt, 16) if n or not init else 0}" for tt in range(2)]
    G.consumer2(a, 3, reads_p, mfmas_t, lambda ks: [WA + ks] + ([XA, WA + 3] if ks == 2 else []), depth=2, bar_ks=0, per_gap=3, nst=16, stage=SP, ring=RP)
    a("s_nop 10")
    G.out_tiles(a, [(ACC + 16 * tt, 12 + tt, 0) for tt in range(2)])
    a.label("K2_end")
    if OPT["stamps"]:
        a("s_memrealtime s[86:87]")
    G.stamp_store(a, 0, 8)
    a.label("K2_done")
    a("s_endpgm")
    a.label("K2_slow")
    for ps in range(2):
        a("s_mov_b32 s6, 0")
        if ps == 0:
            a("v_mov_b32 v7, 0xff800000")
        else:
            for i in range(16):
                a(f"v_mov_b32 v{OA+i}, 0")
        a.label(f"K2_sl{ps}")
        st = len(a.lines)
        a(f"""s_lshr_b32 s7, s6, 2
        s_mul_i32 s7, s7, {CH}
        s_add_u32 s7, s7, s75
        s_and_b32 s68, s6, 3
        s_mul_i32 s70, s68, {8*VG}
        s_add_u32 s70, s70, s7
        s_lshr_b32 s69, s68, 1
        s_lshl_b32 s69, s69, 9
        s_add_u32 s69, s69, s7
        s_bitcmp1_b32 s6, 0
        s_cselect_b32 s71, 8, 0
        s_add_u32 s69, s69, s71
        s_lshl_b32 s68, s68, 10
        s_add_u32 s68, s68, s7
        buffer_load_dwordx4 {vr(KF, 4)}, v{AK}, {W}, s68 offen sc1
        buffer_load_dwordx4 {vr(KF + 4, 4)}, v{AK}, {W}, s68 offen offset:512 sc1
        buffer_load_dwordx2 {vr(KX, 2)}, v{AX}, {W}, s69 offen sc1""")
        if ps:
            for i in range(4):
                a(f"buffer_load_dwordx4 {vr(VF + 4*i, 4)}, v{AV}, {W}, s70 offen offset:{2*i*VG} sc1")
        a(f"s_waitcnt vmcnt(0)\n{mA(0, 0)}\n{mA(0, 1)}\n{mB(0, 0)}\n{mB(0, 1)}\n s_nop 15")
        for j in range(2):
            s = S(0, j)
            if ps == 0:
                for i in range(0, 16, 2):
                    a(f"v_max3_f32 v7, v7, v{s+i}, v{s+i+1}")
            else:
                for i in range(16):
                    a(f"v_sub_f32 v{s+i}, v{s+i}, v7")
                for i in range(16):
                    a(f"v_exp_f32 v{s+i}, v{s+i}")
                a("s_nop 0")
                for k in range(8):
                    a(f"v_cvt_pk_bf16_f32 v{PP+k}, v{s+2*k}, v{s+2*k+1}")
                a(f"s_nop 1\n{mP(0, j, 0)}\n{mP(0, j, 1)}")
        a(f"""s_add_u32 s6, s6, 1
        s_cmp_lt_u32 s6, 32
        s_cbranch_scc1 K2_sl{ps}""")
        a.loops.append(a.lines[st:])
        if ps == 0:
            a("""v_mov_b32 v8, v7
            s_nop 1
            v_permlane32_swap_b32 v7, v8
            s_nop 1
            v_max_f32 v7, v7, v8""")
    a(f"""s_nop 15
    v_cndmask_b32 v6, v{OA+10}, v{OA+12}, s[8:9]
    s_branch K2_fin""")


def cstep(a, nr, ni, lr, li, er, ei, xr, xi):
    a(f"""v_fma_f32 v{nr}, v{lr}, v{er}, v{xr}
    v_fma_f32 v{ni}, v{lr}, v{ei}, v{xi}
    v_fma_f32 v{nr}, -v{li}, v{ei}, v{nr}
    v_fma_f32 v{ni}, v{li}, v{er}, v{ni}""")


def ssm(a):
    OPT, PLB = G.OPT, G.PLB
    stamp = G.stamp
    W = f"s[{G.SRDW}:{G.SRDW+3}]"
    ACC, FR, XA, WA = 64, 32, 24, 28
    a.label("K2_ssm")
    WB, WS_ = 32768, 12288
    a(f"""s_sub_u32 s7, s47, 20
    s_and_b32 s4, s6, 1
    s_mul_i32 s4, s4, 3
    s_lshr_b32 s3, s7, 2
    s_add_u32 s4, s4, s3
    s_and_b32 s7, s7, 3
    s_lshr_b32 s3, s6, 1
    s_lshl_b32 s3, s3, 2
    s_add_u32 s3, s3, s7
    s_setprio {OPT.get("prio", 1)}
    s_nop 0""")
    if not OPT.get("pfe", 1):
        pf_setup(a, 47)
        pf_item(a, "s", OPT.get("pfs", 0), 7)
    G.srd(a, G.SRD1, G.P_BX, 2048 * 1152)
    G.srd(a, G.SRD2A, G.P_BRE, 576 * 1152)
    G.srd(a, G.SRD2B, G.P_BIM, 576 * 1152)
    a("s_mov_b32 s6, s5")
    G.rows_voff(a, 6, 1152, 8)
    a(f"""s_mul_i32 s68, s3, {128*1152}
    s_mul_i32 s69, s4, {96*1152}
    s_lshl_b32 s76, s5, 10
    s_and_b32 s77, s5, 3
    s_lshl_b32 s77, s77, 10
    s_lshr_b32 s71, s5, 2
    s_lshl_b32 s70, s71, 5
    s_sub_u32 s70, 64, s70
    s_mul_i32 s70, s70, 1152
    s_add_u32 s70, s70, s69
    s_mul_i32 s6, s4, 3
    s_lshr_b32 s6, s6, 1
    s_and_b32 s7, s3, 1
    s_lshl_b32 s7, s7, 2
    s_add_u32 s6, s6, s7
    s_sub_u32 s7, s6, 9
    s_cmp_ge_u32 s6, 9
    s_cselect_b32 s6, s7, s6
    s_mul_i32 s78, s6, {128 if OPT.get("rots", 0) else 0}""")
    uid = [0]

    def issue(h):
        if h >= 18:
            return []
        xs, d, base = h >> 1, G.SRD2B if h & 1 else G.SRD2A, WB + (h & 3) * WS_
        uid[0] += 1
        r = [f"""s_add_u32 m0, s76, {(xs & 1) * 16384 + 8192*j}
            s_add_u32 s7, s68, s78
            {f"s_add_u32 s7, s7, {64*1152}" if j else ""}
            buffer_load_dwordx4 v6, s[{G.SRD1}:{G.SRD1+3}], s7 offen lds""" for j in range(2)] if h % 2 == 0 else []
        return r + [f"""s_add_u32 m0, s76, {base}
            s_add_u32 s7, s69, s78
            buffer_load_dwordx4 v6, s[{d}:{d+3}], s7 offen lds""",
                    f"""s_cmp_eq_u32 s71, {h & 1}
            s_cbranch_scc0 S_sk{uid[0]}
            s_add_u32 m0, s77, {base + 8192}
            s_add_u32 s7, s70, s78
            buffer_load_dwordx4 v6, s[{d}:{d+3}], s7 offen lds
            S_sk{uid[0]}:""" + ("""
            s_add_u32 s78, s78, 128
            s_cmp_eq_u32 s78, 1152
            s_cselect_b32 s78, 0, s78""" if h & 1 else "")]

    def vm(h):
        return 0 if h == 17 else (3 if h & 1 else 1)
    a(f"""s_cmp_lt_u32 s5, 6
    s_cbranch_scc1 K2_sc
    s_waitcnt vmcnt(0)
    s_barrier""")
    for x in issue(0) + issue(1):
        a(x)
    for h in range(18):
        a(f"s_waitcnt vmcnt({vm(h)})\n s_barrier")
        for x in issue(h + 2):
            a(x)
    a("s_barrier\n s_endpgm")
    a.label("K2_sc")
    G.srd(a, G.SRDW, G.P_WS, G.WS_END)
    G.lane_parts(a)
    PR = 8
    a(f"""s_cmp_ge_u32 s5, 3
    s_cselect_b32 s14, 1, 0
    s_mul_i32 s15, s14, 3
    s_sub_u32 s15, s5, s15
    s_mul_i32 s46, s4, 96
    s_lshl_b32 s6, s15, 5
    s_add_u32 s46, s46, s6
    v_add_u32 v3, s46, v1
    v_lshlrev_b32 v3, 1, v3
    global_load_ushort v{PR}, v3, s[{G.P_LRE}:{G.P_LRE+1}]
    global_load_ushort v{PR+1}, v3, s[{G.P_LIM}:{G.P_LIM+1}]
    global_load_ushort v{PR+2}, v3, s[{G.P_LDT}:{G.P_LDT+1}]
    v_bfe_u32 v5, v1, 1, 1
    v_lshrrev_b32 v4, 3, v1
    v_lshl_add_u32 v5, v4, 1, v5
    v_and_b32 v4, 1, v1
    v_lshl_add_u32 v5, v4, 4, v5
    v_and_b32 v4, 4, v1
    v_lshl_add_u32 v5, v4, 3, v5
    s_lshl_b32 s7, s14, 13""")
    XA, WA = 24, 28
    G.row_addr(a, XA, 5, "s7", 4)
    a(f"s_lshl_b32 s7, s15, 12\n s_add_u32 s7, s7, {WB}")
    G.row_addr(a, WA, 1, "s7", 4)
    a("s_waitcnt vmcnt(3)\n s_barrier")
    for x in issue(0) + issue(1):
        a(x)
    a("s_waitcnt vmcnt(5)")
    p = PR
    a(f"""s_mov_b32 s12, {G.f2u(G.LOG2E)}
    v_lshlrev_b32 v{p}, 16, v{p}
    v_lshlrev_b32 v{p+1}, 16, v{p+1}
    v_lshlrev_b32 v{p+2}, 16, v{p+2}
    v_mul_f32 v{p+2}, s12, v{p+2}
    v_exp_f32 v{p+2}, v{p+2}
    s_nop 0
    v_cvt_pk_bf16_f32 v{p+2}, v{p+2}, v{p+2}
    v_lshlrev_b32 v{p+2}, 16, v{p+2}
    v_mul_f32 v{p+3}, v{p+2}, v{p}
    v_mul_f32 v{p+2}, v{p+2}, v{p+1}
    v_mul_f32 v{p+3}, s12, v{p+3}
    v_mul_f32 v{p+2}, 0.15915494309189532, v{p+2}
    v_exp_f32 v{p+3}, v{p+3}
    v_fract_f32 v{p+2}, v{p+2}
    v_cos_f32 v{p+4}, v{p+2}
    v_sin_f32 v{p+5}, v{p+2}
    v_mul_f32 v{p+12}, v{p}, v{p}
    v_mul_f32 v{p+4}, v{p+4}, v{p+3}
    v_mul_f32 v{p+5}, v{p+5}, v{p+3}
    v_fma_f32 v{p+12}, v{p+1}, v{p+1}, v{p+12}
    v_rcp_f32 v{p+12}, v{p+12}
    v_add_f32 v{p+13}, -1.0, v{p+4}
    v_mul_f32 v{p+10}, v{p+13}, v{p}
    v_mul_f32 v{p+11}, v{p+5}, v{p}
    v_add_f32 v{p+12}, v{p+12}, v{p+12}
    v_fma_f32 v{p+10}, v{p+5}, v{p+1}, v{p+10}
    v_fma_f32 v{p+11}, -v{p+13}, v{p+1}, v{p+11}
    v_mul_f32 v{p+10}, v{p+10}, v{p+12}
    v_mul_f32 v{p+11}, v{p+11}, v{p+12}""")
    G.cmul(a, p + 12, p + 13, p + 4, p + 5, p + 4, p + 5)
    G.cmul(a, p + 14, p + 15, p + 12, p + 13, p + 12, p + 13)
    G.cmul(a, p + 12, p + 13, p + 14, p + 15, p + 14, p + 15)
    G.cmul(a, p - 4, p - 3, p + 12, p + 13, p + 12, p + 13)
    G.cmul(a, p + 6, p + 7, p - 4, p - 3, p - 4, p - 3)
    G.cmul(a, p + 8, p + 9, p + 6, p + 7, p + 6, p + 7)
    G.cmul(a, p, p + 1, p + 8, p + 9, p + 8, p + 9)
    LR, LI, L16R, L16I, L32R, L32I, L64R, L64I, L128R, L128I, CR, CI = p + 4, p + 5, p - 4, p - 3, p + 6, p + 7, p + 8, p + 9, p, p + 1, p + 10, p + 11
    FX, FW = (32, 44, 56), (40, 52, 20)

    def reads(n, b):
        ks = n & 3
        return [f"ds_read_b128 {vr(FW[b], 4)}, v{WA+ks}", f"ds_read_b128 {vr(FX[b], 4)}, v{XA+ks}",
                f"ds_read_b128 {vr(FX[b]+4, 4)}, v{XA+(ks^2)} offset:1024"]

    def upd2(n):
        h, ks = divmod(n, 4)
        u = [(WA + ks, WS_ if (h + 1) & 3 else -3 * WS_)] if h < 17 else []
        if h & 1 and h < 17 and ks >= 2:
            u += [(XA + k, 16384 if (h >> 1) % 2 == 0 else -16384) for k in (ks - 2, ks)]
        return u

    def mfmas(n, b):
        im = (n >> 2) & 1
        return [f"{MF} {vr(ACC + 32*im + 16*tt, 16)}, {vr(FX[b]+4*tt, 4)}, {vr(FW[b], 4)}, {vr(ACC + 32*im + 16*tt, 16) if n & ~4 else 0}"
                for tt in range(2)]
    stamp(a, 1)
    G.consumer2(a, 4, reads, mfmas, None, depth=2, bar_ks=2, per_gap=3, nst=18, upd2=upd2, by_step=True,
                pre_bar=lambda h: f"s_waitcnt vmcnt({vm(h)}) lgkmcnt(0)", post_bar=lambda h: issue(h + 2), marks=(1, 3, 5, 8, 11, 14, 17))
    stamp(a, 2)
    a("s_setprio 2")

    def pk(d, l, hi, e, x, neg=False):
        return (f"v_pk_fma_f32 {vr(d, 2)}, {vr(l, 2)}, {vr(e, 2)}, {vr(x, 2)} op_sel:[{hi},0,0] op_sel_hi:[{hi},1,1]"
                + (" neg_lo:[1,0,0] neg_hi:[1,0,0]" if neg else ""))

    def pstep(nr, ni, er, ei, xr, xi):
        a("\n".join([pk(nr, LR, 0, er, xr), pk(ni, LR, 0, ei, xi), pk(nr, LR, 1, ei, nr, True), pk(ni, LR, 1, er, ni)]))
    a(f"""s_lshl_b32 s79, s3, 1
    s_add_u32 s79, s79, s14
    v_lshlrev_b32 v3, 3, v1
    s_mul_i32 s13, s3, 4608
    s_lshl_b32 s6, s46, 3
    s_add_u32 s78, s6, {G.ECH_OFF}
    s_add_u32 s13, s13, s78
    s_mul_i32 s75, s79, {8*PLB}
    s_lshl_b32 s6, s46, 4
    s_add_u32 s75, s75, s6
    s_add_u32 s75, s75, {G.XT_OFF}
    s_lshl_b32 s6, s15, 8
    s_add_u32 s6, s6, {WB + 2*WS_}
    v_add_u32 v6, s6, v3""")
    G.srd(a, mega.SRDD, G.P_DBG, 256)
    a(f"v_mov_b32 v62, 0\n buffer_load_dword v63, v62, s[{mega.SRDD}:{mega.SRDD+3}], 0 offen offset:132 sc1")
    e = (ACC, ACC + 32)
    for s_ in range(1, 16):
        n_ = (24, 26) if s_ & 1 else (28, 30)
        pstep(n_[0], n_[1], e[0], e[1], ACC + 2 * s_, ACC + 32 + 2 * s_)
        e = n_
    cstep(a, 20, 21, L16R, L16I, 24, 26, 25, 27)
    a("""v_mov_b32 v28, v20
    v_mov_b32 v29, v21
    v_mov_b32 v30, v20
    v_mov_b32 v31, v21
    s_nop 1
    v_permlane32_swap_b32 v28, v30
    v_permlane32_swap_b32 v29, v31
    s_nop 1""")
    cstep(a, 22, 23, L32R, L32I, 28, 29, 30, 31)
    a(f"""s_cmp_lg_u32 s14, 0
    s_cbranch_scc1 S_x1
    ds_write_b64 v6, v[22:23]""")
    a.label("S_x1")
    a(f"""s_waitcnt vmcnt(0) lgkmcnt(0)
    v_readfirstlane_b32 s6, v63
    s_barrier
    ds_read_b64 v[20:21], v6
    s_cmp_ge_u32 s6, 16
    s_cbranch_scc1 S_ci
    v_mov_b32 v60, v14
    v_mov_b32 v61, v15""")
    mega.wait_init(a, "S_wi")
    a("v_mov_b32 v14, v60\n v_mov_b32 v15, v61")
    a.label("S_ci")
    a(f"""v_mov_b32 v30, 0
    v_mov_b32 v31, 0
    s_mov_b32 s12, 0
    s_waitcnt lgkmcnt(0)
    s_cmp_eq_u32 s14, 0
    s_cbranch_scc1 K2_poll""")
    cstep(a, 62, 63, L64R, L64I, 20, 21, 22, 23)
    a(f"""v_min_u32 v62, -2, v62
    v_min_u32 v63, -2, v63
    s_mov_b64 exec, 0xffffffff
    buffer_store_dwordx2 v[62:63], v3, {W}, s13 offen sc0 sc1
    s_mov_b64 exec, -1""")
    EB = 32
    a.label("K2_poll")
    a("s_mov_b32 s15, s78")
    for c in range(15):
        a(f"""s_cmp_le_u32 s3, {c}
        s_cbranch_scc1 K2_ld
        buffer_load_dwordx2 v[{EB+2*c}:{EB+2*c+1}], v3, {W}, s15 offen sc0 sc1
        s_add_u32 s15, s15, 4608""")
    a.label("K2_ld")
    a("v_mov_b32 v6, 0\n s_waitcnt vmcnt(0)")
    for c in range(15):
        a(f"""s_cmp_le_u32 s3, {c}
        s_cbranch_scc1 K2_ck
        v_max3_u32 v6, v6, v{EB+2*c}, v{EB+2*c+1}""")
    a.label("K2_ck")
    a(f"""v_cmp_eq_u32 vcc, -1, v6
    s_add_u32 s12, s12, 1
    s_cbranch_vccz K2_got
    s_sleep {OPT.get("psleep", 4)}
    s_cmp_lt_u32 s12, 0x40000
    s_cbranch_scc1 K2_poll""")
    a.label("K2_got")
    for c in range(15):
        a(f"s_cmp_le_u32 s3, {c}\n s_cbranch_scc1 K2_h{c}")
        cstep(a, EB + 2 * c, EB + 2 * c + 1, L128R, L128I, EB + 2 * c - 2, EB + 2 * c - 1, EB + 2 * c, EB + 2 * c + 1)
    for c in range(15, 0, -1):
        if c < 15:
            a.label(f"K2_h{c}")
        a(f"v_mov_b32 v30, v{EB+2*c-2}\n v_mov_b32 v31, v{EB+2*c-1}")
        if c > 1:
            a("s_branch K2_h0")
    a.label("K2_h0")
    stamp(a, 3)
    a("s_cmp_eq_u32 s14, 0\n s_cbranch_scc1 S_c0")
    cstep(a, 22, 23, L64R, L64I, 30, 31, 20, 21)
    a("v_mov_b32 v30, v22\n v_mov_b32 v31, v23")
    a.label("S_c0")
    cstep(a, 22, 23, L32R, L32I, 30, 31, 28, 29)
    a(f"""v_cndmask_b32 v28, v30, v22, s[8:9]
    v_cndmask_b32 v30, v31, v23, s[8:9]
    v_mul_u32_u24 v6, {4*PLB}, v2
    v_lshl_add_u32 v6, v1, 4, v6""")
    cstep(a, 29, 31, L16R, L16I, 28, 30, 24, 26)
    g = (28, 30)
    HO = 32
    for s_ in range(16):
        nr, ni = ACC + 2 * s_, ACC + 32 + 2 * s_
        pstep(nr, ni, g[0], g[1], nr, ni)
        o = 20 + 4 * (s_ & 1)
        a(f"""v_pk_mul_f32 {vr(o, 2)}, {vr(CR, 2)}, {vr(nr, 2)} op_sel:[0,0] op_sel_hi:[0,1]
        v_pk_mul_f32 {vr(o+2, 2)}, {vr(CR, 2)}, {vr(ni, 2)} op_sel:[0,0] op_sel_hi:[0,1] neg_lo:[1,0] neg_hi:[1,0]
        {pk(o, CR, 1, ni, o, True)}
        {pk(o+2, CR, 1, nr, o+2, True)}""")
        if s_ & 1:
            k = s_ >> 1
            a(f"""v_cvt_pk_bf16_f32 v{HO+k}, v20, v24
            v_cvt_pk_bf16_f32 v{HO+8+k}, v21, v25
            v_cvt_pk_bf16_f32 v{HO+16+k}, v22, v26
            v_cvt_pk_bf16_f32 v{HO+24+k}, v23, v27""")
        if s_ & 7 == 7:
            for ch in range(2):
                pl = 2 * ch + (s_ >> 3)
                a(f"""s_add_u32 s6, s75, {pl*PLB}
                s_add_u32 s7, s75, {pl*PLB + 576*16}
                buffer_store_dwordx4 {vr(HO+4*pl, 4)}, v6, {W}, s6 offen sc0 sc1
                buffer_store_dwordx4 {vr(HO+16+4*pl, 4)}, v6, {W}, s7 offen sc0 sc1""")
        g = (nr, ni)
    stamp(a, 4)
    a(f"""s_lshl_b32 s74, s79, 7
    s_lshr_b32 s6, s46, 3
    s_add_u32 s74, s74, s6
    s_add_u32 s74, s74, {G.FLG_OFF}
    v_mov_b32 v14, 0
    v_mov_b32 v15, 1
    s_mov_b64 exec, 1
    s_waitcnt vmcnt(0)
    buffer_store_dword v15, v14, {W}, s74 offen sc1""")
    if OPT["stamps"] == 4:
        a("s_memrealtime s[94:95]")
    a("s_branch G2_end")
    a.label("G2x")
    a("s_mov_b64 exec, -1")
    a.label("G2")
    XA, WA, FR = 20, 24, 28
    S3 = 24576
    G.srd(a, G.SRDW, G.P_WS, G.WS_END)
    a(f"""s_cmp_ge_u32 s47, 18
    s_cbranch_scc1 G2_end
    s_setprio 2
    s_and_b32 s6, s2, 7
    s_lshl_b32 s3, s6, 1
    s_and_b32 s7, s47, 1
    s_add_u32 s3, s3, s7
    s_lshr_b32 s4, s47, 1
    s_cmp_lt_u32 s5, 4
    s_cbranch_scc1 G2_c""")
    G.srd(a, G.SRD2A, G.P_CRE, 576 * 1152)
    G.srd(a, G.SRD2B, G.P_CIM, 576 * 1152)
    a("s_sub_u32 s6, s5, 4")
    G.rows_voff(a, 1, 1152, 8)
    a(f"""s_mul_i32 s69, s4, {64*1152}
    s_lshl_b32 s76, s6, 10
    s_lshl_b32 s77, s6, 11
    v_lshrrev_b32 v8, 3, v0
    v_mul_u32_u24 v8, {PLB}, v8
    v_lshrrev_b32 v9, 2, v0
    v_and_b32 v9, 4, v9
    v_and_b32 v10, 7, v0
    v_xor_b32 v9, v9, v10
    s_lshl_b32 s7, s6, 3
    v_add_u32 v9, s7, v9
    v_lshl_add_u32 v4, v9, 4, v8
    s_mul_i32 s68, s3, {16*PLB}
    s_add_u32 s68, s68, {G.XT_OFF}
    s_cmp_lg_u32 s5, 4
    s_cbranch_scc1 G2_l""")
    mega.wait_init(a, "G2_wi")
    a(f"""s_lshl_b32 s74, s3, 8
    s_add_u32 s74, s74, {G.FLG_OFF}
    v_lshlrev_b32 v14, 2, v0
    v_add_u32 v15, 56, v14
    v_cmp_lt_u32 vcc, 17, v0
    s_nop 1
    v_cndmask_b32 v14, v14, v15, vcc""")
    mega.spin(a, "G2_p", f"buffer_load_dword v15, v14, {W}, s74 offen sc1", 1, lanes=36, sleep=OPT.get("gsleep", 8))
    a.label("G2_l")
    a("s_waitcnt vmcnt(0)\n s_barrier")

    def issue_r(st):
        base = (st % 3) * S3
        kb, im = st >> 1, st & 1
        d = G.SRD2B if im else G.SRD2A
        for j in range(2):
            a(f"""s_add_u32 m0, s76, {base + 16384 + 4096*j}
            s_add_u32 s7, s69, {32*1152*j + 128*kb}
            buffer_load_dwordx4 v1, s[{d}:{d+3}], s7 offen lds""")
        for j in range(2):
            for hf in range(2):
                a(f"""s_add_u32 m0, s77, {base + 8192*j + 1024*hf}
                s_add_u32 s7, s68, {(576*im + 64*kb + 32*j) * 16 + 8*PLB*hf}
                buffer_load_dwordx4 v4, {W}, s7 offen sc0 sc1 lds""")
    tail_loader(a, 18, issue_r, per=6, end=False)
    G.stamp_store(a, 0, 8)
    a("s_endpgm")
    a.label("G2_c")
    G.lane_parts(a)
    a(f"""s_and_b32 s14, s5, 1
    s_lshr_b32 s15, s5, 1
    s_lshl_b32 s79, s3, 1
    s_add_u32 s79, s79, s14
    s_lshl_b32 s46, s4, 1
    s_add_u32 s46, s46, s15
    s_lshl_b32 s46, s46, 5
    v_lshlrev_b32 v3, 3, v2
    s_lshl_b32 s6, s46, 1
    v_add_u32 v3, s6, v3
    s_lshl_b32 s6, s79, 6
    v_add_u32 v4, s6, v1
    v_mul_u32_u24 v4, 1152, v4
    v_add_u32 v4, v4, v3
    v_add_u32 v5, {32*1152}, v4""")
    for i in range(4):
        a(f"global_load_dwordx2 v[{96+2*i}:{97+2*i}], v3, s[{G.P_DSK}:{G.P_DSK+1}] offset:{16*i}")
    for tt in range(2):
        for i in range(4):
            a(f"global_load_dwordx2 v[{104+8*tt+2*i}:{105+8*tt+2*i}], v{4+tt}, s[{G.P_BX}:{G.P_BX+1}] offset:{16*i}")
    G.srd(a, G.SRDO, G.P_OUT, 2048 * 4608)
    a(f"""v_bfe_u32 v6, v0, 4, 1
    v_mul_u32_u24 v6, 320, v6
    v_lshl_add_u32 v6, v2, 11, v6
    s_lshl_b32 s7, s14, 10
    v_add_u32 v6, s7, v6
    v_and_b32 v7, 2, v0
    v_lshl_add_u32 v6, v7, 6, v6
    v_and_b32 v7, 12, v0
    v_lshl_add_u32 v6, v7, 2, v6
    v_and_b32 v7, 1, v0
    v_lshl_add_u32 v{WA}, v7, 3, v6
    v_xor_b32 v{WA+1}, 64, v{WA}
    s_lshl_b32 s7, s15, 12
    s_add_u32 s7, s7, 16384""")
    G.row_addr(a, XA, 1, "s7", 8)
    a(G.out_addr(a, 8192, 0).replace("s_add_u32 s7, s7, 0", f"s_cmp_eq_u32 s5, 3\n s_cselect_b32 s7, {3*S3}, s7"))
    a(f"""s_mul_i32 s6, s79, {64*4608}
    s_lshl_b32 s7, s46, 2
    s_add_u32 s6, s6, s7
    s_add_u32 s12, s6, 2304
    s_add_u32 s13, s12, {32*4608}
    s_mov_b32 s14, 0xffff0000
    s_waitcnt vmcnt(0)""")
    for k in range(8):
        a(f"v_lshlrev_b32 v{32+2*k}, 16, v{96+k}\n v_and_b32 v{33+2*k}, s14, v{96+k}")
    for tt in range(2):
        for k in range(8):
            A = ACC + 16 * tt + 2 * k
            a(f"""v_lshlrev_b32 v{A}, 16, v{104+8*tt+k}
            v_and_b32 v{A+1}, s14, v{104+8*tt+k}
            v_mul_f32 v{A}, v{A}, v{32+2*k}
            v_mul_f32 v{A+1}, v{A+1}, v{33+2*k}""")
    a(f"s_setprio {OPT.get('prio3', 0)}\n s_barrier")
    stamp(a, 5)

    def reads_r(ks, b):
        f = FR + 12 * b
        r = [f"ds_read_b128 {vr(f, 4)}, v{XA+ks}"]
        for tt in range(2):
            for e in range(2):
                r.append(f"ds_read_b64_tr_b16 {vr(f+4+4*tt+2*e, 2)}, v{WA+e} offset:{4096*ks+512*tt}")
        return r

    def mfmas_r(n, b):
        f = FR + 12 * b
        return [f"{MF} {vr(ACC+16*tt, 16)}, {vr(f, 4)}, {vr(f+4+4*tt, 4)}, {vr(ACC+16*tt, 16)}" for tt in range(2)]
    G.consumer2(a, 4, reads_r, mfmas_r, lambda ks: [XA + ks] + ([WA, WA + 1] if ks == 3 else []), depth=2, bar_ks=2, per_gap=3, nst=18, stage=S3, ring=3,
                pre_bar=lambda st: "s_waitcnt lgkmcnt(0)")
    stamp(a, 6)
    a("s_setprio 2\n s_nop 9")
    G.out_tiles(a, [(ACC + 16 * tt, 12 + tt, 0) for tt in range(2)])
    a.label("G2_end")
    stamp(a, 7)
    G.stamp_store(a, 0, 8)
    a.label("K2_last")
    a("s_endpgm")
```

```python
import sys
import gen as G
import k2gen as K
from gen import OPT, IMG, CH, VG, PLB, SRD1, SRD2A, SRD2B, SRDW, SRDO, srd, stamp
from asmlib import Asm, check, vr

MF = G.MF
W = f"s[{SRDW}:{SRDW+3}]"
SRDD = 80
NAME = "concat_heads__mha_block__ssm_conv_s5__prompt_kernel"
ST2 = K.ST2


def spin(a, tag, load, ok, lanes=1, sleep=2):
    m = (1 << lanes) - 1
    a(f"s_mov_b32 exec_lo, {m & 0xffffffff}\n s_mov_b32 exec_hi, {m >> 32}\n s_mov_b32 s72, 0")
    a.label(tag)
    a(f"""{load}
    s_waitcnt vmcnt(0)
    v_cmp_gt_u32 vcc, {ok}, v15
    s_add_u32 s72, s72, 1
    s_cbranch_vccz {tag}_ok
    s_sleep {sleep}
    s_cmp_lt_u32 s72, 0x100000
    s_cbranch_scc1 {tag}""")
    a.label(tag + "_ok")
    a("s_mov_b64 exec, -1")


def wait_init(a, tag):
    srd(a, SRDD, G.P_DBG, 256)
    a("v_mov_b32 v14, 0")
    spin(a, tag, f"buffer_load_dword v15, v14, s[{SRDD}:{SRDD+3}], 0 offen offset:132 sc1", 16, sleep=8)


def qk_epilogue(a, b, wf, ACC, T0):
    for ft in range(3):
        t = G.QK_TILES[b][3 * wf + ft]
        A = ACC + 16 * ft
        if G.is_regular(t):
            h0, h1 = G.chunk_info(t[0])[1], G.chunk_info(t[1])[1]
            va = 5
            if h1 - h0 != 1:
                va = 6
                a(f"s_mov_b32 s7, {(h1-h0)*IMG}\n v_mad_u32_u24 v6, v2, s7, v3")
            a(f"s_mov_b32 s12, {h0*IMG}\n s_mov_b32 s13, {h0*IMG+4096}")
            for k in range(8):
                a(f"v_cvt_pk_bf16_f32 v{A+k}, v{A+2*k}, v{A+2*k+1}")
                if k == 3:
                    a(f"buffer_store_dwordx4 v[{A}:{A+3}], v{va}, {W}, s12 offen sc1")
            a(f"buffer_store_dwordx4 v[{A+4}:{A+7}], v{va}, {W}, s13 offen sc1")
            continue
        for i in range(4):
            kk = [G.chunk_info(t[2 * i]), G.chunk_info(t[2 * i + 1])]
            T = T0 + 2 * i
            a(f"v_cvt_pk_bf16_f32 v{T}, v{A+4*i}, v{A+4*i+1}\n v_cvt_pk_bf16_f32 v{T+1}, v{A+4*i+2}, v{A+4*i+3}")
            for kind in ("half", "mid"):
                sel = [k[0] == kind for k in kk]
                if not any(sel):
                    continue
                if kind == "half":
                    c = [k[1] * IMG + (k[2] >> 1) * 4096 + (k[2] & 1) * 8 if k[0] == kind else None for k in kk]
                else:
                    c = [(k[1] - (0, 5, 11)[b]) * 1024 if k[0] == kind else None for k in kk]
                c = [x if x is not None else y for x, y in zip(c, c[::-1])]
                vb = 3 if kind == "half" else 4
                if c[0] != c[1]:
                    a(f"s_mov_b32 s7, {abs(c[1]-c[0])}\n v_mad_u32_u24 v8, v{2 if c[1] >= c[0] else 13}, s7, v{vb}")
                    vb = 8
                if not all(sel):
                    a(f"s_mov_b64 exec, {'0xffffffff' if sel[0] else 's[8:9]'}")
                if kind == "half":
                    a(f"s_mov_b32 s12, {min(c)}\n buffer_store_dwordx2 v[{T}:{T+1}], v{vb}, {W}, s12 offen sc1")
                else:
                    a(f"ds_write_b32 v{vb}, v{T} offset:{min(c)}\n ds_write_b32 v{vb}, v{T+1} offset:{min(c)+512}")
                if not all(sel):
                    a("s_mov_b64 exec, -1")


def qkv(a):
    ACC, FR, XA, WA = 32, 96, 84, 88
    WB, WS_ = 32768, 12288
    srd(a, SRD1, G.P_AX, 2048 * 1152)
    srd(a, SRD2A, G.P_WQKV, 576 * 3456)
    a(f"""s_setprio 2
    s_mov_b32 s6, s5
    s_and_b32 s14, s5, 3
    s_lshr_b32 s15, s5, 2""")
    G.rows_voff(a, 10, 1152, 3)
    a(f"""s_mul_i32 s68, s3, {128*1152}
    s_mul_i32 s69, s4, 384
    s_lshl_b32 s76, s5, 10
    s_lshl_b32 s77, s14, 10
    s_lshr_b32 s6, s47, 2
    s_and_b32 s7, s47, 3
    s_add_u32 s6, s6, s7
    s_mul_i32 s6, s6, {OPT.get("rot", 0)}
    s_mul_i32 s7, s6, 57
    s_lshr_b32 s7, s7, 9
    s_mul_i32 s7, s7, 9
    s_sub_u32 s6, s6, s7
    s_lshl_b32 s78, s6, 7
    s_mul_i32 s79, s6, {64*3456}""")
    uid = [0]

    def ix(xs):
        return [f"""s_add_u32 m0, s76, {(xs & 1) * 16384}
            s_add_u32 s7, s68, s78
            buffer_load_dwordx4 v10, s[{SRD1}:{SRD1+3}], s7 offen lds""",
                f"""s_add_u32 m0, s76, {(xs & 1) * 16384 + 8192}
            s_add_u32 s7, s7, {64*1152}
            buffer_load_dwordx4 v10, s[{SRD1}:{SRD1+3}], s7 offen lds
            s_add_u32 s78, s78, 128
            s_cmp_eq_u32 s78, 1152
            s_cselect_b32 s78, 0, s78"""]

    def iw(h):
        base = WB + (h & 3) * WS_
        uid[0] += 1
        return [f"""s_add_u32 m0, s76, {base}
            s_add_u32 s70, s69, s79
            buffer_load_dwordx4 v11, s[{SRD2A}:{SRD2A+3}], s70 offen lds
            s_add_u32 s79, s79, {32*3456}
            s_cmp_eq_u32 s79, {576*3456}
            s_cselect_b32 s79, 0, s79""",
                f"""s_cmp_eq_u32 s15, {h & 1}
            s_cbranch_scc0 Q_sk{uid[0]}
            s_add_u32 m0, s77, {base + 8192}
            s_nop 0
            buffer_load_dwordx4 v12, s[{SRD2A}:{SRD2A+3}], s70 offen lds
            Q_sk{uid[0]}:"""]

    def issue(h):
        if h >= 18 or (OPT.get("qx") == 2 and h > 3):
            return []
        chk = [f"buffer_load_dword v15, v14, s[{SRDD}:{SRDD+3}], 0 offen offset:132 sc1"] if h == 13 else []
        return (ix(h >> 1) if h % 2 == 0 else []) + iw(h) + chk
    for x in ix(0):
        a(x)
    for d, sh in ((11, "s76"), (12, "s77")):
        a(f"""s_lshr_b32 s7, {sh}, 4
        v_add_u32 v3, s7, v0
        {"v_add_u32 v3, 512, v3" if d == 12 else ""}
        v_mul_u32_u24 v4, 2731, v3
        v_lshrrev_b32 v4, 16, v4
        v_mul_u32_u24 v5, 24, v4
        v_sub_u32 v5, v3, v5
        v_and_b32 v3, 2, v4
        v_lshlrev_b32 v3, 1, v3
        v_xor_b32 v5, v5, v3
        v_mul_u32_u24 v4, 3456, v4
        v_lshl_add_u32 v{d}, v5, 4, v4""")
    for x in iw(0) + iw(1):
        a(x)
    srd(a, SRDW, G.P_WS, G.WS_END)
    srd(a, SRDD, G.P_DBG, 256)
    a("v_mov_b32 v14, 0")
    G.lane_parts(a)

    def loop(w_is_a):
        def reads(n, b):
            f = FR + 16 * b
            r = [f"ds_read_b128 {vr(f, 4)}, v{XA + (n & 3)}"]
            for ft in range(3):
                for e in range(2):
                    r.append(f"ds_read_b64_tr_b16 {vr(f+4+4*ft+2*e, 2)}, v{WA+ft} offset:{(16*(n & 1)+4*e)*384}")
            return r

        def upd2(n):
            u = [(XA + (n & 3), 16384 if (n >> 2) % 2 == 0 else -16384)] if n < 32 else []
            if n & 1 and n < 35:
                u += [(WA + ft, WS_ if ((n >> 1) + 1) & 3 else -3 * WS_) for ft in range(3)]
            return u

        def mfmas(n, b):
            f = FR + 16 * b
            m = []
            for ft in range(3):
                acc, w, x = vr(ACC + 16 * ft, 16), vr(f + 4 + 4 * ft, 4), vr(f, 4)
                A, B = (w, x) if w_is_a else (x, w)
                m.append(f"{MF} {acc}, {A}, {B}, {acc if n else 0}")
            return m
        G.consumer2(a, 2, reads, mfmas, None, depth=1, bar_ks=1, per_gap=3, nst=18, upd2=upd2, by_step=True,
                    pre_bar=lambda h: f"s_waitcnt vmcnt({0 if h == 17 else (3 if h & 1 else 1)})", post_bar=lambda h: issue(h + 2),
                    marks=(1, 3, 5, 8, 11, 14, 17))

    def xaddr(row):
        a("s_lshl_b32 s7, s14, 12")
        G.row_addr(a, XA, row, "s7", 8)
    a("""s_cmp_ge_u32 s4, 6
    s_cbranch_scc1 Q_v
    s_sub_u32 s46, s4, 3
    s_cmp_lt_u32 s4, 3
    s_cselect_b32 s46, s4, s46
    s_lshl_b32 s46, s46, 1
    s_add_u32 s46, s46, s15""")
    for var in range(6):
        b, wf = divmod(var, 2)
        if var:
            a(f"s_cmp_eq_u32 s46, {var}")
        for ft in range(3):
            t = [x - 48 * b for x in G.QK_TILES[b][3 * wf + ft]]
            for hh in range(2):
                val = sum(t[4 * hh + c] << (8 * c) for c in range(4))
                r = 60 + 2 * ft + hh if False else 92 + 2 * ft + hh
                a(f"s_cselect_b32 s{r}, {val}, s{r}" if var else f"s_mov_b32 s{r}, {val}")
    tr_addr(a, WA)
    xaddr(1)
    stamp(a, 1)
    loop(True)
    stamp(a, 2)
    a(f"""s_lshr_b32 s6, s3, 1
    s_mul_i32 s6, s6, {CH}
    s_cmp_lt_u32 s4, 3
    s_cselect_b32 s7, {G.Q_OFF}, {G.KV_OFF}
    s_add_u32 s6, s6, s7
    s_and_b32 s7, s3, 1
    s_lshl_b32 s13, s7, 9
    s_lshl_b32 s7, s7, 2
    s_add_u32 s7, s7, s14
    s_lshl_b32 s12, s7, 9
    s_add_u32 s12, s12, s6
    s_add_u32 s75, s13, s6
    s_add_u32 s75, s75, 8192
    s_lshl_b32 s13, s14, 2
    s_add_u32 s13, s13, 16384
    v_lshl_add_u32 v3, v1, 4, s12
    v_lshl_add_u32 v4, v1, 4, s13
    s_mov_b32 s7, {IMG}
    v_mad_u32_u24 v5, v2, s7, v3
    v_xor_b32 v13, 1, v2""")
    for var in range(6):
        if var < 5:
            a(f"s_cmp_lg_u32 s46, {var}\n s_cbranch_scc1 Q_e{var+1}")
        qk_epilogue(a, *divmod(var, 2), ACC, FR)
        if var < 5:
            a("s_branch Q_x")
            a.label(f"Q_e{var+1}")
    a.label("Q_x")
    a(f"""s_lshr_b32 s6, s46, 1
    s_mul_i32 s7, s6, 11
    s_lshr_b32 s7, s7, 1
    s_add_u32 s7, s7, s5
    s_mul_i32 s7, s7, {2*IMG}
    s_add_u32 s75, s75, s7
    s_lshl_b32 s7, s5, 10
    s_add_u32 s7, s7, 16384
    v_lshl_add_u32 v4, v0, 4, s7
    s_and_b32 s6, s6, 1
    s_add_u32 s6, s6, 5
    s_mov_b32 s7, {IMG}
    v_lshlrev_b32 v5, 4, v1
    v_mad_u32_u24 v5, v2, s7, v5
    s_cmp_lt_u32 s5, s6
    s_waitcnt lgkmcnt(0)
    s_barrier
    s_cbranch_scc0 Q_fin
    ds_read_b128 v[{FR}:{FR+3}], v4
    s_waitcnt lgkmcnt(0)
    buffer_store_dwordx4 v[{FR}:{FR+3}], v5, {W}, s75 offen sc1
    s_branch Q_fin""")
    a.label("Q_v")
    a("s_mul_i32 s46, s15, 3")
    for ft in range(3):
        a(f"""s_add_u32 s7, s46, {ft}
        s_mul_i32 s7, s7, 0x08080808
        s_add_u32 s{92+2*ft}, s7, 0x03020100
        s_add_u32 s{93+2*ft}, s7, 0x07060504""")
    tr_addr(a, WA)
    G.tau(a, 9, 8)
    xaddr(9)
    a(f"""s_sub_u32 s6, s4, 6
    s_mul_i32 s6, s6, 192
    s_lshl_b32 s7, s46, 5
    s_add_u32 s6, s6, s7
    v_add_u32 v3, s6, v1
    s_mov_b32 s7, {IMG}
    v_mul_u32_u24 v8, {2*VG}, v2""")
    for ft in range(3):
        a(f"""v_add_u32 v4, {32*ft}, v3
        v_mul_u32_u24 v5, 3641, v4
        v_lshrrev_b32 v5, 16, v5
        v_mul_u32_u24 v6, 18, v5
        v_sub_u32 v6, v4, v6
        v_mad_u32_u24 v5, v5, s7, v8
        v_lshl_add_u32 v{80+ft}, v6, 4, v5""")
    stamp(a, 1)
    loop(False)
    stamp(a, 2)
    a(f"""s_lshr_b32 s6, s3, 1
    s_mul_i32 s6, s6, {CH}
    s_and_b32 s7, s3, 1
    s_lshl_b32 s7, s7, 2
    s_add_u32 s7, s7, s14
    s_mul_i32 s7, s7, {4*VG}
    s_add_u32 s12, s6, s7
    s_add_u32 s12, s12, {G.KV_OFF + 9216}
    s_nop 3""")
    for ft in range(3):
        A = ACC + 16 * ft
        for k in range(8):
            a(f"v_cvt_pk_bf16_f32 v{A+k}, v{A+2*k}, v{A+2*k+1}")
            if k == 3:
                a(f"buffer_store_dwordx4 v[{A}:{A+3}], v{80+ft}, {W}, s12 offen sc1")
        a(f"buffer_store_dwordx4 v[{A+4}:{A+7}], v{80+ft}, {W}, s12 offen offset:{VG} sc1")
    a.label("Q_fin")
    stamp(a, 3)
    a(f"""s_cmp_lg_u32 s5, 3
    s_cbranch_scc1 Q_w
    v_readfirstlane_b32 s6, v15
    s_nop 0
    s_cmp_ge_u32 s6, 16
    s_cbranch_scc1 Q_ci""")
    wait_init(a, "Q_wi")
    a.label("Q_ci")
    a(f"""s_mul_i32 s6, s4, 43
    s_lshr_b32 s6, s6, 7
    s_mul_i32 s6, s6, 3
    s_sub_u32 s6, s4, s6
    s_lshl_b32 s74, s6, 8
    s_sub_u32 s6, s4, s6
    s_mul_i32 s6, s6, 43
    s_lshr_b32 s6, s6, 7
    s_lshl_b32 s6, s6, 4
    s_add_u32 s6, s6, s3
    s_lshl_b32 s6, s6, 2
    s_add_u32 s74, s74, s6
    s_add_u32 s74, s74, {G.QF_OFF}
    v_mul_u32_u24 v14, 768, v0
    v_mov_b32 v15, 1
    s_waitcnt vmcnt(0)
    s_barrier
    s_mov_b64 exec, 0xff
    buffer_store_dword v15, v14, {W}, s74 offen sc1
    s_branch G2x""")
    a.label("Q_w")
    a("s_waitcnt vmcnt(0)")
    stamp(a, 4)
    a("s_barrier\n s_branch G2")


def tr_addr(a, WA):
    a(f"""v_bfe_u32 v3, v0, 2, 2
    v_lshl_add_u32 v3, v2, 3, v3
    v_mul_u32_u24 v3, 384, v3
    v_add_u32 v3, 32768, v3
    v_and_b32 v4, 8, v0
    v_lshlrev_b32 v4, 3, v4
    v_and_b32 v5, 3, v0
    v_lshlrev_b32 v5, 3, v5""")
    for ft in range(3):
        a(f"""v_mov_b32 v6, s{92+2*ft}
        v_mov_b32 v7, s{93+2*ft}
        v_cndmask_b32 v6, v6, v7, s[10:11]
        v_bfe_u32 v6, v6, v5, 8
        v_lshlrev_b32 v6, 3, v6
        v_xor_b32 v6, v6, v4
        v_add_u32 v{WA+ft}, v3, v6""")


def init(a):
    a.label("I_go")
    a(f"""s_lshl_b32 s6, s3, 3
    s_add_u32 s6, s6, s5
    s_mul_i32 s12, s6, 1152
    s_add_u32 s12, s12, {G.ECH_OFF}
    s_lshr_b32 s7, s6, 2
    s_mul_i32 s7, s7, {IMG}
    s_and_b32 s6, s6, 3
    s_mul_i32 s6, s6, {2*CH}
    s_add_u32 s6, s6, s7
    s_add_u32 s6, s6, {G.KV_OFF + 9216 + 288}
    s_add_u32 s7, s6, {CH}
    v_lshrrev_b32 v1, 1, v0
    v_mul_u32_u24 v1, {VG}, v1
    v_and_b32 v2, 1, v0
    v_lshl_add_u32 v1, v2, 4, v1
    v_subrev_u32 v2, 1, v2
    v_and_b32 v4, 0x3f803f80, v2
    v_mov_b32 v5, v4
    v_mov_b32 v6, v4
    v_mov_b32 v7, v4
    v_lshlrev_b32 v3, 4, v0
    v_mov_b32 v8, -1
    v_mov_b32 v9, -1
    v_mov_b32 v10, -1
    v_mov_b32 v11, -1""")
    srd(a, SRDW, G.P_WS, G.WS_END)
    srd(a, SRDD, G.P_DBG, 256)
    a(f"""buffer_store_dwordx4 v[4:7], v1, {W}, s6 offen sc1
    buffer_store_dwordx4 v[4:7], v1, {W}, s7 offen sc1
    buffer_store_dwordx4 v[8:11], v3, {W}, s12 offen sc1
    s_mov_b64 exec, 0xff
    buffer_store_dwordx4 v[8:11], v3, {W}, s12 offen offset:1024 sc1
    s_cmp_ge_u32 s3, 2
    s_cbranch_scc1 I_nz
    s_mov_b64 exec, -1
    v_mov_b32 v16, 0
    v_mov_b32 v17, 0
    v_mov_b32 v18, 0
    v_mov_b32 v19, 0
    s_lshl_b32 s6, s3, 3
    s_add_u32 s6, s6, s5
    s_lshl_b32 s6, s6, 10
    s_add_u32 s6, s6, {G.FLG_OFF}
    buffer_store_dwordx4 v[16:19], v3, {W}, s6 offen sc1""")
    a.label("I_nz")
    a("""s_mov_b64 exec, -1
    s_waitcnt vmcnt(0)
    s_barrier
    s_cmp_lg_u32 s5, 3
    s_cbranch_scc1 I_na
    s_mov_b64 exec, 1
    v_mov_b32 v14, 0
    v_mov_b32 v15, 1
    buffer_atomic_add v15, v14, s[80:83], 0 offen offset:132 sc1""")
    a.label("I_na")
    if OPT.get("touch", 0):
        a(f"""s_mov_b64 exec, -1
        s_lshl_b32 s6, s3, 3
        s_add_u32 s6, s6, s5
        s_lshr_b32 s7, s6, 2
        s_mul_i32 s7, s7, {IMG}
        s_and_b32 s12, s6, 3
        s_mul_i32 s12, s12, {2*CH}
        s_add_u32 s12, s12, s7
        s_add_u32 s12, s12, {G.KV_OFF + 9216}
        s_add_u32 s13, s12, {CH}
        v_lshlrev_b32 v12, 7, v0
        v_min_u32 v13, {15*128}, v12
        buffer_load_dword v20, v12, {W}, s12 offen
        buffer_load_dword v20, v12, {W}, s13 offen
        s_add_u32 s12, s12, 8192
        s_add_u32 s13, s13, 8192
        buffer_load_dword v20, v13, {W}, s12 offen
        buffer_load_dword v20, v13, {W}, s13 offen
        s_and_b32 s7, s6, 7
        s_mul_i32 s12, s7, {CH}
        s_bfe_u32 s7, s6, 0x10003
        s_mul_i32 s7, s7, {11*IMG - 4096}
        s_add_u32 s12, s12, s7
        s_bfe_u32 s7, s6, 0x10004
        s_mul_i32 s7, s7, {G.Q_OFF - G.KV_OFF}
        s_add_u32 s12, s12, s7
        s_add_u32 s12, s12, {G.KV_OFF + 10*IMG + 4096}
        v_min_u32 v13, {31*128}, v12
        s_cmp_lt_u32 s6, 32
        s_cbranch_scc0 I_nt
        buffer_load_dword v20, v13, {W}, s12 offen""")
        a.label("I_nt")
    a("s_waitcnt vmcnt(0)\n s_branch G2x")


def build(**opt):
    OPT.update(opt)
    K.mega = sys.modules[__name__]
    a = Asm()
    a.label(NAME)
    stamp(a, 0)
    a("s_cmp_ge_u32 s2, 512\n s_cbranch_scc1 K2_done")
    G.load_args(a)
    a("""v_lshrrev_b32 v1, 6, v0
    v_and_b32 v0, 63, v0
    s_and_b32 s6, s2, 7
    v_readfirstlane_b32 s5, v1
    s_bfe_u32 s47, s2, 0x50003
    s_cmp_lt_u32 s47, 20
    s_cbranch_scc1 E_np""")
    if OPT.get("pfe", 1):
        K.pf_setup(a, 47)
        a("s_lshr_b32 s7, s2, 8\n s_mul_i32 s7, s7, 96\n s_add_u32 s12, s12, s7")
        K.pf_item(a, "e", 0, 120)
    a.label("E_np")
    a("""s_cmp_ge_u32 s2, 256
    s_cbranch_scc1 A_go
    s_cmp_ge_u32 s47, 20
    s_cbranch_scc1 K2_ssm
    s_lshr_b32 s3, s6, 1
    s_lshl_b32 s3, s3, 2
    s_and_b32 s4, s47, 3
    s_add_u32 s3, s3, s4
    s_and_b32 s6, s6, 1
    s_mul_i32 s6, s6, 5
    s_lshr_b32 s7, s47, 2
    s_add_u32 s4, s6, s7
    s_mov_b32 s101, s4
    s_and_b32 s6, s2, 7""")
    if OPT.get("pfm", 0) == 1:
        K.pf_setup(a, 47, 0)
        K.pf_item(a, "q", 0, 16)
        K.pf_item(a, "r", 160, 16)
    a("""s_cmp_ge_u32 s4, 9
    s_waitcnt lgkmcnt(0)
    s_cbranch_scc1 I_go""")
    qkv(a)
    init(a)
    K.attention(a)
    K.ssm(a)
    a.lines = [ln if "atomic" in ln else ln.replace(" sc0 sc1", " sc1") for ln in a.lines]
    errs = check(a.lines, "mega")
    for body in getattr(a, "loops", []):
        errs += check(body + body, "loop")
    ref = open("concat_heads__mha_block__ssm_conv_s5__prompt.s.ref").read()
    head = ref[:ref.index("; Override launch geometry")]
    out = head + """; One launch, 512 co-resident workgroups (two per CU), roles by id (generated by gen/mega.py, a hand-written generator):
;   0..159   Q,K,V projection tiles (16 of them initialise constants / hand-off words instead)
;   160..255 SSM input GEMM + exact chunked scan ; afterwards ids 0..143 compute one tile each of the SSM read-out GEMM
;   256..511 attention per (head, 256 queries), then one tile of the output projection
; hand-offs: write-through stores -> vmcnt(0) -> arrival counter ; consumers spin, then read with sc1
; @launch grid=(512,1,1) block=(512,1,1) lds=81920
.amdgcn_target "amdgcn-amd-amdhsa--gfx950"
.text
""" + f".globl {NAME}\n.p2align 8\n.type {NAME},@function\n" + a.text() + '.section .rodata,"a"\n.p2align 6\n' + G.desc(NAME, 128)
    return out, sorted(set(errs))


if __name__ == "__main__":
    opts = {}
    path = "concat_heads__mha_block__ssm_conv_s5__prompt.s"
    for arg in sys.argv[1:]:
        if "=" in arg:
            k, v = arg.split("=")
            opts[k] = int(v)
        else:
            path = arg
    text, errs = build(**opts)
    for e in errs:
        print("HAZARD", e)
    open(path, "w").write(text)
    print("wrote", path, len(text), "bytes;", len(errs), "hazards")
```

```python
import sys
import gen as G
import k2gen as K
from gen import OPT, IMG, CH, VG, PLB, SRD1, SRD2A, SRD2B, SRDW, SRDO, srd, stamp
from asmlib import Asm, check, vr

MF = G.MF
W = f"s[{SRDW}:{SRDW+3}]"
SRDD = 80
NAME = "concat_heads__mha_block__ssm_conv_s5__prompt_kernel"
ST2 = K.ST2


def spin(a, tag, load, ok, lanes=1, sleep=2):
    m = (1 << lanes) - 1
    a(f"s_mov_b32 exec_lo, {m & 0xffffffff}\n s_mov_b32 exec_hi, {m >> 32}\n s_mov_b32 s72, 0")
    a.label(tag)
    a(f"""{load}
    s_waitcnt vmcnt(0)
    v_cmp_gt_u32 vcc, {ok}, v15
    s_add_u32 s72, s72, 1
    s_cbranch_vccz {tag}_ok
    s_sleep {sleep}
    s_cmp_lt_u32 s72, 0x100000
    s_cbranch_scc1 {tag}""")
    a.label(tag + "_ok")
    a("s_mov_b64 exec, -1")


def wait_init(a, tag):
    srd(a, SRDD, G.P_DBG, 256)
    a("v_mov_b32 v14, 0")
    spin(a, tag, f"buffer_load_dword v15, v14, s[{SRDD}:{SRDD+3}], 0 offen offset:132 sc1", 16, sleep=8)


def qk_epilogue(a, b, wf, ACC, T0):
    for ft in range(3):
        t = G.QK_TILES[b][3 * wf + ft]
        A = ACC + 16 * ft
        if G.is_regular(t):
            h0, h1 = G.chunk_info(t[0])[1], G.chunk_info(t[1])[1]
            va = 5
            if h1 - h0 != 1:
                va = 6
                a(f"s_mov_b32 s7, {(h1-h0)*IMG}\n v_mad_u32_u24 v6, v2, s7, v3")
            a(f"s_mov_b32 s12, {h0*IMG}\n s_mov_b32 s13, {h0*IMG+4096}")
            for k in range(8):
                a(f"v_cvt_pk_bf16_f32 v{A+k}, v{A+2*k}, v{A+2*k+1}")
                if k == 3:
                    a(f"buffer_store_dwordx4 v[{A}:{A+3}], v{va}, {W}, s12 offen sc1")
            a(f"buffer_store_dwordx4 v[{A+4}:{A+7}], v{va}, {W}, s13 offen sc1")
            continue
        for i in range(4):
            kk = [G.chunk_info(t[2 * i]), G.chunk_info(t[2 * i + 1])]
            T = T0 + 2 * i
            a(f"v_cvt_pk_bf16_f32 v{T}, v{A+4*i}, v{A+4*i+1}\n v_cvt_pk_bf16_f32 v{T+1}, v{A+4*i+2}, v{A+4*i+3}")
            for kind in ("half", "mid"):
                sel = [k[0] == kind for k in kk]
                if not any(sel):
                    continue
                if kind == "half":
                    c = [k[1] * IMG + (k[2] >> 1) * 4096 + (k[2] & 1) * 8 if k[0] == kind else None for k in kk]
                else:
                    c = [(k[1] - (0, 5, 11)[b]) * 1024 if k[0] == kind else None for k in kk]
                c = [x if x is not None else y for x, y in zip(c, c[::-1])]
                vb = 3 if kind == "half" else 4
                if c[0] != c[1]:
                    a(f"s_mov_b32 s7, {abs(c[1]-c[0])}\n v_mad_u32_u24 v8, v{2 if c[1] >= c[0] else 13}, s7, v{vb}")
                    vb = 8
                if not all(sel):
                    a(f"s_mov_b64 exec, {'0xffffffff' if sel[0] else 's[8:9]'}")
                if kind == "half":
                    a(f"s_mov_b32 s12, {min(c)}\n buffer_store_dwordx2 v[{T}:{T+1}], v{vb}, {W}, s12 offen sc1")
                else:
                    a(f"ds_write_b32 v{vb}, v{T} offset:{min(c)}\n ds_write_b32 v{vb}, v{T+1} offset:{min(c)+512}")
                if not all(sel):
                    a("s_mov_b64 exec, -1")


def qkv(a):
    ACC, FR, XA, WA = 32, 96, 84, 88
    WB, WS_ = 32768, 12288
    srd(a, SRD1, G.P_AX, 2048 * 1152)
    srd(a, SRD2A, G.P_WQKV, 576 * 3456)
    a(f"""s_setprio 2
    s_mov_b32 s6, s5
    s_and_b32 s14, s5, 3
    s_lshr_b32 s15, s5, 2""")
    G.rows_voff(a, 10, 1152, 3)
    a(f"""s_mul_i32 s68, s3, {128*1152}
    s_mul_i32 s69, s4, 384
    s_lshl_b32 s76, s5, 10
    s_lshl_b32 s77, s14, 10
    s_lshr_b32 s6, s47, 2
    s_and_b32 s7, s47, 3
    s_add_u32 s6, s6, s7
    s_mul_i32 s6, s6, {OPT.get("rot", 0)}
    s_mul_i32 s7, s6, 57
    s_lshr_b32 s7, s7, 9
    s_mul_i32 s7, s7, 9
    s_sub_u32 s6, s6, s7
    s_lshl_b32 s78, s6, 7
    s_mul_i32 s79, s6, {64*3456}""")
    uid = [0]

    def ix(xs):
        return [f"""s_add_u32 m0, s76, {(xs & 1) * 16384}
            s_add_u32 s7, s68, s78
            buffer_load_dwordx4 v10, s[{SRD1}:{SRD1+3}], s7 offen lds""",
                f"""s_add_u32 m0, s76, {(xs & 1) * 16384 + 8192}
            s_add_u32 s7, s7, {64*1152}
            buffer_load_dwordx4 v10, s[{SRD1}:{SRD1+3}], s7 offen lds
            s_add_u32 s78, s78, 128
            s_cmp_eq_u32 s78, 1152
            s_cselect_b32 s78, 0, s78"""]

    def iw(h):
        base = WB + (h & 3) * WS_
        uid[0] += 1
        return [f"""s_add_u32 m0, s76, {base}
            s_add_u32 s70, s69, s79
            buffer_load_dwordx4 v11, s[{SRD2A}:{SRD2A+3}], s70 offen lds
            s_add_u32 s79, s79, {32*3456}
            s_cmp_eq_u32 s79, {576*3456}
            s_cselect_b32 s79, 0, s79""",
                f"""s_cmp_eq_u32 s15, {h & 1}
            s_cbranch_scc0 Q_sk{uid[0]}
            s_add_u32 m0, s77, {base + 8192}
            s_nop 0
            buffer_load_dwordx4 v12, s[{SRD2A}:{SRD2A+3}], s70 offen lds
            Q_sk{uid[0]}:"""]

    def issue(h):
        if h >= 18 or (OPT.get("qx") == 2 and h > 3):
            return []
        chk = [f"buffer_load_dword v15, v14, s[{SRDD}:{SRDD+3}], 0 offen offset:132 sc1"] if h == 13 else []
        return (ix(h >> 1) if h % 2 == 0 else []) + iw(h) + chk
    for x in ix(0):
        a(x)
    for d, sh in ((11, "s76"), (12, "s77")):
        a(f"""s_lshr_b32 s7, {sh}, 4
        v_add_u32 v3, s7, v0
        {"v_add_u32 v3, 512, v3" if d == 12 else ""}
        v_mul_u32_u24 v4, 2731, v3
        v_lshrrev_b32 v4, 16, v4
        v_mul_u32_u24 v5, 24, v4
        v_sub_u32 v5, v3, v5
        v_and_b32 v3, 2, v4
        v_lshlrev_b32 v3, 1, v3
        v_xor_b32 v5, v5, v3
        v_mul_u32_u24 v4, 3456, v4
        v_lshl_add_u32 v{d}, v5, 4, v4""")
    for x in iw(0) + iw(1):
        a(x)
    srd(a, SRDW, G.P_WS, G.WS_END)
    srd(a, SRDD, G.P_DBG, 256)
    a("v_mov_b32 v14, 0")
    G.lane_parts(a)

    def loop(w_is_a):
        def reads(n, b):
            f = FR + 16 * b
            r = [f"ds_read_b128 {vr(f, 4)}, v{XA + (n & 3)}"]
            for ft in range(3):
                for e in range(2):
                    r.append(f"ds_read_b64_tr_b16 {vr(f+4+4*ft+2*e, 2)}, v{WA+ft} offset:{(16*(n & 1)+4*e)*384}")
            return r

        def upd2(n):
            u = [(XA + (n & 3), 16384 if (n >> 2) % 2 == 0 else -16384)] if n < 32 else []
            if n & 1 and n < 35:
                u += [(WA + ft, WS_ if ((n >> 1) + 1) & 3 else -3 * WS_) for ft in range(3)]
            return u

        def mfmas(n, b):
            f = FR + 16 * b
            m = []
            for ft in range(3):
                acc, w, x = vr(ACC + 16 * ft, 16), vr(f + 4 + 4 * ft, 4), vr(f, 4)
                A, B = (w, x) if w_is_a else (x, w)
                m.append(f"{MF} {acc}, {A}, {B}, {acc if n else 0}")
            return m
        G.consumer2(a, 2, reads, mfmas, None, depth=1, bar_ks=1, per_gap=3, nst=18, upd2=upd2, by_step=True,
                    pre_bar=lambda h: f"s_waitcnt vmcnt({0 if h == 17 else (3 if h & 1 else 1)})", post_bar=lambda h: issue(h + 2),
                    marks=(1, 3, 5, 8, 11, 14, 17))

    def xaddr(row):
        a("s_lshl_b32 s7, s14, 12")
        G.row_addr(a, XA, row, "s7", 8)
    a("""s_cmp_ge_u32 s4, 6
    s_cbranch_scc1 Q_v
    s_sub_u32 s46, s4, 3
    s_cmp_lt_u32 s4, 3
    s_cselect_b32 s46, s4, s46
    s_lshl_b32 s46, s46, 1
    s_add_u32 s46, s46, s15""")
    for var in range(6):
        b, wf = divmod(var, 2)
        if var:
            a(f"s_cmp_eq_u32 s46, {var}")
        for ft in range(3):
            t = [x - 48 * b for x in G.QK_TILES[b][3 * wf + ft]]
            for hh in range(2):
                val = sum(t[4 * hh + c] << (8 * c) for c in range(4))
                r = 60 + 2 * ft + hh if False else 92 + 2 * ft + hh
                a(f"s_cselect_b32 s{r}, {val}, s{r}" if var else f"s_mov_b32 s{r}, {val}")
    tr_addr(a, WA)
    xaddr(1)
    stamp(a, 1)
    loop(True)
    stamp(a, 2)
    a(f"""s_lshr_b32 s6, s3, 1
    s_mul_i32 s6, s6, {CH}
    s_cmp_lt_u32 s4, 3
    s_cselect_b32 s7, {G.Q_OFF}, {G.KV_OFF}
    s_add_u32 s6, s6, s7
    s_and_b32 s7, s3, 1
    s_lshl_b32 s13, s7, 9
    s_lshl_b32 s7, s7, 2
    s_add_u32 s7, s7, s14
    s_lshl_b32 s12, s7, 9
    s_add_u32 s12, s12, s6
    s_add_u32 s75, s13, s6
    s_add_u32 s75, s75, 8192
    s_lshl_b32 s13, s14, 2
    s_add_u32 s13, s13, 16384
    v_lshl_add_u32 v3, v1, 4, s12
    v_lshl_add_u32 v4, v1, 4, s13
    s_mov_b32 s7, {IMG}
    v_mad_u32_u24 v5, v2, s7, v3
    v_xor_b32 v13, 1, v2""")
    for var in range(6):
        if var < 5:
            a(f"s_cmp_lg_u32 s46, {var}\n s_cbranch_scc1 Q_e{var+1}")
        qk_epilogue(a, *divmod(var, 2), ACC, FR)
        if var < 5:
            a("s_branch Q_x")
            a.label(f"Q_e{var+1}")
    a.label("Q_x")
    a(f"""s_lshr_b32 s6, s46, 1
    s_mul_i32 s7, s6, 11
    s_lshr_b32 s7, s7, 1
    s_add_u32 s7, s7, s5
    s_mul_i32 s7, s7, {2*IMG}
    s_add_u32 s75, s75, s7
    s_lshl_b32 s7, s5, 10
    s_add_u32 s7, s7, 16384
    v_lshl_add_u32 v4, v0, 4, s7
    s_and_b32 s6, s6, 1
    s_add_u32 s6, s6, 5
    s_mov_b32 s7, {IMG}
    v_lshlrev_b32 v5, 4, v1
    v_mad_u32_u24 v5, v2, s7, v5
    s_cmp_lt_u32 s5, s6
    s_waitcnt lgkmcnt(0)
    s_barrier
    s_cbranch_scc0 Q_fin
    ds_read_b128 v[{FR}:{FR+3}], v4
    s_waitcnt lgkmcnt(0)
    buffer_store_dwordx4 v[{FR}:{FR+3}], v5, {W}, s75 offen sc1
    s_branch Q_fin""")
    a.label("Q_v")
    a("s_mul_i32 s46, s15, 3")
    for ft in range(3):
        a(f"""s_add_u32 s7, s46, {ft}
        s_mul_i32 s7, s7, 0x08080808
        s_add_u32 s{92+2*ft}, s7, 0x03020100
        s_add_u32 s{93+2*ft}, s7, 0x07060504""")
    tr_addr(a, WA)
    G.tau(a, 9, 8)
    xaddr(9)
    a(f"""s_sub_u32 s6, s4, 6
    s_mul_i32 s6, s6, 192
    s_lshl_b32 s7, s46, 5
    s_add_u32 s6, s6, s7
    v_add_u32 v3, s6, v1
    s_mov_b32 s7, {IMG}
    v_mul_u32_u24 v8, {2*VG}, v2""")
    for ft in range(3):
        a(f"""v_add_u32 v4, {32*ft}, v3
        v_mul_u32_u24 v5, 3641, v4
        v_lshrrev_b32 v5, 16, v5
        v_mul_u32_u24 v6, 18, v5
        v_sub_u32 v6, v4, v6
        v_mad_u32_u24 v5, v5, s7, v8
        v_lshl_add_u32 v{80+ft}, v6, 4, v5""")
    stamp(a, 1)
    loop(False)
    stamp(a, 2)
    a(f"""s_lshr_b32 s6, s3, 1
    s_mul_i32 s6, s6, {CH}
    s_and_b32 s7, s3, 1
    s_lshl_b32 s7, s7, 2
    s_add_u32 s7, s7, s14
    s_mul_i32 s7, s7, {4*VG}
    s_add_u32 s12, s6, s7
    s_add_u32 s12, s12, {G.KV_OFF + 9216}
    s_nop 3""")
    for ft in range(3):
        A = ACC + 16 * ft
        for k in range(8):
            a(f"v_cvt_pk_bf16_f32 v{A+k}, v{A+2*k}, v{A+2*k+1}")
            if k == 3:
                a(f"buffer_store_dwordx4 v[{A}:{A+3}], v{80+ft}, {W}, s12 offen sc1")
        a(f"buffer_store_dwordx4 v[{A+4}:{A+7}], v{80+ft}, {W}, s12 offen offset:{VG} sc1")
    a.label("Q_fin")
    stamp(a, 3)
    a(f"""s_cmp_lg_u32 s5, 3
    s_cbranch_scc1 Q_w
    v_readfirstlane_b32 s6, v15
    s_nop 0
    s_cmp_ge_u32 s6, 16
    s_cbranch_scc1 Q_ci""")
    wait_init(a, "Q_wi")
    a.label("Q_ci")
    a(f"""s_mul_i32 s6, s4, 43
    s_lshr_b32 s6, s6, 7
    s_mul_i32 s6, s6, 3
    s_sub_u32 s6, s4, s6
    s_lshl_b32 s74, s6, 8
    s_sub_u32 s6, s4, s6
    s_mul_i32 s6, s6, 43
    s_lshr_b32 s6, s6, 7
    s_lshl_b32 s6, s6, 4
    s_add_u32 s6, s6, s3
    s_lshl_b32 s6, s6, 2
    s_add_u32 s74, s74, s6
    s_add_u32 s74, s74, {G.QF_OFF}
    v_mul_u32_u24 v14, 768, v0
    v_mov_b32 v15, 1
    s_waitcnt vmcnt(0)
    s_barrier
    s_mov_b64 exec, 0xff
    buffer_store_dword v15, v14, {W}, s74 offen sc1
    s_branch G2x""")
    a.label("Q_w")
    a("s_waitcnt vmcnt(0)")
    stamp(a, 4)
    a("s_barrier\n s_branch G2")


def tr_addr(a, WA):
    a(f"""v_bfe_u32 v3, v0, 2, 2
    v_lshl_add_u32 v3, v2, 3, v3
    v_mul_u32_u24 v3, 384, v3
    v_add_u32 v3, 32768, v3
    v_and_b32 v4, 8, v0
    v_lshlrev_b32 v4, 3, v4
    v_and_b32 v5, 3, v0
    v_lshlrev_b32 v5, 3, v5""")
    for ft in range(3):
        a(f"""v_mov_b32 v6, s{92+2*ft}
        v_mov_b32 v7, s{93+2*ft}
        v_cndmask_b32 v6, v6, v7, s[10:11]
        v_bfe_u32 v6, v6, v5, 8
        v_lshlrev_b32 v6, 3, v6
        v_xor_b32 v6, v6, v4
        v_add_u32 v{WA+ft}, v3, v6""")


def init(a):
    a.label("I_go")
    a(f"""s_lshl_b32 s6, s3, 3
    s_add_u32 s6, s6, s5
    s_mul_i32 s12, s6, 1152
    s_add_u32 s12, s12, {G.ECH_OFF}
    s_lshr_b32 s7, s6, 2
    s_mul_i32 s7, s7, {IMG}
    s_and_b32 s6, s6, 3
    s_mul_i32 s6, s6, {2*CH}
    s_add_u32 s6, s6, s7
    s_add_u32 s6, s6, {G.KV_OFF + 9216 + 288}
    s_add_u32 s7, s6, {CH}
    v_lshrrev_b32 v1, 1, v0
    v_mul_u32_u24 v1, {VG}, v1
    v_and_b32 v2, 1, v0
    v_lshl_add_u32 v1, v2, 4, v1
    v_subrev_u32 v2, 1, v2
    v_and_b32 v4, 0x3f803f80, v2
    v_mov_b32 v5, v4
    v_mov_b32 v6, v4
    v_mov_b32 v7, v4
    v_lshlrev_b32 v3, 4, v0
    v_mov_b32 v8, -1
    v_mov_b32 v9, -1
    v_mov_b32 v10, -1
    v_mov_b32 v11, -1""")
    srd(a, SRDW, G.P_WS, G.WS_END)
    srd(a, SRDD, G.P_DBG, 256)
    a(f"""buffer_store_dwordx4 v[4:7], v1, {W}, s6 offen sc1
    buffer_store_dwordx4 v[4:7], v1, {W}, s7 offen sc1
    buffer_store_dwordx4 v[8:11], v3, {W}, s12 offen sc1
    s_mov_b64 exec, 0xff
    buffer_store_dwordx4 v[8:11], v3, {W}, s12 offen offset:1024 sc1
    s_cmp_ge_u32 s3, 2
    s_cbranch_scc1 I_nz
    s_mov_b64 exec, -1
    v_mov_b32 v16, 0
    v_mov_b32 v17, 0
    v_mov_b32 v18, 0
    v_mov_b32 v19, 0
    s_lshl_b32 s6, s3, 3
    s_add_u32 s6, s6, s5
    s_lshl_b32 s6, s6, 10
    s_add_u32 s6, s6, {G.FLG_OFF}
    buffer_store_dwordx4 v[16:19], v3, {W}, s6 offen sc1""")
    a.label("I_nz")
    a("""s_mov_b64 exec, -1
    s_waitcnt vmcnt(0)
    s_barrier
    s_cmp_lg_u32 s5, 3
    s_cbranch_scc1 I_na
    s_mov_b64 exec, 1
    v_mov_b32 v14, 0
    v_mov_b32 v15, 1
    buffer_atomic_add v15, v14, s[80:83], 0 offen offset:132 sc1""")
    a.label("I_na")
    if OPT.get("touch", 0):
        a(f"""s_mov_b64 exec, -1
        s_lshl_b32 s6, s3, 3
        s_add_u32 s6, s6, s5
        s_lshr_b32 s7, s6, 2
        s_mul_i32 s7, s7, {IMG}
        s_and_b32 s12, s6, 3
        s_mul_i32 s12, s12, {2*CH}
        s_add_u32 s12, s12, s7
        s_add_u32 s12, s12, {G.KV_OFF + 9216}
        s_add_u32 s13, s12, {CH}
        v_lshlrev_b32 v12, 7, v0
        v_min_u32 v13, {15*128}, v12
        buffer_load_dword v20, v12, {W}, s12 offen
        buffer_load_dword v20, v12, {W}, s13 offen
        s_add_u32 s12, s12, 8192
        s_add_u32 s13, s13, 8192
        buffer_load_dword v20, v13, {W}, s12 offen
        buffer_load_dword v20, v13, {W}, s13 offen
        s_and_b32 s7, s6, 7
        s_mul_i32 s12, s7, {CH}
        s_bfe_u32 s7, s6, 0x10003
        s_mul_i32 s7, s7, {11*IMG - 4096}
        s_add_u32 s12, s12, s7
        s_bfe_u32 s7, s6, 0x10004
        s_mul_i32 s7, s7, {G.Q_OFF - G.KV_OFF}
        s_add_u32 s12, s12, s7
        s_add_u32 s12, s12, {G.KV_OFF + 10*IMG + 4096}
        v_min_u32 v13, {31*128}, v12
        s_cmp_lt_u32 s6, 32
        s_cbranch_scc0 I_nt
        buffer_load_dword v20, v13, {W}, s12 offen""")
        a.label("I_nt")
    a("s_waitcnt vmcnt(0)\n s_branch G2x")


def build(**opt):
    OPT.update(opt)
    K.mega = sys.modules[__name__]
    a = Asm()
    a.label(NAME)
    stamp(a, 0)
    a("s_cmp_ge_u32 s2, 512\n s_cbranch_scc1 K2_done")
    G.load_args(a)
    if OPT.get("pfc", 2) == 2:
        a("s_getpc_b64 s[14:15]")
        a.label("E_pc")
        a(f"""s_bfe_u32 s13, s2, 0x60003
        s_lshl_b32 s13, s13, 10
        v_lshlrev_b32 v10, 1, v0
        v_and_b32 v10, 0x380, v10
        v_add_u32 v10, s13, v10
        s_sub_u32 s14, s14, E_pc-{NAME}
        s_subb_u32 s15, s15, 0
        v_min_u32 v10, K2_last-{NAME}, v10
        v_mov_b32 v11, s15
        v_add_co_u32 v10, vcc, s14, v10
        s_nop 1
        v_addc_co_u32 v11, vcc, 0, v11, vcc
        global_load_dword v121, v[10:11], off""")
    a("""v_lshrrev_b32 v1, 6, v0
    v_and_b32 v0, 63, v0
    s_and_b32 s6, s2, 7
    v_readfirstlane_b32 s5, v1
    s_bfe_u32 s47, s2, 0x50003
    s_cmp_lt_u32 s47, 20
    s_cbranch_scc1 E_np""")
    if OPT.get("pfe", 1):
        K.pf_setup(a, 47)
        a("s_lshr_b32 s7, s2, 8\n s_mul_i32 s7, s7, 96\n s_add_u32 s12, s12, s7")
        K.pf_item(a, "e", 0, 120)
    a.label("E_np")
    a("""s_cmp_ge_u32 s2, 256
    s_cbranch_scc1 A_go
    s_cmp_ge_u32 s47, 20
    s_cbranch_scc1 K2_ssm
    s_lshr_b32 s3, s6, 1
    s_lshl_b32 s3, s3, 2
    s_and_b32 s4, s47, 3
    s_add_u32 s3, s3, s4
    s_and_b32 s6, s6, 1
    s_mul_i32 s6, s6, 5
    s_lshr_b32 s7, s47, 2
    s_add_u32 s4, s6, s7
    s_mov_b32 s101, s4
    s_and_b32 s6, s2, 7""")
    if OPT.get("pfm", 0) == 1:
        K.pf_setup(a, 47, 0)
        K.pf_item(a, "q", 0, 16)
        K.pf_item(a, "r", 160, 16)
    a("""s_cmp_ge_u32 s4, 9
    s_waitcnt lgkmcnt(0)
    s_cbranch_scc1 I_go""")
    qkv(a)
    init(a)
    K.attention(a)
    K.ssm(a)
    a.lines = [ln if "atomic" in ln else ln.replace(" sc0 sc1", " sc1") for ln in a.lines]
    errs = check(a.lines, "mega")
    for body in getattr(a, "loops", []):
        errs += check(body + body, "loop")
    ref = open("concat_heads__mha_block__ssm_conv_s5__prompt.s.ref").read()
    head = ref[:ref.index("; Override launch geometry")]
    out = head + """; One launch, 512 co-resident workgroups (two per CU), roles by id (generated by gen/mega.py, a hand-written generator):
;   0..159   Q,K,V projection tiles (16 of them initialise constants / hand-off words instead)
;   160..255 SSM input GEMM + exact chunked scan ; afterwards ids 0..143 compute one tile each of the SSM read-out GEMM
;   256..511 attention per (head, 256 queries), then one tile of the output projection
; hand-offs: write-through stores -> vmcnt(0) -> arrival counter ; consumers spin, then read with sc1
; @launch grid=(512,1,1) block=(512,1,1) lds=81920
.amdgcn_target "amdgcn-amd-amdhsa--gfx950"
.text
""" + f".globl {NAME}\n.p2align 8\n.type {NAME},@function\n" + a.text() + '.section .rodata,"a"\n.p2align 6\n' + G.desc(NAME, 128)
    return out, sorted(set(errs))


if __name__ == "__main__":
    opts = {}
    path = "concat_heads__mha_block__ssm_conv_s5__prompt.s"
    for arg in sys.argv[1:]:
        if "=" in arg:
            k, v = arg.split("=")
            opts[k] = int(v)
        else:
            path = arg
    text, errs = build(**opts)
    for e in errs:
        print("HAZARD", e)
    open(path, "w").write(text)
    print("wrote", path, len(text), "bytes;", len(errs), "hazards")
```

```python
import gen as G
from asmlib import Asm, vr

MF = "v_mfma_f32_32x32x16_bf16"
MF8 = "v_mfma_f32_32x32x8bf16_1k"
OA, PP, KF, KX, VF, QB, AK, AX, AV, NK, NX, NV = 48, 64, 72, 80, 88, 104, 112, 113, 114, 115, 116, 117


AV2, NV2 = 122, 123


def S(q, j):
    return 16 + 16 * (j & 1)


def k2(a):
    a.label("k2_kernel")
    G.stamp(a, 0)
    a("""s_cmp_ge_u32 s2, 448
    s_cbranch_scc1 K2_done""")
    G.load_args(a)
    a("""v_lshrrev_b32 v1, 6, v0
    v_and_b32 v0, 63, v0
    s_cmp_ge_u32 s2, 256
    v_readfirstlane_b32 s5, v1
    s_cbranch_scc1 K2_ssm""")
    attention(a)
    ssm(a)


ST2 = 20480


def tail_loader(a, nst, issue, per=5, pre=2, end=True):
    for st in range(pre):
        issue(st)
    for st in range(nst):
        a(f"s_waitcnt vmcnt({per * min(pre - 1, nst - 1 - st)})\n s_barrier")
        if st + pre < nst:
            issue(st + pre)
    if end:
        a("s_endpgm")


def poll(a, tag, off, target, sleep=2):
    W = f"s[{G.SRDW}:{G.SRDW+3}]"
    a(f"s_mov_b64 exec, 1\n v_mov_b32 v14, 0\n s_mov_b32 s72, 0")
    a.label(tag)
    a(f"""buffer_load_dword v15, v14, {W}, s{off} offen sc0 sc1
    s_waitcnt vmcnt(0)
    v_readfirstlane_b32 s73, v15
    s_add_u32 s72, s72, 1
    s_cmp_ge_u32 s73, {target}
    s_cbranch_scc1 {tag}_ok
    s_sleep {sleep}
    s_cmp_lt_u32 s72, 0x100000
    s_cbranch_scc1 {tag}""")
    a.label(tag + "_ok")
    a("s_mov_b64 exec, -1")


def arrive(a, off):
    W = f"s[{G.SRDW}:{G.SRDW+3}]"
    a(f"""s_mov_b64 exec, 1
    v_mov_b32 v14, 0
    v_mov_b32 v15, 1
    buffer_atomic_add v15, v14, {W}, s{off} offen sc1
    s_mov_b64 exec, -1""")


def pf_item(a, tag, add, dummy):
    SRD1, SRD2A = G.SRD1, G.SRD2A
    a(f"""s_add_u32 s13, s12, {add}
    s_mul_i32 s14, s13, 2850
    s_lshr_b32 s14, s14, 16
    s_mul_i32 s15, s14, 23
    s_sub_u32 s15, s13, s15
    s_cmp_ge_u32 s13, 207
    s_cbranch_scc1 P_n{tag}
    s_cmp_lt_u32 s15, 8
    s_cbranch_scc0 P_w{tag}
    s_lshr_b32 s68, s6, 1
    s_lshl_b32 s68, s68, 3
    s_add_u32 s15, s15, s68
    s_mul_i32 s15, s15, {64*1152}
    s_lshl_b32 s14, s14, 7
    s_add_u32 s15, s15, s14
    buffer_load_dword v{dummy}, v1, s[{SRD1}:{SRD1+3}], s15 offen
    s_branch P_n{tag}""")
    a.label(f"P_w{tag}")
    a(f"""s_and_b32 s69, s6, 1
    s_mul_i32 s69, s69, 15
    s_add_u32 s15, s15, s69
    s_sub_u32 s15, s15, 8
    s_mul_i32 s14, s14, {64*3456}
    s_cmp_lt_u32 s15, 27
    s_cselect_b32 s14, s14, {0x7f000000}
    s_lshl_b32 s15, s15, 7
    s_add_u32 s15, s15, s14
    buffer_load_dword v{dummy}, v2, s[{SRD2A}:{SRD2A+3}], s15 offen""")
    a.label(f"P_n{tag}")


def pf_setup(a, ireg, first=20):
    a(f"""s_sub_u32 s12, s{ireg}, {first}
    s_lshl_b32 s12, s12, 3
    s_add_u32 s12, s12, s5
    v_mul_u32_u24 v1, 1152, v0
    v_mul_u32_u24 v2, 3456, v0
    s_waitcnt lgkmcnt(0)""")
    G.srd(a, G.SRD1, G.P_AX, 2048 * 1152)
    G.srd(a, G.SRD2A, G.P_WQKV, 576 * 3456)


def warm_mall(a):
    D = G.SRD2B
    a(f"""s_lshl_b32 s12, s5, 8
    s_add_u32 s12, s12, s2
    s_sub_u32 s12, s12, 256
    v_lshlrev_b32 v3, 7, v0
    s_mov_b32 s{D+3}, 0x00020000
    s_waitcnt lgkmcnt(0)
    s_mov_b64 s[{D}:{D+1}], s[{G.P_AX}:{G.P_AX+1}]
    s_mov_b32 s{D+2}, {2048*1152}
    s_mov_b32 s13, 0""")
    for first, p, n in ((576, G.P_WQKV, 576 * 3456), (1062, G.P_BX, 2048 * 1152), (1638, G.P_BRE, 576 * 1152), (1800, G.P_BIM, 576 * 1152)):
        a(f"""s_cmp_ge_u32 s12, {first}
        s_cselect_b32 s{D}, s{p}, s{D}
        s_cselect_b32 s{D+1}, s{p+1}, s{D+1}
        s_cselect_b32 s{D+2}, {n}, s{D+2}
        s_cselect_b32 s13, {first}, s13""")
    a(f"""s_sub_u32 s12, s12, s13
    s_lshl_b32 s12, s12, 12
    s_mov_b64 exec, 0xffffffff
    buffer_load_dword v118, v3, s[{D}:{D+3}], s12 offen
    s_mov_b64 exec, -1""")


def prefetch_att(a):
    SRD1 = G.SRD1
    a("""s_bfe_u32 s7, s2, 0x50003
    s_cmp_lt_u32 s7, 20
    s_cbranch_scc1 P_x""")
    pf_setup(a, 7)
    if G.OPT.get("pf1", 1):
        if not G.OPT.get("pfe", 1):
            pf_item(a, "a", 96 + G.OPT.get("pfs", 0), 118)
        if G.OPT.get("pfs", 0) < 15:
            pf_item(a, "b", 192 + G.OPT.get("pfs", 0), 118)
    if G.OPT.get("pfc", 2) == 1:
        a("s_getpc_b64 s[14:15]")
        a.label("K1_pc")
        a(f"""s_lshl_b32 s13, s12, 10
        s_sub_u32 s14, s14, K1_pc-{mega.NAME}
        s_subb_u32 s15, s15, 0
        v_and_b32 v10, 7, v0
        v_lshl_add_u32 v10, v10, 7, s13
        v_min_u32 v10, K2_last-{mega.NAME}, v10
        v_mov_b32 v11, s15
        v_add_co_u32 v10, vcc, s14, v10
        s_nop 1
        v_addc_co_u32 v11, vcc, 0, v11, vcc
        global_load_dword v118, v[10:11], off""")
    a(f"""s_lshr_b32 s68, s6, 1
    s_mul_i32 s68, s68, {512*1152}
    s_and_b32 s71, s6, 1
    s_mul_i32 s71, s71, {288*1152}
    v_min_u32 v2, 31, v0
    v_mul_u32_u24 v2, 1152, v2""")
    for k in range(2 if G.OPT.get("pf2", 1) else 0):
        a(f"""s_add_u32 s13, s12, {96*k}
        s_mul_i32 s14, s13, 3641
        s_lshr_b32 s14, s14, 16
        s_mul_i32 s15, s14, 18
        s_sub_u32 s15, s13, s15
        s_lshl_b32 s14, s14, 7
        s_cmp_ge_u32 s13, 162
        s_cbranch_scc1 P_x
        s_cmp_lt_u32 s15, 13
        s_cselect_b32 s{SRD1}, s{G.P_BRE}, s{G.P_BIM}
        s_cselect_b32 s{SRD1+1}, s{G.P_BRE+1}, s{G.P_BIM+1}
        s_cselect_b32 s69, 8, 13
        s_mov_b32 s{SRD1+2}, {576*1152}
        s_mov_b32 s70, s71
        s_cmp_lt_u32 s15, 8
        s_cselect_b32 s{SRD1}, s{G.P_BX}, s{SRD1}
        s_cselect_b32 s{SRD1+1}, s{G.P_BX+1}, s{SRD1+1}
        s_cselect_b32 s{SRD1+2}, {2048*1152}, s{SRD1+2}
        s_cselect_b32 s69, 0, s69
        s_cselect_b32 s70, s68, s70
        s_cmp_eq_u32 s15, 12
        s_cselect_b64 vcc, -1, 0
        s_cmp_eq_u32 s15, 17
        s_cselect_b64 vcc, -1, vcc
        s_sub_u32 s15, s15, s69
        s_mul_i32 s15, s15, {64*1152}
        s_add_u32 s15, s15, s14
        s_add_u32 s15, s15, s70
        v_cndmask_b32 v3, v1, v2, vcc
        buffer_load_dword v118, v3, s[{SRD1}:{SRD1+3}], s15 offen""")
    a.label("P_x")


def attention(a):
    OPT, IMG, CH, VG = G.OPT, G.IMG, G.CH, G.VG
    stamp, stampc = G.stamp, G.stampc
    W = f"s[{G.SRDW}:{G.SRDW+3}]"
    a.label("A_go")
    if OPT.get("wm", 0):
        warm_mall(a)
    prefetch_att(a)
    a(f"""s_and_b32 s3, s2, 7
    s_lshl_b32 s3, s3, 2
    s_bfe_u32 s6, s2, 0x20003
    s_add_u32 s3, s3, s6
    s_bfe_u32 s4, s2, 0x30005
    s_mul_i32 s75, s3, {IMG}
    s_lshl_b32 s13, s5, 10
    s_add_u32 s78, s5, 16
    s_min_u32 s78, s78, 18
    s_lshl_b32 s78, s78, 10
    s_mov_b32 s12, s75
    s_mov_b32 s76, 0
    v_lshlrev_b32 v3, 4, v0""")
    G.lane_parts(a)
    a(f"""s_mul_i32 s14, s4, {CH}
    s_add_u32 s14, s14, s75
    s_add_u32 s14, s14, {G.Q_OFF}
    v_lshlrev_b32 v4, 4, v1
    v_lshl_add_u32 v5, v2, 12, v4
    s_lshl_b32 s6, s5, 9
    v_add_u32 v5, s6, v5
    s_lshr_b32 s6, s5, 2
    s_lshl_b32 s6, s6, 9
    s_and_b32 s7, s5, 3
    s_lshl_b32 s7, s7, 2
    s_add_u32 s6, s6, s7
    s_add_u32 s6, s6, 8192
    v_add_u32 v4, s6, v4
    v_add_u32 v6, s13, v3
    v_add_u32 v7, s78, v3
    s_waitcnt lgkmcnt(0)""")
    G.srd(a, G.SRDW, G.P_WS, G.WS_END)

    def dma(c, k):
        sl, g = (c & 3) * CH, c * CH
        if k < 2:
            return f"""s_add_u32 m0, s13, {sl + 8192*k}
            s_add_u32 s7, s75, {g + 8192*k}
            buffer_load_dwordx4 v6, {W}, s7 offen sc1 lds"""
        return f"""s_add_u32 m0, s78, {sl}
        s_add_u32 s7, s75, {g}
        buffer_load_dwordx4 v7, {W}, s7 offen sc1 lds"""

    a(f"""v_and_b32 v11, 19, v1
    v_and_b32 v12, 4, v1
    v_lshl_add_u32 v11, v12, 1, v11
    v_and_b32 v12, 8, v1
    v_lshrrev_b32 v12, 1, v12
    v_add_u32 v11, v11, v12
    v_lshlrev_b32 v{AX}, 4, v11
    v_lshl_add_u32 v{AK}, v2, 12, v{AX}
    v_add_u32 v{AX}, 8192, v{AX}""")
    a(f"""v_min_u32 v12, 19, v1
    v_cmp_gt_u32 vcc, 16, v1
    v_cmp_eq_u32 s[70:71], 28, v1
    s_nop 0
    v_cndmask_b32 v12, v12, v11, vcc
    s_nop 0
    v_cndmask_b32 v12, v12, 18, s[70:71]
    v_bfe_u32 v13, v12, 2, 2
    v_xor_b32 v13, v13, v2
    v_lshlrev_b32 v13, 4, v13
    v_lshl_add_u32 v{AV}, v12, 6, v13
    v_add_u32 v{AV}, 9216, v{AV}
    v_xor_b32 v{AV2}, 32, v{AV}
    v_add_u32 v{NV2}, {3*CH}, v{AV2}
    v_add_u32 v{NK}, {3*CH}, v{AK}
    v_add_u32 v{NX}, {3*CH}, v{AX}
    v_add_u32 v{NV}, {3*CH}, v{AV}
    s_mov_b32 s70, {G.f2u(G.QSCALE)}""")
    for i in range(16):
        a(f"v_mov_b32 v{OA+i}, 0")
    a(f"""s_bfe_u32 s7, s2, 0x50003
    s_lshl_b32 s7, s7, 3
    s_add_u32 s7, s7, s5
    s_cmp_ge_u32 s7, 81
    s_cselect_b32 s48, s{G.P_CIM}, s{G.P_CRE}
    s_cselect_b32 s49, s{G.P_CIM+1}, s{G.P_CRE+1}
    s_cselect_b32 s69, 81, 0
    s_cmp_ge_u32 s7, 162
    s_cselect_b32 s48, s{G.P_WO}, s48
    s_cselect_b32 s49, s{G.P_WO+1}, s49
    s_cselect_b32 s69, 162, s69
    s_sub_u32 s7, s7, s69
    s_lshl_b32 s79, s7, 13
    s_mov_b32 s50, {576*1152}
    s_mov_b32 s51, 0x00020000
    v_lshlrev_b32 v119, 7, v0""")
    a(f"""s_mov_b32 s73, 0xffff0000
    s_cmp_lg_u32 s5, 0
    s_cbranch_scc1 A_w""")
    a(f"s_sleep {OPT.get('asleep0', 127)}")
    mega.wait_init(a, "A_wi")
    a(f"""s_and_b32 s74, s2, 7
    s_mul_i32 s74, s74, 768
    s_add_u32 s74, s74, {G.QF_OFF}
    s_cmp_gt_u32 s3, 10
    s_addc_u32 s6, 0, 0
    s_cmp_gt_u32 s3, 21
    s_addc_u32 s6, s6, 0
    s_lshl_b32 s6, s6, 8
    s_cmp_ge_u32 s3, 10
    s_addc_u32 s7, 0, 0
    s_cmp_ge_u32 s3, 21
    s_addc_u32 s7, s7, 0
    s_lshl_b32 s7, s7, 8
    s_add_u32 s71, s74, s7
    s_add_u32 s74, s74, s6
    v_lshlrev_b32 v14, 2, v0""")
    mega.spin(a, "A_wq", f"buffer_load_dword v15, v14, {W}, s74 offen sc1", 1, lanes=48, sleep=OPT.get("asleep", 4))
    a("s_cmp_eq_u32 s71, s74\n s_cbranch_scc1 A_w")
    mega.spin(a, "A_wr", f"buffer_load_dword v15, v14, {W}, s71 offen sc1", 1, lanes=48, sleep=1)
    a.label("A_w")
    a(f"""s_waitcnt vmcnt(0)
    s_barrier
    s_setprio {OPT.get("prioa", 1)}""")
    stamp(a, 5 if OPT["stamps"] == 4 else 1)
    a(f"""buffer_load_dwordx4 v[{QB}:{QB+3}], v5, {W}, s14 offen sc1
    buffer_load_dword v{QB+4}, v4, {W}, s14 offen sc1""")
    for c in range(4):
        for k in range(3):
            a(dma(c, k))
    a("s_waitcnt vmcnt(12)")
    for q in (QB, QB + 1, QB + 2, QB + 3, QB + 4):
        a(f"""v_lshlrev_b32 v12, 16, v{q}
        v_and_b32 v13, s73, v{q}
        v_mul_f32 v12, s70, v12
        v_mul_f32 v13, s70, v13
        v_cvt_pk_bf16_f32 v{q}, v12, v13""")
    for q in range(1):
        x = QB + 8 * q + 4
        a(f"""v_cndmask_b32 v{x}, v{x}, 0, s[8:9]
        v_mov_b32 v{x+1}, 0
        v_mov_b32 v{x+2}, 0
        v_mov_b32 v{x+3}, v{x}""")
    a(f"s_waitcnt vmcnt({9 if OPT.get('b0', 1) else 6})\n s_barrier")
    stamp(a, 2)
    stampc(a, 5)

    def ad(lo, hi, c, off):
        sl = c & 3
        return (f"v{hi} offset:{off}" if sl == 3 else f"v{lo} offset:{sl * CH + off}")

    def rdK(j):
        return f"ds_read_b128 {vr(KF + 4*(j & 1), 4)}, {ad(AK, NK, j >> 3, (j & 7) * 512)}"

    def rdX(u):
        return f"ds_read_b128 {vr(KX + 4*(u & 1), 4)}, {ad(AX, NX, u >> 1, (u & 1) * 512)}"

    def rdV(j, u):
        return f"ds_read_b128 {vr(VF + 8*(j & 1) + 4*u, 4)}, {ad(AV2 if u else AV, NV2 if u else NV, j >> 3, (j & 7) * G.VT)}"

    def mA(q, j):
        return f"{MF} {vr(S(q, j), 16)}, {vr(KF + 4*(j & 1), 4)}, {vr(QB + 8*q, 4)}, 0"

    def mB(q, j):
        kx = KX + 4 * ((j >> 2) & 1) + 2 * ((j >> 1) & 1)
        return f"{MF8} {vr(S(q, j), 16)}, {vr(kx, 2)}, {vr(QB + 8*q + 4 + 2*(j & 1), 2)}, {vr(S(q, j), 16)}"

    def mP(q, j, u):
        o = vr(OA + 16 * q, 16)
        return f"{MF} {o}, {vr(VF + 8*(j & 1) + 4*u, 4)}, {vr(PP + 8*q + 4*u, 4)}, {o}"

    a(f"""{rdK(0)}
    {rdX(0)}
    {rdK(1)}
    {rdV(0, 0)}
    {rdV(0, 1)}
    s_waitcnt lgkmcnt(3)
    {mA(0, 0)}
    {mB(0, 0)}
    s_waitcnt lgkmcnt(0)
    s_nop 8""")
    a(".p2align 3")
    pat = "A k v0 e e e e P1 v1 x e e e e B d e e c c c c e e P0 e e e e w n c c c c"
    for jj in range(64):
        c8, j8 = divmod(jj, 8)
        last = jj == 63
        s, P = S(0, jj), PP
        ne = nc = 0
        for tok in pat.split():
            if tok == "e":
                a(f"v_exp_f32 v{s+ne}, v{s+ne}")
                ne += 1
            elif tok == "c":
                a(f"v_cvt_pk_bf16_f32 v{P+nc}, v{s+2*nc}, v{s+2*nc+1}")
                nc += 1
            elif tok == "A" and not last:
                a(mA(0, jj + 1))
            elif tok == "B" and not last:
                a(mB(0, jj + 1))
            elif tok == "P1" and jj:
                a(mP(0, jj - 1, 1))
            elif tok == "P0":
                a(mP(0, jj, 0))
            elif tok == "k" and jj + 2 < 64:
                a(rdK(jj + 2))
            elif tok == "v0" and not last:
                a(rdV(jj + 1, 0))
            elif tok == "v1" and not last:
                a(rdV(jj + 1, 1))
            elif tok == "x" and jj % 4 == 0 and jj < 60:
                a(rdX(jj // 4 + 1))
            elif tok == "d" and jj == OPT.get("wpf", 3):
                a("buffer_load_dword v118, v119, s[48:51], s79 offen")
            elif tok == "d" and j8 < 3 and 1 <= c8 <= 4:
                a(dma(c8 + 3, j8))
            elif tok == "w" and not last:
                if j8 == 7 and c8 <= 5:
                    a(f"s_waitcnt vmcnt({3 if c8 <= 4 else 0}) lgkmcnt(0)")
                elif jj == 2 and OPT.get('b0', 1):
                    a("s_waitcnt vmcnt(6) lgkmcnt(0)")
                else:
                    a("s_waitcnt lgkmcnt(0)")
            elif tok == "n" and not last:
                a("s_barrier" if (j8 == 7 and c8 <= 5) or (jj == 2 and OPT.get('b0', 1)) else "s_nop 0")
    a(f"s_nop 1\n{mP(0, 63, 1)}")
    a.loops = getattr(a, "loops", [])
    stamp(a, 3)
    stampc(a, 6)
    a(f"""s_lshl_b32 s6, s4, 8
    s_lshl_b32 s7, s5, 5
    s_add_u32 s6, s6, s7
    v_add_u32 v4, s6, v1
    v_lshlrev_b32 v4, 4, v4
    v_lshl_add_u32 v5, v2, 15, v4
    s_mul_i32 s12, s3, {3*32768}
    s_add_u32 s12, s12, {G.O_OFF}
    s_add_u32 s13, s12, {2*32768}
    v_mov_b32 v9, 0
    v_mov_b32 v10, 0
    v_mov_b32 v11, 0
    s_mov_b32 s14, {G.f2u(2.0**-60)}
    s_mov_b32 s15, {G.f2u(2.0**60)}
    s_movk_i32 s46, 0x207""")
    a(f"""v_cndmask_b32 v6, v{OA+10}, v{OA+12}, s[8:9]
    v_add_f32 v7, |v{OA}|, |v{OA+1}|""")
    for i in range(2, 10):
        a(f"v_add_f32 v7, v7, |v{OA+i}|")
    a(f"""v_cmp_nle_f32 vcc, s14, v6
    v_cmp_lt_f32 s[68:69], s15, v6
    v_cmp_class_f32 s[70:71], v7, s46
    s_or_b64 vcc, vcc, s[68:69]
    s_or_b64 vcc, vcc, s[70:71]
    {"s_branch K2_slow" if OPT.get("slow") else "s_cbranch_vccnz K2_slow"}""")
    a.label("K2_fin")
    a("v_rcp_f32 v6, v6\n s_nop 0")
    for i in range(10):
        a(f"v_mul_f32 v{OA+i}, v6, v{OA+i}")
    for k in range(5):
        a(f"v_cvt_pk_bf16_f32 v{16+k if k < 4 else 8}, v{OA+2*k}, v{OA+2*k+1}")
    a(f"""buffer_store_dwordx4 v[16:19], v5, {W}, s12 offen sc0 sc1
    s_mov_b64 exec, 0xffffffff
    buffer_store_dwordx4 v[8:11], v4, {W}, s13 offen sc0 sc1
    s_mov_b64 exec, -1
    s_lshl_b32 s74, s4, 9
    s_add_u32 s74, s74, {G.OF_OFF}
    s_mul_i32 s14, s3, 43
    s_lshr_b32 s14, s14, 8
    s_mul_i32 s15, s14, 6
    s_sub_u32 s15, s3, s15
    s_lshl_b32 s6, s4, 2
    s_add_u32 s14, s14, s6""")
    stamp(a, 4)
    ACC, FR, XA, WA = 64, 28, 20, 24
    a("""s_cmp_lt_u32 s5, 4
    s_cbranch_scc1 K2_pc
    s_sub_u32 s6, s5, 4""")
    SP, RP = 13312, 6
    G.srd(a, G.SRD2A, G.P_WO, 576 * 1152)
    a(f"""s_nop 0
    v_lshlrev_b32 v1, 4, v0
    s_lshl_b32 s7, s6, 6""")
    for u in range(2):
        a(f"""v_add_u32 v12, s7, v0
        v_add_u32 v12, {256*u}, v12
        v_min_u32 v12, 431, v12
        v_mul_u32_u24 v13, 5462, v12
        v_lshrrev_b32 v13, 16, v13
        v_mul_u32_u24 v13, {1152 - 192}, v13
        v_lshl_add_u32 v{2+u}, v12, 4, v13""")
    a(f"""s_lshl_b32 s68, s14, 10
    s_lshl_b32 s7, s6, 15
    s_add_u32 s68, s68, s7
    s_add_u32 s68, s68, {G.O_OFF}
    s_mul_i32 s69, s15, 192
    s_lshl_b32 s76, s6, 10
    s_cmp_lt_u32 s6, 2
    s_mov_b32 s70, {0x7f000000}
    s_cselect_b32 s70, {4*32768}, s70
    s_cselect_b32 s71, 1, 0
    s_cmp_lt_u32 s6, 3
    s_cselect_b32 s77, 1, 0
    s_waitcnt vmcnt(0)
    {"s_memrealtime s[86:87]" if OPT["stamps"] == 4 else ""}
    s_barrier
    {"s_memrealtime s[88:89]" if OPT["stamps"] == 4 else ""}
    s_cmp_ge_u32 s3, 24
    s_cbranch_scc1 K2_done""")
    a(f"""s_add_u32 s70, s70, s68
    s_cmp_eq_u32 s77, 0
    s_cselect_b32 s78, {0x7f000000}, 0
    v_add_u32 v3, s78, v3""")

    def slot(mask, here):
        return f"""s_add_u32 s7, s76, {here}
        s_cmp_eq_u32 s{mask}, 0
        s_cselect_b32 m0, {RP*SP}, s7"""

    def issue_w(st):
        base = (st % RP) * SP
        a(f"""s_add_u32 m0, s76, {base + 6144}
        s_add_u32 s72, s69, {36*1152*st}
        buffer_load_dwordx4 v2, s[{G.SRD2A}:{G.SRD2A+3}], s72 offen lds
        {slot(77, base + 6144 + 4096)}
        s_nop 0
        buffer_load_dwordx4 v3, s[{G.SRD2A}:{G.SRD2A+3}], s72 offen lds""")

    def issue_o(st):
        base = (st % RP) * SP
        a(f"""s_add_u32 m0, s76, {base}
        s_add_u32 s72, s68, {6*32768*st}
        buffer_load_dwordx4 v1, {W}, s72 offen sc0 sc1 lds
        {slot(71, base + 4096)}
        s_add_u32 s72, s70, {6*32768*st}
        buffer_load_dwordx4 v1, {W}, s72 offen sc0 sc1 lds""")
    for st in range(4):
        issue_w(st)
    a("s_barrier")
    if OPT["stamps"] == 4:
        a("s_memrealtime s[90:91]")

    def issue_p(st):
        if st >= 4:
            issue_w(st)
        issue_o(st)
    for st in range(4):
        issue_o(st)
    for st in range(16):
        n = (2 * (3 - st) + 4 * st) if st < 4 else 4 * min(3, 15 - st)
        a(f"s_waitcnt vmcnt({n})\n s_barrier")
        if OPT["stamps"] == 4 and st in (0, 5, 15):
            a(f"s_memrealtime s[{94 + 2*(0, 5, 15).index(st)}:{95 + 2*(0, 5, 15).index(st)}]")
        if st + 4 < 16:
            issue_p(st + 4)
    if OPT["stamps"] == 4:
        G.stamp_store(a, 0, 8)
    a("s_endpgm")
    a.label("K2_pc")
    G.srd(a, G.SRDO, G.P_OUT, 2048 * 4608)
    a(f"""v_lshlrev_b32 v{XA}, 4, v1
    v_lshl_add_u32 v{XA}, v2, 10, v{XA}
    v_bfe_u32 v12, v0, 2, 2
    v_and_b32 v13, 3, v0
    v_lshlrev_b32 v13, 3, v13
    v_and_b32 v14, 16, v0
    v_lshl_add_u32 v13, v14, 1, v13
    s_lshl_b32 s7, s5, 6
    s_add_u32 s7, s7, 6144
    v_add_u32 v13, s7, v13
    s_movk_i32 s7, 192""")
    for i, (r0, r1) in enumerate(((0, 8), (16, 18), (26, 34), (30, 38))):
        a(f"""v_mad_u32_u24 v14, v2, {r1 - r0}, v12
        v_add_u32 v14, {r0}, v14
        v_min_u32 v14, 35, v14
        v_mad_u32_u24 v{WA+i}, v14, s7, v13""")
    a(G.out_addr(a, 8192, 0))
    a(f"""s_mul_i32 s6, s14, {64*4608}
    s_mul_i32 s7, s15, 384
    s_add_u32 s6, s6, s7
    s_lshl_b32 s7, s5, 7
    s_add_u32 s12, s6, s7
    s_add_u32 s13, s12, {32*4608}
    s_waitcnt vmcnt(0)
    s_barrier
    s_cmp_lg_u32 s5, 3
    s_cbranch_scc1 K2_pw""")
    a(f"""s_lshl_b32 s6, s3, {OPT.get("osh", 4)}
    v_mov_b32 v14, s6
    v_mov_b32 v15, 1
    s_mov_b64 exec, 1
    buffer_store_dword v15, v14, {W}, s74 offen sc1
    s_mov_b64 exec, -1
    s_cmp_ge_u32 s3, 24
    s_cbranch_scc1 K2_done
    v_lshlrev_b32 v14, {OPT.get("osh", 4)}, v0""")
    mega.spin(a, "K2_pp", f"buffer_load_dword v15, v14, {W}, s74 offen sc1", 1, lanes=32, sleep=OPT.get("osleep", 1))
    a("s_barrier\n s_endpgm")
    a.label("K2_pw")
    a("s_cmp_ge_u32 s3, 24\n s_cbranch_scc1 K2_end\n s_barrier")
    stamp(a, 7)

    def reads_p(ks, b):
        f = FR + 12 * b
        return [f"ds_read_b64_tr_b16 {vr(f, 2)}, v{WA+ks}", f"ds_read_b64_tr_b16 {vr(f+2, 2)}, " + (f"v{WA+ks} offset:768" if ks < 2 else f"v{WA+3}"),
                f"ds_read_b128 {vr(f+4, 4)}, v{XA} offset:{2048*ks}", f"ds_read_b128 {vr(f+8, 4)}, v{XA} offset:{2048*ks+512}"]

    def mfmas_t(n, b, init=True):
        f = FR + 12 * b
        return [f"{MF} {vr(ACC+16*tt, 16)}, {vr(f, 4)}, {vr(f+4+4*tt, 4)}, {vr(ACC+16*tt, 16) if n or not init else 0}" for tt in range(2)]
    G.consumer2(a, 3, reads_p, mfmas_t, lambda ks: [WA + ks] + ([XA, WA + 3] if ks == 2 else []), depth=2, bar_ks=0, per_gap=3, nst=16, stage=SP, ring=RP)
    a("s_nop 10")
    G.out_tiles(a, [(ACC + 16 * tt, 12 + tt, 0) for tt in range(2)])
    a.label("K2_end")
    if OPT["stamps"]:
        a("s_memrealtime s[86:87]")
    G.stamp_store(a, 0, 8)
    a.label("K2_done")
    a("s_endpgm")
    a.label("K2_slow")
    for ps in range(2):
        a("s_mov_b32 s6, 0")
        if ps == 0:
            a("v_mov_b32 v7, 0xff800000")
        else:
            for i in range(16):
                a(f"v_mov_b32 v{OA+i}, 0")
        a.label(f"K2_sl{ps}")
        st = len(a.lines)
        a(f"""s_lshr_b32 s7, s6, 2
        s_mul_i32 s7, s7, {CH}
        s_add_u32 s7, s7, s75
        s_and_b32 s68, s6, 3
        s_mul_i32 s70, s68, {2*G.VT}
        s_add_u32 s70, s70, s7
        s_lshr_b32 s69, s68, 1
        s_lshl_b32 s69, s69, 9
        s_add_u32 s69, s69, s7
        s_bitcmp1_b32 s6, 0
        s_cselect_b32 s71, 8, 0
        s_add_u32 s69, s69, s71
        s_lshl_b32 s68, s68, 10
        s_add_u32 s68, s68, s7
        buffer_load_dwordx4 {vr(KF, 4)}, v{AK}, {W}, s68 offen sc1
        buffer_load_dwordx4 {vr(KF + 4, 4)}, v{AK}, {W}, s68 offen offset:512 sc1
        buffer_load_dwordx2 {vr(KX, 2)}, v{AX}, {W}, s69 offen sc1""")
        if ps:
            for i in range(4):
                a(f"buffer_load_dwordx4 {vr(VF + 4*i, 4)}, v{AV2 if i & 1 else AV}, {W}, s70 offen offset:{(i >> 1)*G.VT} sc1")
        a(f"s_waitcnt vmcnt(0)\n{mA(0, 0)}\n{mA(0, 1)}\n{mB(0, 0)}\n{mB(0, 1)}\n s_nop 15")
        for j in range(2):
            s = S(0, j)
            if ps == 0:
                for i in range(0, 16, 2):
                    a(f"v_max3_f32 v7, v7, v{s+i}, v{s+i+1}")
            else:
                for i in range(16):
                    a(f"v_sub_f32 v{s+i}, v{s+i}, v7")
                for i in range(16):
                    a(f"v_exp_f32 v{s+i}, v{s+i}")
                a("s_nop 0")
                for k in range(8):
                    a(f"v_cvt_pk_bf16_f32 v{PP+k}, v{s+2*k}, v{s+2*k+1}")
                a(f"s_nop 1\n{mP(0, j, 0)}\n{mP(0, j, 1)}")
        a(f"""s_add_u32 s6, s6, 1
        s_cmp_lt_u32 s6, 32
        s_cbranch_scc1 K2_sl{ps}""")
        a.loops.append(a.lines[st:])
        if ps == 0:
            a("""v_mov_b32 v8, v7
            s_nop 1
            v_permlane32_swap_b32 v7, v8
            s_nop 1
            v_max_f32 v7, v7, v8""")
    a(f"""s_nop 15
    v_cndmask_b32 v6, v{OA+10}, v{OA+12}, s[8:9]
    s_branch K2_fin""")


def cstep(a, nr, ni, lr, li, er, ei, xr, xi):
    a(f"""v_fma_f32 v{nr}, v{lr}, v{er}, v{xr}
    v_fma_f32 v{ni}, v{lr}, v{ei}, v{xi}
    v_fma_f32 v{nr}, -v{li}, v{ei}, v{nr}
    v_fma_f32 v{ni}, v{li}, v{er}, v{ni}""")


def ssm(a):
    OPT, PLB = G.OPT, G.PLB
    stamp = G.stamp
    W = f"s[{G.SRDW}:{G.SRDW+3}]"
    ACC, FR, XA, WA = 64, 32, 24, 28
    a.label("K2_ssm")
    WB, WS_ = 32768, 12288
    a(f"""s_sub_u32 s7, s47, 20
    s_and_b32 s4, s6, 1
    s_mul_i32 s4, s4, 3
    s_lshr_b32 s3, s7, 2
    s_add_u32 s4, s4, s3
    s_and_b32 s7, s7, 3
    s_lshr_b32 s3, s6, 1
    s_lshl_b32 s3, s3, 2
    s_add_u32 s3, s3, s7
    s_setprio {OPT.get("prio", 1)}
    s_nop 0""")
    if not OPT.get("pfe", 1):
        pf_setup(a, 47)
        pf_item(a, "s", OPT.get("pfs", 0), 7)
    G.srd(a, G.SRD1, G.P_BX, 2048 * 1152)
    G.srd(a, G.SRD2A, G.P_BRE, 576 * 1152)
    G.srd(a, G.SRD2B, G.P_BIM, 576 * 1152)
    a("s_mov_b32 s6, s5")
    G.rows_voff(a, 6, 1152, 8)
    a(f"""s_mul_i32 s68, s3, {128*1152}
    s_mul_i32 s69, s4, {96*1152}
    s_lshl_b32 s76, s5, 10
    s_and_b32 s77, s5, 3
    s_lshl_b32 s77, s77, 10
    s_lshr_b32 s71, s5, 2
    s_lshl_b32 s70, s71, 5
    s_sub_u32 s70, 64, s70
    s_mul_i32 s70, s70, 1152
    s_add_u32 s70, s70, s69
    s_mul_i32 s6, s4, 3
    s_lshr_b32 s6, s6, 1
    s_and_b32 s7, s3, 1
    s_lshl_b32 s7, s7, 2
    s_add_u32 s6, s6, s7
    s_sub_u32 s7, s6, 9
    s_cmp_ge_u32 s6, 9
    s_cselect_b32 s6, s7, s6
    s_mul_i32 s78, s6, {128 if OPT.get("rots", 0) else 0}""")
    uid = [0]

    def issue(h):
        if h >= 18:
            return []
        xs, d, base = h >> 1, G.SRD2B if h & 1 else G.SRD2A, WB + (h & 3) * WS_
        uid[0] += 1
        r = [f"""s_add_u32 m0, s76, {(xs & 1) * 16384 + 8192*j}
            s_add_u32 s7, s68, s78
            {f"s_add_u32 s7, s7, {64*1152}" if j else ""}
            buffer_load_dwordx4 v6, s[{G.SRD1}:{G.SRD1+3}], s7 offen lds""" for j in range(2)] if h % 2 == 0 else []
        return r + [f"""s_add_u32 m0, s76, {base}
            s_add_u32 s7, s69, s78
            buffer_load_dwordx4 v6, s[{d}:{d+3}], s7 offen lds""",
                    f"""s_cmp_eq_u32 s71, {h & 1}
            s_cbranch_scc0 S_sk{uid[0]}
            s_add_u32 m0, s77, {base + 8192}
            s_add_u32 s7, s70, s78
            buffer_load_dwordx4 v6, s[{d}:{d+3}], s7 offen lds
            S_sk{uid[0]}:""" + ("""
            s_add_u32 s78, s78, 128
            s_cmp_eq_u32 s78, 1152
            s_cselect_b32 s78, 0, s78""" if h & 1 else "")]

    def vm(h):
        return 0 if h == 17 else (3 if h & 1 else 1)
    a(f"""s_cmp_lt_u32 s5, 6
    s_cbranch_scc1 K2_sc
    s_waitcnt vmcnt(0)
    s_barrier""")
    for x in issue(0) + issue(1):
        a(x)
    for h in range(18):
        a(f"s_waitcnt vmcnt({vm(h)})\n s_barrier")
        for x in issue(h + 2):
            a(x)
    a("s_barrier\n s_endpgm")
    a.label("K2_sc")
    G.srd(a, G.SRDW, G.P_WS, G.WS_END)
    G.lane_parts(a)
    PR = 8
    a(f"""s_cmp_ge_u32 s5, 3
    s_cselect_b32 s14, 1, 0
    s_mul_i32 s15, s14, 3
    s_sub_u32 s15, s5, s15
    s_mul_i32 s46, s4, 96
    s_lshl_b32 s6, s15, 5
    s_add_u32 s46, s46, s6
    v_add_u32 v3, s46, v1
    v_lshlrev_b32 v3, 1, v3
    global_load_ushort v{PR}, v3, s[{G.P_LRE}:{G.P_LRE+1}]
    global_load_ushort v{PR+1}, v3, s[{G.P_LIM}:{G.P_LIM+1}]
    global_load_ushort v{PR+2}, v3, s[{G.P_LDT}:{G.P_LDT+1}]
    v_bfe_u32 v5, v1, 1, 1
    v_lshrrev_b32 v4, 3, v1
    v_lshl_add_u32 v5, v4, 1, v5
    v_and_b32 v4, 1, v1
    v_lshl_add_u32 v5, v4, 4, v5
    v_and_b32 v4, 4, v1
    v_lshl_add_u32 v5, v4, 3, v5
    s_lshl_b32 s7, s14, 13""")
    XA, WA = 24, 28
    G.row_addr(a, XA, 5, "s7", 4)
    a(f"s_lshl_b32 s7, s15, 12\n s_add_u32 s7, s7, {WB}")
    G.row_addr(a, WA, 1, "s7", 4)
    a("s_waitcnt vmcnt(3)\n s_barrier")
    for x in issue(0) + issue(1):
        a(x)
    a("s_waitcnt vmcnt(5)")
    p = PR
    a(f"""s_mov_b32 s12, {G.f2u(G.LOG2E)}
    v_lshlrev_b32 v{p}, 16, v{p}
    v_lshlrev_b32 v{p+1}, 16, v{p+1}
    v_lshlrev_b32 v{p+2}, 16, v{p+2}
    v_mul_f32 v{p+2}, s12, v{p+2}
    v_exp_f32 v{p+2}, v{p+2}
    s_nop 0
    v_cvt_pk_bf16_f32 v{p+2}, v{p+2}, v{p+2}
    v_lshlrev_b32 v{p+2}, 16, v{p+2}
    v_mul_f32 v{p+3}, v{p+2}, v{p}
    v_mul_f32 v{p+2}, v{p+2}, v{p+1}
    v_mul_f32 v{p+3}, s12, v{p+3}
    v_mul_f32 v{p+2}, 0.15915494309189532, v{p+2}
    v_exp_f32 v{p+3}, v{p+3}
    v_fract_f32 v{p+2}, v{p+2}
    v_cos_f32 v{p+4}, v{p+2}
    v_sin_f32 v{p+5}, v{p+2}
    v_mul_f32 v{p+12}, v{p}, v{p}
    v_mul_f32 v{p+4}, v{p+4}, v{p+3}
    v_mul_f32 v{p+5}, v{p+5}, v{p+3}
    v_fma_f32 v{p+12}, v{p+1}, v{p+1}, v{p+12}
    v_rcp_f32 v{p+12}, v{p+12}
    v_add_f32 v{p+13}, -1.0, v{p+4}
    v_mul_f32 v{p+10}, v{p+13}, v{p}
    v_mul_f32 v{p+11}, v{p+5}, v{p}
    v_add_f32 v{p+12}, v{p+12}, v{p+12}
    v_fma_f32 v{p+10}, v{p+5}, v{p+1}, v{p+10}
    v_fma_f32 v{p+11}, -v{p+13}, v{p+1}, v{p+11}
    v_mul_f32 v{p+10}, v{p+10}, v{p+12}
    v_mul_f32 v{p+11}, v{p+11}, v{p+12}""")
    G.cmul(a, p + 12, p + 13, p + 4, p + 5, p + 4, p + 5)
    G.cmul(a, p + 14, p + 15, p + 12, p + 13, p + 12, p + 13)
    G.cmul(a, p + 12, p + 13, p + 14, p + 15, p + 14, p + 15)
    G.cmul(a, p - 4, p - 3, p + 12, p + 13, p + 12, p + 13)
    G.cmul(a, p + 6, p + 7, p - 4, p - 3, p - 4, p - 3)
    G.cmul(a, p + 8, p + 9, p + 6, p + 7, p + 6, p + 7)
    G.cmul(a, p, p + 1, p + 8, p + 9, p + 8, p + 9)
    LR, LI, L16R, L16I, L32R, L32I, L64R, L64I, L128R, L128I, CR, CI = p + 4, p + 5, p - 4, p - 3, p + 6, p + 7, p + 8, p + 9, p, p + 1, p + 10, p + 11
    FX, FW = (32, 44, 56), (40, 52, 20)

    def reads(n, b):
        ks = n & 3
        return [f"ds_read_b128 {vr(FW[b], 4)}, v{WA+ks}", f"ds_read_b128 {vr(FX[b], 4)}, v{XA+ks}",
                f"ds_read_b128 {vr(FX[b]+4, 4)}, v{XA+(ks^2)} offset:1024"]

    def upd2(n):
        h, ks = divmod(n, 4)
        u = [(WA + ks, WS_ if (h + 1) & 3 else -3 * WS_)] if h < 17 else []
        if h & 1 and h < 17 and ks >= 2:
            u += [(XA + k, 16384 if (h >> 1) % 2 == 0 else -16384) for k in (ks - 2, ks)]
        return u

    def mfmas(n, b):
        im = (n >> 2) & 1
        return [f"{MF} {vr(ACC + 32*im + 16*tt, 16)}, {vr(FX[b]+4*tt, 4)}, {vr(FW[b], 4)}, {vr(ACC + 32*im + 16*tt, 16) if n & ~4 else 0}"
                for tt in range(2)]
    stamp(a, 1)
    G.consumer2(a, 4, reads, mfmas, None, depth=2, bar_ks=2, per_gap=3, nst=18, upd2=upd2, by_step=True,
                pre_bar=lambda h: f"s_waitcnt vmcnt({vm(h)}) lgkmcnt(0)", post_bar=lambda h: issue(h + 2), marks=(1, 3, 5, 8, 11, 14, 17))
    stamp(a, 2)
    a("s_setprio 2")

    def pk(d, l, hi, e, x, neg=False):
        return (f"v_pk_fma_f32 {vr(d, 2)}, {vr(l, 2)}, {vr(e, 2)}, {vr(x, 2)} op_sel:[{hi},0,0] op_sel_hi:[{hi},1,1]"
                + (" neg_lo:[1,0,0] neg_hi:[1,0,0]" if neg else ""))

    def pstep(nr, ni, er, ei, xr, xi):
        a("\n".join([pk(nr, LR, 0, er, xr), pk(ni, LR, 0, ei, xi), pk(nr, LR, 1, ei, nr, True), pk(ni, LR, 1, er, ni)]))
    a(f"""s_lshl_b32 s79, s3, 1
    s_add_u32 s79, s79, s14
    v_lshlrev_b32 v3, 3, v1
    s_mul_i32 s13, s3, 4608
    s_lshl_b32 s6, s46, 3
    s_add_u32 s78, s6, {G.ECH_OFF}
    s_add_u32 s13, s13, s78
    s_mul_i32 s75, s79, {8*PLB}
    s_lshl_b32 s6, s46, 4
    s_add_u32 s75, s75, s6
    s_add_u32 s75, s75, {G.XT_OFF}
    s_lshl_b32 s6, s15, 8
    s_add_u32 s6, s6, {WB + 2*WS_}
    v_add_u32 v6, s6, v3""")
    G.srd(a, mega.SRDD, G.P_DBG, 256)
    a(f"v_mov_b32 v62, 0\n buffer_load_dword v63, v62, s[{mega.SRDD}:{mega.SRDD+3}], 0 offen offset:132 sc1")
    e = (ACC, ACC + 32)
    for s_ in range(1, 16):
        n_ = (24, 26) if s_ & 1 else (28, 30)
        pstep(n_[0], n_[1], e[0], e[1], ACC + 2 * s_, ACC + 32 + 2 * s_)
        e = n_
    cstep(a, 20, 21, L16R, L16I, 24, 26, 25, 27)
    a("""v_mov_b32 v28, v20
    v_mov_b32 v29, v21
    v_mov_b32 v30, v20
    v_mov_b32 v31, v21
    s_nop 1
    v_permlane32_swap_b32 v28, v30
    v_permlane32_swap_b32 v29, v31
    s_nop 1""")
    cstep(a, 22, 23, L32R, L32I, 28, 29, 30, 31)
    a(f"""s_cmp_lg_u32 s14, 0
    s_cbranch_scc1 S_x1
    ds_write_b64 v6, v[22:23]""")
    a.label("S_x1")
    a(f"""s_waitcnt vmcnt(0) lgkmcnt(0)
    v_readfirstlane_b32 s6, v63
    s_barrier
    ds_read_b64 v[20:21], v6
    s_cmp_ge_u32 s6, 16
    s_cbranch_scc1 S_ci
    v_mov_b32 v60, v14
    v_mov_b32 v61, v15""")
    mega.wait_init(a, "S_wi")
    a("v_mov_b32 v14, v60\n v_mov_b32 v15, v61")
    a.label("S_ci")
    a(f"""v_mov_b32 v30, 0
    v_mov_b32 v31, 0
    s_mov_b32 s12, 0
    s_waitcnt lgkmcnt(0)
    s_cmp_eq_u32 s14, 0
    s_cbranch_scc1 K2_poll""")
    cstep(a, 62, 63, L64R, L64I, 20, 21, 22, 23)
    a(f"""v_min_u32 v62, -2, v62
    v_min_u32 v63, -2, v63
    s_mov_b64 exec, 0xffffffff
    buffer_store_dwordx2 v[62:63], v3, {W}, s13 offen sc0 sc1
    s_mov_b64 exec, -1""")
    EB = 32
    a.label("K2_poll")
    a("s_mov_b32 s15, s78")
    for c in range(15):
        a(f"""s_cmp_le_u32 s3, {c}
        s_cbranch_scc1 K2_ld
        buffer_load_dwordx2 v[{EB+2*c}:{EB+2*c+1}], v3, {W}, s15 offen sc0 sc1
        s_add_u32 s15, s15, 4608""")
    a.label("K2_ld")
    a("v_mov_b32 v6, 0\n s_waitcnt vmcnt(0)")
    for c in range(15):
        a(f"""s_cmp_le_u32 s3, {c}
        s_cbranch_scc1 K2_ck
        v_max3_u32 v6, v6, v{EB+2*c}, v{EB+2*c+1}""")
    a.label("K2_ck")
    a(f"""v_cmp_eq_u32 vcc, -1, v6
    s_add_u32 s12, s12, 1
    s_cbranch_vccz K2_got
    s_sleep {OPT.get("psleep", 4)}
    s_cmp_lt_u32 s12, 0x40000
    s_cbranch_scc1 K2_poll""")
    a.label("K2_got")
    for c in range(15):
        a(f"s_cmp_le_u32 s3, {c}\n s_cbranch_scc1 K2_h{c}")
        cstep(a, EB + 2 * c, EB + 2 * c + 1, L128R, L128I, EB + 2 * c - 2, EB + 2 * c - 1, EB + 2 * c, EB + 2 * c + 1)
    for c in range(15, 0, -1):
        if c < 15:
            a.label(f"K2_h{c}")
        a(f"v_mov_b32 v30, v{EB+2*c-2}\n v_mov_b32 v31, v{EB+2*c-1}")
        if c > 1:
            a("s_branch K2_h0")
    a.label("K2_h0")
    stamp(a, 3)
    a("s_cmp_eq_u32 s14, 0\n s_cbranch_scc1 S_c0")
    cstep(a, 22, 23, L64R, L64I, 30, 31, 20, 21)
    a("v_mov_b32 v30, v22\n v_mov_b32 v31, v23")
    a.label("S_c0")
    cstep(a, 22, 23, L32R, L32I, 30, 31, 28, 29)
    a(f"""v_cndmask_b32 v28, v30, v22, s[8:9]
    v_cndmask_b32 v30, v31, v23, s[8:9]
    v_mul_u32_u24 v6, {4*PLB}, v2
    v_lshl_add_u32 v6, v1, 4, v6""")
    cstep(a, 29, 31, L16R, L16I, 28, 30, 24, 26)
    g = (28, 30)
    HO = 32
    for s_ in range(16):
        nr, ni = ACC + 2 * s_, ACC + 32 + 2 * s_
        pstep(nr, ni, g[0], g[1], nr, ni)
        o = 20 + 4 * (s_ & 1)
        a(f"""v_pk_mul_f32 {vr(o, 2)}, {vr(CR, 2)}, {vr(nr, 2)} op_sel:[0,0] op_sel_hi:[0,1]
        v_pk_mul_f32 {vr(o+2, 2)}, {vr(CR, 2)}, {vr(ni, 2)} op_sel:[0,0] op_sel_hi:[0,1] neg_lo:[1,0] neg_hi:[1,0]
        {pk(o, CR, 1, ni, o, True)}
        {pk(o+2, CR, 1, nr, o+2, True)}""")
        if s_ & 1:
            k = s_ >> 1
            a(f"""v_cvt_pk_bf16_f32 v{HO+k}, v20, v24
            v_cvt_pk_bf16_f32 v{HO+8+k}, v21, v25
            v_cvt_pk_bf16_f32 v{HO+16+k}, v22, v26
            v_cvt_pk_bf16_f32 v{HO+24+k}, v23, v27""")
        if s_ & 7 == 7:
            for ch in range(2):
                pl = 2 * ch + (s_ >> 3)
                a(f"""s_add_u32 s6, s75, {pl*PLB}
                s_add_u32 s7, s75, {pl*PLB + 576*16}
                buffer_store_dwordx4 {vr(HO+4*pl, 4)}, v6, {W}, s6 offen sc0 sc1
                buffer_store_dwordx4 {vr(HO+16+4*pl, 4)}, v6, {W}, s7 offen sc0 sc1""")
        g = (nr, ni)
    stamp(a, 4)
    a(f"""s_lshl_b32 s74, s79, 7
    s_lshr_b32 s6, s46, 3
    s_add_u32 s74, s74, s6
    s_add_u32 s74, s74, {G.FLG_OFF}
    v_mov_b32 v14, 0
    v_mov_b32 v15, 1
    s_mov_b64 exec, 1
    s_waitcnt vmcnt(0)
    buffer_store_dword v15, v14, {W}, s74 offen sc1""")
    if OPT["stamps"] == 4:
        a("s_memrealtime s[94:95]")
    a("s_branch G2_end")
    a.label("G2x")
    a("s_mov_b64 exec, -1")
    a.label("G2")
    XA, WA, FR = 20, 24, 28
    S3 = 24576
    G.srd(a, G.SRDW, G.P_WS, G.WS_END)
    a(f"""s_cmp_ge_u32 s47, 18
    s_cbranch_scc1 G2_end
    s_setprio 2
    s_and_b32 s6, s2, 7
    s_lshl_b32 s3, s6, 1
    s_and_b32 s7, s47, 1
    s_add_u32 s3, s3, s7
    s_lshr_b32 s4, s47, 1
    s_cmp_lt_u32 s5, 4
    s_cbranch_scc1 G2_c""")
    G.srd(a, G.SRD2A, G.P_CRE, 576 * 1152)
    G.srd(a, G.SRD2B, G.P_CIM, 576 * 1152)
    a("s_sub_u32 s6, s5, 4")
    G.rows_voff(a, 1, 1152, 8)
    a(f"""s_mul_i32 s69, s4, {64*1152}
    s_lshl_b32 s76, s6, 10
    s_lshl_b32 s77, s6, 11
    v_lshrrev_b32 v8, 3, v0
    v_mul_u32_u24 v8, {PLB}, v8
    v_lshrrev_b32 v9, 2, v0
    v_and_b32 v9, 4, v9
    v_and_b32 v10, 7, v0
    v_xor_b32 v9, v9, v10
    s_lshl_b32 s7, s6, 3
    v_add_u32 v9, s7, v9
    v_lshl_add_u32 v4, v9, 4, v8
    s_mul_i32 s68, s3, {16*PLB}
    s_add_u32 s68, s68, {G.XT_OFF}
    s_cmp_lg_u32 s5, 4
    s_cbranch_scc1 G2_l""")
    mega.wait_init(a, "G2_wi")
    a(f"""s_lshl_b32 s74, s3, 8
    s_add_u32 s74, s74, {G.FLG_OFF}
    v_lshlrev_b32 v14, 2, v0
    v_add_u32 v15, 56, v14
    v_cmp_lt_u32 vcc, 17, v0
    s_nop 1
    v_cndmask_b32 v14, v14, v15, vcc""")
    mega.spin(a, "G2_p", f"buffer_load_dword v15, v14, {W}, s74 offen sc1", 1, lanes=36, sleep=OPT.get("gsleep", 8))
    a.label("G2_l")
    a("s_waitcnt vmcnt(0)\n s_barrier")

    def issue_r(st):
        base = (st % 3) * S3
        kb, im = st >> 1, st & 1
        d = G.SRD2B if im else G.SRD2A
        for j in range(2):
            a(f"""s_add_u32 m0, s76, {base + 16384 + 4096*j}
            s_add_u32 s7, s69, {32*1152*j + 128*kb}
            buffer_load_dwordx4 v1, s[{d}:{d+3}], s7 offen lds""")
        for j in range(2):
            for hf in range(2):
                a(f"""s_add_u32 m0, s77, {base + 8192*j + 1024*hf}
                s_add_u32 s7, s68, {(576*im + 64*kb + 32*j) * 16 + 8*PLB*hf}
                buffer_load_dwordx4 v4, {W}, s7 offen sc0 sc1 lds""")
    tail_loader(a, 18, issue_r, per=6, end=False)
    G.stamp_store(a, 0, 8)
    a("s_endpgm")
    a.label("G2_c")
    G.lane_parts(a)
    a(f"""s_and_b32 s14, s5, 1
    s_lshr_b32 s15, s5, 1
    s_lshl_b32 s79, s3, 1
    s_add_u32 s79, s79, s14
    s_lshl_b32 s46, s4, 1
    s_add_u32 s46, s46, s15
    s_lshl_b32 s46, s46, 5
    v_lshlrev_b32 v3, 3, v2
    s_lshl_b32 s6, s46, 1
    v_add_u32 v3, s6, v3
    s_lshl_b32 s6, s79, 6
    v_add_u32 v4, s6, v1
    v_mul_u32_u24 v4, 1152, v4
    v_add_u32 v4, v4, v3
    v_add_u32 v5, {32*1152}, v4""")
    for i in range(4):
        a(f"global_load_dwordx2 v[{96+2*i}:{97+2*i}], v3, s[{G.P_DSK}:{G.P_DSK+1}] offset:{16*i}")
    for tt in range(2):
        for i in range(4):
            a(f"global_load_dwordx2 v[{104+8*tt+2*i}:{105+8*tt+2*i}], v{4+tt}, s[{G.P_BX}:{G.P_BX+1}] offset:{16*i}")
    G.srd(a, G.SRDO, G.P_OUT, 2048 * 4608)
    a(f"""v_bfe_u32 v6, v0, 4, 1
    v_mul_u32_u24 v6, 320, v6
    v_lshl_add_u32 v6, v2, 11, v6
    s_lshl_b32 s7, s14, 10
    v_add_u32 v6, s7, v6
    v_and_b32 v7, 2, v0
    v_lshl_add_u32 v6, v7, 6, v6
    v_and_b32 v7, 12, v0
    v_lshl_add_u32 v6, v7, 2, v6
    v_and_b32 v7, 1, v0
    v_lshl_add_u32 v{WA}, v7, 3, v6
    v_xor_b32 v{WA+1}, 64, v{WA}
    s_lshl_b32 s7, s15, 12
    s_add_u32 s7, s7, 16384""")
    G.row_addr(a, XA, 1, "s7", 8)
    a(G.out_addr(a, 8192, 0).replace("s_add_u32 s7, s7, 0", f"s_cmp_eq_u32 s5, 3\n s_cselect_b32 s7, {3*S3}, s7"))
    a(f"""s_mul_i32 s6, s79, {64*4608}
    s_lshl_b32 s7, s46, 2
    s_add_u32 s6, s6, s7
    s_add_u32 s12, s6, 2304
    s_add_u32 s13, s12, {32*4608}
    s_mov_b32 s14, 0xffff0000
    s_waitcnt vmcnt(0)""")
    for k in range(8):
        a(f"v_lshlrev_b32 v{32+2*k}, 16, v{96+k}\n v_and_b32 v{33+2*k}, s14, v{96+k}")
    for tt in range(2):
        for k in range(8):
            A = ACC + 16 * tt + 2 * k
            a(f"""v_lshlrev_b32 v{A}, 16, v{104+8*tt+k}
            v_and_b32 v{A+1}, s14, v{104+8*tt+k}
            v_mul_f32 v{A}, v{A}, v{32+2*k}
            v_mul_f32 v{A+1}, v{A+1}, v{33+2*k}""")
    a(f"s_setprio {OPT.get('prio3', 0)}\n s_barrier")
    stamp(a, 5)

    def reads_r(ks, b):
        f = FR + 12 * b
        r = [f"ds_read_b128 {vr(f, 4)}, v{XA+ks}"]
        for tt in range(2):
            for e in range(2):
                r.append(f"ds_read_b64_tr_b16 {vr(f+4+4*tt+2*e, 2)}, v{WA+e} offset:{4096*ks+512*tt}")
        return r

    def mfmas_r(n, b):
        f = FR + 12 * b
        return [f"{MF} {vr(ACC+16*tt, 16)}, {vr(f, 4)}, {vr(f+4+4*tt, 4)}, {vr(ACC+16*tt, 16)}" for tt in range(2)]
    G.consumer2(a, 4, reads_r, mfmas_r, lambda ks: [XA + ks] + ([WA, WA + 1] if ks == 3 else []), depth=2, bar_ks=2, per_gap=3, nst=18, stage=S3, ring=3,
                pre_bar=lambda st: "s_waitcnt lgkmcnt(0)" + ("\n s_setprio 2" if st == OPT.get("g2hi", 12) else ""))
    stamp(a, 6)
    a("s_setprio 2\n s_nop 9")
    G.out_tiles(a, [(ACC + 16 * tt, 12 + tt, 0) for tt in range(2)])
    a.label("G2_end")
    stamp(a, 7)
    G.stamp_store(a, 0, 8)
    a.label("K2_last")
    a("s_endpgm")
```

```python
import sys
import gen as G
import k2gen as K
from gen import OPT, IMG, CH, VG, PLB, SRD1, SRD2A, SRD2B, SRDW, SRDO, srd, stamp
from asmlib import Asm, check, vr

MF = G.MF
W = f"s[{SRDW}:{SRDW+3}]"
SRDD = 80
NAME = "concat_heads__mha_block__ssm_conv_s5__prompt_kernel"
ST2 = K.ST2


def spin(a, tag, load, ok, lanes=1, sleep=2):
    m = (1 << lanes) - 1
    a(f"s_mov_b32 exec_lo, {m & 0xffffffff}\n s_mov_b32 exec_hi, {m >> 32}\n s_mov_b32 s72, 0")
    a.label(tag)
    a(f"""{load}
    s_waitcnt vmcnt(0)
    v_cmp_gt_u32 vcc, {ok}, v15
    s_add_u32 s72, s72, 1
    s_cbranch_vccz {tag}_ok
    s_sleep {sleep}
    s_cmp_lt_u32 s72, 0x100000
    s_cbranch_scc1 {tag}""")
    a.label(tag + "_ok")
    a("s_mov_b64 exec, -1")


def wait_init(a, tag):
    srd(a, SRDD, G.P_DBG, 256)
    a("v_mov_b32 v14, 0")
    spin(a, tag, f"buffer_load_dword v15, v14, s[{SRDD}:{SRDD+3}], 0 offen offset:132 sc1", 16, sleep=8)


def qk_epilogue(a, b, wf, ACC, T0):
    for ft in (2, 0, 1):
        t = G.QK_TILES[b][3 * wf + ft]
        A = ACC + 16 * ft
        if G.is_regular(t):
            h0, h1 = G.chunk_info(t[0])[1], G.chunk_info(t[1])[1]
            va = 5
            if h1 - h0 != 1:
                va = 6
                a(f"s_mov_b32 s7, {(h1-h0)*IMG}\n v_mad_u32_u24 v6, v2, s7, v3")
            a(f"s_mov_b32 s12, {h0*IMG}\n s_mov_b32 s13, {h0*IMG+4096}")
            for k in range(8):
                a(f"v_cvt_pk_bf16_f32 v{A+k}, v{A+2*k}, v{A+2*k+1}")
                if k == 3:
                    a(f"buffer_store_dwordx4 v[{A}:{A+3}], v{va}, {W}, s12 offen sc1")
            a(f"buffer_store_dwordx4 v[{A+4}:{A+7}], v{va}, {W}, s13 offen sc1")
            continue
        for i in range(4):
            kk = [G.chunk_info(t[2 * i]), G.chunk_info(t[2 * i + 1])]
            T = T0 + 2 * i
            a(f"v_cvt_pk_bf16_f32 v{T}, v{A+4*i}, v{A+4*i+1}\n v_cvt_pk_bf16_f32 v{T+1}, v{A+4*i+2}, v{A+4*i+3}")
            for kind in ("half", "mid"):
                sel = [k[0] == kind for k in kk]
                if not any(sel):
                    continue
                if kind == "half":
                    c = [k[1] * IMG + (k[2] >> 1) * 4096 + (k[2] & 1) * 8 if k[0] == kind else None for k in kk]
                else:
                    c = [(k[1] - (0, 5, 11)[b]) * 1024 if k[0] == kind else None for k in kk]
                c = [x if x is not None else y for x, y in zip(c, c[::-1])]
                vb = 3 if kind == "half" else 4
                if c[0] != c[1]:
                    a(f"s_mov_b32 s7, {abs(c[1]-c[0])}\n v_mad_u32_u24 v8, v{2 if c[1] >= c[0] else 13}, s7, v{vb}")
                    vb = 8
                if not all(sel):
                    a(f"s_mov_b64 exec, {'0xffffffff' if sel[0] else 's[8:9]'}")
                if kind == "half":
                    a(f"s_mov_b32 s12, {min(c)}\n buffer_store_dwordx2 v[{T}:{T+1}], v{vb}, {W}, s12 offen sc1")
                else:
                    a(f"ds_write_b32 v{vb}, v{T} offset:{min(c)}\n ds_write_b32 v{vb}, v{T+1} offset:{min(c)+512}")
                if not all(sel):
                    a("s_mov_b64 exec, -1")


def qkv(a):
    ACC, FR, XA, WA = 32, 96, 84, 88
    WB, WS_ = 32768, 12288
    srd(a, SRD1, G.P_AX, 2048 * 1152)
    srd(a, SRD2A, G.P_WQKV, 576 * 3456)
    a(f"""s_setprio 2
    s_mov_b32 s6, s5
    s_and_b32 s14, s5, 3
    s_lshr_b32 s15, s5, 2""")
    G.rows_voff(a, 10, 1152, 3)
    a(f"""s_mul_i32 s68, s3, {128*1152}
    s_mul_i32 s69, s4, 384
    s_lshl_b32 s76, s5, 10
    s_lshl_b32 s77, s14, 10
    s_lshr_b32 s6, s47, 2
    s_and_b32 s7, s47, 3
    s_add_u32 s6, s6, s7
    s_mul_i32 s6, s6, {OPT.get("rot", 0)}
    s_mul_i32 s7, s6, 57
    s_lshr_b32 s7, s7, 9
    s_mul_i32 s7, s7, 9
    s_sub_u32 s6, s6, s7
    s_lshl_b32 s78, s6, 7
    s_mul_i32 s79, s6, {64*3456}""")
    uid = [0]

    def ix(xs):
        return [f"""s_add_u32 m0, s76, {(xs & 1) * 16384}
            s_add_u32 s7, s68, s78
            buffer_load_dwordx4 v10, s[{SRD1}:{SRD1+3}], s7 offen lds""",
                f"""s_add_u32 m0, s76, {(xs & 1) * 16384 + 8192}
            s_add_u32 s7, s7, {64*1152}
            buffer_load_dwordx4 v10, s[{SRD1}:{SRD1+3}], s7 offen lds
            s_add_u32 s78, s78, 128
            s_cmp_eq_u32 s78, 1152
            s_cselect_b32 s78, 0, s78"""]

    def iw(h):
        base = WB + (h & 3) * WS_
        uid[0] += 1
        return [f"""s_add_u32 m0, s76, {base}
            s_add_u32 s70, s69, s79
            buffer_load_dwordx4 v11, s[{SRD2A}:{SRD2A+3}], s70 offen lds
            s_add_u32 s79, s79, {32*3456}
            s_cmp_eq_u32 s79, {576*3456}
            s_cselect_b32 s79, 0, s79""",
                f"""s_cmp_eq_u32 s15, {h & 1}
            s_cbranch_scc0 Q_sk{uid[0]}
            s_add_u32 m0, s77, {base + 8192}
            s_nop 0
            buffer_load_dwordx4 v12, s[{SRD2A}:{SRD2A+3}], s70 offen lds
            Q_sk{uid[0]}:"""]

    def issue(h):
        if h >= 18 or (OPT.get("qx") == 2 and h > 3):
            return []
        chk = [f"buffer_load_dword v15, v14, s[{SRDD}:{SRDD+3}], 0 offen offset:132 sc1"] if h == 13 else []
        return (ix(h >> 1) if h % 2 == 0 else []) + iw(h) + chk
    for x in ix(0):
        a(x)
    for d, sh in ((11, "s76"), (12, "s77")):
        a(f"""s_lshr_b32 s7, {sh}, 4
        v_add_u32 v3, s7, v0
        {"v_add_u32 v3, 512, v3" if d == 12 else ""}
        v_mul_u32_u24 v4, 2731, v3
        v_lshrrev_b32 v4, 16, v4
        v_mul_u32_u24 v5, 24, v4
        v_sub_u32 v5, v3, v5
        v_and_b32 v3, 2, v4
        v_lshlrev_b32 v3, 1, v3
        v_xor_b32 v5, v5, v3
        v_mul_u32_u24 v4, 3456, v4
        v_lshl_add_u32 v{d}, v5, 4, v4""")
    for x in iw(0) + iw(1):
        a(x)
    srd(a, SRDW, G.P_WS, G.WS_END)
    srd(a, SRDD, G.P_DBG, 256)
    a("v_mov_b32 v14, 0")
    G.lane_parts(a)

    def loop(w_is_a):
        def reads(n, b):
            f = FR + 16 * b
            r = [f"ds_read_b128 {vr(f, 4)}, v{XA + (n & 3)}"]
            for ft in range(3):
                for e in range(2):
                    r.append(f"ds_read_b64_tr_b16 {vr(f+4+4*ft+2*e, 2)}, v{WA+ft} offset:{(16*(n & 1)+4*e)*384}")
            return r

        def upd2(n):
            u = [(XA + (n & 3), 16384 if (n >> 2) % 2 == 0 else -16384)] if n < 32 else []
            if n & 1 and n < 35:
                u += [(WA + ft, WS_ if ((n >> 1) + 1) & 3 else -3 * WS_) for ft in range(3)]
            return u

        def mfmas(n, b):
            f = FR + 16 * b
            m = []
            for ft in range(3):
                acc, w, x = vr(ACC + 16 * ft, 16), vr(f + 4 + 4 * ft, 4), vr(f, 4)
                A, B = (w, x) if w_is_a else (x, w)
                m.append(f"{MF} {acc}, {A}, {B}, {acc if n else 0}")
            return m
        G.consumer2(a, 2, reads, mfmas, None, depth=1, bar_ks=1, per_gap=3, nst=18, upd2=upd2, by_step=True,
                    pre_bar=lambda h: f"s_waitcnt vmcnt({0 if h == 17 else (3 if h & 1 else 1)})", post_bar=lambda h: issue(h + 2),
                    marks=(1, 3, 5, 8, 11, 14, 17))

    def xaddr(row):
        a("s_lshl_b32 s7, s14, 12")
        G.row_addr(a, XA, row, "s7", 8)
    a("""s_cmp_ge_u32 s4, 6
    s_cbranch_scc1 Q_v
    s_sub_u32 s46, s4, 3
    s_cmp_lt_u32 s4, 3
    s_cselect_b32 s46, s4, s46
    s_lshl_b32 s46, s46, 1
    s_add_u32 s46, s46, s15""")
    for var in range(6):
        b, wf = divmod(var, 2)
        if var:
            a(f"s_cmp_eq_u32 s46, {var}")
        for ft in range(3):
            t = [x - 48 * b for x in G.QK_TILES[b][3 * wf + ft]]
            for hh in range(2):
                val = sum(t[4 * hh + c] << (8 * c) for c in range(4))
                r = 60 + 2 * ft + hh if False else 92 + 2 * ft + hh
                a(f"s_cselect_b32 s{r}, {val}, s{r}" if var else f"s_mov_b32 s{r}, {val}")
    tr_addr(a, WA)
    xaddr(1)
    stamp(a, 1)
    loop(True)
    stamp(a, 2)
    a(f"""s_lshr_b32 s6, s3, 1
    s_mul_i32 s6, s6, {CH}
    s_cmp_lt_u32 s4, 3
    s_cselect_b32 s7, {G.Q_OFF}, {G.KV_OFF}
    s_add_u32 s6, s6, s7
    s_and_b32 s7, s3, 1
    s_lshl_b32 s13, s7, 9
    s_lshl_b32 s7, s7, 2
    s_add_u32 s7, s7, s14
    s_lshl_b32 s12, s7, 9
    s_add_u32 s12, s12, s6
    s_add_u32 s75, s13, s6
    s_add_u32 s75, s75, 8192
    s_lshl_b32 s13, s14, 2
    s_add_u32 s13, s13, 16384
    v_lshl_add_u32 v3, v1, 4, s12
    v_lshl_add_u32 v4, v1, 4, s13
    s_mov_b32 s7, {IMG}
    v_mad_u32_u24 v5, v2, s7, v3
    v_xor_b32 v13, 1, v2""")
    for var in range(6):
        if var < 5:
            a(f"s_cmp_lg_u32 s46, {var}\n s_cbranch_scc1 Q_e{var+1}")
        qk_epilogue(a, *divmod(var, 2), ACC, FR)
        if var < 5:
            a("s_branch Q_x")
            a.label(f"Q_e{var+1}")
    a.label("Q_x")
    a(f"""s_lshr_b32 s6, s46, 1
    s_mul_i32 s7, s6, 11
    s_lshr_b32 s7, s7, 1
    s_add_u32 s7, s7, s5
    s_mul_i32 s7, s7, {2*IMG}
    s_add_u32 s75, s75, s7
    s_lshl_b32 s7, s5, 10
    s_add_u32 s7, s7, 16384
    v_lshl_add_u32 v4, v0, 4, s7
    s_and_b32 s6, s6, 1
    s_add_u32 s6, s6, 5
    s_mov_b32 s7, {IMG}
    v_lshlrev_b32 v5, 4, v1
    v_mad_u32_u24 v5, v2, s7, v5
    s_cmp_lt_u32 s5, s6
    s_waitcnt lgkmcnt(0)
    s_barrier
    s_cbranch_scc0 Q_fin
    ds_read_b128 v[{FR}:{FR+3}], v4
    s_waitcnt lgkmcnt(0)
    buffer_store_dwordx4 v[{FR}:{FR+3}], v5, {W}, s75 offen sc1
    s_branch Q_fin""")
    a.label("Q_v")
    a("s_mul_i32 s46, s15, 3")
    for ft in range(3):
        a(f"""s_add_u32 s7, s46, {ft}
        s_mul_i32 s7, s7, 0x08080808
        s_add_u32 s{92+2*ft}, s7, 0x03020100
        s_add_u32 s{93+2*ft}, s7, 0x07060504""")
    tr_addr(a, WA)
    G.tau(a, 9, 8)
    xaddr(9)
    a(f"""s_sub_u32 s6, s4, 6
    s_mul_i32 s6, s6, 192
    s_lshl_b32 s7, s46, 5
    s_add_u32 s6, s6, s7
    v_add_u32 v3, s6, v1
    v_lshrrev_b32 v7, 2, v0
    v_add_u32 v7, s6, v7
    s_lshl_b32 s6, s5, 11
    s_add_u32 s6, s6, 16384
    v_lshl_add_u32 v8, v1, 6, s6
    v_lshl_add_u32 v22, v0, 4, s6
    v_and_b32 v9, 3, v0
    v_lshlrev_b32 v9, 4, v9
    v_lshlrev_b32 v13, 1, v2
    s_mov_b32 s7, {IMG}""")
    for ft in range(3):
        a(f"""v_add_u32 v4, {32*ft}, v3
        v_mul_u32_u24 v5, 3641, v4
        v_lshrrev_b32 v5, 16, v5
        v_mul_u32_u24 v6, 18, v5
        v_sub_u32 v6, v4, v6
        v_bfe_u32 v6, v6, 2, 2
        v_xor_b32 v6, v6, v13
        v_lshl_add_u32 v{80+ft}, v6, 4, v8""")
        for j in range(2):
            a(f"""v_add_u32 v4, {32*ft + 16*j}, v7
            v_mul_u32_u24 v5, 3641, v4
            v_lshrrev_b32 v5, 16, v5
            v_mul_u32_u24 v6, 18, v5
            v_sub_u32 v6, v4, v6
            v_mad_u32_u24 v5, v5, s7, v9
            v_lshl_add_u32 v{16+2*ft+j}, v6, 6, v5""")
    stamp(a, 1)
    loop(False)
    stamp(a, 2)
    a(f"""s_lshr_b32 s6, s3, 1
    s_mul_i32 s6, s6, {CH}
    s_and_b32 s7, s3, 1
    s_lshl_b32 s7, s7, 2
    s_add_u32 s7, s7, s14
    s_mul_i32 s7, s7, {G.VT}
    s_add_u32 s12, s6, s7
    s_add_u32 s12, s12, {G.KV_OFF + 9216}
    s_nop 3""")
    for ft in range(3):
        A = ACC + 16 * ft
        for k in range(8):
            a(f"v_cvt_pk_bf16_f32 v{A+k}, v{A+2*k}, v{A+2*k+1}")
        a(f"""v_xor_b32 v23, 16, v{80+ft}
        ds_write_b128 v{80+ft}, v[{A}:{A+3}]
        ds_write_b128 v23, v[{A+4}:{A+7}]
        ds_read_b128 v[{A+8}:{A+11}], v22
        ds_read_b128 v[{A+12}:{A+15}], v22 offset:1024""")
        for f2, n in (((ft - 1, 4),) if ft else ()) + (((2, 0),) if ft == 2 else ()):
            B = ACC + 16 * f2
            a(f"""s_waitcnt lgkmcnt({n})
            buffer_store_dwordx4 v[{B+8}:{B+11}], v{16+2*f2}, {W}, s12 offen sc1
            buffer_store_dwordx4 v[{B+12}:{B+15}], v{17+2*f2}, {W}, s12 offen sc1""")
    a.label("Q_fin")
    stamp(a, 3)
    a(f"""s_cmp_lg_u32 s5, 3
    s_cbranch_scc1 Q_w
    v_readfirstlane_b32 s6, v15
    s_nop 0
    s_cmp_ge_u32 s6, 16
    s_cbranch_scc1 Q_ci""")
    wait_init(a, "Q_wi")
    a.label("Q_ci")
    a(f"""s_mul_i32 s6, s4, 43
    s_lshr_b32 s6, s6, 7
    s_mul_i32 s6, s6, 3
    s_sub_u32 s6, s4, s6
    s_lshl_b32 s74, s6, 8
    s_sub_u32 s6, s4, s6
    s_mul_i32 s6, s6, 43
    s_lshr_b32 s6, s6, 7
    s_lshl_b32 s6, s6, 4
    s_add_u32 s6, s6, s3
    s_lshl_b32 s6, s6, 2
    s_add_u32 s74, s74, s6
    s_add_u32 s74, s74, {G.QF_OFF}
    v_mul_u32_u24 v14, 768, v0
    v_mov_b32 v15, 1
    s_waitcnt vmcnt(0)
    s_barrier
    s_mov_b64 exec, 0xff
    buffer_store_dword v15, v14, {W}, s74 offen sc1
    s_branch G2x""")
    a.label("Q_w")
    a("s_waitcnt vmcnt(0)")
    stamp(a, 4)
    a("s_barrier\n s_branch G2")


def tr_addr(a, WA):
    a(f"""v_bfe_u32 v3, v0, 2, 2
    v_lshl_add_u32 v3, v2, 3, v3
    v_mul_u32_u24 v3, 384, v3
    v_add_u32 v3, 32768, v3
    v_and_b32 v4, 8, v0
    v_lshlrev_b32 v4, 3, v4
    v_and_b32 v5, 3, v0
    v_lshlrev_b32 v5, 3, v5""")
    for ft in range(3):
        a(f"""v_mov_b32 v6, s{92+2*ft}
        v_mov_b32 v7, s{93+2*ft}
        v_cndmask_b32 v6, v6, v7, s[10:11]
        v_bfe_u32 v6, v6, v5, 8
        v_lshlrev_b32 v6, 3, v6
        v_xor_b32 v6, v6, v4
        v_add_u32 v{WA+ft}, v3, v6""")


def init(a):
    a.label("I_go")
    a(f"""s_lshl_b32 s6, s3, 3
    s_add_u32 s6, s6, s5
    s_mul_i32 s12, s6, 1152
    s_add_u32 s12, s12, {G.ECH_OFF}
    s_lshr_b32 s7, s6, 2
    s_mul_i32 s7, s7, {IMG}
    s_and_b32 s6, s6, 3
    s_mul_i32 s6, s6, {2*CH}
    s_add_u32 s6, s6, s7
    s_add_u32 s6, s6, {G.KV_OFF + 9216 + 18*64}
    s_add_u32 s7, s6, {CH}
    v_lshrrev_b32 v1, 3, v0
    v_mul_u32_u24 v1, {G.VT}, v1
    v_and_b32 v2, 7, v0
    v_lshl_add_u32 v1, v2, 4, v1
    v_bfe_u32 v2, v0, 2, 1
    v_subrev_u32 v2, 1, v2
    v_and_b32 v4, 0x3f803f80, v2
    v_mov_b32 v5, v4
    v_mov_b32 v6, v4
    v_mov_b32 v7, v4
    v_lshlrev_b32 v3, 4, v0
    v_mov_b32 v8, -1
    v_mov_b32 v9, -1
    v_mov_b32 v10, -1
    v_mov_b32 v11, -1""")
    srd(a, SRDW, G.P_WS, G.WS_END)
    srd(a, SRDD, G.P_DBG, 256)
    a(f"""buffer_store_dwordx4 v[4:7], v1, {W}, s6 offen sc1
    buffer_store_dwordx4 v[4:7], v1, {W}, s7 offen sc1
    buffer_store_dwordx4 v[8:11], v3, {W}, s12 offen sc1
    s_mov_b64 exec, 0xff
    buffer_store_dwordx4 v[8:11], v3, {W}, s12 offen offset:1024 sc1
    s_cmp_ge_u32 s3, 2
    s_cbranch_scc1 I_nz
    s_mov_b64 exec, -1
    v_mov_b32 v16, 0
    v_mov_b32 v17, 0
    v_mov_b32 v18, 0
    v_mov_b32 v19, 0
    s_lshl_b32 s6, s3, 3
    s_add_u32 s6, s6, s5
    s_lshl_b32 s6, s6, 10
    s_add_u32 s6, s6, {G.FLG_OFF}
    buffer_store_dwordx4 v[16:19], v3, {W}, s6 offen sc1""")
    a.label("I_nz")
    a("""s_mov_b64 exec, -1
    s_waitcnt vmcnt(0)
    s_barrier
    s_cmp_lg_u32 s5, 3
    s_cbranch_scc1 I_na
    s_mov_b64 exec, 1
    v_mov_b32 v14, 0
    v_mov_b32 v15, 1
    buffer_atomic_add v15, v14, s[80:83], 0 offen offset:132 sc1""")
    a.label("I_na")
    if OPT.get("touch", 1):
        a(f"""s_mov_b64 exec, -1
        s_lshl_b32 s6, s3, 3
        s_add_u32 s6, s6, s5
        v_lshlrev_b32 v12, 7, v0
        s_and_b32 s7, s6, 7
        s_mul_i32 s12, s7, {CH}
        s_bfe_u32 s7, s6, 0x10003
        s_mul_i32 s7, s7, {11*IMG - 4096}
        s_add_u32 s12, s12, s7
        s_bfe_u32 s7, s6, 0x10004
        s_mul_i32 s7, s7, {G.Q_OFF - G.KV_OFF}
        s_add_u32 s12, s12, s7
        s_add_u32 s12, s12, {G.KV_OFF + 10*IMG + 4096}
        v_min_u32 v13, {31*128}, v12
        s_cmp_lt_u32 s6, 32
        s_cbranch_scc0 I_nt
        buffer_load_dword v20, v13, {W}, s12 offen sc1""")
        a.label("I_nt")
    a("s_waitcnt vmcnt(0)\n s_branch G2x")


def build(**opt):
    OPT.update(opt)
    K.mega = sys.modules[__name__]
    a = Asm()
    a.label(NAME)
    stamp(a, 0)
    a("s_cmp_ge_u32 s2, 512\n s_cbranch_scc1 K2_done")
    G.load_args(a)
    if OPT.get("pfc", 2) == 2:
        a("s_getpc_b64 s[14:15]")
        a.label("E_pc")
        a(f"""s_bfe_u32 s13, s2, 0x60003
        s_lshl_b32 s13, s13, 10
        v_lshlrev_b32 v10, 1, v0
        v_and_b32 v10, 0x380, v10
        v_add_u32 v10, s13, v10
        s_sub_u32 s14, s14, E_pc-{NAME}
        s_subb_u32 s15, s15, 0
        v_min_u32 v10, K2_last-{NAME}, v10
        v_mov_b32 v11, s15
        v_add_co_u32 v10, vcc, s14, v10
        s_nop 1
        v_addc_co_u32 v11, vcc, 0, v11, vcc
        global_load_dword v121, v[10:11], off""")
    a("""v_lshrrev_b32 v1, 6, v0
    v_and_b32 v0, 63, v0
    s_and_b32 s6, s2, 7
    v_readfirstlane_b32 s5, v1
    s_bfe_u32 s47, s2, 0x50003
    s_cmp_lt_u32 s47, 20
    s_cbranch_scc1 E_np""")
    if OPT.get("pfe", 1):
        K.pf_setup(a, 47)
        a("s_lshr_b32 s7, s2, 8\n s_mul_i32 s7, s7, 96\n s_add_u32 s12, s12, s7")
        K.pf_item(a, "e", 0, 120)
    a.label("E_np")
    a("""s_cmp_ge_u32 s2, 256
    s_cbranch_scc1 A_go
    s_cmp_ge_u32 s47, 20
    s_cbranch_scc1 K2_ssm
    s_lshr_b32 s3, s6, 1
    s_lshl_b32 s3, s3, 2
    s_and_b32 s4, s47, 3
    s_add_u32 s3, s3, s4
    s_and_b32 s6, s6, 1
    s_mul_i32 s6, s6, 5
    s_lshr_b32 s7, s47, 2
    s_add_u32 s4, s6, s7
    s_mov_b32 s101, s4
    s_and_b32 s6, s2, 7""")
    if OPT.get("pfm", 0) == 1:
        K.pf_setup(a, 47, 0)
        K.pf_item(a, "q", 0, 16)
        K.pf_item(a, "r", 160, 16)
    a("""s_cmp_ge_u32 s4, 9
    s_waitcnt lgkmcnt(0)
    s_cbranch_scc1 I_go""")
    qkv(a)
    init(a)
    K.attention(a)
    K.ssm(a)
    a.lines = [ln if "atomic" in ln else ln.replace(" sc0 sc1", " sc1") for ln in a.lines]
    errs = check(a.lines, "mega")
    for body in getattr(a, "loops", []):
        errs += check(body + body, "loop")
    ref = open("concat_heads__mha_block__ssm_conv_s5__prompt.s.ref").read()
    head = ref[:ref.index("; Override launch geometry")]
    out = head + """; One launch, 512 co-resident workgroups (two per CU), roles by id (generated by gen/mega.py, a hand-written generator):
;   0..159   Q,K,V projection tiles (16 of them initialise constants / hand-off words instead)
;   160..255 SSM input GEMM + exact chunked scan ; afterwards ids 0..143 compute one tile each of the SSM read-out GEMM
;   256..511 attention per (head, 256 queries), then one tile of the output projection
; hand-offs: write-through stores -> vmcnt(0) -> arrival counter ; consumers spin, then read with sc1
; @launch grid=(512,1,1) block=(512,1,1) lds=81920
.amdgcn_target "amdgcn-amd-amdhsa--gfx950"
.text
""" + f".globl {NAME}\n.p2align 8\n.type {NAME},@function\n" + a.text() + '.section .rodata,"a"\n.p2align 6\n' + G.desc(NAME, 128)
    return out, sorted(set(errs))


if __name__ == "__main__":
    opts = {}
    path = "concat_heads__mha_block__ssm_conv_s5__prompt.s"
    for arg in sys.argv[1:]:
        if "=" in arg:
            k, v = arg.split("=")
            opts[k] = int(v)
        else:
            path = arg
    text, errs = build(**opts)
    for e in errs:
        print("HAZARD", e)
    open(path, "w").write(text)
    print("wrote", path, len(text), "bytes;", len(errs), "hazards")
```

```python
import gen as G
from asmlib import Asm, vr

MF = "v_mfma_f32_32x32x16_bf16"
MF8 = "v_mfma_f32_32x32x8bf16_1k"
OA, PP, KF, KX, VF, QB, AK, AX, AV, NK, NX, NV = 48, 64, 72, 80, 88, 104, 112, 113, 114, 115, 116, 117


AV2, NV2 = 122, 123


def S(q, j):
    return 16 + 16 * (j & 1)


def k2(a):
    a.label("k2_kernel")
    G.stamp(a, 0)
    a("""s_cmp_ge_u32 s2, 448
    s_cbranch_scc1 K2_done""")
    G.load_args(a)
    a("""v_lshrrev_b32 v1, 6, v0
    v_and_b32 v0, 63, v0
    s_cmp_ge_u32 s2, 256
    v_readfirstlane_b32 s5, v1
    s_cbranch_scc1 K2_ssm""")
    attention(a)
    ssm(a)


ST2 = 20480


def tail_loader(a, nst, issue, per=5, pre=2, end=True):
    for st in range(pre):
        issue(st)
    for st in range(nst):
        a(f"s_waitcnt vmcnt({per * min(pre - 1, nst - 1 - st)})\n s_barrier")
        if st + pre < nst:
            issue(st + pre)
    if end:
        a("s_endpgm")


def poll(a, tag, off, target, sleep=2):
    W = f"s[{G.SRDW}:{G.SRDW+3}]"
    a(f"s_mov_b64 exec, 1\n v_mov_b32 v14, 0\n s_mov_b32 s72, 0")
    a.label(tag)
    a(f"""buffer_load_dword v15, v14, {W}, s{off} offen sc0 sc1
    s_waitcnt vmcnt(0)
    v_readfirstlane_b32 s73, v15
    s_add_u32 s72, s72, 1
    s_cmp_ge_u32 s73, {target}
    s_cbranch_scc1 {tag}_ok
    s_sleep {sleep}
    s_cmp_lt_u32 s72, 0x100000
    s_cbranch_scc1 {tag}""")
    a.label(tag + "_ok")
    a("s_mov_b64 exec, -1")


def arrive(a, off):
    W = f"s[{G.SRDW}:{G.SRDW+3}]"
    a(f"""s_mov_b64 exec, 1
    v_mov_b32 v14, 0
    v_mov_b32 v15, 1
    buffer_atomic_add v15, v14, {W}, s{off} offen sc1
    s_mov_b64 exec, -1""")


def pf_item(a, tag, add, dummy):
    SRD1, SRD2A = G.SRD1, G.SRD2A
    a(f"""s_add_u32 s13, s12, {add}
    s_mul_i32 s14, s13, 2850
    s_lshr_b32 s14, s14, 16
    s_mul_i32 s15, s14, 23
    s_sub_u32 s15, s13, s15
    s_cmp_ge_u32 s13, 207
    s_cbranch_scc1 P_n{tag}
    s_cmp_lt_u32 s15, 8
    s_cbranch_scc0 P_w{tag}
    s_lshr_b32 s68, s6, 1
    s_lshl_b32 s68, s68, 3
    s_add_u32 s15, s15, s68
    s_mul_i32 s15, s15, {64*1152}
    s_lshl_b32 s14, s14, 7
    s_add_u32 s15, s15, s14
    buffer_load_dword v{dummy}, v1, s[{SRD1}:{SRD1+3}], s15 offen
    s_branch P_n{tag}""")
    a.label(f"P_w{tag}")
    a(f"""s_and_b32 s69, s6, 1
    s_mul_i32 s69, s69, 15
    s_add_u32 s15, s15, s69
    s_sub_u32 s15, s15, 8
    s_mul_i32 s14, s14, {64*3456}
    s_cmp_lt_u32 s15, 27
    s_cselect_b32 s14, s14, {0x7f000000}
    s_lshl_b32 s15, s15, 7
    s_add_u32 s15, s15, s14
    buffer_load_dword v{dummy}, v2, s[{SRD2A}:{SRD2A+3}], s15 offen""")
    a.label(f"P_n{tag}")


def pf_setup(a, ireg, first=20):
    a(f"""s_sub_u32 s12, s{ireg}, {first}
    s_lshl_b32 s12, s12, 3
    s_add_u32 s12, s12, s5
    v_mul_u32_u24 v1, 1152, v0
    v_mul_u32_u24 v2, 3456, v0
    s_waitcnt lgkmcnt(0)""")
    G.srd(a, G.SRD1, G.P_AX, 2048 * 1152)
    G.srd(a, G.SRD2A, G.P_WQKV, 576 * 3456)


def warm_mall(a):
    D = G.SRD2B
    a(f"""s_lshl_b32 s12, s5, 8
    s_add_u32 s12, s12, s2
    s_sub_u32 s12, s12, 256
    v_lshlrev_b32 v3, 7, v0
    s_mov_b32 s{D+3}, 0x00020000
    s_waitcnt lgkmcnt(0)
    s_mov_b64 s[{D}:{D+1}], s[{G.P_AX}:{G.P_AX+1}]
    s_mov_b32 s{D+2}, {2048*1152}
    s_mov_b32 s13, 0""")
    for first, p, n in ((576, G.P_WQKV, 576 * 3456), (1062, G.P_BX, 2048 * 1152), (1638, G.P_BRE, 576 * 1152), (1800, G.P_BIM, 576 * 1152)):
        a(f"""s_cmp_ge_u32 s12, {first}
        s_cselect_b32 s{D}, s{p}, s{D}
        s_cselect_b32 s{D+1}, s{p+1}, s{D+1}
        s_cselect_b32 s{D+2}, {n}, s{D+2}
        s_cselect_b32 s13, {first}, s13""")
    a(f"""s_sub_u32 s12, s12, s13
    s_lshl_b32 s12, s12, 12
    s_mov_b64 exec, 0xffffffff
    buffer_load_dword v118, v3, s[{D}:{D+3}], s12 offen
    s_mov_b64 exec, -1""")


def prefetch_att(a):
    SRD1 = G.SRD1
    a("""s_bfe_u32 s7, s2, 0x50003
    s_cmp_lt_u32 s7, 20
    s_cbranch_scc1 P_x""")
    pf_setup(a, 7)
    if G.OPT.get("pf1", 1):
        if not G.OPT.get("pfe", 1):
            pf_item(a, "a", 96 + G.OPT.get("pfs", 0), 118)
        if G.OPT.get("pfs", 0) < 15:
            pf_item(a, "b", 192 + G.OPT.get("pfs", 0), 118)
    if G.OPT.get("pfc", 2) == 1:
        a("s_getpc_b64 s[14:15]")
        a.label("K1_pc")
        a(f"""s_lshl_b32 s13, s12, 10
        s_sub_u32 s14, s14, K1_pc-{mega.NAME}
        s_subb_u32 s15, s15, 0
        v_and_b32 v10, 7, v0
        v_lshl_add_u32 v10, v10, 7, s13
        v_min_u32 v10, K2_last-{mega.NAME}, v10
        v_mov_b32 v11, s15
        v_add_co_u32 v10, vcc, s14, v10
        s_nop 1
        v_addc_co_u32 v11, vcc, 0, v11, vcc
        global_load_dword v118, v[10:11], off""")
    a(f"""s_lshr_b32 s68, s6, 1
    s_mul_i32 s68, s68, {512*1152}
    s_and_b32 s71, s6, 1
    s_mul_i32 s71, s71, {288*1152}
    v_min_u32 v2, 31, v0
    v_mul_u32_u24 v2, 1152, v2""")
    for k in range(2 if G.OPT.get("pf2", 1) else 0):
        if G.OPT.get("pfp", 2) > k:
            a("s_waitcnt vmcnt(0)")
        a(f"""s_add_u32 s13, s12, {96*k}
        s_mul_i32 s14, s13, 3641
        s_lshr_b32 s14, s14, 16
        s_mul_i32 s15, s14, 18
        s_sub_u32 s15, s13, s15
        s_lshl_b32 s14, s14, 7
        s_cmp_ge_u32 s13, 162
        s_cbranch_scc1 P_x
        s_cmp_lt_u32 s15, 13
        s_cselect_b32 s{SRD1}, s{G.P_BRE}, s{G.P_BIM}
        s_cselect_b32 s{SRD1+1}, s{G.P_BRE+1}, s{G.P_BIM+1}
        s_cselect_b32 s69, 8, 13
        s_mov_b32 s{SRD1+2}, {576*1152}
        s_mov_b32 s70, s71
        s_cmp_lt_u32 s15, 8
        s_cselect_b32 s{SRD1}, s{G.P_BX}, s{SRD1}
        s_cselect_b32 s{SRD1+1}, s{G.P_BX+1}, s{SRD1+1}
        s_cselect_b32 s{SRD1+2}, {2048*1152}, s{SRD1+2}
        s_cselect_b32 s69, 0, s69
        s_cselect_b32 s70, s68, s70
        s_cmp_eq_u32 s15, 12
        s_cselect_b64 vcc, -1, 0
        s_cmp_eq_u32 s15, 17
        s_cselect_b64 vcc, -1, vcc
        s_sub_u32 s15, s15, s69
        s_mul_i32 s15, s15, {64*1152}
        s_add_u32 s15, s15, s14
        s_add_u32 s15, s15, s70
        v_cndmask_b32 v3, v1, v2, vcc
        buffer_load_dword v118, v3, s[{SRD1}:{SRD1+3}], s15 offen""")
    a.label("P_x")


def attention(a):
    OPT, IMG, CH, VG = G.OPT, G.IMG, G.CH, G.VG
    stamp, stampc = G.stamp, G.stampc
    W = f"s[{G.SRDW}:{G.SRDW+3}]"
    a.label("A_go")
    if OPT.get("wm", 0):
        warm_mall(a)
    prefetch_att(a)
    a(f"""s_and_b32 s3, s2, 7
    s_lshl_b32 s3, s3, 2
    s_bfe_u32 s6, s2, 0x20003
    s_add_u32 s3, s3, s6
    s_bfe_u32 s4, s2, 0x30005
    s_mul_i32 s75, s3, {IMG}
    s_lshl_b32 s13, s5, 10
    s_add_u32 s78, s5, 16
    s_min_u32 s78, s78, 18
    s_lshl_b32 s78, s78, 10
    s_mov_b32 s12, s75
    s_mov_b32 s76, 0
    v_lshlrev_b32 v3, 4, v0""")
    G.lane_parts(a)
    a(f"""s_mul_i32 s14, s4, {CH}
    s_add_u32 s14, s14, s75
    s_add_u32 s14, s14, {G.Q_OFF}
    v_lshlrev_b32 v4, 4, v1
    v_lshl_add_u32 v5, v2, 12, v4
    s_lshl_b32 s6, s5, 9
    v_add_u32 v5, s6, v5
    s_lshr_b32 s6, s5, 2
    s_lshl_b32 s6, s6, 9
    s_and_b32 s7, s5, 3
    s_lshl_b32 s7, s7, 2
    s_add_u32 s6, s6, s7
    s_add_u32 s6, s6, 8192
    v_add_u32 v4, s6, v4
    v_add_u32 v6, s13, v3
    v_add_u32 v7, s78, v3
    s_waitcnt lgkmcnt(0)""")
    G.srd(a, G.SRDW, G.P_WS, G.WS_END)

    def dma(c, k):
        sl, g = (c & 3) * CH, c * CH
        if k < 2:
            return f"""s_add_u32 m0, s13, {sl + 8192*k}
            s_add_u32 s7, s75, {g + 8192*k}
            buffer_load_dwordx4 v6, {W}, s7 offen sc1 lds"""
        return f"""s_add_u32 m0, s78, {sl}
        s_add_u32 s7, s75, {g}
        buffer_load_dwordx4 v7, {W}, s7 offen sc1 lds"""

    a(f"""v_and_b32 v11, 19, v1
    v_and_b32 v12, 4, v1
    v_lshl_add_u32 v11, v12, 1, v11
    v_and_b32 v12, 8, v1
    v_lshrrev_b32 v12, 1, v12
    v_add_u32 v11, v11, v12
    v_lshlrev_b32 v{AX}, 4, v11
    v_lshl_add_u32 v{AK}, v2, 12, v{AX}
    v_add_u32 v{AX}, 8192, v{AX}""")
    a(f"""v_min_u32 v12, 19, v1
    v_cmp_gt_u32 vcc, 16, v1
    v_cmp_eq_u32 s[70:71], 28, v1
    s_nop 0
    v_cndmask_b32 v12, v12, v11, vcc
    s_nop 0
    v_cndmask_b32 v12, v12, 18, s[70:71]
    v_bfe_u32 v13, v12, 2, 2
    v_xor_b32 v13, v13, v2
    v_lshlrev_b32 v13, 4, v13
    v_lshl_add_u32 v{AV}, v12, 6, v13
    v_add_u32 v{AV}, 9216, v{AV}
    v_xor_b32 v{AV2}, 32, v{AV}
    v_add_u32 v{NV2}, {3*CH}, v{AV2}
    v_add_u32 v{NK}, {3*CH}, v{AK}
    v_add_u32 v{NX}, {3*CH}, v{AX}
    v_add_u32 v{NV}, {3*CH}, v{AV}
    s_mov_b32 s70, {G.f2u(G.QSCALE)}""")
    for i in range(16):
        a(f"v_mov_b32 v{OA+i}, 0")
    a(f"""s_bfe_u32 s7, s2, 0x50003
    s_lshl_b32 s7, s7, 3
    s_add_u32 s7, s7, s5
    s_cmp_ge_u32 s7, 81
    s_cselect_b32 s48, s{G.P_CIM}, s{G.P_CRE}
    s_cselect_b32 s49, s{G.P_CIM+1}, s{G.P_CRE+1}
    s_cselect_b32 s69, 81, 0
    s_cmp_ge_u32 s7, 162
    s_cselect_b32 s48, s{G.P_WO}, s48
    s_cselect_b32 s49, s{G.P_WO+1}, s49
    s_cselect_b32 s69, 162, s69
    s_sub_u32 s7, s7, s69
    s_lshl_b32 s79, s7, 13
    s_mov_b32 s50, {576*1152}
    s_mov_b32 s51, 0x00020000
    v_lshlrev_b32 v119, 7, v0""")
    a(f"""s_mov_b32 s73, 0xffff0000
    s_cmp_lg_u32 s5, 0
    s_cbranch_scc1 A_w""")
    a(f"s_sleep {OPT.get('asleep0', 127)}")
    mega.wait_init(a, "A_wi")
    a(f"""s_and_b32 s74, s2, 7
    s_mul_i32 s74, s74, 768
    s_add_u32 s74, s74, {G.QF_OFF}
    s_cmp_gt_u32 s3, 10
    s_addc_u32 s6, 0, 0
    s_cmp_gt_u32 s3, 21
    s_addc_u32 s6, s6, 0
    s_lshl_b32 s6, s6, 8
    s_cmp_ge_u32 s3, 10
    s_addc_u32 s7, 0, 0
    s_cmp_ge_u32 s3, 21
    s_addc_u32 s7, s7, 0
    s_lshl_b32 s7, s7, 8
    s_add_u32 s71, s74, s7
    s_add_u32 s74, s74, s6
    v_lshlrev_b32 v14, 2, v0""")
    mega.spin(a, "A_wq", f"buffer_load_dword v15, v14, {W}, s74 offen sc1", 1, lanes=48, sleep=OPT.get("asleep", 4))
    a("s_cmp_eq_u32 s71, s74\n s_cbranch_scc1 A_w")
    mega.spin(a, "A_wr", f"buffer_load_dword v15, v14, {W}, s71 offen sc1", 1, lanes=48, sleep=1)
    a.label("A_w")
    a(f"""s_waitcnt vmcnt(0)
    s_barrier
    s_setprio {3 if OPT.get("pr3", 1) else 1}""")
    stamp(a, 5 if OPT["stamps"] == 4 else 1)
    a(f"""buffer_load_dwordx4 v[{QB}:{QB+3}], v5, {W}, s14 offen sc1
    buffer_load_dword v{QB+4}, v4, {W}, s14 offen sc1""")
    for c in range(4):
        for k in range(3):
            a(dma(c, k))
    a("s_waitcnt vmcnt(12)")
    for q in (QB, QB + 1, QB + 2, QB + 3, QB + 4):
        a(f"""v_lshlrev_b32 v12, 16, v{q}
        v_and_b32 v13, s73, v{q}
        v_mul_f32 v12, s70, v12
        v_mul_f32 v13, s70, v13
        v_cvt_pk_bf16_f32 v{q}, v12, v13""")
    for q in range(1):
        x = QB + 8 * q + 4
        a(f"""v_cndmask_b32 v{x}, v{x}, 0, s[8:9]
        v_mov_b32 v{x+1}, 0
        v_mov_b32 v{x+2}, 0
        v_mov_b32 v{x+3}, v{x}""")
    a(f"s_waitcnt vmcnt({9 if OPT.get('b0', 1) else 6})\n s_barrier")
    stamp(a, 2)
    stampc(a, 5)

    def ad(lo, hi, c, off):
        sl = c & 3
        return (f"v{hi} offset:{off}" if sl == 3 else f"v{lo} offset:{sl * CH + off}")

    def rdK(j):
        return f"ds_read_b128 {vr(KF + 4*(j & 1), 4)}, {ad(AK, NK, j >> 3, (j & 7) * 512)}"

    def rdX(u):
        return f"ds_read_b128 {vr(KX + 4*(u & 1), 4)}, {ad(AX, NX, u >> 1, (u & 1) * 512)}"

    def rdV(j, u):
        return f"ds_read_b128 {vr(VF + 8*(j & 1) + 4*u, 4)}, {ad(AV2 if u else AV, NV2 if u else NV, j >> 3, (j & 7) * G.VT)}"

    def mA(q, j):
        return f"{MF} {vr(S(q, j), 16)}, {vr(KF + 4*(j & 1), 4)}, {vr(QB + 8*q, 4)}, 0"

    def mB(q, j):
        kx = KX + 4 * ((j >> 2) & 1) + 2 * ((j >> 1) & 1)
        return f"{MF8} {vr(S(q, j), 16)}, {vr(kx, 2)}, {vr(QB + 8*q + 4 + 2*(j & 1), 2)}, {vr(S(q, j), 16)}"

    def mP(q, j, u):
        o = vr(OA + 16 * q, 16)
        return f"{MF} {o}, {vr(VF + 8*(j & 1) + 4*u, 4)}, {vr(PP + 8*q + 4*u, 4)}, {o}"

    a(f"""{rdK(0)}
    {rdX(0)}
    {rdK(1)}
    {rdV(0, 0)}
    {rdV(0, 1)}
    s_waitcnt lgkmcnt(3)
    {mA(0, 0)}
    {mB(0, 0)}
    s_waitcnt lgkmcnt(0)
    s_nop 8""")
    a(".p2align 3")
    pat = "A k v0 e e e e P1 v1 x e e e e B d e e c c c c e e P0 e e e e w n c c c c"
    for jj in range(64):
        c8, j8 = divmod(jj, 8)
        last = jj == 63
        s, P = S(0, jj), PP
        ne = nc = 0
        for tok in pat.split():
            if tok == "e":
                a(f"v_exp_f32 v{s+ne}, v{s+ne}")
                ne += 1
            elif tok == "c":
                a(f"v_cvt_pk_bf16_f32 v{P+nc}, v{s+2*nc}, v{s+2*nc+1}")
                nc += 1
            elif tok == "A" and not last:
                a(mA(0, jj + 1))
            elif tok == "B" and not last:
                a(mB(0, jj + 1))
            elif tok == "P1" and jj:
                a(mP(0, jj - 1, 1))
            elif tok == "P0":
                a(mP(0, jj, 0))
            elif tok == "k" and jj + 2 < 64:
                a(rdK(jj + 2))
            elif tok == "v0" and not last:
                a(rdV(jj + 1, 0))
            elif tok == "v1" and not last:
                a(rdV(jj + 1, 1))
            elif tok == "x" and jj % 4 == 0 and jj < 60:
                a(rdX(jj // 4 + 1))
            elif tok == "d" and jj == OPT.get("wpf", 3):
                a("buffer_load_dword v118, v119, s[48:51], s79 offen")
            elif tok == "d" and j8 < 3 and 1 <= c8 <= 4:
                a(dma(c8 + 3, j8))
            elif tok == "w" and not last:
                if j8 == 7 and c8 <= 5:
                    a(f"s_waitcnt vmcnt({3 if c8 <= 4 else 0}) lgkmcnt(0)")
                elif jj == 2 and OPT.get('b0', 1):
                    a("s_waitcnt vmcnt(6) lgkmcnt(0)")
                else:
                    a("s_waitcnt lgkmcnt(0)")
            elif tok == "n" and not last:
                PR = (3, 3, 3, 2, 2, 2, 1, 1) if OPT.get("pr3", 1) else (1,) * 8
                if (j8 == 7 and c8 <= 5) or (jj == 2 and OPT.get('b0', 1)):
                    a("s_barrier")
                    if PR[(j8 + 1) & 7] != PR[j8]:
                        a(f"s_setprio {PR[(j8 + 1) & 7]}\n s_nop 0")
                elif PR[(j8 + 1) & 7] != PR[j8]:
                    a(f"s_setprio {PR[(j8 + 1) & 7]}")
                else:
                    a.lines[-2] = a.lines[-2].replace("v_exp_f32", "v_exp_f32_e64")
    a(f"s_nop 1\n{mP(0, 63, 1)}")
    a.loops = getattr(a, "loops", [])
    stamp(a, 3)
    stampc(a, 6)
    a(f"""s_lshl_b32 s6, s4, 8
    s_lshl_b32 s7, s5, 5
    s_add_u32 s6, s6, s7
    v_add_u32 v4, s6, v1
    v_lshlrev_b32 v4, 4, v4
    v_lshl_add_u32 v5, v2, 15, v4
    s_mul_i32 s12, s3, {3*32768}
    s_add_u32 s12, s12, {G.O_OFF}
    s_add_u32 s13, s12, {2*32768}
    v_mov_b32 v9, 0
    v_mov_b32 v10, 0
    v_mov_b32 v11, 0
    s_mov_b32 s14, {G.f2u(2.0**-60)}
    s_mov_b32 s15, {G.f2u(2.0**60)}
    s_movk_i32 s46, 0x207""")
    a(f"""v_cndmask_b32 v6, v{OA+10}, v{OA+12}, s[8:9]
    v_add_f32 v7, |v{OA}|, |v{OA+1}|""")
    for i in range(2, 10):
        a(f"v_add_f32 v7, v7, |v{OA+i}|")
    a(f"""v_cmp_nle_f32 vcc, s14, v6
    v_cmp_lt_f32 s[68:69], s15, v6
    v_cmp_class_f32 s[70:71], v7, s46
    s_or_b64 vcc, vcc, s[68:69]
    s_or_b64 vcc, vcc, s[70:71]
    {"s_branch K2_slow" if OPT.get("slow") else "s_cbranch_vccnz K2_slow"}""")
    a.label("K2_fin")
    a("v_rcp_f32 v6, v6\n s_nop 0")
    for i in range(10):
        a(f"v_mul_f32 v{OA+i}, v6, v{OA+i}")
    for k in range(5):
        a(f"v_cvt_pk_bf16_f32 v{16+k if k < 4 else 8}, v{OA+2*k}, v{OA+2*k+1}")
    a(f"""buffer_store_dwordx4 v[16:19], v5, {W}, s12 offen sc0 sc1
    s_mov_b64 exec, 0xffffffff
    buffer_store_dwordx4 v[8:11], v4, {W}, s13 offen sc0 sc1
    s_mov_b64 exec, -1
    s_lshl_b32 s74, s4, 9
    s_add_u32 s74, s74, {G.OF_OFF}
    s_mul_i32 s14, s3, 43
    s_lshr_b32 s14, s14, 8
    s_mul_i32 s15, s14, 6
    s_sub_u32 s15, s3, s15
    s_lshl_b32 s6, s4, 2
    s_add_u32 s14, s14, s6""")
    stamp(a, 4)
    ACC, FR, XA, WA = 64, 28, 20, 24
    a("""s_cmp_lt_u32 s5, 4
    s_cbranch_scc1 K2_pc
    s_sub_u32 s6, s5, 4""")
    SP, RP = 13312, 6
    G.srd(a, G.SRD2A, G.P_WO, 576 * 1152)
    a(f"""s_nop 0
    v_lshlrev_b32 v1, 4, v0
    s_lshl_b32 s7, s6, 6""")
    for u in range(2):
        a(f"""v_add_u32 v12, s7, v0
        v_add_u32 v12, {256*u}, v12
        v_min_u32 v12, 431, v12
        v_mul_u32_u24 v13, 5462, v12
        v_lshrrev_b32 v13, 16, v13
        v_mul_u32_u24 v13, {1152 - 192}, v13
        v_lshl_add_u32 v{2+u}, v12, 4, v13""")
    a(f"""s_lshl_b32 s68, s14, 10
    s_lshl_b32 s7, s6, 15
    s_add_u32 s68, s68, s7
    s_add_u32 s68, s68, {G.O_OFF}
    s_mul_i32 s69, s15, 192
    s_lshl_b32 s76, s6, 10
    s_cmp_lt_u32 s6, 2
    s_mov_b32 s70, {0x7f000000}
    s_cselect_b32 s70, {4*32768}, s70
    s_cselect_b32 s71, 1, 0
    s_cmp_lt_u32 s6, 3
    s_cselect_b32 s77, 1, 0
    s_waitcnt vmcnt(0)
    {"s_memrealtime s[86:87]" if OPT["stamps"] == 4 else ""}
    s_barrier
    {"s_memrealtime s[88:89]" if OPT["stamps"] == 4 else ""}
    s_cmp_ge_u32 s3, 24
    s_cbranch_scc1 K2_done""")
    a(f"""s_add_u32 s70, s70, s68
    s_cmp_eq_u32 s77, 0
    s_cselect_b32 s78, {0x7f000000}, 0
    v_add_u32 v3, s78, v3""")

    def slot(mask, here):
        return f"""s_add_u32 s7, s76, {here}
        s_cmp_eq_u32 s{mask}, 0
        s_cselect_b32 m0, {RP*SP}, s7"""

    def issue_w(st):
        base = (st % RP) * SP
        a(f"""s_add_u32 m0, s76, {base + 6144}
        s_add_u32 s72, s69, {36*1152*st}
        buffer_load_dwordx4 v2, s[{G.SRD2A}:{G.SRD2A+3}], s72 offen lds
        {slot(77, base + 6144 + 4096)}
        s_nop 0
        buffer_load_dwordx4 v3, s[{G.SRD2A}:{G.SRD2A+3}], s72 offen lds""")

    def issue_o(st):
        base = (st % RP) * SP
        a(f"""s_add_u32 m0, s76, {base}
        s_add_u32 s72, s68, {6*32768*st}
        buffer_load_dwordx4 v1, {W}, s72 offen sc0 sc1 lds
        {slot(71, base + 4096)}
        s_add_u32 s72, s70, {6*32768*st}
        buffer_load_dwordx4 v1, {W}, s72 offen sc0 sc1 lds""")
    for st in range(4):
        issue_w(st)
    a("s_barrier")
    if OPT["stamps"] == 4:
        a("s_memrealtime s[90:91]")

    def issue_p(st):
        if st >= 4:
            issue_w(st)
        issue_o(st)
    for st in range(4):
        issue_o(st)
    for st in range(16):
        n = (2 * (3 - st) + 4 * st) if st < 4 else 4 * min(3, 15 - st)
        a(f"s_waitcnt vmcnt({n})\n s_barrier")
        if OPT["stamps"] == 4 and st in (0, 5, 15):
            a(f"s_memrealtime s[{94 + 2*(0, 5, 15).index(st)}:{95 + 2*(0, 5, 15).index(st)}]")
        if st + 4 < 16:
            issue_p(st + 4)
    if OPT["stamps"] == 4:
        G.stamp_store(a, 0, 8)
    a("s_endpgm")
    a.label("K2_pc")
    G.srd(a, G.SRDO, G.P_OUT, 2048 * 4608)
    a(f"""v_lshlrev_b32 v{XA}, 4, v1
    v_lshl_add_u32 v{XA}, v2, 10, v{XA}
    v_bfe_u32 v12, v0, 2, 2
    v_and_b32 v13, 3, v0
    v_lshlrev_b32 v13, 3, v13
    v_and_b32 v14, 16, v0
    v_lshl_add_u32 v13, v14, 1, v13
    s_lshl_b32 s7, s5, 6
    s_add_u32 s7, s7, 6144
    v_add_u32 v13, s7, v13
    s_movk_i32 s7, 192""")
    for i, (r0, r1) in enumerate(((0, 8), (16, 18), (26, 34), (30, 38))):
        a(f"""v_mad_u32_u24 v14, v2, {r1 - r0}, v12
        v_add_u32 v14, {r0}, v14
        v_min_u32 v14, 35, v14
        v_mad_u32_u24 v{WA+i}, v14, s7, v13""")
    a(G.out_addr(a, 8192, 0))
    a(f"""s_mul_i32 s6, s14, {64*4608}
    s_mul_i32 s7, s15, 384
    s_add_u32 s6, s6, s7
    s_lshl_b32 s7, s5, 7
    s_add_u32 s12, s6, s7
    s_add_u32 s13, s12, {32*4608}
    s_waitcnt vmcnt(0)
    s_barrier
    s_cmp_lg_u32 s5, 3
    s_cbranch_scc1 K2_pw""")
    a(f"""s_lshl_b32 s6, s3, {OPT.get("osh", 4)}
    v_mov_b32 v14, s6
    v_mov_b32 v15, 1
    s_mov_b64 exec, 1
    buffer_store_dword v15, v14, {W}, s74 offen sc1
    s_mov_b64 exec, -1
    s_cmp_ge_u32 s3, 24
    s_cbranch_scc1 K2_done
    v_lshlrev_b32 v14, {OPT.get("osh", 4)}, v0""")
    mega.spin(a, "K2_pp", f"buffer_load_dword v15, v14, {W}, s74 offen sc1", 1, lanes=32, sleep=OPT.get("osleep", 1))
    a("s_barrier\n s_endpgm")
    a.label("K2_pw")
    a("s_cmp_ge_u32 s3, 24\n s_cbranch_scc1 K2_end\n s_barrier")
    stamp(a, 7)

    def reads_p(ks, b):
        f = FR + 12 * b
        return [f"ds_read_b64_tr_b16 {vr(f, 2)}, v{WA+ks}", f"ds_read_b64_tr_b16 {vr(f+2, 2)}, " + (f"v{WA+ks} offset:768" if ks < 2 else f"v{WA+3}"),
                f"ds_read_b128 {vr(f+4, 4)}, v{XA} offset:{2048*ks}", f"ds_read_b128 {vr(f+8, 4)}, v{XA} offset:{2048*ks+512}"]

    def mfmas_t(n, b, init=True):
        f = FR + 12 * b
        return [f"{MF} {vr(ACC+16*tt, 16)}, {vr(f, 4)}, {vr(f+4+4*tt, 4)}, {vr(ACC+16*tt, 16) if n or not init else 0}" for tt in range(2)]
    G.consumer2(a, 3, reads_p, mfmas_t, lambda ks: [WA + ks] + ([XA, WA + 3] if ks == 2 else []), depth=2, bar_ks=0, per_gap=3, nst=16, stage=SP, ring=RP)
    a("s_nop 10")
    G.out_tiles(a, [(ACC + 16 * tt, 12 + tt, 0) for tt in range(2)])
    a.label("K2_end")
    if OPT["stamps"]:
        a("s_memrealtime s[86:87]")
    G.stamp_store(a, 0, 8)
    a.label("K2_done")
    a("s_endpgm")
    a.label("K2_slow")
    for ps in range(2):
        a("s_mov_b32 s6, 0")
        if ps == 0:
            a("v_mov_b32 v7, 0xff800000")
        else:
            for i in range(16):
                a(f"v_mov_b32 v{OA+i}, 0")
        a.label(f"K2_sl{ps}")
        st = len(a.lines)
        a(f"""s_lshr_b32 s7, s6, 2
        s_mul_i32 s7, s7, {CH}
        s_add_u32 s7, s7, s75
        s_and_b32 s68, s6, 3
        s_mul_i32 s70, s68, {2*G.VT}
        s_add_u32 s70, s70, s7
        s_lshr_b32 s69, s68, 1
        s_lshl_b32 s69, s69, 9
        s_add_u32 s69, s69, s7
        s_bitcmp1_b32 s6, 0
        s_cselect_b32 s71, 8, 0
        s_add_u32 s69, s69, s71
        s_lshl_b32 s68, s68, 10
        s_add_u32 s68, s68, s7
        buffer_load_dwordx4 {vr(KF, 4)}, v{AK}, {W}, s68 offen sc1
        buffer_load_dwordx4 {vr(KF + 4, 4)}, v{AK}, {W}, s68 offen offset:512 sc1
        buffer_load_dwordx2 {vr(KX, 2)}, v{AX}, {W}, s69 offen sc1""")
        if ps:
            for i in range(4):
                a(f"buffer_load_dwordx4 {vr(VF + 4*i, 4)}, v{AV2 if i & 1 else AV}, {W}, s70 offen offset:{(i >> 1)*G.VT} sc1")
        a(f"s_waitcnt vmcnt(0)\n{mA(0, 0)}\n{mA(0, 1)}\n{mB(0, 0)}\n{mB(0, 1)}\n s_nop 15")
        for j in range(2):
            s = S(0, j)
            if ps == 0:
                for i in range(0, 16, 2):
                    a(f"v_max3_f32 v7, v7, v{s+i}, v{s+i+1}")
            else:
                for i in range(16):
                    a(f"v_sub_f32 v{s+i}, v{s+i}, v7")
                for i in range(16):
                    a(f"v_exp_f32 v{s+i}, v{s+i}")
                a("s_nop 0")
                for k in range(8):
                    a(f"v_cvt_pk_bf16_f32 v{PP+k}, v{s+2*k}, v{s+2*k+1}")
                a(f"s_nop 1\n{mP(0, j, 0)}\n{mP(0, j, 1)}")
        a(f"""s_add_u32 s6, s6, 1
        s_cmp_lt_u32 s6, 32
        s_cbranch_scc1 K2_sl{ps}""")
        a.loops.append(a.lines[st:])
        if ps == 0:
            a("""v_mov_b32 v8, v7
            s_nop 1
            v_permlane32_swap_b32 v7, v8
            s_nop 1
            v_max_f32 v7, v7, v8""")
    a(f"""s_nop 15
    v_cndmask_b32 v6, v{OA+10}, v{OA+12}, s[8:9]
    s_branch K2_fin""")


def cstep(a, nr, ni, lr, li, er, ei, xr, xi):
    a(f"""v_fma_f32 v{nr}, v{lr}, v{er}, v{xr}
    v_fma_f32 v{ni}, v{lr}, v{ei}, v{xi}
    v_fma_f32 v{nr}, -v{li}, v{ei}, v{nr}
    v_fma_f32 v{ni}, v{li}, v{er}, v{ni}""")


def ssm(a):
    OPT, PLB = G.OPT, G.PLB
    stamp = G.stamp
    W = f"s[{G.SRDW}:{G.SRDW+3}]"
    ACC, FR, XA, WA = 64, 32, 24, 28
    a.label("K2_ssm")
    WB, WS_ = 32768, 12288
    a(f"""s_sub_u32 s7, s47, 20
    s_and_b32 s4, s6, 1
    s_mul_i32 s4, s4, 3
    s_lshr_b32 s3, s7, 2
    s_add_u32 s4, s4, s3
    s_and_b32 s7, s7, 3
    s_lshr_b32 s3, s6, 1
    s_lshl_b32 s3, s3, 2
    s_add_u32 s3, s3, s7
    s_setprio {OPT.get("prio", 3)}
    s_nop 0""")
    if not OPT.get("pfe", 1):
        pf_setup(a, 47)
        pf_item(a, "s", OPT.get("pfs", 0), 7)
    G.srd(a, G.SRD1, G.P_BX, 2048 * 1152)
    G.srd(a, G.SRD2A, G.P_BRE, 576 * 1152)
    G.srd(a, G.SRD2B, G.P_BIM, 576 * 1152)
    a("s_mov_b32 s6, s5")
    G.rows_voff(a, 6, 1152, 8)
    a(f"""s_mul_i32 s68, s3, {128*1152}
    s_mul_i32 s69, s4, {96*1152}
    s_lshl_b32 s76, s5, 10
    s_and_b32 s77, s5, 3
    s_lshl_b32 s77, s77, 10
    s_lshr_b32 s71, s5, 2
    s_lshl_b32 s70, s71, 5
    s_sub_u32 s70, 64, s70
    s_mul_i32 s70, s70, 1152
    s_add_u32 s70, s70, s69
    s_mul_i32 s6, s4, 3
    s_lshr_b32 s6, s6, 1
    s_and_b32 s7, s3, 1
    s_lshl_b32 s7, s7, 2
    s_add_u32 s6, s6, s7
    s_sub_u32 s7, s6, 9
    s_cmp_ge_u32 s6, 9
    s_cselect_b32 s6, s7, s6
    s_mul_i32 s78, s6, {128 if OPT.get("rots", 0) else 0}""")
    uid = [0]

    def issue(h):
        if h >= 18:
            return []
        xs, d, base = h >> 1, G.SRD2B if h & 1 else G.SRD2A, WB + (h & 3) * WS_
        uid[0] += 1
        r = [f"""s_add_u32 m0, s76, {(xs & 1) * 16384 + 8192*j}
            s_add_u32 s7, s68, s78
            {f"s_add_u32 s7, s7, {64*1152}" if j else ""}
            buffer_load_dwordx4 v6, s[{G.SRD1}:{G.SRD1+3}], s7 offen lds""" for j in range(2)] if h % 2 == 0 else []
        return r + [f"""s_add_u32 m0, s76, {base}
            s_add_u32 s7, s69, s78
            buffer_load_dwordx4 v6, s[{d}:{d+3}], s7 offen lds""",
                    f"""s_cmp_eq_u32 s71, {h & 1}
            s_cbranch_scc0 S_sk{uid[0]}
            s_add_u32 m0, s77, {base + 8192}
            s_add_u32 s7, s70, s78
            buffer_load_dwordx4 v6, s[{d}:{d+3}], s7 offen lds
            S_sk{uid[0]}:""" + ("""
            s_add_u32 s78, s78, 128
            s_cmp_eq_u32 s78, 1152
            s_cselect_b32 s78, 0, s78""" if h & 1 else "")]

    def vm(h):
        return 0 if h == 17 else (3 if h & 1 else 1)
    a(f"""s_cmp_lt_u32 s5, 6
    s_cbranch_scc1 K2_sc
    s_waitcnt vmcnt(0)
    s_barrier""")
    for x in issue(0) + issue(1):
        a(x)
    for h in range(18):
        a(f"s_waitcnt vmcnt({vm(h)})\n s_barrier")
        for x in issue(h + 2):
            a(x)
    a("s_barrier\n s_endpgm")
    a.label("K2_sc")
    G.srd(a, G.SRDW, G.P_WS, G.WS_END)
    G.lane_parts(a)
    PR = 8
    a(f"""s_cmp_ge_u32 s5, 3
    s_cselect_b32 s14, 1, 0
    s_mul_i32 s15, s14, 3
    s_sub_u32 s15, s5, s15
    s_mul_i32 s46, s4, 96
    s_lshl_b32 s6, s15, 5
    s_add_u32 s46, s46, s6
    v_add_u32 v3, s46, v1
    v_lshlrev_b32 v3, 1, v3
    global_load_ushort v{PR}, v3, s[{G.P_LRE}:{G.P_LRE+1}]
    global_load_ushort v{PR+1}, v3, s[{G.P_LIM}:{G.P_LIM+1}]
    global_load_ushort v{PR+2}, v3, s[{G.P_LDT}:{G.P_LDT+1}]
    v_bfe_u32 v5, v1, 1, 1
    v_lshrrev_b32 v4, 3, v1
    v_lshl_add_u32 v5, v4, 1, v5
    v_and_b32 v4, 1, v1
    v_lshl_add_u32 v5, v4, 4, v5
    v_and_b32 v4, 4, v1
    v_lshl_add_u32 v5, v4, 3, v5
    s_lshl_b32 s7, s14, 13""")
    XA, WA = 24, 28
    G.row_addr(a, XA, 5, "s7", 4)
    a(f"s_lshl_b32 s7, s15, 12\n s_add_u32 s7, s7, {WB}")
    G.row_addr(a, WA, 1, "s7", 4)
    a("s_waitcnt vmcnt(3)\n s_barrier")
    for x in issue(0) + issue(1):
        a(x)
    a("s_waitcnt vmcnt(5)")
    p = PR
    a(f"""s_mov_b32 s12, {G.f2u(G.LOG2E)}
    v_lshlrev_b32 v{p}, 16, v{p}
    v_lshlrev_b32 v{p+1}, 16, v{p+1}
    v_lshlrev_b32 v{p+2}, 16, v{p+2}
    v_mul_f32 v{p+2}, s12, v{p+2}
    v_exp_f32 v{p+2}, v{p+2}
    s_nop 0
    v_cvt_pk_bf16_f32 v{p+2}, v{p+2}, v{p+2}
    v_lshlrev_b32 v{p+2}, 16, v{p+2}
    v_mul_f32 v{p+3}, v{p+2}, v{p}
    v_mul_f32 v{p+2}, v{p+2}, v{p+1}
    v_mul_f32 v{p+3}, s12, v{p+3}
    v_mul_f32 v{p+2}, 0.15915494309189532, v{p+2}
    v_exp_f32 v{p+3}, v{p+3}
    v_fract_f32 v{p+2}, v{p+2}
    v_cos_f32 v{p+4}, v{p+2}
    v_sin_f32 v{p+5}, v{p+2}
    v_mul_f32 v{p+12}, v{p}, v{p}
    v_mul_f32 v{p+4}, v{p+4}, v{p+3}
    v_mul_f32 v{p+5}, v{p+5}, v{p+3}
    v_fma_f32 v{p+12}, v{p+1}, v{p+1}, v{p+12}
    v_rcp_f32 v{p+12}, v{p+12}
    v_add_f32 v{p+13}, -1.0, v{p+4}
    v_mul_f32 v{p+10}, v{p+13}, v{p}
    v_mul_f32 v{p+11}, v{p+5}, v{p}
    v_add_f32 v{p+12}, v{p+12}, v{p+12}
    v_fma_f32 v{p+10}, v{p+5}, v{p+1}, v{p+10}
    v_fma_f32 v{p+11}, -v{p+13}, v{p+1}, v{p+11}
    v_mul_f32 v{p+10}, v{p+10}, v{p+12}
    v_mul_f32 v{p+11}, v{p+11}, v{p+12}""")
    G.cmul(a, p + 12, p + 13, p + 4, p + 5, p + 4, p + 5)
    G.cmul(a, p + 14, p + 15, p + 12, p + 13, p + 12, p + 13)
    G.cmul(a, p + 12, p + 13, p + 14, p + 15, p + 14, p + 15)
    G.cmul(a, p - 4, p - 3, p + 12, p + 13, p + 12, p + 13)
    G.cmul(a, p + 6, p + 7, p - 4, p - 3, p - 4, p - 3)
    G.cmul(a, p + 8, p + 9, p + 6, p + 7, p + 6, p + 7)
    G.cmul(a, p, p + 1, p + 8, p + 9, p + 8, p + 9)
    LR, LI, L16R, L16I, L32R, L32I, L64R, L64I, L128R, L128I, CR, CI = p + 4, p + 5, p - 4, p - 3, p + 6, p + 7, p + 8, p + 9, p, p + 1, p + 10, p + 11
    FX, FW = (32, 44, 56), (40, 52, 20)

    def reads(n, b):
        ks = n & 3
        return [f"ds_read_b128 {vr(FW[b], 4)}, v{WA+ks}", f"ds_read_b128 {vr(FX[b], 4)}, v{XA+ks}",
                f"ds_read_b128 {vr(FX[b]+4, 4)}, v{XA+(ks^2)} offset:1024"]

    def upd2(n):
        h, ks = divmod(n, 4)
        u = [(WA + ks, WS_ if (h + 1) & 3 else -3 * WS_)] if h < 17 else []
        if h & 1 and h < 17 and ks >= 2:
            u += [(XA + k, 16384 if (h >> 1) % 2 == 0 else -16384) for k in (ks - 2, ks)]
        return u

    def mfmas(n, b):
        im = (n >> 2) & 1
        return [f"{MF} {vr(ACC + 32*im + 16*tt, 16)}, {vr(FX[b]+4*tt, 4)}, {vr(FW[b], 4)}, {vr(ACC + 32*im + 16*tt, 16) if n & ~4 else 0}"
                for tt in range(2)]
    stamp(a, 1)
    G.consumer2(a, 4, reads, mfmas, None, depth=2, bar_ks=2, per_gap=3, nst=18, upd2=upd2, by_step=True,
                pre_bar=lambda h: f"s_waitcnt vmcnt({vm(h)}) lgkmcnt(0)", post_bar=lambda h: issue(h + 2), marks=(1, 3, 5, 8, 11, 14, 17))
    stamp(a, 2)
    a("s_setprio 3")

    def pk(d, l, hi, e, x, neg=False):
        return (f"v_pk_fma_f32 {vr(d, 2)}, {vr(l, 2)}, {vr(e, 2)}, {vr(x, 2)} op_sel:[{hi},0,0] op_sel_hi:[{hi},1,1]"
                + (" neg_lo:[1,0,0] neg_hi:[1,0,0]" if neg else ""))

    def pstep(nr, ni, er, ei, xr, xi):
        a("\n".join([pk(nr, LR, 0, er, xr), pk(ni, LR, 0, ei, xi), pk(nr, LR, 1, ei, nr, True), pk(ni, LR, 1, er, ni)]))
    a(f"""s_lshl_b32 s79, s3, 1
    s_add_u32 s79, s79, s14
    v_lshlrev_b32 v3, 3, v1
    s_mul_i32 s13, s3, 4608
    s_lshl_b32 s6, s46, 3
    s_add_u32 s78, s6, {G.ECH_OFF}
    s_add_u32 s13, s13, s78
    s_mul_i32 s75, s79, {8*PLB}
    s_lshl_b32 s6, s46, 4
    s_add_u32 s75, s75, s6
    s_add_u32 s75, s75, {G.XT_OFF}
    s_lshl_b32 s6, s15, 8
    s_add_u32 s6, s6, {WB + 2*WS_}
    v_add_u32 v6, s6, v3""")
    G.srd(a, mega.SRDD, G.P_DBG, 256)
    a(f"v_mov_b32 v62, 0\n buffer_load_dword v63, v62, s[{mega.SRDD}:{mega.SRDD+3}], 0 offen offset:132 sc1")
    e = (ACC, ACC + 32)
    for s_ in range(1, 16):
        n_ = (24, 26) if s_ & 1 else (28, 30)
        pstep(n_[0], n_[1], e[0], e[1], ACC + 2 * s_, ACC + 32 + 2 * s_)
        e = n_
    cstep(a, 20, 21, L16R, L16I, 24, 26, 25, 27)
    a("""v_mov_b32 v28, v20
    v_mov_b32 v29, v21
    v_mov_b32 v30, v20
    v_mov_b32 v31, v21
    s_nop 1
    v_permlane32_swap_b32 v28, v30
    v_permlane32_swap_b32 v29, v31
    s_nop 1""")
    cstep(a, 22, 23, L32R, L32I, 28, 29, 30, 31)
    a(f"""s_cmp_lg_u32 s14, 0
    s_cbranch_scc1 S_x1
    ds_write_b64 v6, v[22:23]""")
    a.label("S_x1")
    a(f"""s_waitcnt vmcnt(0) lgkmcnt(0)
    v_readfirstlane_b32 s6, v63
    s_barrier
    ds_read_b64 v[20:21], v6
    s_cmp_ge_u32 s6, 16
    s_cbranch_scc1 S_ci
    v_mov_b32 v60, v14
    v_mov_b32 v61, v15""")
    mega.wait_init(a, "S_wi")
    a("v_mov_b32 v14, v60\n v_mov_b32 v15, v61")
    a.label("S_ci")
    a(f"""v_mov_b32 v30, 0
    v_mov_b32 v31, 0
    s_mov_b32 s12, 0
    s_waitcnt lgkmcnt(0)
    s_cmp_eq_u32 s14, 0
    s_cbranch_scc1 K2_poll""")
    cstep(a, 62, 63, L64R, L64I, 20, 21, 22, 23)
    a(f"""v_min_u32 v62, -2, v62
    v_min_u32 v63, -2, v63
    s_mov_b64 exec, 0xffffffff
    buffer_store_dwordx2 v[62:63], v3, {W}, s13 offen sc0 sc1
    s_mov_b64 exec, -1""")
    EB = 32
    a.label("K2_poll")
    a("s_mov_b32 s15, s78")
    for c in range(15):
        a(f"""s_cmp_le_u32 s3, {c}
        s_cbranch_scc1 K2_ld
        buffer_load_dwordx2 v[{EB+2*c}:{EB+2*c+1}], v3, {W}, s15 offen sc0 sc1
        s_add_u32 s15, s15, 4608""")
    a.label("K2_ld")
    a("v_mov_b32 v6, 0\n s_waitcnt vmcnt(0)")
    for c in range(15):
        a(f"""s_cmp_le_u32 s3, {c}
        s_cbranch_scc1 K2_ck
        v_max3_u32 v6, v6, v{EB+2*c}, v{EB+2*c+1}""")
    a.label("K2_ck")
    a(f"""v_cmp_eq_u32 vcc, -1, v6
    s_add_u32 s12, s12, 1
    s_cbranch_vccz K2_got
    s_sleep {OPT.get("psleep", 4)}
    s_cmp_lt_u32 s12, 0x40000
    s_cbranch_scc1 K2_poll""")
    a.label("K2_got")
    for c in range(15):
        a(f"s_cmp_le_u32 s3, {c}\n s_cbranch_scc1 K2_h{c}")
        cstep(a, EB + 2 * c, EB + 2 * c + 1, L128R, L128I, EB + 2 * c - 2, EB + 2 * c - 1, EB + 2 * c, EB + 2 * c + 1)
    for c in range(15, 0, -1):
        if c < 15:
            a.label(f"K2_h{c}")
        a(f"v_mov_b32 v30, v{EB+2*c-2}\n v_mov_b32 v31, v{EB+2*c-1}")
        if c > 1:
            a("s_branch K2_h0")
    a.label("K2_h0")
    stamp(a, 3)
    a("s_cmp_eq_u32 s14, 0\n s_cbranch_scc1 S_c0")
    cstep(a, 22, 23, L64R, L64I, 30, 31, 20, 21)
    a("v_mov_b32 v30, v22\n v_mov_b32 v31, v23")
    a.label("S_c0")
    cstep(a, 22, 23, L32R, L32I, 30, 31, 28, 29)
    a(f"""v_cndmask_b32 v28, v30, v22, s[8:9]
    v_cndmask_b32 v30, v31, v23, s[8:9]
    v_mul_u32_u24 v6, {4*PLB}, v2
    v_lshl_add_u32 v6, v1, 4, v6""")
    cstep(a, 29, 31, L16R, L16I, 28, 30, 24, 26)
    g = (28, 30)
    HO = 32
    for s_ in range(16):
        nr, ni = ACC + 2 * s_, ACC + 32 + 2 * s_
        pstep(nr, ni, g[0], g[1], nr, ni)
        o = 20 + 4 * (s_ & 1)
        a(f"""v_pk_mul_f32 {vr(o, 2)}, {vr(CR, 2)}, {vr(nr, 2)} op_sel:[0,0] op_sel_hi:[0,1]
        v_pk_mul_f32 {vr(o+2, 2)}, {vr(CR, 2)}, {vr(ni, 2)} op_sel:[0,0] op_sel_hi:[0,1] neg_lo:[1,0] neg_hi:[1,0]
        {pk(o, CR, 1, ni, o, True)}
        {pk(o+2, CR, 1, nr, o+2, True)}""")
        if s_ & 1:
            k = s_ >> 1
            a(f"""v_cvt_pk_bf16_f32 v{HO+k}, v20, v24
            v_cvt_pk_bf16_f32 v{HO+8+k}, v21, v25
            v_cvt_pk_bf16_f32 v{HO+16+k}, v22, v26
            v_cvt_pk_bf16_f32 v{HO+24+k}, v23, v27""")
        if s_ & 7 == 7:
            for ch in range(2):
                pl = 2 * ch + (s_ >> 3)
                a(f"""s_add_u32 s6, s75, {pl*PLB}
                s_add_u32 s7, s75, {pl*PLB + 576*16}
                buffer_store_dwordx4 {vr(HO+4*pl, 4)}, v6, {W}, s6 offen sc0 sc1
                buffer_store_dwordx4 {vr(HO+16+4*pl, 4)}, v6, {W}, s7 offen sc0 sc1""")
        g = (nr, ni)
    stamp(a, 4)
    a(f"""s_lshl_b32 s74, s79, 7
    s_lshr_b32 s6, s46, 3
    s_add_u32 s74, s74, s6
    s_add_u32 s74, s74, {G.FLG_OFF}
    v_mov_b32 v14, 0
    v_mov_b32 v15, 1
    s_mov_b64 exec, 1
    s_waitcnt vmcnt(0)
    buffer_store_dword v15, v14, {W}, s74 offen sc1""")
    if OPT["stamps"] == 4:
        a("s_memrealtime s[94:95]")
    a("s_branch G2_end")
    a.label("G2x")
    a("s_mov_b64 exec, -1")
    a.label("G2")
    XA, WA, FR = 20, 24, 28
    S3 = 24576
    G.srd(a, G.SRDW, G.P_WS, G.WS_END)
    a(f"""s_cmp_ge_u32 s47, 18
    s_cbranch_scc1 G2_end
    s_setprio 3
    s_and_b32 s6, s2, 7
    s_lshl_b32 s3, s6, 1
    s_and_b32 s7, s47, 1
    s_add_u32 s3, s3, s7
    s_lshr_b32 s4, s47, 1
    s_cmp_lt_u32 s5, 4
    s_cbranch_scc1 G2_c""")
    G.srd(a, G.SRD2A, G.P_CRE, 576 * 1152)
    G.srd(a, G.SRD2B, G.P_CIM, 576 * 1152)
    a("s_sub_u32 s6, s5, 4")
    G.rows_voff(a, 1, 1152, 8)
    a(f"""s_mul_i32 s69, s4, {64*1152}
    s_lshl_b32 s76, s6, 10
    s_lshl_b32 s77, s6, 11
    v_lshrrev_b32 v8, 3, v0
    v_mul_u32_u24 v8, {PLB}, v8
    v_lshrrev_b32 v9, 2, v0
    v_and_b32 v9, 4, v9
    v_and_b32 v10, 7, v0
    v_xor_b32 v9, v9, v10
    s_lshl_b32 s7, s6, 3
    v_add_u32 v9, s7, v9
    v_lshl_add_u32 v4, v9, 4, v8
    s_mul_i32 s68, s3, {16*PLB}
    s_add_u32 s68, s68, {G.XT_OFF}
    s_cmp_lg_u32 s5, 4
    s_cbranch_scc1 G2_l""")
    mega.wait_init(a, "G2_wi")
    a(f"""s_lshl_b32 s74, s3, 8
    s_add_u32 s74, s74, {G.FLG_OFF}
    v_lshlrev_b32 v14, 2, v0
    v_add_u32 v15, 56, v14
    v_cmp_lt_u32 vcc, 17, v0
    s_nop 1
    v_cndmask_b32 v14, v14, v15, vcc""")
    mega.spin(a, "G2_p", f"buffer_load_dword v15, v14, {W}, s74 offen sc1", 1, lanes=36, sleep=OPT.get("gsleep", 8))
    a.label("G2_l")
    a("s_waitcnt vmcnt(0)\n s_barrier")

    def issue_r(st):
        base = (st % 3) * S3
        kb, im = st >> 1, st & 1
        d = G.SRD2B if im else G.SRD2A
        for j in range(2):
            a(f"""s_add_u32 m0, s76, {base + 16384 + 4096*j}
            s_add_u32 s7, s69, {32*1152*j + 128*kb}
            buffer_load_dwordx4 v1, s[{d}:{d+3}], s7 offen lds""")
        for j in range(2):
            for hf in range(2):
                a(f"""s_add_u32 m0, s77, {base + 8192*j + 1024*hf}
                s_add_u32 s7, s68, {(576*im + 64*kb + 32*j) * 16 + 8*PLB*hf}
                buffer_load_dwordx4 v4, {W}, s7 offen sc0 sc1 lds""")
    tail_loader(a, 18, issue_r, per=6, end=False)
    G.stamp_store(a, 0, 8)
    a("s_endpgm")
    a.label("G2_c")
    G.lane_parts(a)
    a(f"""s_and_b32 s14, s5, 1
    s_lshr_b32 s15, s5, 1
    s_lshl_b32 s79, s3, 1
    s_add_u32 s79, s79, s14
    s_lshl_b32 s46, s4, 1
    s_add_u32 s46, s46, s15
    s_lshl_b32 s46, s46, 5
    v_lshlrev_b32 v3, 3, v2
    s_lshl_b32 s6, s46, 1
    v_add_u32 v3, s6, v3
    s_lshl_b32 s6, s79, 6
    v_add_u32 v4, s6, v1
    v_mul_u32_u24 v4, 1152, v4
    v_add_u32 v4, v4, v3
    v_add_u32 v5, {32*1152}, v4""")
    for i in range(4):
        a(f"global_load_dwordx2 v[{96+2*i}:{97+2*i}], v3, s[{G.P_DSK}:{G.P_DSK+1}] offset:{16*i}")
    for tt in range(2):
        for i in range(4):
            a(f"global_load_dwordx2 v[{104+8*tt+2*i}:{105+8*tt+2*i}], v{4+tt}, s[{G.P_BX}:{G.P_BX+1}] offset:{16*i}")
    G.srd(a, G.SRDO, G.P_OUT, 2048 * 4608)
    a(f"""v_bfe_u32 v6, v0, 4, 1
    v_mul_u32_u24 v6, 320, v6
    v_lshl_add_u32 v6, v2, 11, v6
    s_lshl_b32 s7, s14, 10
    v_add_u32 v6, s7, v6
    v_and_b32 v7, 2, v0
    v_lshl_add_u32 v6, v7, 6, v6
    v_and_b32 v7, 12, v0
    v_lshl_add_u32 v6, v7, 2, v6
    v_and_b32 v7, 1, v0
    v_lshl_add_u32 v{WA}, v7, 3, v6
    v_xor_b32 v{WA+1}, 64, v{WA}
    s_lshl_b32 s7, s15, 12
    s_add_u32 s7, s7, 16384""")
    G.row_addr(a, XA, 1, "s7", 8)
    a(G.out_addr(a, 8192, 0).replace("s_add_u32 s7, s7, 0", f"s_cmp_eq_u32 s5, 3\n s_cselect_b32 s7, {3*S3}, s7"))
    a(f"""s_mul_i32 s6, s79, {64*4608}
    s_lshl_b32 s7, s46, 2
    s_add_u32 s6, s6, s7
    s_add_u32 s12, s6, 2304
    s_add_u32 s13, s12, {32*4608}
    s_mov_b32 s14, 0xffff0000
    s_waitcnt vmcnt(0)""")
    for k in range(8):
        a(f"v_lshlrev_b32 v{32+2*k}, 16, v{96+k}\n v_and_b32 v{33+2*k}, s14, v{96+k}")
    for tt in range(2):
        for k in range(8):
            A = ACC + 16 * tt + 2 * k
            a(f"""v_lshlrev_b32 v{A}, 16, v{104+8*tt+k}
            v_and_b32 v{A+1}, s14, v{104+8*tt+k}
            v_mul_f32 v{A}, v{A}, v{32+2*k}
            v_mul_f32 v{A+1}, v{A+1}, v{33+2*k}""")
    a(f"s_setprio {OPT.get('prio3', 0)}\n s_barrier")
    stamp(a, 5)

    def reads_r(ks, b):
        f = FR + 12 * b
        r = [f"ds_read_b128 {vr(f, 4)}, v{XA+ks}"]
        for tt in range(2):
            for e in range(2):
                r.append(f"ds_read_b64_tr_b16 {vr(f+4+4*tt+2*e, 2)}, v{WA+e} offset:{4096*ks+512*tt}")
        return r

    def mfmas_r(n, b):
        f = FR + 12 * b
        return [f"{MF} {vr(ACC+16*tt, 16)}, {vr(f, 4)}, {vr(f+4+4*tt, 4)}, {vr(ACC+16*tt, 16)}" for tt in range(2)]
    G.consumer2(a, 4, reads_r, mfmas_r, lambda ks: [XA + ks] + ([WA, WA + 1] if ks == 3 else []), depth=2, bar_ks=2, per_gap=3, nst=18, stage=S3, ring=3,
                pre_bar=lambda st: "s_waitcnt lgkmcnt(0)" + (f"\n s_setprio {OPT.get('g2p', 2)}" if st == OPT.get("g2hi", 12) else ""))
    stamp(a, 6)
    a("s_setprio 3\n s_nop 9")
    G.out_tiles(a, [(ACC + 16 * tt, 12 + tt, 0) for tt in range(2)])
    a.label("G2_end")
    stamp(a, 7)
    G.stamp_store(a, 0, 8)
    a.label("K2_last")
    a("s_endpgm")
```

```python
import gen as G
from asmlib import Asm, vr

MF = "v_mfma_f32_32x32x16_bf16"
MF8 = "v_mfma_f32_32x32x8bf16_1k"
OA, PP, KF, KX, VF, QB, AK, AX, AV, NK, NX, NV = 48, 64, 72, 80, 88, 104, 112, 113, 114, 115, 116, 117


AV2, NV2 = 122, 123


def S(q, j):
    return 16 + 16 * (j & 1)


def k2(a):
    a.label("k2_kernel")
    G.stamp(a, 0)
    a("""s_cmp_ge_u32 s2, 448
    s_cbranch_scc1 K2_done""")
    G.load_args(a)
    a("""v_lshrrev_b32 v1, 6, v0
    v_and_b32 v0, 63, v0
    s_cmp_ge_u32 s2, 256
    v_readfirstlane_b32 s5, v1
    s_cbranch_scc1 K2_ssm""")
    attention(a)
    ssm(a)


ST2 = 20480


def tail_loader(a, nst, issue, per=5, pre=2, end=True):
    for st in range(pre):
        issue(st)
    for st in range(nst):
        a(f"s_waitcnt vmcnt({per * min(pre - 1, nst - 1 - st)})\n s_barrier")
        if st + pre < nst:
            issue(st + pre)
    if end:
        a("s_endpgm")


def poll(a, tag, off, target, sleep=2):
    W = f"s[{G.SRDW}:{G.SRDW+3}]"
    a(f"s_mov_b64 exec, 1\n v_mov_b32 v14, 0\n s_mov_b32 s72, 0")
    a.label(tag)
    a(f"""buffer_load_dword v15, v14, {W}, s{off} offen sc0 sc1
    s_waitcnt vmcnt(0)
    v_readfirstlane_b32 s73, v15
    s_add_u32 s72, s72, 1
    s_cmp_ge_u32 s73, {target}
    s_cbranch_scc1 {tag}_ok
    s_sleep {sleep}
    s_cmp_lt_u32 s72, 0x100000
    s_cbranch_scc1 {tag}""")
    a.label(tag + "_ok")
    a("s_mov_b64 exec, -1")


def arrive(a, off):
    W = f"s[{G.SRDW}:{G.SRDW+3}]"
    a(f"""s_mov_b64 exec, 1
    v_mov_b32 v14, 0
    v_mov_b32 v15, 1
    buffer_atomic_add v15, v14, {W}, s{off} offen sc1
    s_mov_b64 exec, -1""")


def pf_item(a, tag, add, dummy):
    SRD1, SRD2A = G.SRD1, G.SRD2A
    a(f"""s_add_u32 s13, s12, {add}
    s_mul_i32 s14, s13, 2850
    s_lshr_b32 s14, s14, 16
    s_mul_i32 s15, s14, 23
    s_sub_u32 s15, s13, s15
    s_cmp_ge_u32 s13, 207
    s_cbranch_scc1 P_n{tag}
    s_cmp_lt_u32 s15, 8
    s_cbranch_scc0 P_w{tag}
    s_lshr_b32 s68, s6, 1
    s_lshl_b32 s68, s68, 3
    s_add_u32 s15, s15, s68
    s_mul_i32 s15, s15, {64*1152}
    s_lshl_b32 s14, s14, 7
    s_add_u32 s15, s15, s14
    buffer_load_dword v{dummy}, v1, s[{SRD1}:{SRD1+3}], s15 offen
    s_branch P_n{tag}""")
    a.label(f"P_w{tag}")
    a(f"""s_and_b32 s69, s6, 1
    s_mul_i32 s69, s69, 15
    s_add_u32 s15, s15, s69
    s_sub_u32 s15, s15, 8
    s_mul_i32 s14, s14, {64*3456}
    s_cmp_lt_u32 s15, 27
    s_cselect_b32 s14, s14, {0x7f000000}
    s_lshl_b32 s15, s15, 7
    s_add_u32 s15, s15, s14
    buffer_load_dword v{dummy}, v2, s[{SRD2A}:{SRD2A+3}], s15 offen""")
    a.label(f"P_n{tag}")


def pf_setup(a, ireg, first=20):
    a(f"""s_sub_u32 s12, s{ireg}, {first}
    s_lshl_b32 s12, s12, 3
    s_add_u32 s12, s12, s5
    v_mul_u32_u24 v1, 1152, v0
    v_mul_u32_u24 v2, 3456, v0
    s_waitcnt lgkmcnt(0)""")
    G.srd(a, G.SRD1, G.P_AX, 2048 * 1152)
    G.srd(a, G.SRD2A, G.P_WQKV, 576 * 3456)


def warm_mall(a):
    D = G.SRD2B
    a(f"""s_lshl_b32 s12, s5, 8
    s_add_u32 s12, s12, s2
    s_sub_u32 s12, s12, 256
    v_lshlrev_b32 v3, 7, v0
    s_mov_b32 s{D+3}, 0x00020000
    s_waitcnt lgkmcnt(0)
    s_mov_b64 s[{D}:{D+1}], s[{G.P_AX}:{G.P_AX+1}]
    s_mov_b32 s{D+2}, {2048*1152}
    s_mov_b32 s13, 0""")
    for first, p, n in ((576, G.P_WQKV, 576 * 3456), (1062, G.P_BX, 2048 * 1152), (1638, G.P_BRE, 576 * 1152), (1800, G.P_BIM, 576 * 1152)):
        a(f"""s_cmp_ge_u32 s12, {first}
        s_cselect_b32 s{D}, s{p}, s{D}
        s_cselect_b32 s{D+1}, s{p+1}, s{D+1}
        s_cselect_b32 s{D+2}, {n}, s{D+2}
        s_cselect_b32 s13, {first}, s13""")
    a(f"""s_sub_u32 s12, s12, s13
    s_lshl_b32 s12, s12, 12
    s_mov_b64 exec, 0xffffffff
    buffer_load_dword v118, v3, s[{D}:{D+3}], s12 offen
    s_mov_b64 exec, -1""")


def prefetch_att(a):
    SRD1 = G.SRD1
    a("""s_bfe_u32 s7, s2, 0x50003
    s_cmp_lt_u32 s7, 20
    s_cbranch_scc1 P_x""")
    pf_setup(a, 7)
    if G.OPT.get("pf1", 1):
        if not G.OPT.get("pfe", 1):
            pf_item(a, "a", 96 + G.OPT.get("pfs", 0), 118)
        if G.OPT.get("pfs", 0) < 15:
            pf_item(a, "b", 192 + G.OPT.get("pfs", 0), 118)
    if G.OPT.get("pfc", 2) == 1:
        a("s_getpc_b64 s[14:15]")
        a.label("K1_pc")
        a(f"""s_lshl_b32 s13, s12, 10
        s_sub_u32 s14, s14, K1_pc-{mega.NAME}
        s_subb_u32 s15, s15, 0
        v_and_b32 v10, 7, v0
        v_lshl_add_u32 v10, v10, 7, s13
        v_min_u32 v10, K2_last-{mega.NAME}, v10
        v_mov_b32 v11, s15
        v_add_co_u32 v10, vcc, s14, v10
        s_nop 1
        v_addc_co_u32 v11, vcc, 0, v11, vcc
        global_load_dword v118, v[10:11], off""")
    a(f"""s_lshr_b32 s68, s6, 1
    s_mul_i32 s68, s68, {512*1152}
    s_and_b32 s71, s6, 1
    s_mul_i32 s71, s71, {288*1152}
    v_min_u32 v2, 31, v0
    v_mul_u32_u24 v2, 1152, v2""")
    for k in range(2 if G.OPT.get("pf2", 1) else 0):
        if G.OPT.get("pfp", 2) > k:
            a("s_waitcnt vmcnt(0)")
        a(f"""s_add_u32 s13, s12, {96*k}
        s_mul_i32 s14, s13, 3641
        s_lshr_b32 s14, s14, 16
        s_mul_i32 s15, s14, 18
        s_sub_u32 s15, s13, s15
        s_lshl_b32 s14, s14, 7
        s_cmp_ge_u32 s13, 162
        s_cbranch_scc1 P_x
        s_cmp_lt_u32 s15, 13
        s_cselect_b32 s{SRD1}, s{G.P_BRE}, s{G.P_BIM}
        s_cselect_b32 s{SRD1+1}, s{G.P_BRE+1}, s{G.P_BIM+1}
        s_cselect_b32 s69, 8, 13
        s_mov_b32 s{SRD1+2}, {576*1152}
        s_mov_b32 s70, s71
        s_cmp_lt_u32 s15, 8
        s_cselect_b32 s{SRD1}, s{G.P_BX}, s{SRD1}
        s_cselect_b32 s{SRD1+1}, s{G.P_BX+1}, s{SRD1+1}
        s_cselect_b32 s{SRD1+2}, {2048*1152}, s{SRD1+2}
        s_cselect_b32 s69, 0, s69
        s_cselect_b32 s70, s68, s70
        s_cmp_eq_u32 s15, 12
        s_cselect_b64 vcc, -1, 0
        s_cmp_eq_u32 s15, 17
        s_cselect_b64 vcc, -1, vcc
        s_sub_u32 s15, s15, s69
        s_mul_i32 s15, s15, {64*1152}
        s_add_u32 s15, s15, s14
        s_add_u32 s15, s15, s70
        v_cndmask_b32 v3, v1, v2, vcc
        buffer_load_dword v118, v3, s[{SRD1}:{SRD1+3}], s15 offen""")
    a.label("P_x")


def attention(a):
    OPT, IMG, CH, VG = G.OPT, G.IMG, G.CH, G.VG
    stamp, stampc = G.stamp, G.stampc
    W = f"s[{G.SRDW}:{G.SRDW+3}]"
    a.label("A_go")
    if OPT.get("wm", 0):
        warm_mall(a)
    prefetch_att(a)
    a(f"""s_and_b32 s3, s2, 7
    s_lshl_b32 s3, s3, 2
    s_bfe_u32 s6, s2, 0x20003
    s_add_u32 s3, s3, s6
    s_bfe_u32 s4, s2, 0x30005
    s_mul_i32 s75, s3, {IMG}
    s_lshl_b32 s13, s5, 10
    s_add_u32 s78, s5, 16
    s_min_u32 s78, s78, 18
    s_lshl_b32 s78, s78, 10
    s_mov_b32 s12, s75
    s_mov_b32 s76, 0
    v_lshlrev_b32 v3, 4, v0""")
    G.lane_parts(a)
    a(f"""s_mul_i32 s14, s4, {CH}
    s_add_u32 s14, s14, s75
    s_add_u32 s14, s14, {G.Q_OFF}
    v_lshlrev_b32 v4, 4, v1
    v_lshl_add_u32 v5, v2, 12, v4
    s_lshl_b32 s6, s5, 9
    v_add_u32 v5, s6, v5
    s_lshr_b32 s6, s5, 2
    s_lshl_b32 s6, s6, 9
    s_and_b32 s7, s5, 3
    s_lshl_b32 s7, s7, 2
    s_add_u32 s6, s6, s7
    s_add_u32 s6, s6, 8192
    v_add_u32 v4, s6, v4
    v_add_u32 v6, s13, v3
    v_add_u32 v7, s78, v3
    s_waitcnt lgkmcnt(0)""")
    G.srd(a, G.SRDW, G.P_WS, G.WS_END)

    def dma(c, k):
        sl, g = (c & 3) * CH, c * CH
        if k < 2:
            return f"""s_add_u32 m0, s13, {sl + 8192*k}
            s_add_u32 s7, s75, {g + 8192*k}
            buffer_load_dwordx4 v6, {W}, s7 offen sc1 lds"""
        return f"""s_add_u32 m0, s78, {sl}
        s_add_u32 s7, s75, {g}
        buffer_load_dwordx4 v7, {W}, s7 offen sc1 lds"""

    a(f"""v_and_b32 v11, 19, v1
    v_and_b32 v12, 4, v1
    v_lshl_add_u32 v11, v12, 1, v11
    v_and_b32 v12, 8, v1
    v_lshrrev_b32 v12, 1, v12
    v_add_u32 v11, v11, v12
    v_lshlrev_b32 v{AX}, 4, v11
    v_lshl_add_u32 v{AK}, v2, 12, v{AX}
    v_add_u32 v{AX}, 8192, v{AX}""")
    a(f"""v_min_u32 v12, 19, v1
    v_cmp_gt_u32 vcc, 16, v1
    v_cmp_eq_u32 s[70:71], 28, v1
    s_nop 0
    v_cndmask_b32 v12, v12, v11, vcc
    s_nop 0
    v_cndmask_b32 v12, v12, 18, s[70:71]
    v_bfe_u32 v13, v12, 2, 2
    v_xor_b32 v13, v13, v2
    v_lshlrev_b32 v13, 4, v13
    v_lshl_add_u32 v{AV}, v12, 6, v13
    v_add_u32 v{AV}, 9216, v{AV}
    v_xor_b32 v{AV2}, 32, v{AV}
    v_add_u32 v{NV2}, {3*CH}, v{AV2}
    v_add_u32 v{NK}, {3*CH}, v{AK}
    v_add_u32 v{NX}, {3*CH}, v{AX}
    v_add_u32 v{NV}, {3*CH}, v{AV}
    s_mov_b32 s70, {G.f2u(G.QSCALE)}""")
    for i in range(16):
        a(f"v_mov_b32 v{OA+i}, 0")
    a(f"""s_bfe_u32 s7, s2, 0x50003
    s_lshl_b32 s7, s7, 3
    s_add_u32 s7, s7, s5
    s_cmp_ge_u32 s7, 81
    s_cselect_b32 s48, s{G.P_CIM}, s{G.P_CRE}
    s_cselect_b32 s49, s{G.P_CIM+1}, s{G.P_CRE+1}
    s_cselect_b32 s69, 81, 0
    s_cmp_ge_u32 s7, 162
    s_cselect_b32 s48, s{G.P_WO}, s48
    s_cselect_b32 s49, s{G.P_WO+1}, s49
    s_cselect_b32 s69, 162, s69
    s_sub_u32 s7, s7, s69
    s_lshl_b32 s79, s7, 13
    s_mov_b32 s50, {576*1152}
    s_mov_b32 s51, 0x00020000
    v_lshlrev_b32 v119, 7, v0""")
    a(f"""s_mov_b32 s73, 0xffff0000
    s_cmp_lg_u32 s5, 0
    s_cbranch_scc1 A_w""")
    a(f"s_sleep {OPT.get('asleep0', 127)}")
    mega.wait_init(a, "A_wi")
    a(f"""s_and_b32 s74, s2, 7
    s_mul_i32 s74, s74, 768
    s_add_u32 s74, s74, {G.QF_OFF}
    s_cmp_gt_u32 s3, 10
    s_addc_u32 s6, 0, 0
    s_cmp_gt_u32 s3, 21
    s_addc_u32 s6, s6, 0
    s_lshl_b32 s6, s6, 8
    s_cmp_ge_u32 s3, 10
    s_addc_u32 s7, 0, 0
    s_cmp_ge_u32 s3, 21
    s_addc_u32 s7, s7, 0
    s_lshl_b32 s7, s7, 8
    s_add_u32 s71, s74, s7
    s_add_u32 s74, s74, s6
    v_lshlrev_b32 v14, 2, v0""")
    mega.spin(a, "A_wq", f"buffer_load_dword v15, v14, {W}, s74 offen sc1", 1, lanes=48, sleep=OPT.get("asleep", 4))
    a("s_cmp_eq_u32 s71, s74\n s_cbranch_scc1 A_w")
    mega.spin(a, "A_wr", f"buffer_load_dword v15, v14, {W}, s71 offen sc1", 1, lanes=48, sleep=1)
    a.label("A_w")
    a(f"""s_waitcnt vmcnt(0)
    s_barrier
    s_setprio {3 if OPT.get("pr3", 1) else 1}""")
    stamp(a, 5 if OPT["stamps"] == 4 else 1)
    a(f"""buffer_load_dwordx4 v[{QB}:{QB+3}], v5, {W}, s14 offen sc1
    buffer_load_dword v{QB+4}, v4, {W}, s14 offen sc1""")
    for c in range(4):
        for k in range(3):
            a(dma(c, k))
    a("s_waitcnt vmcnt(12)")
    for q in (QB, QB + 1, QB + 2, QB + 3, QB + 4):
        a(f"""v_lshlrev_b32 v12, 16, v{q}
        v_and_b32 v13, s73, v{q}
        v_mul_f32 v12, s70, v12
        v_mul_f32 v13, s70, v13
        v_cvt_pk_bf16_f32 v{q}, v12, v13""")
    for q in range(1):
        x = QB + 8 * q + 4
        a(f"""v_cndmask_b32 v{x}, v{x}, 0, s[8:9]
        v_mov_b32 v{x+1}, 0
        v_mov_b32 v{x+2}, 0
        v_mov_b32 v{x+3}, v{x}""")
    a(f"s_waitcnt vmcnt({9 if OPT.get('b0', 1) else 6})\n s_barrier")
    stamp(a, 2)
    stampc(a, 5)

    def ad(lo, hi, c, off):
        sl = c & 3
        return (f"v{hi} offset:{off}" if sl == 3 else f"v{lo} offset:{sl * CH + off}")

    def rdK(j):
        return f"ds_read_b128 {vr(KF + 4*(j & 1), 4)}, {ad(AK, NK, j >> 3, (j & 7) * 512)}"

    def rdX(u):
        return f"ds_read_b128 {vr(KX + 4*(u & 1), 4)}, {ad(AX, NX, u >> 1, (u & 1) * 512)}"

    def rdV(j, u):
        return f"ds_read_b128 {vr(VF + 8*(j & 1) + 4*u, 4)}, {ad(AV2 if u else AV, NV2 if u else NV, j >> 3, (j & 7) * G.VT)}"

    def mA(q, j):
        return f"{MF} {vr(S(q, j), 16)}, {vr(KF + 4*(j & 1), 4)}, {vr(QB + 8*q, 4)}, 0"

    def mB(q, j):
        kx = KX + 4 * ((j >> 2) & 1) + 2 * ((j >> 1) & 1)
        return f"{MF8} {vr(S(q, j), 16)}, {vr(kx, 2)}, {vr(QB + 8*q + 4 + 2*(j & 1), 2)}, {vr(S(q, j), 16)}"

    def mP(q, j, u):
        o = vr(OA + 16 * q, 16)
        return f"{MF} {o}, {vr(VF + 8*(j & 1) + 4*u, 4)}, {vr(PP + 8*q + 4*u, 4)}, {o}"

    a(f"""{rdK(0)}
    {rdX(0)}
    {rdK(1)}
    {rdV(0, 0)}
    {rdV(0, 1)}
    s_waitcnt lgkmcnt(3)
    {mA(0, 0)}
    {mB(0, 0)}
    s_waitcnt lgkmcnt(0)
    s_nop 8""")
    a(".p2align 3")
    pat = "A k v0 e e e e P1 v1 x e e e e B d e e c c c c e e P0 e e e e w n c c c c"
    for jj in range(64):
        c8, j8 = divmod(jj, 8)
        last = jj == 63
        s, P = S(0, jj), PP
        ne = nc = 0
        for tok in pat.split():
            if tok == "e":
                a(f"v_exp_f32 v{s+ne}, v{s+ne}")
                ne += 1
            elif tok == "c":
                a(f"v_cvt_pk_bf16_f32 v{P+nc}, v{s+2*nc}, v{s+2*nc+1}")
                nc += 1
            elif tok == "A" and not last:
                a(mA(0, jj + 1))
            elif tok == "B" and not last:
                a(mB(0, jj + 1))
            elif tok == "P1" and jj:
                a(mP(0, jj - 1, 1))
            elif tok == "P0":
                a(mP(0, jj, 0))
            elif tok == "k" and jj + 2 < 64:
                a(rdK(jj + 2))
            elif tok == "v0" and not last:
                a(rdV(jj + 1, 0))
            elif tok == "v1" and not last:
                a(rdV(jj + 1, 1))
            elif tok == "x" and jj % 4 == 0 and jj < 60:
                a(rdX(jj // 4 + 1))
            elif tok == "d" and jj == OPT.get("wpf", 3):
                a("buffer_load_dword v118, v119, s[48:51], s79 offen")
            elif tok == "d" and j8 < 3 and 1 <= c8 <= 4:
                a(dma(c8 + 3, j8))
            elif tok == "w" and not last:
                if j8 == 7 and c8 <= 5:
                    a(f"s_waitcnt vmcnt({3 if c8 <= 4 else 0}) lgkmcnt(0)")
                elif jj == 2 and OPT.get('b0', 1):
                    a("s_waitcnt vmcnt(6) lgkmcnt(0)")
                else:
                    a("s_waitcnt lgkmcnt(0)")
            elif tok == "n" and not last:
                PR = (3, 3, 3, 2, 2, 2, 1, 1) if OPT.get("pr3", 1) else (1,) * 8
                if (j8 == 7 and c8 <= 5) or (jj == 2 and OPT.get('b0', 1)):
                    a("s_barrier")
                    if PR[(j8 + 1) & 7] != PR[j8]:
                        a(f"s_setprio {PR[(j8 + 1) & 7]}\n s_nop 0")
                elif PR[(j8 + 1) & 7] != PR[j8]:
                    a(f"s_setprio {PR[(j8 + 1) & 7]}")
                else:
                    a.lines[-2] = a.lines[-2].replace("v_exp_f32", "v_exp_f32_e64")
    a(f"s_nop 1\n{mP(0, 63, 1)}")
    a.loops = getattr(a, "loops", [])
    stamp(a, 3)
    stampc(a, 6)
    a(f"""s_lshl_b32 s6, s4, 8
    s_lshl_b32 s7, s5, 5
    s_add_u32 s6, s6, s7
    v_add_u32 v4, s6, v1
    v_lshlrev_b32 v4, 4, v4
    v_lshl_add_u32 v5, v2, 15, v4
    s_mul_i32 s12, s3, {3*32768}
    s_add_u32 s12, s12, {G.O_OFF}
    s_add_u32 s13, s12, {2*32768}
    v_mov_b32 v9, 0
    v_mov_b32 v10, 0
    v_mov_b32 v11, 0
    s_mov_b32 s14, {G.f2u(2.0**-60)}
    s_mov_b32 s15, {G.f2u(2.0**60)}
    s_movk_i32 s46, 0x207""")
    a(f"""v_cndmask_b32 v6, v{OA+10}, v{OA+12}, s[8:9]
    v_add_f32 v7, |v{OA}|, |v{OA+1}|""")
    for i in range(2, 10):
        a(f"v_add_f32 v7, v7, |v{OA+i}|")
    a(f"""v_cmp_nle_f32 vcc, s14, v6
    v_cmp_lt_f32 s[68:69], s15, v6
    v_cmp_class_f32 s[70:71], v7, s46
    s_or_b64 vcc, vcc, s[68:69]
    s_or_b64 vcc, vcc, s[70:71]
    {"s_branch K2_slow" if OPT.get("slow") else "s_cbranch_vccnz K2_slow"}""")
    a.label("K2_fin")
    a("v_rcp_f32 v6, v6\n s_nop 0")
    for i in range(10):
        a(f"v_mul_f32 v{OA+i}, v6, v{OA+i}")
    for k in range(5):
        a(f"v_cvt_pk_bf16_f32 v{16+k if k < 4 else 8}, v{OA+2*k}, v{OA+2*k+1}")
    a(f"""buffer_store_dwordx4 v[16:19], v5, {W}, s12 offen sc0 sc1
    s_mov_b64 exec, 0xffffffff
    buffer_store_dwordx4 v[8:11], v4, {W}, s13 offen sc0 sc1
    s_mov_b64 exec, -1
    s_lshl_b32 s74, s4, 9
    s_add_u32 s74, s74, {G.OF_OFF}
    s_mul_i32 s14, s3, 43
    s_lshr_b32 s14, s14, 8
    s_mul_i32 s15, s14, 6
    s_sub_u32 s15, s3, s15
    s_lshl_b32 s6, s4, 2
    s_add_u32 s14, s14, s6""")
    stamp(a, 4)
    ACC, FR, XA, WA = 64, 28, 20, 24
    a("""s_cmp_lt_u32 s5, 4
    s_cbranch_scc1 K2_pc
    s_sub_u32 s6, s5, 4""")
    SP, RP = 13312, 6
    G.srd(a, G.SRD2A, G.P_WO, 576 * 1152)
    a(f"""s_nop 0
    v_lshlrev_b32 v1, 4, v0
    s_lshl_b32 s7, s6, 6""")
    for u in range(2):
        a(f"""v_add_u32 v12, s7, v0
        v_add_u32 v12, {256*u}, v12
        v_min_u32 v12, 431, v12
        v_mul_u32_u24 v13, 5462, v12
        v_lshrrev_b32 v13, 16, v13
        v_mul_u32_u24 v13, {1152 - 192}, v13
        v_lshl_add_u32 v{2+u}, v12, 4, v13""")
    a(f"""s_lshl_b32 s68, s14, 10
    s_lshl_b32 s7, s6, 15
    s_add_u32 s68, s68, s7
    s_add_u32 s68, s68, {G.O_OFF}
    s_mul_i32 s69, s15, 192
    s_lshl_b32 s76, s6, 10
    s_cmp_lt_u32 s6, 2
    s_mov_b32 s70, {0x7f000000}
    s_cselect_b32 s70, {4*32768}, s70
    s_cselect_b32 s71, 1, 0
    s_cmp_lt_u32 s6, 3
    s_cselect_b32 s77, 1, 0
    s_waitcnt vmcnt(0)
    {"s_memrealtime s[86:87]" if OPT["stamps"] == 4 else ""}
    s_barrier
    {"s_memrealtime s[88:89]" if OPT["stamps"] == 4 else ""}
    s_cmp_ge_u32 s3, 24
    s_cbranch_scc1 K2_done""")
    a(f"""s_add_u32 s70, s70, s68
    s_cmp_eq_u32 s77, 0
    s_cselect_b32 s78, {0x7f000000}, 0
    v_add_u32 v3, s78, v3""")

    def slot(mask, here):
        return f"""s_add_u32 s7, s76, {here}
        s_cmp_eq_u32 s{mask}, 0
        s_cselect_b32 m0, {RP*SP}, s7"""

    def issue_w(st):
        base = (st % RP) * SP
        a(f"""s_add_u32 m0, s76, {base + 6144}
        s_add_u32 s72, s69, {36*1152*st}
        buffer_load_dwordx4 v2, s[{G.SRD2A}:{G.SRD2A+3}], s72 offen lds
        {slot(77, base + 6144 + 4096)}
        s_nop 0
        buffer_load_dwordx4 v3, s[{G.SRD2A}:{G.SRD2A+3}], s72 offen lds""")

    def issue_o(st):
        base = (st % RP) * SP
        a(f"""s_add_u32 m0, s76, {base}
        s_add_u32 s72, s68, {6*32768*st}
        buffer_load_dwordx4 v1, {W}, s72 offen sc0 sc1 lds
        {slot(71, base + 4096)}
        s_add_u32 s72, s70, {6*32768*st}
        buffer_load_dwordx4 v1, {W}, s72 offen sc0 sc1 lds""")
    for st in range(4):
        issue_w(st)
    a("s_barrier")
    if OPT["stamps"] == 4:
        a("s_memrealtime s[90:91]")

    def issue_p(st):
        if st >= 4:
            issue_w(st)
        issue_o(st)
    for st in range(4):
        issue_o(st)
    for st in range(16):
        n = (2 * (3 - st) + 4 * st) if st < 4 else 4 * min(3, 15 - st)
        a(f"s_waitcnt vmcnt({n})\n s_barrier")
        if OPT["stamps"] == 4 and st in (0, 5, 15):
            a(f"s_memrealtime s[{94 + 2*(0, 5, 15).index(st)}:{95 + 2*(0, 5, 15).index(st)}]")
        if st + 4 < 16:
            issue_p(st + 4)
    if OPT["stamps"] == 4:
        G.stamp_store(a, 0, 8)
    a("s_endpgm")
    a.label("K2_pc")
    G.srd(a, G.SRDO, G.P_OUT, 2048 * 4608)
    a(f"""v_lshlrev_b32 v{XA}, 4, v1
    v_lshl_add_u32 v{XA}, v2, 10, v{XA}
    v_bfe_u32 v12, v0, 2, 2
    v_and_b32 v13, 3, v0
    v_lshlrev_b32 v13, 3, v13
    v_and_b32 v14, 16, v0
    v_lshl_add_u32 v13, v14, 1, v13
    s_lshl_b32 s7, s5, 6
    s_add_u32 s7, s7, 6144
    v_add_u32 v13, s7, v13
    s_movk_i32 s7, 192""")
    for i, (r0, r1) in enumerate(((0, 8), (16, 18), (26, 34), (30, 38))):
        a(f"""v_mad_u32_u24 v14, v2, {r1 - r0}, v12
        v_add_u32 v14, {r0}, v14
        v_min_u32 v14, 35, v14
        v_mad_u32_u24 v{WA+i}, v14, s7, v13""")
    a(G.out_addr(a, 8192, 0))
    a(f"""s_mul_i32 s6, s14, {64*4608}
    s_mul_i32 s7, s15, 384
    s_add_u32 s6, s6, s7
    s_lshl_b32 s7, s5, 7
    s_add_u32 s12, s6, s7
    s_add_u32 s13, s12, {32*4608}
    s_waitcnt vmcnt(0)
    s_barrier
    s_cmp_lg_u32 s5, 3
    s_cbranch_scc1 K2_pw""")
    a(f"""s_lshl_b32 s6, s3, {OPT.get("osh", 4)}
    v_mov_b32 v14, s6
    v_mov_b32 v15, 1
    s_mov_b64 exec, 1
    buffer_store_dword v15, v14, {W}, s74 offen sc1
    s_mov_b64 exec, -1
    s_cmp_ge_u32 s3, 24
    s_cbranch_scc1 K2_done
    v_lshlrev_b32 v14, {OPT.get("osh", 4)}, v0""")
    mega.spin(a, "K2_pp", f"buffer_load_dword v15, v14, {W}, s74 offen sc1", 1, lanes=32, sleep=OPT.get("osleep", 1))
    a("s_barrier\n s_endpgm")
    a.label("K2_pw")
    a("s_cmp_ge_u32 s3, 24\n s_cbranch_scc1 K2_end\n s_barrier")
    stamp(a, 7)

    def reads_p(ks, b):
        f = FR + 12 * b
        return [f"ds_read_b64_tr_b16 {vr(f, 2)}, v{WA+ks}", f"ds_read_b64_tr_b16 {vr(f+2, 2)}, " + (f"v{WA+ks} offset:768" if ks < 2 else f"v{WA+3}"),
                f"ds_read_b128 {vr(f+4, 4)}, v{XA} offset:{2048*ks}", f"ds_read_b128 {vr(f+8, 4)}, v{XA} offset:{2048*ks+512}"]

    def mfmas_t(n, b, init=True):
        f = FR + 12 * b
        return [f"{MF} {vr(ACC+16*tt, 16)}, {vr(f, 4)}, {vr(f+4+4*tt, 4)}, {vr(ACC+16*tt, 16) if n or not init else 0}" for tt in range(2)]
    G.consumer2(a, 3, reads_p, mfmas_t, lambda ks: [WA + ks] + ([XA, WA + 3] if ks == 2 else []), depth=2, bar_ks=0, per_gap=3, nst=16, stage=SP, ring=RP)
    a("s_nop 10")
    G.out_tiles(a, [(ACC + 16 * tt, 12 + tt, 0) for tt in range(2)])
    a.label("K2_end")
    if OPT["stamps"]:
        a("s_memrealtime s[86:87]")
    G.stamp_store(a, 0, 8)
    a.label("K2_done")
    a("s_endpgm")
    a.label("K2_slow")
    for ps in range(2):
        a("s_mov_b32 s6, 0")
        if ps == 0:
            a("v_mov_b32 v7, 0xff800000")
        else:
            for i in range(16):
                a(f"v_mov_b32 v{OA+i}, 0")
        a.label(f"K2_sl{ps}")
        st = len(a.lines)
        a(f"""s_lshr_b32 s7, s6, 2
        s_mul_i32 s7, s7, {CH}
        s_add_u32 s7, s7, s75
        s_and_b32 s68, s6, 3
        s_mul_i32 s70, s68, {2*G.VT}
        s_add_u32 s70, s70, s7
        s_lshr_b32 s69, s68, 1
        s_lshl_b32 s69, s69, 9
        s_add_u32 s69, s69, s7
        s_bitcmp1_b32 s6, 0
        s_cselect_b32 s71, 8, 0
        s_add_u32 s69, s69, s71
        s_lshl_b32 s68, s68, 10
        s_add_u32 s68, s68, s7
        buffer_load_dwordx4 {vr(KF, 4)}, v{AK}, {W}, s68 offen sc1
        buffer_load_dwordx4 {vr(KF + 4, 4)}, v{AK}, {W}, s68 offen offset:512 sc1
        buffer_load_dwordx2 {vr(KX, 2)}, v{AX}, {W}, s69 offen sc1""")
        if ps:
            for i in range(4):
                a(f"buffer_load_dwordx4 {vr(VF + 4*i, 4)}, v{AV2 if i & 1 else AV}, {W}, s70 offen offset:{(i >> 1)*G.VT} sc1")
        a(f"s_waitcnt vmcnt(0)\n{mA(0, 0)}\n{mA(0, 1)}\n{mB(0, 0)}\n{mB(0, 1)}\n s_nop 15")
        for j in range(2):
            s = S(0, j)
            if ps == 0:
                for i in range(0, 16, 2):
                    a(f"v_max3_f32 v7, v7, v{s+i}, v{s+i+1}")
            else:
                for i in range(16):
                    a(f"v_sub_f32 v{s+i}, v{s+i}, v7")
                for i in range(16):
                    a(f"v_exp_f32 v{s+i}, v{s+i}")
                a("s_nop 0")
                for k in range(8):
                    a(f"v_cvt_pk_bf16_f32 v{PP+k}, v{s+2*k}, v{s+2*k+1}")
                a(f"s_nop 1\n{mP(0, j, 0)}\n{mP(0, j, 1)}")
        a(f"""s_add_u32 s6, s6, 1
        s_cmp_lt_u32 s6, 32
        s_cbranch_scc1 K2_sl{ps}""")
        a.loops.append(a.lines[st:])
        if ps == 0:
            a("""v_mov_b32 v8, v7
            s_nop 1
            v_permlane32_swap_b32 v7, v8
            s_nop 1
            v_max_f32 v7, v7, v8""")
    a(f"""s_nop 15
    v_cndmask_b32 v6, v{OA+10}, v{OA+12}, s[8:9]
    s_branch K2_fin""")


def cstep(a, nr, ni, lr, li, er, ei, xr, xi):
    a(f"""v_fma_f32 v{nr}, v{lr}, v{er}, v{xr}
    v_fma_f32 v{ni}, v{lr}, v{ei}, v{xi}
    v_fma_f32 v{nr}, -v{li}, v{ei}, v{nr}
    v_fma_f32 v{ni}, v{li}, v{er}, v{ni}""")


def ssm(a):
    OPT, PLB = G.OPT, G.PLB
    stamp = G.stamp
    W = f"s[{G.SRDW}:{G.SRDW+3}]"
    ACC, FR, XA, WA = 64, 32, 24, 28
    a.label("K2_ssm")
    WB, WS_ = 32768, 12288
    a(f"""s_sub_u32 s7, s47, 20
    s_and_b32 s4, s6, 1
    s_mul_i32 s4, s4, 3
    s_lshr_b32 s3, s7, 2
    s_add_u32 s4, s4, s3
    s_and_b32 s7, s7, 3
    s_lshr_b32 s3, s6, 1
    s_lshl_b32 s3, s3, 2
    s_add_u32 s3, s3, s7
    s_setprio {OPT.get("prio", 3)}
    s_nop 0""")
    if not OPT.get("pfe", 1):
        pf_setup(a, 47)
        pf_item(a, "s", OPT.get("pfs", 0), 7)
    G.srd(a, G.SRD1, G.P_BX, 2048 * 1152)
    G.srd(a, G.SRD2A, G.P_BRE, 576 * 1152)
    G.srd(a, G.SRD2B, G.P_BIM, 576 * 1152)
    a("s_mov_b32 s6, s5")
    G.rows_voff(a, 6, 1152, 8)
    a(f"""s_mul_i32 s68, s3, {128*1152}
    s_mul_i32 s69, s4, {96*1152}
    s_lshl_b32 s76, s5, 10
    s_and_b32 s77, s5, 3
    s_lshl_b32 s77, s77, 10
    s_lshr_b32 s71, s5, 2
    s_lshl_b32 s70, s71, 5
    s_sub_u32 s70, 64, s70
    s_mul_i32 s70, s70, 1152
    s_add_u32 s70, s70, s69
    s_mul_i32 s6, s4, 3
    s_lshr_b32 s6, s6, 1
    s_and_b32 s7, s3, 1
    s_lshl_b32 s7, s7, 2
    s_add_u32 s6, s6, s7
    s_sub_u32 s7, s6, 9
    s_cmp_ge_u32 s6, 9
    s_cselect_b32 s6, s7, s6
    s_mul_i32 s78, s6, {128 if OPT.get("rots", 0) else 0}""")
    def issue(h, part):
        if h >= 18:
            return []
        xs, d, base = h >> 1, G.SRD2B if h & 1 else G.SRD2A, WB + (h & 3) * WS_
        r = [f"""s_add_u32 m0, s76, {(xs & 1) * 16384 + 8192*j}
            s_add_u32 s7, s68, {128*xs + 64*1152*j}
            buffer_load_dwordx4 v6, s[{G.SRD1}:{G.SRD1+3}], s7 offen lds""" for j in range(2)] if h % 2 == 0 else []
        r.append(f"""s_add_u32 m0, s76, {base}
            s_add_u32 s7, s69, {128*xs}
            buffer_load_dwordx4 v6, s[{d}:{d+3}], s7 offen lds""")
        if part == h & 1:
            r.append(f"""s_add_u32 m0, s77, {base + 8192}
            s_add_u32 s7, s70, {128*xs}
            buffer_load_dwordx4 v6, s[{d}:{d+3}], s7 offen lds""")
        return r
    G.srd(a, G.SRDW, G.P_WS, G.WS_END)
    G.lane_parts(a)
    R0, M0, R1, M1, XF, XA, WA = 64, 80, 96, 112, 32, 60, 28
    a(f"""s_and_b32 s14, s5, 3
    s_mul_i32 s46, s4, 96
    s_lshl_b32 s6, s71, 6
    s_add_u32 s46, s46, s6
    v_add_u32 v3, s46, v1
    v_lshlrev_b32 v3, 1, v3
    s_and_b32 s6, s14, 1
    s_lshl_b32 s6, s6, 6
    s_sub_u32 s6, s6, 128
    s_cmp_eq_u32 s71, 0
    s_cselect_b32 s6, 64, s6
    v_add_u32 v4, s6, v3""")
    for sl in range(2):
        a(f"""global_load_ushort v{32+16*sl}, v{3+sl}, s[{G.P_LRE}:{G.P_LRE+1}]
        global_load_ushort v{33+16*sl}, v{3+sl}, s[{G.P_LIM}:{G.P_LIM+1}]
        global_load_ushort v{34+16*sl}, v{3+sl}, s[{G.P_LDT}:{G.P_LDT+1}]""")
    a(f"""v_bfe_u32 v5, v1, 1, 1
    v_lshrrev_b32 v4, 3, v1
    v_lshl_add_u32 v5, v4, 1, v5
    v_and_b32 v4, 1, v1
    v_lshl_add_u32 v5, v4, 3, v5
    v_and_b32 v4, 4, v1
    v_lshl_add_u32 v5, v4, 2, v5
    s_lshl_b32 s7, s14, 12""")
    G.row_addr(a, XA, 5, "s7", 4)
    a(f"s_mul_i32 s7, s71, {WS_}\n s_add_u32 s7, s7, {WB}")
    G.row_addr(a, WA, 1, "s7", 4)
    a("""s_waitcnt vmcnt(6)
    s_barrier
    s_cmp_lg_u32 s71, 0
    s_cbranch_scc1 S_i1""")
    for part in range(2):
        if part:
            a.label("S_i1")
        for x in issue(0, part) + issue(1, part):
            a(x)
        if not part:
            a("s_branch S_i2")
    a.label("S_i2")
    a(f"s_mov_b32 s12, {G.f2u(G.LOG2E)}\n s_waitcnt vmcnt(5)")
    for sl in range(2):
        p, P = 32 + 16 * sl, 8 + 10 * sl
        a(f"""v_lshlrev_b32 v{p}, 16, v{p}
        v_lshlrev_b32 v{p+1}, 16, v{p+1}
        v_lshlrev_b32 v{p+2}, 16, v{p+2}
        v_mul_f32 v{p+2}, s12, v{p+2}
        v_exp_f32 v{p+2}, v{p+2}
        s_nop 0
        v_cvt_pk_bf16_f32 v{p+2}, v{p+2}, v{p+2}
        v_lshlrev_b32 v{p+2}, 16, v{p+2}
        v_mul_f32 v{p+3}, v{p+2}, v{p}
        v_mul_f32 v{p+2}, v{p+2}, v{p+1}
        v_mul_f32 v{p+3}, s12, v{p+3}
        v_mul_f32 v{p+2}, 0.15915494309189532, v{p+2}
        v_exp_f32 v{p+3}, v{p+3}
        v_fract_f32 v{p+2}, v{p+2}
        v_cos_f32 v{P}, v{p+2}
        v_sin_f32 v{P+1}, v{p+2}
        v_mul_f32 v{p+4}, v{p}, v{p}
        v_mul_f32 v{P}, v{P}, v{p+3}
        v_mul_f32 v{P+1}, v{P+1}, v{p+3}
        v_fma_f32 v{p+4}, v{p+1}, v{p+1}, v{p+4}
        v_rcp_f32 v{p+4}, v{p+4}
        v_add_f32 v{p+5}, -1.0, v{P}
        v_mul_f32 v{P+2}, v{p+5}, v{p}
        v_mul_f32 v{P+3}, v{P+1}, v{p}
        v_add_f32 v{p+4}, v{p+4}, v{p+4}
        v_fma_f32 v{P+2}, v{P+1}, v{p+1}, v{P+2}
        v_fma_f32 v{P+3}, -v{p+5}, v{p+1}, v{P+3}
        v_mul_f32 v{P+2}, v{P+2}, v{p+4}
        v_mul_f32 v{P+3}, v{P+3}, v{p+4}""")
        G.cmul(a, p, p + 1, P, P + 1, P, P + 1)
        G.cmul(a, p + 2, p + 3, p, p + 1, p, p + 1)
        G.cmul(a, P + 4, P + 5, p + 2, p + 3, p + 2, p + 3)
        G.cmul(a, P + 6, P + 7, P + 4, P + 5, P + 4, P + 5)
        G.cmul(a, P + 8, P + 9, P + 6, P + 7, P + 6, P + 7)
    stamp(a, 1)
    a("s_cmp_lg_u32 s71, 0\n s_cbranch_scc1 S_g1")
    XB = 49152
    for part in range(2):
        if part:
            a.label("S_g1")
        tiles = (R0, R1, M1) if part == 0 else (R1, M1, M0)
        FB = (48, M0 if part == 0 else R0)

        def bar(y):
            young = len(issue(y + 1, part))
            a(f"s_waitcnt vmcnt({young})\n s_barrier")
            if OPT["stamps"] == 3 and y in (1, 3, 5, 8, 11, 14, 17):
                k_ = (1, 3, 5, 8, 11, 14, 17).index(y)
                a(f"s_memrealtime s[{86+2*k_}:{87+2*k_}]")
            return issue(y + 2, part)

        def rdB(ks):
            return [f"ds_read_b128 {vr(FB[ks & 1] + 4*ct, 4)}, v{WA+ks} offset:{4096*ct}" for ct in range(3)]
        if part:
            for x in bar(0):
                a(x)
        for st in range(9):
            h = 2 * st + part
            q = bar(h)
            for ks in range(4):
                a(f"ds_read_b128 {vr(XF + 4*ks, 4)}, v{XA+ks}")
            for x in rdB(0):
                a(x)
            for ks in range(4):
                rd = rdB(ks + 1) if ks < 3 else []
                if st < 8:
                    rd += [f"v_add_u32 v{XA+ks}, {(16384 if st % 2 == 0 else -16384) & 0xffffffff}, v{XA+ks}",
                           f"v_add_u32 v{WA+ks}, {(2*WS_ if st % 2 == 0 else -2*WS_) & 0xffffffff}, v{WA+ks}"]
                if ks == 2 and h + 1 < 18:
                    assert not q
                    q = bar(h + 1)
                for ct in range(3):
                    a(f"s_waitcnt lgkmcnt({2 if ks < 3 else 2 - ct})")
                    t = vr(tiles[ct], 16)
                    a(f"{MF} {t}, {vr(XF + 4*ks, 4)}, {vr(FB[ks & 1] + 4*ct, 4)}, {t if st or ks else 0}")
                    if rd:
                        a(rd.pop(0))
                    if q:
                        a(q.pop(0))
                for x in rd:
                    a(x)
        stamp(a, 2)
        a(f"""s_setprio 3
        s_mul_i32 s6, s14, 12288
        v_lshl_add_u32 v7, v0, 4, s6
        s_nop 7
        s_barrier""")
        send = ((M1, 0),) if part == 0 else ((R1, 1), (M1, 2))
        recv = ((M0, 1), (M1, 2)) if part == 0 else ((R0, 0),)
        for reg, k in send:
            for i in range(4):
                a(f"ds_write_b128 v7, {vr(reg + 4*i, 4)} offset:{4096*k + 1024*i}")
        a("s_waitcnt lgkmcnt(0)\n s_barrier")
        for reg, k in recv:
            for i in range(4):
                a(f"ds_read_b128 {vr(reg + 4*i, 4)}, v7 offset:{4096*k + 1024*i}")
        if not part:
            a("s_branch S_g2")
    a.label("S_g2")

    def pk(d, l, hi, e, x, neg=False):
        return (f"v_pk_fma_f32 {vr(d, 2)}, {vr(l, 2)}, {vr(e, 2)}, {vr(x, 2)} op_sel:[{hi},0,0] op_sel_hi:[{hi},1,1]"
                + (" neg_lo:[1,0,0] neg_hi:[1,0,0]" if neg else ""))

    def pstep(L, nr, ni, er, ei, xr, xi):
        a("\n".join([pk(nr, L, 0, er, xr), pk(ni, L, 0, ei, xi), pk(nr, L, 1, ei, nr, True), pk(ni, L, 1, er, ni)]))
    G.srd(a, mega.SRDD, G.P_DBG, 256)
    a(f"""v_lshlrev_b32 v3, 3, v1
    s_lshl_b32 s6, s71, 11
    s_add_u32 s6, s6, {XB}
    v_add_u32 v4, s6, v3
    s_lshl_b32 s6, s14, 8
    v_add_u32 v5, s6, v4
    v_mov_b32 v62, 0
    buffer_load_dword v63, v62, s[{mega.SRDD}:{mega.SRDD+3}], 0 offen offset:132 sc1
    s_waitcnt lgkmcnt(0)""")
    for sl in range(2):
        P, XR, XI, K = 8 + 10 * sl, (R0, R1)[sl], (M0, M1)[sl], 32 + 8 * sl
        if sl:
            a("s_cmp_lg_u32 s71, 0\n s_cbranch_scc1 S_p1")
        e = (XR, XI)
        for s_ in range(1, 8):
            n_ = (K, K + 2) if s_ & 1 else (48, 50)
            pstep(P, n_[0], n_[1], e[0], e[1], XR + 2 * s_, XI + 2 * s_)
            e = n_
        cstep(a, 48, 49, P + 4, P + 5, K, K + 2, K + 1, K + 3)
        a(f"""v_mov_b32 v{K+4}, v48
        v_mov_b32 v{K+5}, v49
        s_nop 1
        v_permlane32_swap_b32 v{K+4}, v48
        v_permlane32_swap_b32 v{K+5}, v49
        s_nop 1""")
        cstep(a, 50, 51, P + 6, P + 7, K + 4, K + 5, 48, 49)
        a(f"ds_write_b64 v5, v[50:51] offset:{1024*sl}")
    a.label("S_p1")
    a(f"""s_waitcnt vmcnt(0) lgkmcnt(0)
    v_readfirstlane_b32 s12, v63
    s_barrier
    s_lshl_b32 s6, 1, s5
    s_and_b32 s6, s6, 0x70
    s_cbranch_scc0 S_wt
    s_cmp_lg_u32 s5, 6
    s_cselect_b64 vcc, -1, 0
    s_lshl_b32 s15, s14, 10
    s_add_u32 s6, s15, {XB}
    v_add_u32 v7, s6, v3
    ds_read_b64 v[48:49], v7
    ds_read_b64 v[50:51], v7 offset:256
    ds_read_b64 v[52:53], v7 offset:512
    ds_read_b64 v[54:55], v7 offset:768
    v_cndmask_b32 v28, v16, v26, vcc
    v_cndmask_b32 v29, v17, v27, vcc
    s_lshr_b32 s15, s15, 2
    s_mul_i32 s6, s4, 768
    s_add_u32 s78, s6, s15
    s_add_u32 s78, s78, {G.ECH_OFF}
    s_mul_i32 s13, s3, 4608
    s_add_u32 s13, s13, s78""")
    G.cmul(a, 56, 57, 28, 29, 28, 29)
    G.cmul(a, 30, 31, 56, 57, 56, 57)
    a("""s_cmp_ge_u32 s12, 16
    s_cbranch_scc1 S_ci
    v_mov_b32 v60, v14
    v_mov_b32 v61, v15""")
    mega.wait_init(a, "S_wi")
    a("v_mov_b32 v14, v60\n v_mov_b32 v15, v61")
    a.label("S_ci")
    a("s_waitcnt lgkmcnt(0)")
    for k in range(1, 4):
        cstep(a, 48 + 2 * k, 49 + 2 * k, 28, 29, 46 + 2 * k, 47 + 2 * k, 48 + 2 * k, 49 + 2 * k)
    a(f"""v_min_u32 v54, -2, v54
    v_min_u32 v55, -2, v55
    s_mov_b64 exec, 0xffffffff
    buffer_store_dwordx2 v[54:55], v3, {W}, s13 offen sc0 sc1
    s_mov_b64 exec, -1
    v_mov_b32 v96, 0
    v_mov_b32 v97, 0
    v_mov_b32 v46, 0
    v_mov_b32 v47, 0
    s_mov_b32 s12, 0
    s_mov_b32 s79, s3""")
    EB, NB = 98, 15
    a.label("K2_poll")
    a("s_mov_b32 s15, s78")
    for c in range(NB):
        a(f"""s_cmp_le_u32 s79, {c}
        s_cbranch_scc1 K2_ld
        buffer_load_dwordx2 v[{EB+2*c}:{EB+2*c+1}], v3, {W}, s15 offen sc0 sc1
        s_add_u32 s15, s15, 4608""")
    a.label("K2_ld")
    a("v_mov_b32 v62, 0\n s_waitcnt vmcnt(0)")
    for c in range(NB):
        a(f"""s_cmp_le_u32 s79, {c}
        s_cbranch_scc1 K2_ck
        v_max3_u32 v62, v62, v{EB+2*c}, v{EB+2*c+1}""")
    a.label("K2_ck")
    a(f"""v_cmp_eq_u32 vcc, -1, v62
    s_add_u32 s12, s12, 1
    s_cbranch_vccz K2_got
    s_sleep {OPT.get("psleep", 2)}
    s_cmp_lt_u32 s12, 0x40000
    s_cbranch_scc1 K2_poll""")
    a.label("K2_got")
    for c in range(NB):
        a(f"s_cmp_le_u32 s79, {c}\n s_cbranch_scc1 K2_h{c}")
        cstep(a, EB + 2 * c, EB + 2 * c + 1, 30, 31, EB + 2 * c - 2, EB + 2 * c - 1, EB + 2 * c, EB + 2 * c + 1)
    a(f"""v_mov_b32 v46, v{EB+2*NB-2}
    v_mov_b32 v47, v{EB+2*NB-1}
    s_branch K2_h0""")
    for c in range(NB - 1, 0, -1):
        a.label(f"K2_h{c}")
        a(f"v_mov_b32 v46, v{EB+2*c-2}\n v_mov_b32 v47, v{EB+2*c-1}")
        if c > 1:
            a("s_branch K2_h0")
    a.label("K2_h0")
    a(f"ds_write_b64 v7, v[46:47] offset:768\n s_waitcnt lgkmcnt(0)")
    a.label("S_wt")
    a(f"""s_barrier
    v_mul_u32_u24 v6, {2*PLB}, v2
    v_lshl_add_u32 v6, v1, 4, v6
    s_lshl_b32 s75, s3, 2
    s_add_u32 s75, s75, s14
    s_mul_i32 s75, s75, {4*PLB}
    s_lshl_b32 s6, s46, 4
    s_add_u32 s75, s75, s6
    s_add_u32 s75, s75, {G.XT_OFF}""")
    stamp(a, 3)
    for sl in range(2):
        P, XR, XI, K = 8 + 10 * sl, (R0, R1)[sl], (M0, M1)[sl], 32 + 8 * sl
        if sl:
            a("s_cmp_lg_u32 s71, 0\n s_cbranch_scc1 S_p2")
        a(f"""ds_read_b64 v[48:49], v4 offset:{1024*sl + 768}
        ds_read_b64 v[50:51], v4 offset:{1024*sl}
        ds_read_b64 v[52:53], v4 offset:{1024*sl + 256}
        ds_read_b64 v[54:55], v4 offset:{1024*sl + 512}
        s_waitcnt lgkmcnt(0)""")
        for k in range(3):
            a(f"s_cmp_le_u32 s14, {k}\n s_cbranch_scc1 S_c{sl}")
            cstep(a, 50 + 2 * k, 51 + 2 * k, P + 8, P + 9, 48, 49, 50 + 2 * k, 51 + 2 * k)
            a(f"v_mov_b32 v48, v{50+2*k}\n v_mov_b32 v49, v{51+2*k}")
        a.label(f"S_c{sl}")
        cstep(a, 50, 51, P + 6, P + 7, 48, 49, K + 4, K + 5)
        a("v_cndmask_b32 v28, v48, v50, s[8:9]\n v_cndmask_b32 v30, v49, v51, s[8:9]")
        cstep(a, 29, 31, P + 4, P + 5, 28, 30, K, K + 2)
        g = (28, 30)
        HO = 48 if sl == 0 else R0
        for s_ in range(8):
            nr, ni = XR + 2 * s_, XI + 2 * s_
            pstep(P, nr, ni, g[0], g[1], nr, ni)
            o = K if s_ % 2 == 0 else K + 4
            a(f"""v_pk_mul_f32 {vr(o, 2)}, {vr(P+2, 2)}, {vr(nr, 2)} op_sel:[0,0] op_sel_hi:[0,1]
            v_pk_mul_f32 {vr(o+2, 2)}, {vr(P+2, 2)}, {vr(ni, 2)} op_sel:[0,0] op_sel_hi:[0,1] neg_lo:[1,0] neg_hi:[1,0]
            {pk(o, P+2, 1, ni, o, True)}
            {pk(o+2, P+2, 1, nr, o+2, True)}""")
            if s_ & 1:
                k = s_ >> 1
                for j in range(4):
                    a(f"v_cvt_pk_bf16_f32 v{HO+4*j+k}, v{K+j}, v{K+4+j}")
            g = (nr, ni)
        for j in range(4):
            a(f"""s_add_u32 s6, s75, {(j & 1)*PLB + (j >> 1)*576*16 + 512*sl}
            buffer_store_dwordx4 {vr(HO+4*j, 4)}, v6, {W}, s6 offen sc0 sc1""")
    a.label("S_p2")
    stamp(a, 4)
    a(f"""s_lshl_b32 s74, s3, 7
    s_lshl_b32 s6, s4, 2
    s_add_u32 s74, s74, s6
    s_add_u32 s74, s74, {G.FLG_OFF}
    v_mov_b32 v14, 0
    v_mov_b32 v15, 1
    s_waitcnt vmcnt(0)
    s_barrier
    s_cmp_lg_u32 s5, 0
    s_cbranch_scc1 G2_end
    s_mov_b64 exec, 1
    buffer_store_dword v15, v14, {W}, s74 offen sc1""")
    if OPT["stamps"] == 4:
        a("s_memrealtime s[94:95]")
    a("s_branch G2_end")
    a.label("G2x")
    a("s_mov_b64 exec, -1")
    a.label("G2")
    XA, WA, FR = 20, 24, 28
    S3 = 24576
    G.srd(a, G.SRDW, G.P_WS, G.WS_END)
    a(f"""s_cmp_ge_u32 s47, 18
    s_cbranch_scc1 G2_end
    s_setprio 3
    s_and_b32 s6, s2, 7
    s_lshl_b32 s3, s6, 1
    s_and_b32 s7, s47, 1
    s_add_u32 s3, s3, s7
    s_lshr_b32 s4, s47, 1
    s_cmp_lt_u32 s5, 4
    s_cbranch_scc1 G2_c""")
    G.srd(a, G.SRD2A, G.P_CRE, 576 * 1152)
    G.srd(a, G.SRD2B, G.P_CIM, 576 * 1152)
    a("s_sub_u32 s6, s5, 4")
    G.rows_voff(a, 1, 1152, 8)
    a(f"""s_mul_i32 s69, s4, {64*1152}
    s_lshl_b32 s76, s6, 10
    s_lshl_b32 s77, s6, 11
    v_lshrrev_b32 v8, 3, v0
    v_mul_u32_u24 v8, {PLB}, v8
    v_lshrrev_b32 v9, 2, v0
    v_and_b32 v9, 4, v9
    v_and_b32 v10, 7, v0
    v_xor_b32 v9, v9, v10
    s_lshl_b32 s7, s6, 3
    v_add_u32 v9, s7, v9
    v_lshl_add_u32 v4, v9, 4, v8
    s_mul_i32 s68, s3, {16*PLB}
    s_add_u32 s68, s68, {G.XT_OFF}
    s_cmp_lg_u32 s5, 4
    s_cbranch_scc1 G2_l""")
    mega.wait_init(a, "G2_wi")
    a(f"""s_lshl_b32 s74, s3, 7
    s_add_u32 s74, s74, {G.FLG_OFF}
    v_lshlrev_b32 v14, 2, v0""")
    mega.spin(a, "G2_p", f"buffer_load_dword v15, v14, {W}, s74 offen sc1", 1, lanes=6, sleep=OPT.get("gsleep", 8))
    a.label("G2_l")
    a("s_waitcnt vmcnt(0)\n s_barrier")

    def issue_r(st):
        base = (st % 3) * S3
        kb, im = st >> 1, st & 1
        d = G.SRD2B if im else G.SRD2A
        for j in range(2):
            a(f"""s_add_u32 m0, s76, {base + 16384 + 4096*j}
            s_add_u32 s7, s69, {32*1152*j + 128*kb}
            buffer_load_dwordx4 v1, s[{d}:{d+3}], s7 offen lds""")
        for j in range(2):
            for hf in range(2):
                a(f"""s_add_u32 m0, s77, {base + 8192*j + 1024*hf}
                s_add_u32 s7, s68, {(576*im + 64*kb + 32*j) * 16 + 8*PLB*hf}
                buffer_load_dwordx4 v4, {W}, s7 offen sc0 sc1 lds""")
    tail_loader(a, 18, issue_r, per=6, end=False)
    G.stamp_store(a, 0, 8)
    a("s_endpgm")
    a.label("G2_c")
    G.lane_parts(a)
    a(f"""s_and_b32 s14, s5, 1
    s_lshr_b32 s15, s5, 1
    s_lshl_b32 s79, s3, 1
    s_add_u32 s79, s79, s14
    s_lshl_b32 s46, s4, 1
    s_add_u32 s46, s46, s15
    s_lshl_b32 s46, s46, 5
    v_lshlrev_b32 v3, 3, v2
    s_lshl_b32 s6, s46, 1
    v_add_u32 v3, s6, v3
    s_lshl_b32 s6, s79, 6
    v_add_u32 v4, s6, v1
    v_mul_u32_u24 v4, 1152, v4
    v_add_u32 v4, v4, v3
    v_add_u32 v5, {32*1152}, v4""")
    for i in range(4):
        a(f"global_load_dwordx2 v[{96+2*i}:{97+2*i}], v3, s[{G.P_DSK}:{G.P_DSK+1}] offset:{16*i}")
    for tt in range(2):
        for i in range(4):
            a(f"global_load_dwordx2 v[{104+8*tt+2*i}:{105+8*tt+2*i}], v{4+tt}, s[{G.P_BX}:{G.P_BX+1}] offset:{16*i}")
    G.srd(a, G.SRDO, G.P_OUT, 2048 * 4608)
    a(f"""v_bfe_u32 v6, v0, 4, 1
    v_mul_u32_u24 v6, 320, v6
    v_lshl_add_u32 v6, v2, 11, v6
    s_lshl_b32 s7, s14, 10
    v_add_u32 v6, s7, v6
    v_and_b32 v7, 2, v0
    v_lshl_add_u32 v6, v7, 6, v6
    v_and_b32 v7, 12, v0
    v_lshl_add_u32 v6, v7, 2, v6
    v_and_b32 v7, 1, v0
    v_lshl_add_u32 v{WA}, v7, 3, v6
    v_xor_b32 v{WA+1}, 64, v{WA}
    s_lshl_b32 s7, s15, 12
    s_add_u32 s7, s7, 16384""")
    G.row_addr(a, XA, 1, "s7", 8)
    a(G.out_addr(a, 8192, 0).replace("s_add_u32 s7, s7, 0", f"s_cmp_eq_u32 s5, 3\n s_cselect_b32 s7, {3*S3}, s7"))
    a(f"""s_mul_i32 s6, s79, {64*4608}
    s_lshl_b32 s7, s46, 2
    s_add_u32 s6, s6, s7
    s_add_u32 s12, s6, 2304
    s_add_u32 s13, s12, {32*4608}
    s_mov_b32 s14, 0xffff0000
    s_waitcnt vmcnt(0)""")
    for k in range(8):
        a(f"v_lshlrev_b32 v{32+2*k}, 16, v{96+k}\n v_and_b32 v{33+2*k}, s14, v{96+k}")
    for tt in range(2):
        for k in range(8):
            A = ACC + 16 * tt + 2 * k
            a(f"""v_lshlrev_b32 v{A}, 16, v{104+8*tt+k}
            v_and_b32 v{A+1}, s14, v{104+8*tt+k}
            v_mul_f32 v{A}, v{A}, v{32+2*k}
            v_mul_f32 v{A+1}, v{A+1}, v{33+2*k}""")
    a(f"s_setprio {OPT.get('prio3', 0)}\n s_barrier")
    stamp(a, 5)

    def reads_r(ks, b):
        f = FR + 12 * b
        r = [f"ds_read_b128 {vr(f, 4)}, v{XA+ks}"]
        for tt in range(2):
            for e in range(2):
                r.append(f"ds_read_b64_tr_b16 {vr(f+4+4*tt+2*e, 2)}, v{WA+e} offset:{4096*ks+512*tt}")
        return r

    def mfmas_r(n, b):
        f = FR + 12 * b
        return [f"{MF} {vr(ACC+16*tt, 16)}, {vr(f, 4)}, {vr(f+4+4*tt, 4)}, {vr(ACC+16*tt, 16)}" for tt in range(2)]
    G.consumer2(a, 4, reads_r, mfmas_r, lambda ks: [XA + ks] + ([WA, WA + 1] if ks == 3 else []), depth=2, bar_ks=2, per_gap=3, nst=18, stage=S3, ring=3,
                pre_bar=lambda st: "s_waitcnt lgkmcnt(0)" + (f"\n s_setprio {OPT.get('g2p', 2)}" if st == OPT.get("g2hi", 12) else ""))
    stamp(a, 6)
    a("s_setprio 3\n s_nop 9")
    G.out_tiles(a, [(ACC + 16 * tt, 12 + tt, 0) for tt in range(2)])
    a.label("G2_end")
    stamp(a, 7)
    G.stamp_store(a, 0, 8)
    a.label("K2_last")
    a("s_endpgm")
```

```python
import gen as G
from asmlib import Asm, vr

MF = "v_mfma_f32_32x32x16_bf16"
MF8 = "v_mfma_f32_32x32x8bf16_1k"
OA, PP, KF, KX, VF, QB, AK, AX, AV, NK, NX, NV = 48, 64, 72, 80, 88, 104, 112, 113, 114, 115, 116, 117


AV2, NV2 = 122, 123


def S(q, j):
    return 16 + 16 * (j & 1)


def k2(a):
    a.label("k2_kernel")
    G.stamp(a, 0)
    a("""s_cmp_ge_u32 s2, 448
    s_cbranch_scc1 K2_done""")
    G.load_args(a)
    a("""v_lshrrev_b32 v1, 6, v0
    v_and_b32 v0, 63, v0
    s_cmp_ge_u32 s2, 256
    v_readfirstlane_b32 s5, v1
    s_cbranch_scc1 K2_ssm""")
    attention(a)
    ssm(a)


ST2 = 20480


def tail_loader(a, nst, issue, per=5, pre=2, end=True):
    for st in range(pre):
        issue(st)
    for st in range(nst):
        a(f"s_waitcnt vmcnt({per * min(pre - 1, nst - 1 - st)})\n s_barrier")
        if st + pre < nst:
            issue(st + pre)
    if end:
        a("s_endpgm")


def poll(a, tag, off, target, sleep=2):
    W = f"s[{G.SRDW}:{G.SRDW+3}]"
    a(f"s_mov_b64 exec, 1\n v_mov_b32 v14, 0\n s_mov_b32 s72, 0")
    a.label(tag)
    a(f"""buffer_load_dword v15, v14, {W}, s{off} offen sc0 sc1
    s_waitcnt vmcnt(0)
    v_readfirstlane_b32 s73, v15
    s_add_u32 s72, s72, 1
    s_cmp_ge_u32 s73, {target}
    s_cbranch_scc1 {tag}_ok
    s_sleep {sleep}
    s_cmp_lt_u32 s72, 0x100000
    s_cbranch_scc1 {tag}""")
    a.label(tag + "_ok")
    a("s_mov_b64 exec, -1")


def arrive(a, off):
    W = f"s[{G.SRDW}:{G.SRDW+3}]"
    a(f"""s_mov_b64 exec, 1
    v_mov_b32 v14, 0
    v_mov_b32 v15, 1
    buffer_atomic_add v15, v14, {W}, s{off} offen sc1
    s_mov_b64 exec, -1""")


def pf_item(a, tag, add, dummy):
    SRD1, SRD2A = G.SRD1, G.SRD2A
    a(f"""s_add_u32 s13, s12, {add}
    s_mul_i32 s14, s13, 2850
    s_lshr_b32 s14, s14, 16
    s_mul_i32 s15, s14, 23
    s_sub_u32 s15, s13, s15
    s_cmp_ge_u32 s13, 207
    s_cbranch_scc1 P_n{tag}
    s_cmp_lt_u32 s15, 8
    s_cbranch_scc0 P_w{tag}
    s_lshr_b32 s68, s6, 1
    s_lshl_b32 s68, s68, 3
    s_add_u32 s15, s15, s68
    s_mul_i32 s15, s15, {64*1152}
    s_lshl_b32 s14, s14, 7
    s_add_u32 s15, s15, s14
    buffer_load_dword v{dummy}, v1, s[{SRD1}:{SRD1+3}], s15 offen
    s_branch P_n{tag}""")
    a.label(f"P_w{tag}")
    a(f"""s_and_b32 s69, s6, 1
    s_mul_i32 s69, s69, 15
    s_add_u32 s15, s15, s69
    s_sub_u32 s15, s15, 8
    s_mul_i32 s14, s14, {64*3456}
    s_cmp_lt_u32 s15, 27
    s_cselect_b32 s14, s14, {0x7f000000}
    s_lshl_b32 s15, s15, 7
    s_add_u32 s15, s15, s14
    buffer_load_dword v{dummy}, v2, s[{SRD2A}:{SRD2A+3}], s15 offen""")
    a.label(f"P_n{tag}")


def pf_setup(a, ireg, first=20):
    a(f"""s_sub_u32 s12, s{ireg}, {first}
    s_lshl_b32 s12, s12, 3
    s_add_u32 s12, s12, s5
    v_mul_u32_u24 v1, 1152, v0
    v_mul_u32_u24 v2, 3456, v0
    s_waitcnt lgkmcnt(0)""")
    G.srd(a, G.SRD1, G.P_AX, 2048 * 1152)
    G.srd(a, G.SRD2A, G.P_WQKV, 576 * 3456)


def warm_mall(a):
    D = G.SRD2B
    a(f"""s_lshl_b32 s12, s5, 8
    s_add_u32 s12, s12, s2
    s_sub_u32 s12, s12, 256
    v_lshlrev_b32 v3, 7, v0
    s_mov_b32 s{D+3}, 0x00020000
    s_waitcnt lgkmcnt(0)
    s_mov_b64 s[{D}:{D+1}], s[{G.P_AX}:{G.P_AX+1}]
    s_mov_b32 s{D+2}, {2048*1152}
    s_mov_b32 s13, 0""")
    for first, p, n in ((576, G.P_WQKV, 576 * 3456), (1062, G.P_BX, 2048 * 1152), (1638, G.P_BRE, 576 * 1152), (1800, G.P_BIM, 576 * 1152)):
        a(f"""s_cmp_ge_u32 s12, {first}
        s_cselect_b32 s{D}, s{p}, s{D}
        s_cselect_b32 s{D+1}, s{p+1}, s{D+1}
        s_cselect_b32 s{D+2}, {n}, s{D+2}
        s_cselect_b32 s13, {first}, s13""")
    a(f"""s_sub_u32 s12, s12, s13
    s_lshl_b32 s12, s12, 12
    s_mov_b64 exec, 0xffffffff
    buffer_load_dword v118, v3, s[{D}:{D+3}], s12 offen
    s_mov_b64 exec, -1""")


def prefetch_att(a):
    SRD1 = G.SRD1
    a("""s_bfe_u32 s7, s2, 0x50003
    s_cmp_lt_u32 s7, 20
    s_cbranch_scc1 P_x""")
    pf_setup(a, 7)
    if G.OPT.get("pf1", 1):
        if not G.OPT.get("pfe", 1):
            pf_item(a, "a", 96 + G.OPT.get("pfs", 0), 118)
        if G.OPT.get("pfs", 0) < 15:
            pf_item(a, "b", 192 + G.OPT.get("pfs", 0), 118)
    if G.OPT.get("pfc", 2) == 1:
        a("s_getpc_b64 s[14:15]")
        a.label("K1_pc")
        a(f"""s_lshl_b32 s13, s12, 10
        s_sub_u32 s14, s14, K1_pc-{mega.NAME}
        s_subb_u32 s15, s15, 0
        v_and_b32 v10, 7, v0
        v_lshl_add_u32 v10, v10, 7, s13
        v_min_u32 v10, K2_last-{mega.NAME}, v10
        v_mov_b32 v11, s15
        v_add_co_u32 v10, vcc, s14, v10
        s_nop 1
        v_addc_co_u32 v11, vcc, 0, v11, vcc
        global_load_dword v118, v[10:11], off""")
    a(f"""s_lshr_b32 s68, s6, 1
    s_mul_i32 s68, s68, {512*1152}
    s_and_b32 s71, s6, 1
    s_mul_i32 s71, s71, {288*1152}
    v_min_u32 v2, 31, v0
    v_mul_u32_u24 v2, 1152, v2""")
    for k in range(2 if G.OPT.get("pf2", 1) else 0):
        if G.OPT.get("pfp", 2) > k:
            a("s_waitcnt vmcnt(0)")
        a(f"""s_add_u32 s13, s12, {96*k}
        s_mul_i32 s14, s13, 3641
        s_lshr_b32 s14, s14, 16
        s_mul_i32 s15, s14, 18
        s_sub_u32 s15, s13, s15
        s_lshl_b32 s14, s14, 7
        s_cmp_ge_u32 s13, 162
        s_cbranch_scc1 P_x
        s_cmp_lt_u32 s15, 13
        s_cselect_b32 s{SRD1}, s{G.P_BRE}, s{G.P_BIM}
        s_cselect_b32 s{SRD1+1}, s{G.P_BRE+1}, s{G.P_BIM+1}
        s_cselect_b32 s69, 8, 13
        s_mov_b32 s{SRD1+2}, {576*1152}
        s_mov_b32 s70, s71
        s_cmp_lt_u32 s15, 8
        s_cselect_b32 s{SRD1}, s{G.P_BX}, s{SRD1}
        s_cselect_b32 s{SRD1+1}, s{G.P_BX+1}, s{SRD1+1}
        s_cselect_b32 s{SRD1+2}, {2048*1152}, s{SRD1+2}
        s_cselect_b32 s69, 0, s69
        s_cselect_b32 s70, s68, s70
        s_cmp_eq_u32 s15, 12
        s_cselect_b64 vcc, -1, 0
        s_cmp_eq_u32 s15, 17
        s_cselect_b64 vcc, -1, vcc
        s_sub_u32 s15, s15, s69
        s_mul_i32 s15, s15, {64*1152}
        s_add_u32 s15, s15, s14
        s_add_u32 s15, s15, s70
        v_cndmask_b32 v3, v1, v2, vcc
        buffer_load_dword v118, v3, s[{SRD1}:{SRD1+3}], s15 offen""")
    a.label("P_x")


def attention(a):
    OPT, IMG, CH, VG = G.OPT, G.IMG, G.CH, G.VG
    stamp, stampc = G.stamp, G.stampc
    W = f"s[{G.SRDW}:{G.SRDW+3}]"
    a.label("A_go")
    if OPT.get("wm", 0):
        warm_mall(a)
    prefetch_att(a)
    a(f"""s_and_b32 s3, s2, 7
    s_lshl_b32 s3, s3, 2
    s_bfe_u32 s6, s2, 0x20003
    s_add_u32 s3, s3, s6
    s_bfe_u32 s4, s2, 0x30005
    s_mul_i32 s75, s3, {IMG}
    s_lshl_b32 s13, s5, 10
    s_add_u32 s78, s5, 16
    s_min_u32 s78, s78, 18
    s_lshl_b32 s78, s78, 10
    s_mov_b32 s12, s75
    s_mov_b32 s76, 0
    v_lshlrev_b32 v3, 4, v0""")
    G.lane_parts(a)
    a(f"""s_mul_i32 s14, s4, {CH}
    s_add_u32 s14, s14, s75
    s_add_u32 s14, s14, {G.Q_OFF}
    v_lshlrev_b32 v4, 4, v1
    v_lshl_add_u32 v5, v2, 12, v4
    s_lshl_b32 s6, s5, 9
    v_add_u32 v5, s6, v5
    s_lshr_b32 s6, s5, 2
    s_lshl_b32 s6, s6, 9
    s_and_b32 s7, s5, 3
    s_lshl_b32 s7, s7, 2
    s_add_u32 s6, s6, s7
    s_add_u32 s6, s6, 8192
    v_add_u32 v4, s6, v4
    v_add_u32 v6, s13, v3
    v_add_u32 v7, s78, v3
    s_waitcnt lgkmcnt(0)""")
    G.srd(a, G.SRDW, G.P_WS, G.WS_END)

    def dma(c, k):
        sl, g = (c & 3) * CH, c * CH
        if k < 2:
            return f"""s_add_u32 m0, s13, {sl + 8192*k}
            s_add_u32 s7, s75, {g + 8192*k}
            buffer_load_dwordx4 v6, {W}, s7 offen sc1 lds"""
        return f"""s_add_u32 m0, s78, {sl}
        s_add_u32 s7, s75, {g}
        buffer_load_dwordx4 v7, {W}, s7 offen sc1 lds"""

    a(f"""v_and_b32 v11, 19, v1
    v_and_b32 v12, 4, v1
    v_lshl_add_u32 v11, v12, 1, v11
    v_and_b32 v12, 8, v1
    v_lshrrev_b32 v12, 1, v12
    v_add_u32 v11, v11, v12
    v_lshlrev_b32 v{AX}, 4, v11
    v_lshl_add_u32 v{AK}, v2, 12, v{AX}
    v_add_u32 v{AX}, 8192, v{AX}""")
    a(f"""v_min_u32 v12, 19, v1
    v_cmp_gt_u32 vcc, 16, v1
    v_cmp_eq_u32 s[70:71], 28, v1
    s_nop 0
    v_cndmask_b32 v12, v12, v11, vcc
    s_nop 0
    v_cndmask_b32 v12, v12, 18, s[70:71]
    v_bfe_u32 v13, v12, 2, 2
    v_xor_b32 v13, v13, v2
    v_lshlrev_b32 v13, 4, v13
    v_lshl_add_u32 v{AV}, v12, 6, v13
    v_add_u32 v{AV}, 9216, v{AV}
    v_xor_b32 v{AV2}, 32, v{AV}
    v_add_u32 v{NV2}, {3*CH}, v{AV2}
    v_add_u32 v{NK}, {3*CH}, v{AK}
    v_add_u32 v{NX}, {3*CH}, v{AX}
    v_add_u32 v{NV}, {3*CH}, v{AV}
    s_mov_b32 s70, {G.f2u(G.QSCALE)}""")
    for i in range(16):
        a(f"v_mov_b32 v{OA+i}, 0")
    a(f"""s_bfe_u32 s7, s2, 0x50003
    s_lshl_b32 s7, s7, 3
    s_add_u32 s7, s7, s5
    s_cmp_ge_u32 s7, 81
    s_cselect_b32 s48, s{G.P_CIM}, s{G.P_CRE}
    s_cselect_b32 s49, s{G.P_CIM+1}, s{G.P_CRE+1}
    s_cselect_b32 s69, 81, 0
    s_cmp_ge_u32 s7, 162
    s_cselect_b32 s48, s{G.P_WO}, s48
    s_cselect_b32 s49, s{G.P_WO+1}, s49
    s_cselect_b32 s69, 162, s69
    s_sub_u32 s7, s7, s69
    s_lshl_b32 s79, s7, 13
    s_mov_b32 s50, {576*1152}
    s_mov_b32 s51, 0x00020000
    v_lshlrev_b32 v119, 7, v0""")
    G.srd(a, G.SRD2A, G.P_WO, 576 * 1152)
    a(f"""s_lshl_b32 s7, s5, 6
    v_add_u32 v12, s7, v0
    v_min_u32 v12, 431, v12
    v_mul_u32_u24 v13, 5462, v12
    v_lshrrev_b32 v13, 16, v13
    v_mul_u32_u24 v13, {1152 - 192}, v13
    v_lshl_add_u32 v124, v12, 4, v13
    s_mul_i32 s6, s3, 43
    s_lshr_b32 s6, s6, 8
    s_mul_i32 s6, s6, 6
    s_sub_u32 s6, s3, s6
    s_mul_i32 s77, s6, 192
    s_and_b32 s6, s3, 3
    s_mul_i32 s6, s6, {4*36*1152 if OPT.get("rot3", 0) else 0}
    s_add_u32 s77, s77, s6
    s_cmp_lt_u32 s5, 7
    s_cselect_b32 s76, 1, 0
    s_cmp_lt_u32 s3, 24
    s_cselect_b32 s76, s76, 0""")
    a(f"""s_mov_b32 s73, 0xffff0000
    s_cmp_lg_u32 s5, 0
    s_cbranch_scc1 A_w""")
    a(f"s_sleep {OPT.get('asleep0', 127)}")
    mega.wait_init(a, "A_wi")
    a(f"""s_and_b32 s74, s2, 7
    s_mul_i32 s74, s74, 768
    s_add_u32 s74, s74, {G.QF_OFF}
    s_cmp_gt_u32 s3, 10
    s_addc_u32 s6, 0, 0
    s_cmp_gt_u32 s3, 21
    s_addc_u32 s6, s6, 0
    s_lshl_b32 s6, s6, 8
    s_cmp_ge_u32 s3, 10
    s_addc_u32 s7, 0, 0
    s_cmp_ge_u32 s3, 21
    s_addc_u32 s7, s7, 0
    s_lshl_b32 s7, s7, 8
    s_add_u32 s71, s74, s7
    s_add_u32 s74, s74, s6
    v_lshlrev_b32 v14, 2, v0""")
    mega.spin(a, "A_wq", f"buffer_load_dword v15, v14, {W}, s74 offen sc1", 1, lanes=48, sleep=OPT.get("asleep", 4))
    a("s_cmp_eq_u32 s71, s74\n s_cbranch_scc1 A_w")
    mega.spin(a, "A_wr", f"buffer_load_dword v15, v14, {W}, s71 offen sc1", 1, lanes=48, sleep=1)
    a.label("A_w")
    a(f"""s_waitcnt vmcnt(0)
    s_barrier
    s_setprio {3 if OPT.get("pr3", 1) else 1}""")
    stamp(a, 5 if OPT["stamps"] == 4 else 1)
    a(f"""buffer_load_dwordx4 v[{QB}:{QB+3}], v5, {W}, s14 offen sc1
    buffer_load_dword v{QB+4}, v4, {W}, s14 offen sc1""")
    for c in range(4):
        for k in range(3):
            a(dma(c, k))
    a("s_waitcnt vmcnt(12)")
    for q in (QB, QB + 1, QB + 2, QB + 3, QB + 4):
        a(f"""v_lshlrev_b32 v12, 16, v{q}
        v_and_b32 v13, s73, v{q}
        v_mul_f32 v12, s70, v12
        v_mul_f32 v13, s70, v13
        v_cvt_pk_bf16_f32 v{q}, v12, v13""")
    for q in range(1):
        x = QB + 8 * q + 4
        a(f"""v_cndmask_b32 v{x}, v{x}, 0, s[8:9]
        v_mov_b32 v{x+1}, 0
        v_mov_b32 v{x+2}, 0
        v_mov_b32 v{x+3}, v{x}""")
    a(f"s_waitcnt vmcnt({9 if OPT.get('b0', 1) else 6})\n s_barrier")
    stamp(a, 2)
    stampc(a, 5)

    def ad(lo, hi, c, off):
        sl = c & 3
        return (f"v{hi} offset:{off}" if sl == 3 else f"v{lo} offset:{sl * CH + off}")

    def rdK(j):
        return f"ds_read_b128 {vr(KF + 4*(j & 1), 4)}, {ad(AK, NK, j >> 3, (j & 7) * 512)}"

    def rdX(u):
        return f"ds_read_b128 {vr(KX + 4*(u & 1), 4)}, {ad(AX, NX, u >> 1, (u & 1) * 512)}"

    def rdV(j, u):
        return f"ds_read_b128 {vr(VF + 8*(j & 1) + 4*u, 4)}, {ad(AV2 if u else AV, NV2 if u else NV, j >> 3, (j & 7) * G.VT)}"

    def mA(q, j):
        return f"{MF} {vr(S(q, j), 16)}, {vr(KF + 4*(j & 1), 4)}, {vr(QB + 8*q, 4)}, 0"

    def mB(q, j):
        kx = KX + 4 * ((j >> 2) & 1) + 2 * ((j >> 1) & 1)
        return f"{MF8} {vr(S(q, j), 16)}, {vr(kx, 2)}, {vr(QB + 8*q + 4 + 2*(j & 1), 2)}, {vr(S(q, j), 16)}"

    def mP(q, j, u):
        o = vr(OA + 16 * q, 16)
        return f"{MF} {o}, {vr(VF + 8*(j & 1) + 4*u, 4)}, {vr(PP + 8*q + 4*u, 4)}, {o}"

    a(f"""{rdK(0)}
    {rdX(0)}
    {rdK(1)}
    {rdV(0, 0)}
    {rdV(0, 1)}
    s_waitcnt lgkmcnt(3)
    {mA(0, 0)}
    {mB(0, 0)}
    s_waitcnt lgkmcnt(0)
    s_nop 8""")
    a(".p2align 3")
    pat = "A k v0 e e e e P1 v1 x e e e e B d e e c c c c e e P0 e e e e w n c c c c"
    for jj in range(64):
        c8, j8 = divmod(jj, 8)
        last = jj == 63
        s, P = S(0, jj), PP
        ne = nc = 0
        for tok in pat.split():
            if tok == "e":
                a(f"v_exp_f32 v{s+ne}, v{s+ne}")
                ne += 1
            elif tok == "c":
                a(f"v_cvt_pk_bf16_f32 v{P+nc}, v{s+2*nc}, v{s+2*nc+1}")
                nc += 1
            elif tok == "A" and not last:
                a(mA(0, jj + 1))
            elif tok == "B" and not last:
                a(mB(0, jj + 1))
            elif tok == "P1" and jj:
                a(mP(0, jj - 1, 1))
            elif tok == "P0":
                a(mP(0, jj, 0))
            elif tok == "k" and jj + 2 < 64:
                a(rdK(jj + 2))
            elif tok == "v0" and not last:
                a(rdV(jj + 1, 0))
            elif tok == "v1" and not last:
                a(rdV(jj + 1, 1))
            elif tok == "x" and jj % 4 == 0 and jj < 60:
                a(rdX(jj // 4 + 1))
            elif tok == "d" and jj == OPT.get("wpf", 3):
                a("buffer_load_dword v118, v119, s[48:51], s79 offen")
            elif tok == "d" and c8 == 7 and j8 < 4 and OPT.get("wpre", 1):
                a(f"""s_cmp_eq_u32 s76, 0
                s_cbranch_scc1 A_nw{j8}
                s_add_u32 m0, s13, {13312*j8 + 6144}
                s_add_u32 s7, s77, {36*1152*j8}
                buffer_load_dwordx4 v124, s[{G.SRD2A}:{G.SRD2A+3}], s7 offen lds""")
                a.label(f"A_nw{j8}")
            elif tok == "d" and j8 < 3 and 1 <= c8 <= 4:
                a(dma(c8 + 3, j8))
            elif tok == "w" and not last:
                if j8 == 7 and c8 <= 5:
                    a(f"s_waitcnt vmcnt({3 if c8 <= 4 else 0}) lgkmcnt(0)")
                elif jj == 2 and OPT.get('b0', 1):
                    a("s_waitcnt vmcnt(6) lgkmcnt(0)")
                else:
                    a("s_waitcnt lgkmcnt(0)")
            elif tok == "n" and not last:
                PR = (3, 3, 3, 2, 2, 2, 1, 1) if OPT.get("pr3", 1) else (1,) * 8
                if (j8 == 7 and c8 <= 6) or (jj == 2 and OPT.get('b0', 1)):
                    a("s_barrier")
                    if PR[(j8 + 1) & 7] != PR[j8]:
                        a(f"s_setprio {PR[(j8 + 1) & 7]}\n s_nop 0")
                elif PR[(j8 + 1) & 7] != PR[j8]:
                    a(f"s_setprio {PR[(j8 + 1) & 7]}")
                else:
                    a.lines[-2] = a.lines[-2].replace("v_exp_f32", "v_exp_f32_e64")
    a(f"s_nop 1\n{mP(0, 63, 1)}")
    a.loops = getattr(a, "loops", [])
    stamp(a, 3)
    stampc(a, 6)
    a(f"""s_lshl_b32 s6, s4, 8
    s_lshl_b32 s7, s5, 5
    s_add_u32 s6, s6, s7
    v_add_u32 v4, s6, v1
    v_lshlrev_b32 v4, 4, v4
    v_lshl_add_u32 v5, v2, 15, v4
    s_mul_i32 s12, s3, {3*32768}
    s_add_u32 s12, s12, {G.O_OFF}
    s_add_u32 s13, s12, {2*32768}
    v_mov_b32 v9, 0
    v_mov_b32 v10, 0
    v_mov_b32 v11, 0
    s_mov_b32 s14, {G.f2u(2.0**-60)}
    s_mov_b32 s15, {G.f2u(2.0**60)}
    s_movk_i32 s46, 0x207""")
    a(f"""v_cndmask_b32 v6, v{OA+10}, v{OA+12}, s[8:9]
    v_add_f32 v7, |v{OA}|, |v{OA+1}|""")
    for i in range(2, 10):
        a(f"v_add_f32 v7, v7, |v{OA+i}|")
    a(f"""v_cmp_nle_f32 vcc, s14, v6
    v_cmp_lt_f32 s[68:69], s15, v6
    v_cmp_class_f32 s[70:71], v7, s46
    s_or_b64 vcc, vcc, s[68:69]
    s_or_b64 vcc, vcc, s[70:71]
    {"s_branch K2_slow" if OPT.get("slow") else "s_cbranch_vccnz K2_slow"}""")
    a.label("K2_fin")
    a("v_rcp_f32 v6, v6\n s_nop 0")
    for i in range(10):
        a(f"v_mul_f32 v{OA+i}, v6, v{OA+i}")
    for k in range(5):
        a(f"v_cvt_pk_bf16_f32 v{16+k if k < 4 else 8}, v{OA+2*k}, v{OA+2*k+1}")
    a(f"""buffer_store_dwordx4 v[16:19], v5, {W}, s12 offen sc0 sc1
    s_mov_b64 exec, 0xffffffff
    buffer_store_dwordx4 v[8:11], v4, {W}, s13 offen sc0 sc1
    s_mov_b64 exec, -1
    s_lshl_b32 s74, s4, 9
    s_add_u32 s74, s74, {G.OF_OFF}
    s_mul_i32 s14, s3, 43
    s_lshr_b32 s14, s14, 8
    s_mul_i32 s15, s14, 6
    s_sub_u32 s15, s3, s15
    s_lshl_b32 s6, s4, 2
    s_add_u32 s14, s14, s6""")
    stamp(a, 4)
    ACC, FR, XA, WA = 64, 28, 20, 24
    a("""s_cmp_lt_u32 s5, 4
    s_cbranch_scc1 K2_pc
    s_sub_u32 s6, s5, 4""")
    SP, RP = 13312, 6
    G.srd(a, G.SRD2A, G.P_WO, 576 * 1152)
    a(f"""s_nop 0
    v_lshlrev_b32 v1, 4, v0
    s_lshl_b32 s7, s6, 6""")
    for u in range(2):
        a(f"""v_add_u32 v12, s7, v0
        v_add_u32 v12, {256*u}, v12
        v_min_u32 v12, 431, v12
        v_mul_u32_u24 v13, 5462, v12
        v_lshrrev_b32 v13, 16, v13
        v_mul_u32_u24 v13, {1152 - 192}, v13
        v_lshl_add_u32 v{2+u}, v12, 4, v13""")
    a(f"""s_lshl_b32 s68, s14, 10
    s_lshl_b32 s7, s6, 15
    s_add_u32 s68, s68, s7
    s_add_u32 s68, s68, {G.O_OFF}
    s_mul_i32 s69, s15, 192
    s_lshl_b32 s76, s6, 10
    s_waitcnt vmcnt(0)
    {"s_memrealtime s[86:87]" if OPT["stamps"] == 4 else ""}
    s_barrier
    {"s_memrealtime s[88:89]" if OPT["stamps"] == 4 else ""}
    s_cmp_ge_u32 s3, 24
    s_cbranch_scc1 {"A_ls" if OPT["stamps"] == 4 else "K2_done"}""")
    assert OPT.get("wpre", 1) and not OPT.get("rot3", 0)
    a("""s_barrier
    s_cmp_eq_u32 s6, 2
    s_cbranch_scc1 A_l1
    s_cmp_eq_u32 s6, 3
    s_cbranch_scc1 A_l2""")
    if OPT["stamps"] == 4:
        a("s_memrealtime s[90:91]")
    for cls, (no, nw) in enumerate(((2, 2), (1, 2), (1, 1))):
        if cls:
            a.label(f"A_l{cls}")

        def issue_p(st):
            base = (st % RP) * SP
            for u in range(nw if st >= 4 else 0):
                a(f"""s_add_u32 m0, s76, {base + 6144 + 4096*u}
                s_add_u32 s72, s69, {36*1152*st}
                buffer_load_dwordx4 v{2+u}, s[{G.SRD2A}:{G.SRD2A+3}], s72 offen lds""")
            for u in range(no):
                a(f"""s_add_u32 m0, s76, {base + 4096*u}
                s_add_u32 s72, s68, {(6*st + 4*u)*32768}
                buffer_load_dwordx4 v1, {W}, s72 offen sc0 sc1 lds""")
        for st in range(4):
            issue_p(st)
        for st in range(16):
            n = (no * (3 - st) + (no + nw) * st) if st < 4 else (no + nw) * min(3, 15 - st)
            a(f"s_waitcnt vmcnt({n})\n s_barrier")
            if OPT["stamps"] == 4 and st in (0, 5, 15) and cls == 0:
                a(f"s_memrealtime s[{94 + 2*(0, 5, 15).index(st)}:{95 + 2*(0, 5, 15).index(st)}]")
            if st + 4 < 16:
                issue_p(st + 4)
        if cls < 2:
            a("s_branch A_ls" if OPT["stamps"] == 4 else "s_endpgm")
    if OPT["stamps"] == 4:
        a.label("A_ls")
        G.stamp_store(a, 0, 8)
    a("s_endpgm")
    a.label("K2_pc")
    G.srd(a, G.SRDO, G.P_OUT, 2048 * 4608)
    a(f"""v_lshlrev_b32 v{XA}, 4, v1
    v_lshl_add_u32 v{XA}, v2, 10, v{XA}
    v_bfe_u32 v12, v0, 2, 2
    v_and_b32 v13, 3, v0
    v_lshlrev_b32 v13, 3, v13
    v_and_b32 v14, 16, v0
    v_lshl_add_u32 v13, v14, 1, v13
    s_lshl_b32 s7, s5, 6
    s_add_u32 s7, s7, 6144
    v_add_u32 v13, s7, v13
    s_movk_i32 s7, 192""")
    for i, (r0, r1) in enumerate(((0, 8), (16, 18), (26, 34), (30, 38))):
        a(f"""v_mad_u32_u24 v14, v2, {r1 - r0}, v12
        v_add_u32 v14, {r0}, v14
        v_min_u32 v14, 35, v14
        v_mad_u32_u24 v{WA+i}, v14, s7, v13""")
    a(G.out_addr(a, 8192, 0))
    a(f"""s_mul_i32 s6, s14, {64*4608}
    s_mul_i32 s7, s15, 384
    s_add_u32 s6, s6, s7
    s_lshl_b32 s7, s5, 7
    s_add_u32 s12, s6, s7
    s_add_u32 s13, s12, {32*4608}
    s_waitcnt vmcnt(0)
    s_barrier
    s_cmp_lg_u32 s5, 3
    s_cbranch_scc1 K2_pw""")
    a(f"""s_lshl_b32 s6, s3, {OPT.get("osh", 4)}
    v_mov_b32 v14, s6
    v_mov_b32 v15, 1
    s_mov_b64 exec, 1
    buffer_store_dword v15, v14, {W}, s74 offen sc1
    s_mov_b64 exec, -1
    s_cmp_ge_u32 s3, 24
    s_cbranch_scc1 K2_done
    v_lshlrev_b32 v14, {OPT.get("osh", 4)}, v0""")
    mega.spin(a, "K2_pp", f"buffer_load_dword v15, v14, {W}, s74 offen sc1", 1, lanes=32, sleep=OPT.get("osleep", 1))
    a("s_barrier\n s_endpgm")
    a.label("K2_pw")
    a("s_cmp_ge_u32 s3, 24\n s_cbranch_scc1 K2_end\n s_barrier")
    stamp(a, 7)

    def reads_p(ks, b):
        f = FR + 12 * b
        return [f"ds_read_b64_tr_b16 {vr(f, 2)}, v{WA+ks}", f"ds_read_b64_tr_b16 {vr(f+2, 2)}, " + (f"v{WA+ks} offset:768" if ks < 2 else f"v{WA+3}"),
                f"ds_read_b128 {vr(f+4, 4)}, v{XA} offset:{2048*ks}", f"ds_read_b128 {vr(f+8, 4)}, v{XA} offset:{2048*ks+512}"]

    def mfmas_t(n, b, init=True):
        f = FR + 12 * b
        return [f"{MF} {vr(ACC+16*tt, 16)}, {vr(f, 4)}, {vr(f+4+4*tt, 4)}, {vr(ACC+16*tt, 16) if n or not init else 0}" for tt in range(2)]
    G.consumer2(a, 3, reads_p, mfmas_t, lambda ks: [WA + ks] + ([XA, WA + 3] if ks == 2 else []), depth=2, bar_ks=0, per_gap=3, nst=16, stage=SP, ring=RP)
    a("s_nop 10")
    G.out_tiles(a, [(ACC + 16 * tt, 12 + tt, 0) for tt in range(2)], 'owp')
    a.label("K2_end")
    if OPT["stamps"]:
        a("s_memrealtime s[86:87]")
    G.stamp_store(a, 0, 8)
    a.label("K2_done")
    a("s_endpgm")
    a.label("K2_slow")
    for ps in range(2):
        a("s_mov_b32 s6, 0")
        if ps == 0:
            a("v_mov_b32 v7, 0xff800000")
        else:
            for i in range(16):
                a(f"v_mov_b32 v{OA+i}, 0")
        a.label(f"K2_sl{ps}")
        st = len(a.lines)
        a(f"""s_lshr_b32 s7, s6, 2
        s_mul_i32 s7, s7, {CH}
        s_add_u32 s7, s7, s75
        s_and_b32 s68, s6, 3
        s_mul_i32 s70, s68, {2*G.VT}
        s_add_u32 s70, s70, s7
        s_lshr_b32 s69, s68, 1
        s_lshl_b32 s69, s69, 9
        s_add_u32 s69, s69, s7
        s_bitcmp1_b32 s6, 0
        s_cselect_b32 s71, 8, 0
        s_add_u32 s69, s69, s71
        s_lshl_b32 s68, s68, 10
        s_add_u32 s68, s68, s7
        buffer_load_dwordx4 {vr(KF, 4)}, v{AK}, {W}, s68 offen sc1
        buffer_load_dwordx4 {vr(KF + 4, 4)}, v{AK}, {W}, s68 offen offset:512 sc1
        buffer_load_dwordx2 {vr(KX, 2)}, v{AX}, {W}, s69 offen sc1""")
        if ps:
            for i in range(4):
                a(f"buffer_load_dwordx4 {vr(VF + 4*i, 4)}, v{AV2 if i & 1 else AV}, {W}, s70 offen offset:{(i >> 1)*G.VT} sc1")
        a(f"s_waitcnt vmcnt(0)\n{mA(0, 0)}\n{mA(0, 1)}\n{mB(0, 0)}\n{mB(0, 1)}\n s_nop 15")
        for j in range(2):
            s = S(0, j)
            if ps == 0:
                for i in range(0, 16, 2):
                    a(f"v_max3_f32 v7, v7, v{s+i}, v{s+i+1}")
            else:
                for i in range(16):
                    a(f"v_sub_f32 v{s+i}, v{s+i}, v7")
                for i in range(16):
                    a(f"v_exp_f32 v{s+i}, v{s+i}")
                a("s_nop 0")
                for k in range(8):
                    a(f"v_cvt_pk_bf16_f32 v{PP+k}, v{s+2*k}, v{s+2*k+1}")
                a(f"s_nop 1\n{mP(0, j, 0)}\n{mP(0, j, 1)}")
        a(f"""s_add_u32 s6, s6, 1
        s_cmp_lt_u32 s6, 32
        s_cbranch_scc1 K2_sl{ps}""")
        a.loops.append(a.lines[st:])
        if ps == 0:
            a("""v_mov_b32 v8, v7
            s_nop 1
            v_permlane32_swap_b32 v7, v8
            s_nop 1
            v_max_f32 v7, v7, v8""")
    a(f"""s_nop 15
    v_cndmask_b32 v6, v{OA+10}, v{OA+12}, s[8:9]
    s_branch K2_fin""")


def cstep(a, nr, ni, lr, li, er, ei, xr, xi):
    a(f"""v_fma_f32 v{nr}, v{lr}, v{er}, v{xr}
    v_fma_f32 v{ni}, v{lr}, v{ei}, v{xi}
    v_fma_f32 v{nr}, -v{li}, v{ei}, v{nr}
    v_fma_f32 v{ni}, v{li}, v{er}, v{ni}""")


def ssm(a):
    OPT, PLB = G.OPT, G.PLB
    stamp = G.stamp
    W = f"s[{G.SRDW}:{G.SRDW+3}]"
    ACC, FR, XA, WA = 64, 32, 24, 28
    a.label("K2_ssm")
    WB, WS_ = 32768, 12288
    a(f"""s_sub_u32 s7, s47, 20
    s_and_b32 s4, s6, 1
    s_mul_i32 s4, s4, 3
    s_lshr_b32 s3, s7, 2
    s_add_u32 s4, s4, s3
    s_and_b32 s7, s7, 3
    s_lshr_b32 s3, s6, 1
    s_lshl_b32 s3, s3, 2
    s_add_u32 s3, s3, s7
    s_setprio {OPT.get("prio", 3)}
    s_nop 0""")
    if not OPT.get("pfe", 1):
        pf_setup(a, 47)
        pf_item(a, "s", OPT.get("pfs", 0), 7)
    G.srd(a, G.SRD1, G.P_BX, 2048 * 1152)
    G.srd(a, G.SRD2A, G.P_BRE, 576 * 1152)
    G.srd(a, G.SRD2B, G.P_BIM, 576 * 1152)
    a("s_mov_b32 s6, s5")
    G.rows_voff(a, 6, 1152, 8)
    a(f"""s_mul_i32 s68, s3, {128*1152}
    s_mul_i32 s69, s4, {96*1152}
    s_lshl_b32 s76, s5, 10
    s_and_b32 s77, s5, 3
    s_lshl_b32 s77, s77, 10
    s_lshr_b32 s71, s5, 2
    s_lshl_b32 s70, s71, 5
    s_sub_u32 s70, 64, s70
    s_mul_i32 s70, s70, 1152
    s_add_u32 s70, s70, s69
    s_mul_i32 s6, s4, 3
    s_lshr_b32 s6, s6, 1
    s_and_b32 s7, s3, 1
    s_lshl_b32 s7, s7, 2
    s_add_u32 s6, s6, s7
    s_sub_u32 s7, s6, 9
    s_cmp_ge_u32 s6, 9
    s_cselect_b32 s6, s7, s6
    s_mul_i32 s78, s6, {128 if OPT.get("rots", 0) else 0}""")
    def issue(h, part):
        if h >= 18:
            return []
        xs, d, base = h >> 1, G.SRD2B if h & 1 else G.SRD2A, WB + (h & 3) * WS_
        r = [f"""s_add_u32 m0, s76, {(xs & 1) * 16384 + 8192*j}
            s_add_u32 s7, s68, {128*xs + 64*1152*j}
            buffer_load_dwordx4 v6, s[{G.SRD1}:{G.SRD1+3}], s7 offen lds""" for j in range(2)] if h % 2 == 0 else []
        r.append(f"""s_add_u32 m0, s76, {base}
            s_add_u32 s7, s69, {128*xs}
            buffer_load_dwordx4 v6, s[{d}:{d+3}], s7 offen lds""")
        if part == h & 1:
            r.append(f"""s_add_u32 m0, s77, {base + 8192}
            s_add_u32 s7, s70, {128*xs}
            buffer_load_dwordx4 v6, s[{d}:{d+3}], s7 offen lds""")
        return r
    G.srd(a, G.SRDW, G.P_WS, G.WS_END)
    G.lane_parts(a)
    R0, M0, R1, M1, XF, XA, WA = 64, 80, 96, 112, 32, 60, 28
    a(f"""s_and_b32 s14, s5, 3
    s_mul_i32 s46, s4, 96
    s_lshl_b32 s6, s71, 6
    s_add_u32 s46, s46, s6
    v_add_u32 v3, s46, v1
    v_lshlrev_b32 v3, 1, v3
    s_and_b32 s6, s14, 1
    s_lshl_b32 s6, s6, 6
    s_sub_u32 s6, s6, 128
    s_cmp_eq_u32 s71, 0
    s_cselect_b32 s6, 64, s6
    v_add_u32 v4, s6, v3""")
    for sl in range(2):
        a(f"""global_load_ushort v{32+16*sl}, v{3+sl}, s[{G.P_LRE}:{G.P_LRE+1}]
        global_load_ushort v{33+16*sl}, v{3+sl}, s[{G.P_LIM}:{G.P_LIM+1}]
        global_load_ushort v{34+16*sl}, v{3+sl}, s[{G.P_LDT}:{G.P_LDT+1}]""")
    a(f"""v_bfe_u32 v5, v1, 1, 1
    v_lshrrev_b32 v4, 3, v1
    v_lshl_add_u32 v5, v4, 1, v5
    v_and_b32 v4, 1, v1
    v_lshl_add_u32 v5, v4, 3, v5
    v_and_b32 v4, 4, v1
    v_lshl_add_u32 v5, v4, 2, v5
    s_lshl_b32 s7, s14, 12""")
    G.row_addr(a, XA, 5, "s7", 4)
    a(f"s_mul_i32 s7, s71, {WS_}\n s_add_u32 s7, s7, {WB}")
    G.row_addr(a, WA, 1, "s7", 4)
    a("""s_waitcnt vmcnt(6)
    s_barrier
    s_cmp_lg_u32 s71, 0
    s_cbranch_scc1 S_i1""")
    for part in range(2):
        if part:
            a.label("S_i1")
        for x in issue(0, part) + issue(1, part):
            a(x)
        if not part:
            a("s_branch S_i2")
    a.label("S_i2")
    a(f"s_mov_b32 s12, {G.f2u(G.LOG2E)}\n s_waitcnt vmcnt(5)")
    for sl in range(2):
        p, P = 32 + 16 * sl, 8 + 10 * sl
        a(f"""v_lshlrev_b32 v{p}, 16, v{p}
        v_lshlrev_b32 v{p+1}, 16, v{p+1}
        v_lshlrev_b32 v{p+2}, 16, v{p+2}
        v_mul_f32 v{p+2}, s12, v{p+2}
        v_exp_f32 v{p+2}, v{p+2}
        s_nop 0
        v_cvt_pk_bf16_f32 v{p+2}, v{p+2}, v{p+2}
        v_lshlrev_b32 v{p+2}, 16, v{p+2}
        v_mul_f32 v{p+3}, v{p+2}, v{p}
        v_mul_f32 v{p+2}, v{p+2}, v{p+1}
        v_mul_f32 v{p+3}, s12, v{p+3}
        v_mul_f32 v{p+2}, 0.15915494309189532, v{p+2}
        v_exp_f32 v{p+3}, v{p+3}
        v_fract_f32 v{p+2}, v{p+2}
        v_cos_f32 v{P}, v{p+2}
        v_sin_f32 v{P+1}, v{p+2}
        v_mul_f32 v{p+4}, v{p}, v{p}
        v_mul_f32 v{P}, v{P}, v{p+3}
        v_mul_f32 v{P+1}, v{P+1}, v{p+3}
        v_fma_f32 v{p+4}, v{p+1}, v{p+1}, v{p+4}
        v_rcp_f32 v{p+4}, v{p+4}
        v_add_f32 v{p+5}, -1.0, v{P}
        v_mul_f32 v{P+2}, v{p+5}, v{p}
        v_mul_f32 v{P+3}, v{P+1}, v{p}
        v_add_f32 v{p+4}, v{p+4}, v{p+4}
        v_fma_f32 v{P+2}, v{P+1}, v{p+1}, v{P+2}
        v_fma_f32 v{P+3}, -v{p+5}, v{p+1}, v{P+3}
        v_mul_f32 v{P+2}, v{P+2}, v{p+4}
        v_mul_f32 v{P+3}, v{P+3}, v{p+4}""")
        G.cmul(a, p, p + 1, P, P + 1, P, P + 1)
        G.cmul(a, p + 2, p + 3, p, p + 1, p, p + 1)
        G.cmul(a, P + 4, P + 5, p + 2, p + 3, p + 2, p + 3)
        G.cmul(a, P + 6, P + 7, P + 4, P + 5, P + 4, P + 5)
        G.cmul(a, P + 8, P + 9, P + 6, P + 7, P + 6, P + 7)
    stamp(a, 1)
    a("s_cmp_lg_u32 s71, 0\n s_cbranch_scc1 S_g1")
    XB = 49152
    for part in range(2):
        if part:
            a.label("S_g1")
        tiles = (R0, R1, M1) if part == 0 else (R1, M1, M0)
        FB = (48, M0 if part == 0 else R0)

        def bar(y):
            young = len(issue(y + 1, part))
            a(f"s_waitcnt vmcnt({young})\n s_barrier")
            if OPT["stamps"] == 3 and y in (1, 3, 5, 8, 11, 14, 17):
                k_ = (1, 3, 5, 8, 11, 14, 17).index(y)
                a(f"s_memrealtime s[{86+2*k_}:{87+2*k_}]")
            return issue(y + 2, part)

        def rdB(ks):
            return [f"ds_read_b128 {vr(FB[ks & 1] + 4*ct, 4)}, v{WA+ks} offset:{4096*ct}" for ct in range(3)]
        if part:
            for x in bar(0):
                a(x)
        for st in range(9):
            h = 2 * st + part
            q = bar(h)
            for ks in range(4):
                a(f"ds_read_b128 {vr(XF + 4*ks, 4)}, v{XA+ks}")
            for x in rdB(0):
                a(x)
            for ks in range(4):
                rd = rdB(ks + 1) if ks < 3 else []
                if st < 8:
                    rd += [f"v_add_u32 v{XA+ks}, {(16384 if st % 2 == 0 else -16384) & 0xffffffff}, v{XA+ks}",
                           f"v_add_u32 v{WA+ks}, {(2*WS_ if st % 2 == 0 else -2*WS_) & 0xffffffff}, v{WA+ks}"]
                if ks == 2 and h + 1 < 18:
                    assert not q
                    q = bar(h + 1)
                for ct in range(3):
                    a(f"s_waitcnt lgkmcnt({2 if ks < 3 else 2 - ct})")
                    t = vr(tiles[ct], 16)
                    a(f"{MF} {t}, {vr(XF + 4*ks, 4)}, {vr(FB[ks & 1] + 4*ct, 4)}, {t if st or ks else 0}")
                    if rd:
                        a(rd.pop(0))
                    if q:
                        a(q.pop(0))
                for x in rd:
                    a(x)
        stamp(a, 2)
        a(f"""s_setprio 3
        s_mul_i32 s6, s14, 12288
        v_lshl_add_u32 v7, v0, 4, s6
        s_nop 7
        s_barrier""")
        send = ((M1, 0),) if part == 0 else ((R1, 1), (M1, 2))
        recv = ((M0, 1), (M1, 2)) if part == 0 else ((R0, 0),)
        for reg, k in send:
            for i in range(4):
                a(f"ds_write_b128 v7, {vr(reg + 4*i, 4)} offset:{4096*k + 1024*i}")
        a("s_waitcnt lgkmcnt(0)\n s_barrier")
        for reg, k in recv:
            for i in range(4):
                a(f"ds_read_b128 {vr(reg + 4*i, 4)}, v7 offset:{4096*k + 1024*i}")
        if not part:
            a("s_branch S_g2")
    a.label("S_g2")

    def pk(d, l, hi, e, x, neg=False):
        return (f"v_pk_fma_f32 {vr(d, 2)}, {vr(l, 2)}, {vr(e, 2)}, {vr(x, 2)} op_sel:[{hi},0,0] op_sel_hi:[{hi},1,1]"
                + (" neg_lo:[1,0,0] neg_hi:[1,0,0]" if neg else ""))

    def pstep(L, nr, ni, er, ei, xr, xi):
        a("\n".join([pk(nr, L, 0, er, xr), pk(ni, L, 0, ei, xi), pk(nr, L, 1, ei, nr, True), pk(ni, L, 1, er, ni)]))
    G.srd(a, mega.SRDD, G.P_DBG, 256)
    a(f"""v_lshlrev_b32 v3, 3, v1
    s_lshl_b32 s6, s71, 11
    s_add_u32 s6, s6, {XB}
    v_add_u32 v4, s6, v3
    s_lshl_b32 s6, s14, 8
    v_add_u32 v5, s6, v4
    v_mov_b32 v62, 0
    buffer_load_dword v63, v62, s[{mega.SRDD}:{mega.SRDD+3}], 0 offen offset:132 sc1
    s_waitcnt lgkmcnt(0)""")
    for sl in range(2):
        P, XR, XI, K = 8 + 10 * sl, (R0, R1)[sl], (M0, M1)[sl], 32 + 8 * sl
        if sl:
            a("s_cmp_lg_u32 s71, 0\n s_cbranch_scc1 S_p1")
        e = (XR, XI)
        for s_ in range(1, 8):
            n_ = (K, K + 2) if s_ & 1 else (48, 50)
            pstep(P, n_[0], n_[1], e[0], e[1], XR + 2 * s_, XI + 2 * s_)
            e = n_
        cstep(a, 48, 49, P + 4, P + 5, K, K + 2, K + 1, K + 3)
        a(f"""v_mov_b32 v{K+4}, v48
        v_mov_b32 v{K+5}, v49
        s_nop 1
        v_permlane32_swap_b32 v{K+4}, v48
        v_permlane32_swap_b32 v{K+5}, v49
        s_nop 1""")
        cstep(a, 50, 51, P + 6, P + 7, K + 4, K + 5, 48, 49)
        a(f"ds_write_b64 v5, v[50:51] offset:{1024*sl}")
    a.label("S_p1")
    a(f"""s_waitcnt vmcnt(0) lgkmcnt(0)
    v_readfirstlane_b32 s12, v63
    s_barrier
    s_lshl_b32 s6, 1, s5
    s_and_b32 s6, s6, 0x70
    s_cbranch_scc0 S_wt
    s_cmp_lg_u32 s5, 6
    s_cselect_b64 vcc, -1, 0
    s_lshl_b32 s15, s14, 10
    s_add_u32 s6, s15, {XB}
    v_add_u32 v7, s6, v3
    ds_read_b64 v[48:49], v7
    ds_read_b64 v[50:51], v7 offset:256
    ds_read_b64 v[52:53], v7 offset:512
    ds_read_b64 v[54:55], v7 offset:768
    v_cndmask_b32 v28, v16, v26, vcc
    v_cndmask_b32 v29, v17, v27, vcc
    s_lshr_b32 s15, s15, 2
    s_mul_i32 s6, s4, 768
    s_add_u32 s78, s6, s15
    s_add_u32 s78, s78, {G.ECH_OFF}
    s_mul_i32 s13, s3, 4608
    s_add_u32 s13, s13, s78""")
    G.cmul(a, 56, 57, 28, 29, 28, 29)
    G.cmul(a, 30, 31, 56, 57, 56, 57)
    a("""s_cmp_ge_u32 s12, 16
    s_cbranch_scc1 S_ci
    v_mov_b32 v60, v14
    v_mov_b32 v61, v15""")
    mega.wait_init(a, "S_wi")
    a("v_mov_b32 v14, v60\n v_mov_b32 v15, v61")
    a.label("S_ci")
    a("s_waitcnt lgkmcnt(0)")
    for k in range(1, 4):
        cstep(a, 48 + 2 * k, 49 + 2 * k, 28, 29, 46 + 2 * k, 47 + 2 * k, 48 + 2 * k, 49 + 2 * k)
    a(f"""v_min_u32 v54, -2, v54
    v_min_u32 v55, -2, v55
    s_mov_b64 exec, 0xffffffff
    buffer_store_dwordx2 v[54:55], v3, {W}, s13 offen sc0 sc1
    s_mov_b64 exec, -1
    v_mov_b32 v96, 0
    v_mov_b32 v97, 0
    v_mov_b32 v46, 0
    v_mov_b32 v47, 0
    s_mov_b32 s12, 0
    s_mov_b32 s79, s3""")
    EB, NB = 98, 15
    a.label("K2_poll")
    a("s_mov_b32 s15, s78")
    for c in range(NB):
        a(f"""s_cmp_le_u32 s79, {c}
        s_cbranch_scc1 K2_ld
        buffer_load_dwordx2 v[{EB+2*c}:{EB+2*c+1}], v3, {W}, s15 offen sc0 sc1
        s_add_u32 s15, s15, 4608""")
    a.label("K2_ld")
    a("v_mov_b32 v62, 0\n s_waitcnt vmcnt(0)")
    for c in range(NB):
        a(f"""s_cmp_le_u32 s79, {c}
        s_cbranch_scc1 K2_ck
        v_max3_u32 v62, v62, v{EB+2*c}, v{EB+2*c+1}""")
    a.label("K2_ck")
    a(f"""v_cmp_eq_u32 vcc, -1, v62
    s_add_u32 s12, s12, 1
    s_cbranch_vccz K2_got
    s_sleep {OPT.get("psleep", 2)}
    s_cmp_lt_u32 s12, 0x40000
    s_cbranch_scc1 K2_poll""")
    a.label("K2_got")
    for c in range(NB):
        a(f"s_cmp_le_u32 s79, {c}\n s_cbranch_scc1 K2_h{c}")
        cstep(a, EB + 2 * c, EB + 2 * c + 1, 30, 31, EB + 2 * c - 2, EB + 2 * c - 1, EB + 2 * c, EB + 2 * c + 1)
    a(f"""v_mov_b32 v46, v{EB+2*NB-2}
    v_mov_b32 v47, v{EB+2*NB-1}
    s_branch K2_h0""")
    for c in range(NB - 1, 0, -1):
        a.label(f"K2_h{c}")
        a(f"v_mov_b32 v46, v{EB+2*c-2}\n v_mov_b32 v47, v{EB+2*c-1}")
        if c > 1:
            a("s_branch K2_h0")
    a.label("K2_h0")
    a(f"ds_write_b64 v7, v[46:47] offset:768\n s_waitcnt lgkmcnt(0)")
    a.label("S_wt")
    a(f"""s_barrier
    v_mul_u32_u24 v6, {2*PLB}, v2
    v_lshl_add_u32 v6, v1, 4, v6
    s_lshl_b32 s75, s3, 2
    s_add_u32 s75, s75, s14
    s_mul_i32 s75, s75, {4*PLB}
    s_lshl_b32 s6, s46, 4
    s_add_u32 s75, s75, s6
    s_add_u32 s75, s75, {G.XT_OFF}""")
    stamp(a, 3)
    for sl in range(2):
        P, XR, XI, K = 8 + 10 * sl, (R0, R1)[sl], (M0, M1)[sl], 32 + 8 * sl
        if sl:
            a("s_cmp_lg_u32 s71, 0\n s_cbranch_scc1 S_p2")
        a(f"""ds_read_b64 v[48:49], v4 offset:{1024*sl + 768}
        ds_read_b64 v[50:51], v4 offset:{1024*sl}
        ds_read_b64 v[52:53], v4 offset:{1024*sl + 256}
        ds_read_b64 v[54:55], v4 offset:{1024*sl + 512}
        s_waitcnt lgkmcnt(0)""")
        for k in range(3):
            a(f"s_cmp_le_u32 s14, {k}\n s_cbranch_scc1 S_c{sl}")
            cstep(a, 50 + 2 * k, 51 + 2 * k, P + 8, P + 9, 48, 49, 50 + 2 * k, 51 + 2 * k)
            a(f"v_mov_b32 v48, v{50+2*k}\n v_mov_b32 v49, v{51+2*k}")
        a.label(f"S_c{sl}")
        cstep(a, 50, 51, P + 6, P + 7, 48, 49, K + 4, K + 5)
        a("v_cndmask_b32 v28, v48, v50, s[8:9]\n v_cndmask_b32 v30, v49, v51, s[8:9]")
        cstep(a, 29, 31, P + 4, P + 5, 28, 30, K, K + 2)
        g = (28, 30)
        HO = 48 if sl == 0 else R0
        for s_ in range(8):
            nr, ni = XR + 2 * s_, XI + 2 * s_
            pstep(P, nr, ni, g[0], g[1], nr, ni)
            o = K if s_ % 2 == 0 else K + 4
            a(f"""v_pk_mul_f32 {vr(o, 2)}, {vr(P+2, 2)}, {vr(nr, 2)} op_sel:[0,0] op_sel_hi:[0,1]
            v_pk_mul_f32 {vr(o+2, 2)}, {vr(P+2, 2)}, {vr(ni, 2)} op_sel:[0,0] op_sel_hi:[0,1] neg_lo:[1,0] neg_hi:[1,0]
            {pk(o, P+2, 1, ni, o, True)}
            {pk(o+2, P+2, 1, nr, o+2, True)}""")
            if s_ & 1:
                k = s_ >> 1
                for j in range(4):
                    a(f"v_cvt_pk_bf16_f32 v{HO+4*j+k}, v{K+j}, v{K+4+j}")
            g = (nr, ni)
        for j in range(4):
            a(f"""s_add_u32 s6, s75, {(j & 1)*PLB + (j >> 1)*576*16 + 512*sl}
            buffer_store_dwordx4 {vr(HO+4*j, 4)}, v6, {W}, s6 offen sc0 sc1""")
    a.label("S_p2")
    stamp(a, 4)
    a(f"""s_lshl_b32 s74, s3, 7
    s_lshl_b32 s6, s4, 2
    s_add_u32 s74, s74, s6
    s_add_u32 s74, s74, {G.FLG_OFF}
    v_mov_b32 v14, 0
    v_mov_b32 v15, 1
    s_waitcnt vmcnt(0)
    s_barrier
    s_cmp_lg_u32 s5, 0
    s_cbranch_scc1 G2_end
    s_mov_b64 exec, 1
    buffer_store_dword v15, v14, {W}, s74 offen sc1""")
    if OPT["stamps"] == 4:
        a("s_memrealtime s[94:95]")
    a("s_branch G2_end")
    a.label("G2x")
    a("s_mov_b64 exec, -1")
    a.label("G2")
    XA, WA, FR = 20, 24, 28
    S3 = 24576
    G.srd(a, G.SRDW, G.P_WS, G.WS_END)
    a(f"""s_cmp_ge_u32 s47, 18
    s_cbranch_scc1 G2_end
    s_setprio 3
    s_and_b32 s6, s2, 7
    s_lshl_b32 s3, s6, 1
    s_and_b32 s7, s47, 1
    s_add_u32 s3, s3, s7
    s_lshr_b32 s4, s47, 1
    s_cmp_lt_u32 s5, 4
    s_cbranch_scc1 G2_c""")
    G.srd(a, G.SRD2A, G.P_CRE, 576 * 1152)
    G.srd(a, G.SRD2B, G.P_CIM, 576 * 1152)
    a("s_sub_u32 s6, s5, 4")
    G.rows_voff(a, 1, 1152, 8)
    a(f"""s_mul_i32 s69, s4, {64*1152}
    s_lshl_b32 s76, s6, 10
    s_lshl_b32 s77, s6, 11
    v_lshrrev_b32 v8, 3, v0
    v_mul_u32_u24 v8, {PLB}, v8
    v_lshrrev_b32 v9, 2, v0
    v_and_b32 v9, 4, v9
    v_and_b32 v10, 7, v0
    v_xor_b32 v9, v9, v10
    s_lshl_b32 s7, s6, 3
    v_add_u32 v9, s7, v9
    v_lshl_add_u32 v4, v9, 4, v8
    s_mul_i32 s68, s3, {16*PLB}
    s_add_u32 s68, s68, {G.XT_OFF}
    s_cmp_lg_u32 s5, 4
    s_cbranch_scc1 G2_l""")
    mega.wait_init(a, "G2_wi")
    a(f"""s_lshl_b32 s74, s3, 7
    s_add_u32 s74, s74, {G.FLG_OFF}
    v_lshlrev_b32 v14, 2, v0""")
    mega.spin(a, "G2_p", f"buffer_load_dword v15, v14, {W}, s74 offen sc1", 1, lanes=6, sleep=OPT.get("gsleep", 8))
    a.label("G2_l")
    a("s_waitcnt vmcnt(0)\n s_barrier")

    def issue_r(st):
        base = (st % 3) * S3
        kb, im = st >> 1, st & 1
        d = G.SRD2B if im else G.SRD2A
        for j in range(2):
            a(f"""s_add_u32 m0, s76, {base + 16384 + 4096*j}
            s_add_u32 s7, s69, {32*1152*j + 128*kb}
            buffer_load_dwordx4 v1, s[{d}:{d+3}], s7 offen lds""")
        for j in range(2):
            for hf in range(2):
                a(f"""s_add_u32 m0, s77, {base + 8192*j + 1024*hf}
                s_add_u32 s7, s68, {(576*im + 64*kb + 32*j) * 16 + 8*PLB*hf}
                buffer_load_dwordx4 v4, {W}, s7 offen sc0 sc1 lds""")
    tail_loader(a, 18, issue_r, per=6, end=False)
    G.stamp_store(a, 0, 8)
    a("s_endpgm")
    a.label("G2_c")
    G.lane_parts(a)
    a(f"""s_and_b32 s14, s5, 1
    s_lshr_b32 s15, s5, 1
    s_lshl_b32 s79, s3, 1
    s_add_u32 s79, s79, s14
    s_lshl_b32 s46, s4, 1
    s_add_u32 s46, s46, s15
    s_lshl_b32 s46, s46, 5
    v_lshlrev_b32 v3, 3, v2
    s_lshl_b32 s6, s46, 1
    v_add_u32 v3, s6, v3
    s_lshl_b32 s6, s79, 6
    v_add_u32 v4, s6, v1
    v_mul_u32_u24 v4, 1152, v4
    v_add_u32 v4, v4, v3
    v_add_u32 v5, {32*1152}, v4""")
    for i in range(4):
        a(f"global_load_dwordx2 v[{96+2*i}:{97+2*i}], v3, s[{G.P_DSK}:{G.P_DSK+1}] offset:{16*i}")
    for tt in range(2):
        for i in range(4):
            a(f"global_load_dwordx2 v[{104+8*tt+2*i}:{105+8*tt+2*i}], v{4+tt}, s[{G.P_BX}:{G.P_BX+1}] offset:{16*i}")
    G.srd(a, G.SRDO, G.P_OUT, 2048 * 4608)
    a(f"""v_bfe_u32 v6, v0, 4, 1
    v_mul_u32_u24 v6, 320, v6
    v_lshl_add_u32 v6, v2, 11, v6
    s_lshl_b32 s7, s14, 10
    v_add_u32 v6, s7, v6
    v_and_b32 v7, 2, v0
    v_lshl_add_u32 v6, v7, 6, v6
    v_and_b32 v7, 12, v0
    v_lshl_add_u32 v6, v7, 2, v6
    v_and_b32 v7, 1, v0
    v_lshl_add_u32 v{WA}, v7, 3, v6
    v_xor_b32 v{WA+1}, 64, v{WA}
    s_lshl_b32 s7, s15, 12
    s_add_u32 s7, s7, 16384""")
    G.row_addr(a, XA, 1, "s7", 8)
    a(G.out_addr(a, 8192, 0).replace("s_add_u32 s7, s7, 0", f"s_cmp_eq_u32 s5, 3\n s_cselect_b32 s7, {3*S3}, s7"))
    a(f"""s_mul_i32 s6, s79, {64*4608}
    s_lshl_b32 s7, s46, 2
    s_add_u32 s6, s6, s7
    s_add_u32 s12, s6, 2304
    s_add_u32 s13, s12, {32*4608}
    s_mov_b32 s14, 0xffff0000
    s_waitcnt vmcnt(0)""")
    for k in range(8):
        a(f"v_lshlrev_b32 v{32+2*k}, 16, v{96+k}\n v_and_b32 v{33+2*k}, s14, v{96+k}")
    for tt in range(2):
        for k in range(8):
            A = ACC + 16 * tt + 2 * k
            a(f"""v_lshlrev_b32 v{A}, 16, v{104+8*tt+k}
            v_and_b32 v{A+1}, s14, v{104+8*tt+k}
            v_mul_f32 v{A}, v{A}, v{32+2*k}
            v_mul_f32 v{A+1}, v{A+1}, v{33+2*k}""")
    a(f"s_setprio {OPT.get('prio3', 0)}\n s_barrier")
    stamp(a, 5)

    def reads_r(ks, b):
        f = FR + 12 * b
        r = [f"ds_read_b128 {vr(f, 4)}, v{XA+ks}"]
        for tt in range(2):
            for e in range(2):
                r.append(f"ds_read_b64_tr_b16 {vr(f+4+4*tt+2*e, 2)}, v{WA+e} offset:{4096*ks+512*tt}")
        return r

    def mfmas_r(n, b):
        f = FR + 12 * b
        return [f"{MF} {vr(ACC+16*tt, 16)}, {vr(f, 4)}, {vr(f+4+4*tt, 4)}, {vr(ACC+16*tt, 16)}" for tt in range(2)]
    G.consumer2(a, 4, reads_r, mfmas_r, lambda ks: [XA + ks] + ([WA, WA + 1] if ks == 3 else []), depth=2, bar_ks=2, per_gap=3, nst=18, stage=S3, ring=3,
                pre_bar=lambda st: "s_waitcnt lgkmcnt(0)" + (f"\n s_setprio {OPT.get('g2p', 2)}" if st == OPT.get("g2hi", 12) else ""))
    stamp(a, 6)
    a("s_setprio 3\n s_nop 9")
    G.out_tiles(a, [(ACC + 16 * tt, 12 + tt, 0) for tt in range(2)])
    a.label("G2_end")
    stamp(a, 7)
    G.stamp_store(a, 0, 8)
    a.label("K2_last")
    a("s_endpgm")
```
